```python
import torch

def _softmax(x, axis=-1):
    return torch.softmax(x, dim=axis)
def _gelu(x):
    return torch.nn.functional.gelu(x, approximate="tanh")
def _silu(x):
    return torch.nn.functional.silu(x)
def _sigmoid(x):
    return torch.sigmoid(x)
def _layernorm(x, axis=-1, eps=1e-5):
    m = x.mean(dim=axis, keepdim=True)
    v = x.var(dim=axis, keepdim=True, unbiased=False)
    return (x - m) / torch.sqrt(v + eps)
def _scatter_add(tgt, idx, src, axis=0):
    return tgt.clone().index_add_(axis, idx, src)
def _segment_sum(src, seg, n):
    out = torch.zeros((n,) + src.shape[1:], dtype=src.dtype)
    return out.index_add_(0, seg, src)
def _pad(x, pw):
    flat = tuple(v for pair in reversed(pw) for v in pair)
    return torch.nn.functional.pad(x, flat)

kernel_name = 'parallel_sum__grouped_kv_mqa__mixer_token_mlp__prompt'

def setup_inputs():

    _w = (lambda a: (lambda t: t.to(torch.bfloat16) if t.is_floating_point() else t)(torch.as_tensor(a)))
    def _A_setup():
        B, S, D, H = 1, 2048, 448, 16
        Dh = D // H
        return {
            "x": _w((lambda *s: torch.randn(*s, dtype=torch.bfloat16) * 0.05)(B, S, D)),
            "wq": _w((lambda *s: torch.randn(*s, dtype=torch.bfloat16) * 0.05)(D, H * Dh)),
            "wk": _w((lambda *s: torch.randn(*s, dtype=torch.bfloat16) * 0.05)(D, Dh)),
            "wv": _w((lambda *s: torch.randn(*s, dtype=torch.bfloat16) * 0.05)(D, Dh)),
            "wo": _w((lambda *s: torch.randn(*s, dtype=torch.bfloat16) * 0.05)(H * Dh, D)),
        }
    _A_in = _A_setup()

    def _B_setup():
        B, S, D, F = 1, 2048, 448, 1792
        return {
            "x": _w((lambda *s: torch.randn(*s, dtype=torch.bfloat16) * 0.05)(B, S, D)),
            "w1": _w((lambda *s: torch.randn(*s, dtype=torch.bfloat16) * 0.8)(S, F) * (S ** -0.5)),
            "b1": _w((lambda *s: torch.randn(*s, dtype=torch.bfloat16) * 12.8)(F) * 0.02),
            "w2": _w((lambda *s: torch.randn(*s, dtype=torch.bfloat16) * 0.2)(F, S) * (F ** -0.5)),
            "b2": _w((lambda *s: torch.randn(*s, dtype=torch.bfloat16) * 1.6)(S) * 0.02),
        }
    _B_in = _B_setup()

    return {
        "A_x": _A_in["x"],
        "A_wq": _A_in["wq"],
        "A_wk": _A_in["wk"],
        "A_wv": _A_in["wv"],
        "A_wo": _A_in["wo"],
        "B_x": _B_in["x"],
        "B_w1": _B_in["w1"],
        "B_b1": _B_in["b1"],
        "B_w2": _B_in["w2"],
        "B_b2": _B_in["b2"],
    }

def reference(A_x, A_wq, A_wk, A_wv, A_wo, B_x, B_w1, B_b1, B_w2, B_b2):
    def _A_ref(x, wq, wk, wv, wo):
        B, S, D = x.shape
        H = 16
        Dh = D // H
        q = (lambda x, *d: x.permute(*d))((x @ wq).reshape(B, S, H, Dh), 0, 2, 1, 3)
        k = x @ wk
        v = x @ wv
        scores = torch.einsum("bhqd,bkd->bhqk", q, k) * (Dh ** -0.5)
        p = _softmax(scores, axis=-1)
        o = torch.einsum("bhqk,bkd->bhqd", p, v)
        return (lambda x, *d: x.permute(*d))(o, 0, 2, 1, 3).reshape(B, S, H * Dh) @ wo

    def _B_ref(x, w1, b1, w2, b2):
        B, S, D = x.shape
        h = _layernorm(x, axis=-1)
        u = torch.einsum("bsd,sf->bdf", h, w1) + b1
        u = _gelu(u)
        y = torch.einsum("bdf,fs->bds", u, w2) + b2
        return (lambda x, *d: x.permute(*d))(y, 0, 2, 1)

    x = A_x
    xn = _layernorm(x, axis=-1)
    return x + _A_ref(xn, A_wq, A_wk, A_wv, A_wo) + _B_ref(xn, B_w1, B_b1, B_w2, B_b2)
```

```python
import re

class Asm:
    def __init__(self):
        self.L = []
        self.uid = 0
    def __call__(self, s):
        for line in s.strip().split("\n"):
            line = line.strip()
            if line: self.L.append(line)
    def label(self, base="L"):
        self.uid += 1
        return f"{base}_{self.uid}"
    def text(self):
        out = []
        for l in self.L:
            if l.endswith(":") or l.startswith(".") or l.startswith(";"):
                out.append(l)
            else:
                out.append("    " + l)
        return "\n".join(out) + "\n"

def vr(a, n=1):
    return f"v{a}" if n == 1 else f"v[{a}:{a+n-1}]"
def sr(a, n=1):
    return f"s{a}" if n == 1 else f"s[{a}:{a+n-1}]"

_reg = re.compile(r"^(-|\|)?(abs\()?([vsa])(?:(\d+)|\[(\d+):(\d+)\])\)?\|?$")
def regs(op):
    op = op.strip()
    if op in ("vcc",): return {("s", 106), ("s", 107)}
    if op == "vcc_lo": return {("s", 106)}
    if op == "vcc_hi": return {("s", 107)}
    if op == "exec": return {("s", 126), ("s", 127)}
    if op == "m0": return {("s", 124)}
    m = _reg.match(op)
    if not m: return set()
    k = m.group(3)
    if m.group(4) is not None: return {(k, int(m.group(4)))}
    return {(k, i) for i in range(int(m.group(5)), int(m.group(6)) + 1)}

TRANS = ("v_exp_", "v_log_", "v_rcp_", "v_rsq_", "v_sqrt_", "v_sin_", "v_cos_")
class Ins:
    def __init__(self, text):
        self.text = text
        t = text.split(";")[0].strip()
        parts = t.split(None, 1)
        self.op = parts[0]
        rest = parts[1] if len(parts) > 1 else ""
        ops, cur, d = [], "", 0
        for ch in rest:
            if ch == "[": d += 1
            if ch == "]": d -= 1
            if ch == "," and d == 0: ops.append(cur.strip()); cur = ""
            else: cur += ch
        if cur.strip(): ops.append(cur.strip())
        self.mods = ""
        if ops:
            last = ops[-1].split(None, 1)
            ops[-1] = last[0]
            self.mods = last[1] if len(last) > 1 else ""
        self.ops = ops
        op = self.op
        self.mfma = op.startswith("v_mfma")
        self.valu = op.startswith("v_") and not self.mfma
        self.trans = op.startswith(TRANS)
        self.dot = op.startswith("v_dot")
        self.vmem = op.startswith(("buffer_", "global_", "flat_"))
        self.ds = op.startswith("ds_")
        self.salu = op.startswith("s_")
        self.dpp = "_dpp" in op
        self.sdwa = "_sdwa" in op
        self.w, self.r = set(), set()
        R = [regs(o) for o in ops]
        U = lambda xs: set().union(*xs) if xs else set()
        self.srcc = set(); self.ab = set(); self.stdata = set(); self.lds_dma = False
        if self.mfma:
            self.w = R[0]; self.ab = R[1] | R[2]; self.srcc = R[3]; self.r = self.ab | self.srcc
            self.passes = 8 if "32x32x16" in op else 4
        elif self.valu:
            if op.startswith("v_cmp"):
                self.w = R[0]; self.r = U(R[1:])
                if op.startswith("v_cmpx"): self.w |= regs("exec")
            elif op.startswith(("v_add_co", "v_sub_co", "v_addc_co", "v_subb_co", "v_subrev_co")):
                self.w = R[0] | R[1]; self.r = U(R[2:])
            elif op.startswith("v_permlane") or op.startswith("v_swap"):
                self.w = R[0] | R[1]; self.r = R[0] | R[1]
            elif op == "v_nop":
                pass
            else:
                self.w = R[0]; self.r = U(R[1:])
                if op.startswith(("v_fmac", "v_dot2c", "v_writelane", "v_pk_fmac")) or "UNUSED_PRESERVE" in self.mods or self.dpp: self.r |= R[0]
        elif self.vmem:
            if " lds" in (" " + self.mods) or "_lds_" in op:
                self.lds_dma = True; self.r = U(R) | regs("m0")
            elif "load" in op:
                self.w = R[0]; self.r = U(R[1:])
                if "d16" in op: self.r |= R[0]
            elif "store" in op:
                self.r = U(R)
                self.stdata = R[0] if op.startswith("buffer") else R[1]
            elif "atomic" in op:
                self.r = U(R)
                if "sc0" in self.mods: self.w = R[0]
        elif self.ds:
            if "read" in op or "_rtn" in op or "permute" in op or "swizzle" in op:
                self.w = R[0]; self.r = U(R[1:])
            else:
                self.r = U(R)
        elif self.salu:
            if op.startswith(("s_cmp", "s_waitcnt", "s_nop", "s_barrier", "s_branch", "s_cbranch", "s_endpgm", "s_sleep", "s_setprio", "s_bitcmp")):
                self.r = U(R)
            else:
                self.w = R[0] if R else set(); self.r = U(R[1:])
                if "saveexec" in op: self.w |= regs("exec")
        self.states = 1
        if op == "s_nop": self.states = int(ops[0], 0) + 1

def need(p, c):
    n = 0
    vw = {x for x in p.w if x[0] in "va"}; sw = {x for x in p.w if x[0] == "s"}
    if p.valu:
        if c.mfma and vw & c.r: n = max(n, 2)
        if c.mfma and ("s", 126) in sw: n = max(n, 4)
        if c.valu and c.dpp and vw & c.r: n = max(n, 2)
        if c.valu and c.dpp and ("s", 126) in sw: n = max(n, 5)
        if c.op.startswith(("v_readlane", "v_readfirstlane")) and vw & c.r: n = max(n, 1)
        if c.op.startswith(("v_readlane", "v_readfirstlane", "v_writelane", "v_permlane")) and ("s", 126) in sw: n = max(n, 4)
        if c.op.startswith("v_permlane") and vw & c.r: n = max(n, 2)
        if c.vmem and sw & c.r: n = max(n, 5)
        if c.valu and sw & c.r:
            n = max(n, 4 if c.op.startswith(("v_readlane", "v_writelane")) else 2)
        if c.op.startswith("v_cndmask") and len(c.ops) == 3 and sw & regs("vcc"): n = max(n, 2)
        if p.trans and (c.valu and not c.trans) and vw & (c.r): n = max(n, 1)
        if (p.sdwa or "op_sel:" in p.mods) and c.valu and vw & (c.r | c.w): n = max(n, 1)
        if p.dot and (c.valu or c.vmem or c.ds or c.mfma) and vw & (c.r | c.w):
            same = c.op.replace("_e32", "") == p.op.replace("_e32", "")
            if same and c.dot:
                srcs = regs(c.ops[1]) | regs(c.ops[2])
                if vw & srcs: n = max(n, 3)
            else: n = max(n, 3)
    if p.mfma:
        P = p.passes
        if c.mfma:
            if p.w & c.ab: n = max(n, {4: 8, 8: 12}[P])
            if p.w & c.srcc and not (p.w == c.srcc and c.passes == P): n = max(n, {4: 6, 8: 10}[P])
            if p.w & c.w and not (p.w & c.srcc): n = max(n, 0)
        elif (c.valu or c.vmem or c.ds) and p.w & (c.r | c.w): n = max(n, {4: 8, 8: 12}[P])
        if c.valu and p.srcc & c.w: n = max(n, {4: 3, 8: 7}[P])
    if p.vmem and p.stdata and len(p.stdata) >= 3:
        if c.valu and p.stdata & c.w: n = max(n, 2)
        elif p.stdata & c.w: n = max(n, 1)
    if p.salu and ("s", 124) in p.w and (c.lds_dma): n = max(n, 1)
    return n

def check(lines, verbose=True):
    ins, lab = [], {}
    for l in lines:
        t = l.split(";")[0].strip()
        if not t or t.startswith("."): continue
        if t.endswith(":"): lab[t[:-1]] = len(ins); continue
        ins.append(Ins(t))
    errs = []
    W = 20
    def succ(i):
        c = ins[i]
        if c.op == "s_endpgm": return []
        if c.op == "s_branch": return [lab[c.ops[0]]]
        if c.op.startswith("s_cbranch"): return [i + 1, lab[c.ops[0]]]
        return [i + 1]
    for i, p in enumerate(ins):
        if not (p.valu or p.mfma or p.stdata or (p.salu and ("s", 124) in p.w)): continue
        stack = [(j, 0) for j in succ(i)]
        seen = {}
        while stack:
            j, d = stack.pop()
            if j >= len(ins) or d >= W: continue
            if seen.get(j, 99) <= d: continue
            seen[j] = d
            c = ins[j]
            n = need(p, c)
            if n > d: errs.append(f"HAZARD need {n} have {d}: [{p.text}] -> [{c.text}]")
            for k in succ(j): stack.append((k, d + c.states))
    if verbose:
        for e in errs[:40]: print(e)
        print(f"hazard check: {len(ins)} instrs, {len(errs)} problems")
    return errs
```

```python
import sys, math
sys.path.insert(0, "dev")
from asmlib import Asm, vr, sr, check

NAME = "parallel_sum__grouped_kv_mqa__mixer_token_mlp__prompt"
WS_HT = 0
WS_KV = 2 << 20
WS_Q  = 3 << 20
WS_U  = 5 << 20
WS_O  = 7 << 20
WS_SIZE = 16 << 20
XN_STRIDE = 912
LDS_XN = 0
LDS_WQ = 64 * XN_STRIDE
LDS_WKV = LDS_WQ + 448 * 128
LDS_P1_END = LDS_WKV + 25 * 1024
RING = 12
LDS_RING = 0
LDS_RED = 4 * RING * 2048
LDS_RED2 = LDS_RED
LDS_MX = LDS_RED + 49152
LDS_CNT = LDS_MX + 2048
LDS_TOTAL = LDS_CNT + 256
sWG, sXCD, sJ, sRB, sCB, sW = 2, 3, 4, 5, 6, 7
sT0, sT1, sT2, sT3, sT4, sT5 = 8, 9, 10, 11, 12, 13
P_X, P_WQ, P_WK, P_WV, P_WO, P_BX, P_W1, P_B1, P_W2, P_B2, P_OUT, P_DBG, P_WS = 16, 18, 20, 22, 24, 26, 28, 30, 32, 34, 36, 38, 40
R_X, R_WQ, R_WKV, R_WS, R_W1, R_W2, R_WO, R_OUT, R_KV, R_B = 44, 48, 52, 56, 60, 64, 68, 72, 76, 80
sM2, sR2 = 84, 92
sHI = 14
OOB = 0x40000000
EPS = 0x3727c5ac
QSCALE = (28 ** -0.5) * math.log2(math.e)
import struct
def f32(x): return "0x%08x" % struct.unpack("<I", struct.pack("<f", x))[0]

vLANE, vJ, vHH = 1, 2, 3

def srd(a, r, p, size):
    a(f"s_mov_b32 s{r}, s{p}\ns_mov_b32 s{r+1}, s{p+1}\ns_mov_b32 s{r+2}, {size}\ns_mov_b32 s{r+3}, 0x20000")

def prologue(a, end):
    a(f"""
    s_cmp_ge_u32 s2, 256
    s_cbranch_scc1 {end}
    s_load_dwordx16 s[16:31], s[0:1], 0
    s_load_dwordx8 s[32:39], s[0:1], 64
    s_load_dwordx2 s[40:41], s[0:1], 96
    v_lshrrev_b32 v4, 6, v0
    v_and_b32 v{vLANE}, 63, v0
    v_readfirstlane_b32 s{sW}, v4
    v_and_b32 v{vJ}, 31, v0
    v_lshrrev_b32 v{vHH}, 5, v{vLANE}
    s_and_b32 s{sXCD}, s2, 7
    s_lshr_b32 s{sJ}, s2, 3
    s_lshr_b32 s{sT0}, s{sJ}, 3
    s_lshl_b32 s{sRB}, s{sXCD}, 2
    s_add_u32 s{sRB}, s{sRB}, s{sT0}
    s_and_b32 s{sCB}, s{sJ}, 7
    s_mov_b32 s{sHI}, 0
    s_mov_b32 s{sHI+1}, -1
    s_waitcnt lgkmcnt(0)
    """)
    srd(a, R_X, P_X, 2048 * 896)
    srd(a, R_WS, P_WS, WS_SIZE)

def bf16_stats(a, vs, vq, vm, vr_, t):
    a(f"""
    v_mul_f32 v{vs}, {f32(1/448)}, v{vs}
    v_mul_f32 v{vq}, {f32(1/448)}, v{vq}
    v_fma_f32 v{vq}, -v{vs}, v{vs}, v{vq}
    v_max_f32 v{vq}, 0, v{vq}
    v_cvt_pk_bf16_f32 v{t}, v{vs}, v{vq}
    v_lshlrev_b32 v{vm}, 16, v{t}
    v_and_b32 v{t}, 0xffff0000, v{t}
    v_add_f32 v{t}, {EPS:#x}, v{t}
    v_cvt_pk_bf16_f32 v{t}, v{t}, v{t}
    v_and_b32 v{t}, 0xffff0000, v{t}
    v_sqrt_f32 v{t}, v{t}
    s_nop 0
    v_cvt_pk_bf16_f32 v{t}, v{t}, v{t}
    v_and_b32 v{t}, 0xffff0000, v{t}
    v_rcp_f32 v{vr_}, v{t}
    s_nop 0
    """)

def row_stats(a, X, vs, vq, sOnes):
    a(f"v_mov_b32 v{vs}, 0\nv_mov_b32 v{vq}, 0")
    for i in range(28):
        a(f"v_dot2c_f32_bf16 v{vs}, s{sOnes}, v{X+i}")
        a(f"v_dot2c_f32_bf16 v{vq}, v{X+i}, v{X+i}")
    a("s_nop 2")
    for mode in ("quad_perm:[1,0,3,2]", "quad_perm:[2,3,0,1]", "row_half_mirror"):
        a(f"v_add_f32_dpp v{vs}, v{vs}, v{vs} {mode} row_mask:0xf bank_mask:0xf")
        a(f"v_add_f32_dpp v{vq}, v{vq}, v{vq} {mode} row_mask:0xf bank_mask:0xf")
        a("s_nop 0")

def tile_gemm(a, acc, vW, wstep, wx, vXn, w_is_a, B0=32):
    D = 4; NB = 8
    def reads(ks):
        b = B0 + 8 * (ks % NB)
        a(f"ds_read_b64_tr_b16 {vr(b,2)}, v{vW} offset:{ks*wstep}")
        a(f"ds_read_b64_tr_b16 {vr(b+2,2)}, v{vW} offset:{ks*wstep+wx}")
        a(f"ds_read_b128 {vr(b+4,4)}, v{vXn} offset:{ks*32}")
    for ks in range(D): reads(ks)
    for ks in range(28):
        if ks + D < 28: reads(ks + D)
        left = min(D, 27 - ks)
        a(f"s_waitcnt lgkmcnt({3*left})")
        b = B0 + 8 * (ks % NB)
        A, B = (vr(b, 4), vr(b + 4, 4)) if w_is_a else (vr(b + 4, 4), vr(b, 4))
        c = "0" if ks == 0 else vr(acc, 16)
        a(f"v_mfma_f32_32x32x16_bf16 {vr(acc,16)}, {A}, {B}, {c}")

def phase1(a, fused, done):
    X = 128
    srd(a, R_WQ, P_WQ, 448 * 896)
    a(f"""
    v_lshrrev_b32 v4, 3, v{vLANE}
    v_and_b32 v5, 7, v{vLANE}
    v_mul_u32_u24 v6, 896, v4
    v_lshl_add_u32 v7, v5, 4, v6
    s_lshl_b32 s{sT0}, s{sRB}, 3
    s_add_u32 s{sT0}, s{sT0}, s{sW}
    s_mul_i32 s{sT0}, s{sT0}, {8*896}
    """)
    for i in range(7):
        a(f"buffer_load_dwordx4 {vr(X+4*i,4)}, v7, {sr(R_X,4)}, s{sT0} offen offset:{128*i}")
    skip = a.label("nokv")
    a(f"""
    s_cmp_ge_u32 s{sCB}, 2
    s_cselect_b32 s{R_WKV}, s{P_WV}, s{P_WK}
    s_cselect_b32 s{R_WKV+1}, s{P_WV+1}, s{P_WK+1}
    s_mov_b32 s{R_WKV+2}, {448*56}
    s_mov_b32 s{R_WKV+3}, 0x20000
    v_lshlrev_b32 v8, 4, v{vLANE}
    s_mul_i32 s{sT1}, s{sW}, 3072
    s_add_u32 m0, s{sT1}, {LDS_WKV}
    s_cmp_ge_u32 s{sCB}, 4
    s_cbranch_scc1 {skip}
    """)
    for i in range(4):
        a(f"buffer_load_dwordx4 v8, {sr(R_WKV,4)}, s{sT1} offen offset:{1024*i} lds")
    a(f"{skip}:")
    a(f"""
    v_lshrrev_b32 v9, 2, v{vLANE}
    v_and_b32 v9, 4, v9
    v_xor_b32 v9, v9, v5
    v_lshl_add_u32 v9, v9, 4, v6
    s_mul_i32 s{sT1}, s{sW}, {56*896}
    s_mul_i32 s{sT2}, s{sCB}, 112
    s_add_u32 s{sT1}, s{sT1}, s{sT2}
    s_mul_i32 s{sT2}, s{sW}, {56*128}
    s_add_u32 m0, s{sT2}, {LDS_WQ}
    s_mov_b32 s{sT3}, 0x3f803f80
    """)
    for i in range(7):
        a(f"buffer_load_dwordx4 v9, {sr(R_WQ,4)}, s{sT1} offen lds")
        if i < 6:
            a(f"s_add_u32 m0, m0, 1024\ns_add_u32 s{sT1}, s{sT1}, {8*896}")
    a(f"""
    v_mul_u32_u24 v10, {XN_STRIDE}, v4
    v_lshl_add_u32 v10, v5, 4, v10
    s_mul_i32 s{sT2}, s{sW}, {8*XN_STRIDE}
    v_add_u32 v11, s{sT2}, v10
    s_waitcnt vmcnt(7)
    """)
    row_stats(a, X, 12, 13, sT3)
    bf16_stats(a, 12, 13, 14, 15, 16)
    a(f"v_mul_f32 v14, v14, v15\nv_mov_b32 v17, 0xffff0000")
    for i in range(28):
        t = 18 + 2 * (i % 4)
        a(f"""
        v_lshlrev_b32 v{t}, 16, v{X+i}
        v_and_b32 v{t+1}, v17, v{X+i}
        v_fma_f32 v{t}, v{t}, v15, -v14
        v_fma_f32 v{t+1}, v{t+1}, v15, -v14
        v_cvt_pk_bf16_f32 v{X+i}, v{t}, v{t+1}
        """)
        if i % 4 == 3:
            a(f"ds_write_b128 v11, {vr(X+i-3,4)} offset:{LDS_XN + 128*(i//4)}")
    a(f"""
    v_bfe_u32 v4, v{vLANE}, 2, 2
    v_and_b32 v5, 3, v{vLANE}
    v_bfe_u32 v6, v{vLANE}, 4, 1
    v_lshlrev_b32 v5, 3, v5
    v_lshl_add_u32 v5, v6, 5, v5
    v_lshl_add_u32 v6, v{vHH}, 3, v4
    s_waitcnt vmcnt(0) lgkmcnt(0)
    s_barrier
    """)
    hpart = a.label("hpart"); qpart = a.label("qpart"); vpart = a.label("vpart"); kvst = a.label("kvst")
    a(f"""
    s_cmp_ge_u32 s{sW}, 4
    s_cbranch_scc1 {hpart}
    s_cmp_lg_u32 s{sW}, 0
    s_cbranch_scc1 {qpart}
    s_cmp_ge_u32 s{sCB}, 4
    s_cbranch_scc1 {qpart}
    """)
    ACC = 96
    a(f"""
    v_mul_u32_u24 v8, 56, v6
    v_add_u32 v8, v8, v5
    v_add_u32 v8, {LDS_WKV}, v8
    s_and_b32 s{sT0}, s{sCB}, 1
    s_mul_i32 s{sT1}, s{sT0}, {32*XN_STRIDE}
    v_mul_u32_u24 v9, {XN_STRIDE}, v{vJ}
    v_lshl_add_u32 v9, v{vHH}, 4, v9
    v_add_u32 v9, s{sT1}, v9
    s_lshl_b32 s{sT1}, s{sRB}, 1
    s_add_u32 s{sT1}, s{sT1}, s{sT0}
    s_lshl_b32 s{sT1}, s{sT1}, 12
    s_add_u32 s{sT1}, s{sT1}, {WS_KV}
    s_cmp_ge_u32 s{sCB}, 2
    s_cbranch_scc1 {vpart}
    """)
    tile_gemm(a, ACC, 8, 896, 224, 9, True)
    a("s_nop 11")
    for i in range(8): a(f"v_cvt_pk_bf16_f32 v{ACC+16+i}, v{ACC+2*i}, v{ACC+2*i+1}")
    a(f"""
    s_mov_b64 exec, {sr(sHI,2)}
    v_mov_b32 v{ACC+22}, 0x3f803f80
    v_mov_b32 v{ACC+23}, 0x00003f80
    s_mov_b64 exec, -1
    s_branch {kvst}
    {vpart}:
    """)
    tile_gemm(a, ACC, 8, 896, 224, 9, False)
    a(f"s_add_u32 s{sT1}, s{sT1}, 2048\ns_nop 10")
    for i in range(8): a(f"v_cvt_pk_bf16_f32 v{ACC+16+i}, v{ACC+2*i}, v{ACC+2*i+1}")
    a(f"s_mov_b32 exec_lo, 0xf0000000\ns_mov_b32 exec_hi, 0xf0000000")
    for i in range(8): a(f"v_mov_b32 v{ACC+16+i}, 0")
    a(f"s_mov_b32 exec_lo, 0x10000000\ns_mov_b32 exec_hi, 0x10000000")
    for i in range(8): a(f"v_mov_b32 v{ACC+16+i}, 0x3f803f80")
    a(f"""
    s_mov_b64 exec, -1
    {kvst}:
    v_lshlrev_b32 v8, 4, v{vLANE}
    buffer_store_dwordx4 {vr(ACC+16,4)}, v8, {sr(R_WS,4)}, s{sT1} offen sc1
    buffer_store_dwordx4 {vr(ACC+20,4)}, v8, {sr(R_WS,4)}, s{sT1} offen offset:1024 sc1
    """)
    QACC = 128
    a(f"""
    {qpart}:
    s_and_b32 s{sT0}, s{sW}, 1
    s_mul_i32 s{sT0}, s{sT0}, 56
    v_add_u32 v10, s{sT0}, v5
    v_lshlrev_b32 v11, 5, v4
    v_and_b32 v11, 64, v11
    v_xor_b32 v10, v10, v11
    v_lshl_add_u32 v10, v6, 7, v10
    v_add_u32 v10, {LDS_WQ}, v10
    s_lshr_b32 s{sT1}, s{sW}, 1
    s_mul_i32 s{sT1}, s{sT1}, {32*XN_STRIDE}
    v_mul_u32_u24 v11, {XN_STRIDE}, v{vJ}
    v_lshl_add_u32 v11, v{vHH}, 4, v11
    v_add_u32 v11, s{sT1}, v11
    """)
    tile_gemm(a, QACC, 10, 2048, 512, 11, True)
    a(f"s_mov_b32 s{sT0}, {f32(QSCALE)}\ns_nop 10")
    for i in range(16): a(f"v_mul_f32 v{QACC+i}, s{sT0}, v{QACC+i}")
    for i in range(8): a(f"v_cvt_pk_bf16_f32 v{QACC+16+i}, v{QACC+2*i}, v{QACC+2*i+1}")
    a(f"""
    s_mov_b64 exec, {sr(sHI,2)}
    v_mov_b32 v{QACC+22}, 0
    v_mov_b32 v{QACC+23}, 0
    s_mov_b64 exec, -1
    s_lshl_b32 s{sT1}, s2, 2
    s_add_u32 s{sT1}, s{sT1}, s{sW}
    s_lshl_b32 s{sT1}, s{sT1}, 11
    s_add_u32 s{sT1}, s{sT1}, {WS_Q}
    v_lshlrev_b32 v8, 4, v{vLANE}
    buffer_store_dwordx4 {vr(QACC+16,4)}, v8, {sr(R_WS,4)}, s{sT1} offen
    buffer_store_dwordx4 {vr(QACC+20,4)}, v8, {sr(R_WS,4)}, s{sT1} offen offset:1024
    s_branch {done}
    """)
    a(f"""
    {hpart}:
    s_mul_i32 s{sT2}, s{sCB}, {8*XN_STRIDE}
    v_add_u32 v11, s{sT2}, v10
    """)
    for i in range(7): a(f"ds_read_b128 {vr(X+4*i,4)}, v11 offset:{LDS_XN+128*i}")
    a(f"""
    v_mul_u32_u24 v8, {XN_STRIDE}, v4
    v_lshl_add_u32 v8, v{vHH}, 6, v8
    v_add_u32 v8, v8, v5
    s_sub_u32 s{sT0}, s{sW}, 4
    s_mul_i32 s{sT1}, s{sT0}, 224
    s_add_u32 s{sT1}, s{sT1}, s{sT2}
    v_add_u32 v8, s{sT1}, v8
    """)
    H = 32
    for p in range(2):
        for x in range(2):
            a(f"ds_read_b64_tr_b16 {vr(H+4*p+2*x,2)}, v8 offset:{LDS_XN + p*112 + x*4*XN_STRIDE}")
    a("s_waitcnt lgkmcnt(4)")
    row_stats(a, X, 12, 13, sT3)
    bf16_stats(a, 12, 13, 14, 15, 16)
    for r in range(8):
        a(f"v_readlane_b32 s{sM2+r}, v14, {8*r}")
        a(f"v_readlane_b32 s{sR2+r}, v15, {8*r}")
    a(f"""
    v_lshlrev_b32 v9, 10, v{vHH}
    v_lshl_add_u32 v9, v{vJ}, 4, v9
    v_mov_b32 v18, {OOB}
    v_cmp_gt_u32 vcc, 56, v{vLANE}
    s_lshl_b32 s{sT0}, s{sT0}, 8
    s_lshl_b32 s{sT1}, s{sRB}, 2
    v_cndmask_b32 v9, v18, v9, vcc
    s_add_u32 s{sT0}, s{sT0}, s{sT1}
    s_lshr_b32 s{sT1}, s{sCB}, 1
    s_add_u32 s{sT0}, s{sT0}, s{sT1}
    s_lshl_b32 s{sT0}, s{sT0}, 11
    s_and_b32 s{sT1}, s{sCB}, 1
    s_lshl_b32 s{sT1}, s{sT1}, 9
    s_add_u32 s{sT0}, s{sT0}, s{sT1}
    s_add_u32 s{sT0}, s{sT0}, {WS_HT}
    s_waitcnt lgkmcnt(0)
    """)
    for p in range(2):
        for i in range(4):
            s = H + 4 * p + i; t = 18 + 2 * i
            a(f"""
            v_lshlrev_b32 v{t}, 16, v{s}
            v_and_b32 v{t+1}, v17, v{s}
            v_subrev_f32 v{t}, s{sM2+2*i}, v{t}
            v_subrev_f32 v{t+1}, s{sM2+2*i+1}, v{t+1}
            v_cvt_pk_bf16_f32 v{s}, v{t}, v{t+1}
            v_lshlrev_b32 v{t}, 16, v{s}
            v_and_b32 v{t+1}, v17, v{s}
            v_mul_f32 v{t}, s{sR2+2*i}, v{t}
            v_mul_f32 v{t+1}, s{sR2+2*i+1}, v{t+1}
            v_cvt_pk_bf16_f32 v{s}, v{t}, v{t+1}
            """)
        a(f"buffer_store_dwordx4 {vr(H+4*p,4)}, v9, {sr(R_WS,4)}, s{sT0} offen sc1")
        if p == 0: a(f"s_add_u32 s{sT0}, s{sT0}, {128*2048}")
    a(f"s_branch {done}")

def lds_sync(a, cnt, target, vA=28, vT=29):
    spin = a.label("spin")
    a(f"""
    v_mov_b32 v{vA}, {LDS_CNT + 4*cnt}
    v_mov_b32 v{vT}, 1
    s_waitcnt lgkmcnt(0)
    s_mov_b64 exec, 1
    ds_add_u32 v{vA}, v{vT}
    s_mov_b64 exec, -1
    {spin}:
    ds_read_b32 v{vT}, v{vA}
    s_waitcnt lgkmcnt(0)
    v_readfirstlane_b32 s{sT5}, v{vT}
    s_cmp_lt_u32 s{sT5}, {target}
    s_cbranch_scc1 {spin}
    """)

def attention(a, fused, done):
    Q, O, S, P, KV = 32, 64, 128, 160, 176
    NM = 20
    sK, sIt, sNT, sRetry = sT0, sT1, sT2, sT3
    a(f"""
    s_add_u32 s{R_KV}, s{P_WS}, {WS_KV}
    s_addc_u32 s{R_KV+1}, s{P_WS+1}, 0
    s_add_u32 s{sT0}, s{sW}, 1
    s_lshl_b32 s{R_KV+2}, s{sT0}, 16
    s_mov_b32 s{R_KV+3}, 0x20000
    v_lshlrev_b32 v4, 4, v{vLANE}
    """)
    for i in range(4):
        a(f"""
        s_add_u32 s{sT0}, s{sW}, {i}
        s_and_b32 s{sT0}, s{sT0}, 3
        s_lshl_b32 s{sT1}, s2, 2
        s_add_u32 s{sT0}, s{sT0}, s{sT1}
        s_lshl_b32 s{sT0}, s{sT0}, 11
        s_add_u32 s{sT0}, s{sT0}, {WS_Q}
        buffer_load_dwordx4 {vr(Q+8*i,4)}, v4, {sr(R_WS,4)}, s{sT0} offen
        buffer_load_dwordx4 {vr(Q+8*i+4,4)}, v4, {sr(R_WS,4)}, s{sT0} offen offset:1024
        """)
    restart = a.label("att_restart"); mloop = a.label("att_mloop"); loop = a.label("att_loop"); ok = a.label("att_ok")
    a(f"s_mov_b32 s{sNT}, 1\ns_mov_b32 s{sRetry}, 0")
    a(f"{restart}:")
    for i in range(4): a(f"v_mov_b32 v{NM+i}, 0xff800000")
    a(f"s_lshl_b32 s{sK}, s{sW}, 16\ns_mov_b32 s{sIt}, 0")
    a(f"{mloop}:")
    a(f"""
    buffer_load_dwordx4 {vr(S,4)}, v4, {sr(R_KV,4)}, s{sK} offen sc1
    buffer_load_dwordx4 {vr(S+4,4)}, v4, {sr(R_KV,4)}, s{sK} offen offset:1024 sc1
    s_waitcnt vmcnt(0)
    """)
    for i in range(4):
        a(f"v_mfma_f32_32x32x16_bf16 {vr(O+16*i,16)}, {vr(S,4)}, {vr(Q+8*i,4)}, 0")
    for i in range(4):
        a(f"v_mfma_f32_32x32x16_bf16 {vr(O+16*i,16)}, {vr(S+4,4)}, {vr(Q+8*i+4,4)}, {vr(O+16*i,16)}")
    a(f"s_add_u32 s{sK}, s{sK}, 4096\ns_add_u32 s{sIt}, s{sIt}, 1\ns_nop 6")
    for i in range(4):
        for j in range(8):
            a(f"v_max3_f32 v{NM+i}, v{O+16*i+2*j}, v{O+16*i+2*j+1}, v{NM+i}")
    a(f"s_cmp_lt_u32 s{sIt}, s{sNT}\ns_cbranch_scc1 {mloop}")
    a(f"s_lshl_b32 s{sK}, s{sW}, 16")
    for r in range(8): a(f"v_mov_b32 v{KV+48+8+r}, 0")
    def kvload(buf):
        for j in range(4):
            a(f"buffer_load_dwordx4 {vr(KV+16*buf+4*j,4)}, v4, {sr(R_KV,4)}, s{sK} offen offset:{1024*j} sc1")
        a(f"s_add_u32 s{sK}, s{sK}, 4096")
    for b in range(3): kvload(b)
    for i in range(4): a(f"v_mov_b32 v{8+i}, v{NM+i}")
    a("s_nop 1")
    for i in range(4): a(f"v_permlane32_swap_b32 v{8+i}, v{NM+i}")
    for i in range(4): a(f"v_max_f32 v{NM+i}, v{8+i}, v{NM+i}")
    a(f"s_mov_b64 exec, {sr(sHI,2)}")
    for i in range(4):
        a(f"""
        v_cvt_pk_bf16_f32 v8, -v{NM+i}, 0
        v_lshlrev_b32 v9, 16, v8
        v_sub_f32 v9, -v{NM+i}, v9
        v_cvt_pk_bf16_f32 v10, v9, 0
        v_lshl_or_b32 v{Q+8*i+6}, v10, 16, v8
        v_lshlrev_b32 v10, 16, v10
        v_sub_f32 v9, v9, v10
        v_cvt_pk_bf16_f32 v{Q+8*i+7}, v9, 0
        """.replace("v_sub_f32 v9, -v", "v_sub_f32_e64 v9, -v"))
    a("s_mov_b64 exec, -1")
    for r in range(64): a(f"v_mov_b32 v{O+r}, 0")
    for r in range(8): a(f"v_mov_b32 v{P+8+r}, 0")
    a(f"v_mov_b32 v{S+30}, 0\nv_mov_b32 v{S+31}, 0")
    def smf(q, b, kb):
        d = vr(S + 16 * b, 16)
        return [f"v_mfma_f32_32x32x16_bf16 {d}, {vr(KV+16*kb,4)}, {vr(Q+8*q,4)}, 0",
                f"v_mfma_f32_32x32x16_bf16 {d}, {vr(KV+16*kb+4,4)}, {vr(Q+8*q+4,4)}, {d}"]
    def pv(q, b, kb):
        d = vr(O + 16 * q, 16)
        return [f"v_mfma_f32_32x32x16_bf16 {d}, {vr(KV+16*kb+8,4)}, {vr(P+8*b,4)}, {d}",
                f"v_mfma_f32_32x32x16_bf16 {d}, {vr(KV+16*kb+12,4)}, {vr(P+8*b+4,4)}, {d}"]
    def pk(b, i): return f"v_cvt_pk_bf16_f32 v{P+8*b+i}, v{S+16*b+2*i}, v{S+16*b+2*i+1}"
    a("s_waitcnt vmcnt(8)")
    for x in smf(0, 0, 0): a(x)
    a(f"s_mov_b32 s{sIt}, 4\ns_nop 10")
    a(".p2align 6")
    a(f"{loop}:")
    for n in range(16):
        T, q, b = n // 4, n % 4, n % 2
        va = []
        for i in range(8):
            r = S + 16 * b + 2 * i
            va += [f"v_exp_f32 v{r}, v{r}", f"v_exp_f32 v{r+1}, v{r+1}", pk(b, i - 1) if i else pk(1 - b, 7)]
        s = smf((q + 1) % 4, 1 - b, ((n + 1) // 4) % 4)
        p = pv((q - 1) % 4, 1 - b, ((n - 1) // 4) % 4)
        ins = {3: [s[0]], 9: [s[1]], 15: [p[0]], 21: [p[1]]}
        if q == 3: ins[1] = ["s_waitcnt vmcnt(8)"]
        if q == 1:
            buf = (T - 1) % 4
            for j in range(4):
                ins.setdefault(1 + 3 * j, []).insert(0, f"buffer_load_dwordx4 {vr(KV+16*buf+4*j,4)}, v4, {sr(R_KV,4)}, s{sK} offen offset:{1024*j} sc1")
            ins[13] = [f"s_add_u32 s{sK}, s{sK}, 4096"]
        if n == 15:
            ins[19] = [f"s_sub_u32 s{sIt}, s{sIt}, 1"]
            ins[22] = [f"s_cmp_lg_u32 s{sIt}, 0"]
        for i, x in enumerate(va):
            for y in ins.get(i, []): a(y)
            a(x)
    a(f"s_cbranch_scc1 {loop}")
    a(pk(1, 7)); a("s_nop 1")
    for x in pv(3, 1, 3): a(x)
    a(f"""
    s_mov_b32 s{sT4}, 0x71800000
    s_waitcnt vmcnt(0)
    s_nop 9
    v_add_f32 v9, v{O+12}, v{O+28}
    v_add_f32 v10, v{O+44}, v{O+60}
    v_add_f32 v9, v9, v10
    v_cmp_nlt_f32 vcc, v9, s{sT4}
    s_and_b64 vcc, vcc, {sr(sHI,2)}
    s_cbranch_scc0 {ok}
    s_cmp_lg_u32 s{sRetry}, 0
    s_cbranch_scc1 {ok}
    s_mov_b32 s{sRetry}, 1
    s_mov_b32 s{sNT}, 16
    s_mov_b64 exec, {sr(sHI,2)}
    """.replace("v_cmp_nlt_f32 vcc, v9, s", "v_cmp_nlt_f32_e64 vcc, v9, s"))
    for i in range(4): a(f"v_mov_b32 v{Q+8*i+6}, 0\nv_mov_b32 v{Q+8*i+7}, 0")
    a(f"s_mov_b64 exec, -1\ns_branch {restart}\n{ok}:")
    if fused: pass
    for i in range(4):
        a(f"""
        s_add_u32 s{sT0}, s{sW}, {i}
        s_and_b32 s{sT0}, s{sT0}, 3
        s_lshl_b32 s{sT1}, s{sT0}, 9
        s_add_u32 s{sT1}, s{sT1}, {LDS_MX + 128*i}
        v_lshl_add_u32 v{8+i}, v{vJ}, 2, s{sT1}
        ds_write_b32 v{8+i}, v{NM+i}
        """)
        if i:
            a(f"""
            s_mul_i32 s{sT1}, s{sT0}, 12288
            s_add_u32 s{sT1}, s{sT1}, {LDS_RED + 4096*(i-1)}
            v_add_u32 v{12+i}, s{sT1}, v4
            """)
            for g in range(4): a(f"ds_write_b128 v{12+i}, {vr(O+16*i+4*g,4)} offset:{1024*g}")
    lds_sync(a, 0, 4)
    a(f"""
    s_mul_i32 s{sT1}, s{sW}, 12288
    s_add_u32 s{sT1}, s{sT1}, {LDS_RED}
    v_add_u32 v12, s{sT1}, v4
    """)
    for i in range(1, 4): a(f"ds_read_b32 v{NM+i}, v8 offset:{128*i}")
    for i in range(1, 4):
        for g in range(4): a(f"ds_read_b128 {vr(O+16*i+4*g,4)}, v12 offset:{4096*(i-1)+1024*g}")
    a(f"""
    s_waitcnt lgkmcnt(12)
    v_max3_f32 v9, v{NM}, v{NM+1}, v{NM+2}
    v_max_f32 v9, v9, v{NM+3}
    """)
    for i in range(4): a(f"v_sub_f32 v{NM+i}, v{NM+i}, v9")
    for i in range(4): a(f"v_exp_f32 v{NM+i}, v{NM+i}")
    a("s_nop 0")
    for r in range(16): a(f"v_mul_f32 v{O+r}, v{NM}, v{O+r}")
    for i in range(1, 4):
        a(f"s_waitcnt lgkmcnt({4*(3-i)})")
        for r in range(16): a(f"v_fmac_f32 v{O+r}, v{NM+i}, v{O+16*i+r}")
    a(f"""
    v_mov_b32 v9, v{O+12}
    v_mov_b32 v10, v{O+12}
    s_nop 1
    v_permlane32_swap_b32 v9, v10
    v_rcp_f32 v10, v10
    s_and_b32 s{sT0}, s{sW}, 1
    s_lshl_b32 s{sT1}, s{sCB}, 1
    """)
    for r in range(16): a(f"v_mul_f32 v{O+r}, v10, v{O+r}")
    for i in range(8): a(f"v_cvt_pk_bf16_f32 v{O+16+i}, v{O+2*i}, v{O+2*i+1}")
    a(f"""
    s_mov_b64 exec, {sr(sHI,2)}
    v_mov_b32 v{O+22}, 0
    v_mov_b32 v{O+23}, 0
    s_mov_b64 exec, -1
    s_add_u32 s{sT0}, s{sT0}, s{sT1}
    s_lshl_b32 s{sT0}, s{sT0}, 12
    s_lshl_b32 s{sT1}, s{sRB}, 16
    s_add_u32 s{sT0}, s{sT0}, s{sT1}
    s_lshr_b32 s{sT1}, s{sW}, 1
    s_lshl_b32 s{sT1}, s{sT1}, 10
    s_add_u32 s{sT0}, s{sT0}, s{sT1}
    s_add_u32 s{sT0}, s{sT0}, {WS_O}
    buffer_store_dwordx4 {vr(O+16,4)}, v4, {sr(R_WS,4)}, s{sT0} offen sc1
    buffer_store_dwordx4 {vr(O+20,4)}, v4, {sr(R_WS,4)}, s{sT0} offen offset:2048 sc1
    s_branch {done}
    """)

class VM:
    def __init__(self, a): self.a = a; self.q = []
    def issue(self, tag, text): self.a(text); self.q.append(tag)
    def wait(self, tags):
        idx = [i for i, t in enumerate(self.q) if t in tags]
        if not idx: return
        n = len(self.q) - 1 - max(idx)
        self.a(f"s_waitcnt vmcnt({min(n,63)})")
        self.q = self.q[max(idx) + 1:] if n <= 63 else self.q[len(self.q) - 63:]

ACC, AF, BF = 64, 32, 128
DH = 12
def gemm_stream(a, steps, vm):
    n = len(steps)
    def dma(k): steps[k]['dma'](k, k % RING)
    def ld(k): steps[k]['ld'](k, BF + 8 * (k % DH))
    def tr(k):
        b0, b1, xo = steps[k]['tr']; r = AF + 8 * (k % 2); off = (k % RING) * 2048
        a(f"ds_read_b64_tr_b16 {vr(r,2)}, v{b0} offset:{off}")
        a(f"ds_read_b64_tr_b16 {vr(r+2,2)}, v{b0} offset:{off+xo}")
        a(f"ds_read_b64_tr_b16 {vr(r+4,2)}, v{b1} offset:{off}")
        a(f"ds_read_b64_tr_b16 {vr(r+6,2)}, v{b1} offset:{off+xo}")
    DW = RING - 1
    for k in range(max(DW, DH)):
        if k < DW and k < n: dma(k)
        if k < DH - 1 and k < n: ld(k)
    vm.wait({('d', 0)})
    tr(0)
    for k in range(n):
        if k + DH - 1 < n: ld(k + DH - 1)
        if k + 1 < n:
            vm.wait({('d', k + 1), ('l', k)})
            tr(k + 1)
            a("s_waitcnt lgkmcnt(4)")
        else:
            vm.wait({('l', k)})
            a("s_waitcnt lgkmcnt(0)")
        if k + DW < n: dma(k + DW)
        l = AF + 8 * (k % 2); d = BF + 8 * (k % DH)
        for i in range(4):
            mi, ni = i >> 1, i & 1
            if steps[k]['lds_is_a']: A, B = vr(l + 4 * mi, 4), vr(d + 4 * ni, 4)
            else: A, B = vr(d + 4 * mi, 4), vr(l + 4 * ni, 4)
            a(f"v_mfma_f32_32x32x16_bf16 {vr(ACC+16*i,16)}, {A}, {B}, {vr(ACC+16*i,16)}")

def g_setup(a):
    a(f"""
    s_sub_u32 s{sG}, s{sW}, 4
    s_lshr_b32 s{sGM}, s{sG}, 1
    s_and_b32 s{sGN}, s{sG}, 1
    s_mul_i32 s{sRing}, s{sG}, {RING*2048}
    s_add_u32 s{sRing}, s{sRing}, {LDS_RING}
    v_lshlrev_b32 v4, 4, v{vLANE}
    v_lshrrev_b32 v5, 3, v{vLANE}
    v_lshrrev_b32 v6, 2, v{vLANE}
    v_and_b32 v6, 4, v6
    v_and_b32 v7, 7, v{vLANE}
    v_xor_b32 v6, v6, v7
    v_lshlrev_b32 v6, 4, v6
    v_bfe_u32 v7, v{vLANE}, 2, 2
    v_and_b32 v8, 3, v{vLANE}
    v_bfe_u32 v9, v{vLANE}, 4, 1
    v_lshlrev_b32 v8, 3, v8
    v_lshl_add_u32 v8, v9, 5, v8
    v_lshl_add_u32 v8, v7, 7, v8
    v_lshlrev_b32 v9, 5, v7
    v_and_b32 v9, 64, v9
    v_add_u32 v8, v8, v9
    v_add_u32 v8, s{sRing}, v8
    v_mov_b32 v9, {OOB}
    v_add_u32 v10, 1024, v4
    v_cmp_gt_u32 vcc, 24, v{vJ}
    s_nop 1
    v_cndmask_b32 v9, v9, v10, vcc
    """)
sG, sGM, sGN, sRing, sA, sD, sL = 84, 85, 86, 87, 88, 89, 90

def sel2(a, dst0, dst1, x0, x1, s):
    a(f"""
    s_cmp_lg_u32 s{s}, 0
    s_cselect_b64 vcc, -1, 0
    v_cndmask_b32 v{dst0}, v{x0}, v{x1}, vcc
    v_cndmask_b32 v{dst1}, v{x1}, v{x0}, vcc
    """)

def reduce4(a, cnt, red):
    base, stride = red
    a(f"""
    s_mul_i32 s{sT1}, s{sG}, {stride}
    s_add_u32 s{sT1}, s{sT1}, {base}
    v_add_u32 v24, s{sT1}, v4
    """)
    for i in range(1, 4):
        a(f"""
        s_xor_b32 s{sT0}, s{sG}, {i}
        s_mul_i32 s{sT1}, s{sT0}, {stride}
        s_add_u32 s{sT1}, s{sT1}, {base + 4096*(i-1)}
        v_add_u32 v{24+i}, s{sT1}, v4
        """)
    for i in range(1, 4):
        for g in range(4): a(f"ds_write_b128 v24, {vr(ACC+16*i+4*g,4)} offset:{4096*(i-1)+1024*g}")
    lds_sync(a, cnt, 4)
    for i in range(1, 4):
        for g in range(4): a(f"ds_read_b128 {vr(ACC+16*i+4*g,4)}, v{24+i} offset:{1024*g}")
    for i in range(1, 4):
        a(f"s_waitcnt lgkmcnt({4*(3-i)})")
        for r in range(16): a(f"v_add_f32 v{ACC+r}, v{ACC+r}, v{ACC+16*i+r}")

def gemm1(a, fused, done, red):
    sFB = 91
    a(f"""
    s_cmp_ge_u32 s{sJ}, 28
    s_cbranch_scc1 {done}
    s_and_b32 s{sA}, s{sXCD}, 1
    s_lshl_b32 s{sA}, s{sA}, 2
    s_and_b32 s{sT0}, s{sJ}, 3
    s_add_u32 s{sA}, s{sA}, s{sT0}
    s_lshr_b32 s{sFB}, s{sXCD}, 1
    s_mul_i32 s{sFB}, s{sFB}, 7
    s_lshr_b32 s{sT0}, s{sJ}, 2
    s_add_u32 s{sFB}, s{sFB}, s{sT0}
    """)
    srd(a, R_W1, P_W1, 2048 * 3584)
    srd(a, R_B, P_B1, 1792 * 2)
    vm = VM(a)
    a(f"""
    s_lshl_b32 s{sT0}, s{sFB}, 7
    s_lshl_b32 s{sT1}, s{sGM}, 6
    s_add_u32 s{sT0}, s{sT0}, s{sT1}
    v_lshlrev_b32 v10, 3, v{vHH}
    """)
    for g in range(4): vm.issue(('b', g), f"buffer_load_dwordx2 {vr(48+2*g,2)}, v10, {sr(R_B,4)}, s{sT0} offen offset:{16*g}")
    a(f"""
    v_mul_u32_u24 v11, 3584, v5
    v_add_u32 v11, v11, v6
    v_lshl_add_u32 v12, v{vHH}, 10, v8
    v_xor_b32 v13, 64, v12
    s_mul_i32 s{sD}, s{sG}, {512*3584}
    s_lshl_b32 s{sT0}, s{sFB}, 7
    s_add_u32 s{sD}, s{sD}, s{sT0}
    s_lshl_b32 s{sL}, s{sA}, 7
    s_lshl_b32 s{sT0}, s{sG}, 5
    s_add_u32 s{sL}, s{sL}, s{sT0}
    s_lshl_b32 s{sL}, s{sL}, 11
    s_add_u32 s{sL}, s{sL}, {WS_HT}
    """)
    sel2(a, 14, 15, 12, 13, sGM)
    sel2(a, 16, 17, 4, 9, sGN)
    def dma(k, slot):
        for h in range(2):
            a(f"s_add_u32 m0, s{sRing}, {slot*2048 + h*1024}")
            a("s_nop 0")
            vm.issue(('d', k), f"buffer_load_dwordx4 v11, {sr(R_W1,4)}, s{sD} offen lds")
            a(f"s_add_u32 s{sD}, s{sD}, {8*3584}")
    def ld(k, r):
        vm.issue(('l', k), f"buffer_load_dwordx4 {vr(r,4)}, v16, {sr(R_WS,4)}, s{sL} offen sc1")
        vm.issue(('l', k), f"buffer_load_dwordx4 {vr(r+4,4)}, v17, {sr(R_WS,4)}, s{sL} offen sc1")
        a(f"s_add_u32 s{sL}, s{sL}, 2048")
    for r in range(16, 64): a(f"v_mov_b32 v{ACC+r}, 0")
    a("s_waitcnt vmcnt(0)"); vm.q = []
    for i in range(8):
        a(f"v_lshlrev_b32 v{ACC+2*i}, 16, v{48+i}\nv_and_b32 v{ACC+2*i+1}, 0xffff0000, v{48+i}")
    steps = [dict(dma=dma, ld=ld, tr=(14, 15, 512), lds_is_a=True) for _ in range(32)]
    gemm_stream(a, steps, vm)
    reduce4(a, 1, red)
    k = 2 * math.sqrt(2 / math.pi) * math.log2(math.e)
    a(f"s_mov_b32 s{sT0}, {f32(-k*0.044715)}\nv_mov_b32 v18, {f32(-k)}")
    T = ACC + 16
    for r in range(16): a(f"v_mul_f32 v{T+r}, v{ACC+r}, v{ACC+r}")
    for r in range(16): a(f"v_fma_f32 v{T+r}, v{T+r}, s{sT0}, v18")
    for r in range(16): a(f"v_mul_f32 v{T+r}, v{T+r}, v{ACC+r}")
    for r in range(16): a(f"v_exp_f32 v{T+r}, v{T+r}")
    for r in range(16): a(f"v_add_f32 v{T+r}, 1.0, v{T+r}")
    for r in range(16): a(f"v_rcp_f32 v{T+r}, v{T+r}")
    for r in range(16): a(f"v_mul_f32 v{T+r}, v{T+r}, v{ACC+r}")
    for i in range(8): a(f"v_cvt_pk_bf16_f32 v{ACC+i}, v{T+2*i}, v{T+2*i+1}")
    a(f"""
    s_mul_i32 s{sT0}, s{sA}, 112
    s_lshl_b32 s{sT1}, s{sFB}, 2
    s_add_u32 s{sT0}, s{sT0}, s{sT1}
    s_lshl_b32 s{sT1}, s{sGM}, 1
    s_add_u32 s{sT0}, s{sT0}, s{sT1}
    s_lshl_b32 s{sT0}, s{sT0}, 11
    s_add_u32 s{sT0}, s{sT0}, {WS_U}
    buffer_store_dwordx4 {vr(ACC,4)}, v16, {sr(R_WS,4)}, s{sT0} offen sc1
    buffer_store_dwordx4 {vr(ACC+4,4)}, v16, {sr(R_WS,4)}, s{sT0} offen offset:2048 sc1
    s_branch {done}
    """)

def gemm2(a, fused, done, red):
    sD2, sL2 = 91, 92
    srd(a, R_W2, P_W2, 1792 * 4096)
    srd(a, R_WO, P_WO, 448 * 896)
    srd(a, R_OUT, P_OUT, 2048 * 896)
    srd(a, R_B, P_B2, 2048 * 2)
    vm = VM(a)
    a(f"""
    v_mul_u32_u24 v10, 896, v{vJ}
    v_lshl_add_u32 v10, v{vHH}, 3, v10
    s_lshl_b32 s{sT0}, s{sRB}, 1
    s_add_u32 s{sT0}, s{sT0}, s{sGN}
    s_lshl_b32 s{sT2}, s{sT0}, 6
    s_mul_i32 s{sT0}, s{sT0}, {32*896}
    s_mul_i32 s{sT1}, s{sCB}, 112
    s_add_u32 s{sT0}, s{sT0}, s{sT1}
    s_lshl_b32 s{sT1}, s{sGM}, 6
    s_add_u32 s{sA}, s{sT0}, s{sT1}
    v_lshlrev_b32 v11, 1, v{vJ}
    """)
    for g in range(4): a(f"buffer_load_dwordx2 {vr(48+2*g,2)}, v10, {sr(R_X,4)}, s{sA} offen offset:{16*g}")
    a(f"buffer_load_ushort v56, v11, {sr(R_B,4)}, s{sT2} offen")
    a(f"""
    v_lshl_add_u32 v11, v5, 12, v6
    v_mul_u32_u24 v19, 896, v5
    v_add_u32 v19, v19, v6
    v_lshl_add_u32 v12, v{vHH}, 9, v8
    v_xor_b32 v13, 64, v12
    v_add_u32 v18, 1024, v4
    s_mul_i32 s{sD}, s{sG}, {448*4096}
    s_lshl_b32 s{sT0}, s{sRB}, 7
    s_add_u32 s{sD}, s{sD}, s{sT0}
    s_mul_i32 s{sL}, s{sCB}, 112
    s_mul_i32 s{sT0}, s{sG}, 28
    s_add_u32 s{sL}, s{sL}, s{sT0}
    s_lshl_b32 s{sL}, s{sL}, 11
    s_add_u32 s{sL}, s{sL}, {WS_U}
    s_mul_i32 s{sD2}, s{sG}, {112*896}
    s_mul_i32 s{sT0}, s{sCB}, 112
    s_add_u32 s{sD2}, s{sD2}, s{sT0}
    s_lshl_b32 s{sL2}, s{sRB}, 16
    s_lshl_b32 s{sT0}, s{sG}, 14
    s_add_u32 s{sL2}, s{sL2}, s{sT0}
    s_add_u32 s{sL2}, s{sL2}, {WS_O}
    """)
    sel2(a, 14, 15, 12, 13, sGN)
    sel2(a, 16, 17, 4, 9, sGM)
    sel2(a, 20, 21, 12, 13, sGM)
    sel2(a, 22, 23, 4, 18, sGN)
    def dma_u(k, slot):
        for h in range(2):
            a(f"s_add_u32 m0, s{sRing}, {slot*2048 + h*1024}")
            a("s_nop 0")
            vm.issue(('d', k), f"buffer_load_dwordx4 v11, {sr(R_W2,4)}, s{sD} offen lds")
            a(f"s_add_u32 s{sD}, s{sD}, {8*4096}")
    def ld_u(k, r):
        vm.issue(('l', k), f"buffer_load_dwordx4 {vr(r,4)}, v16, {sr(R_WS,4)}, s{sL} offen sc1")
        vm.issue(('l', k), f"buffer_load_dwordx4 {vr(r+4,4)}, v17, {sr(R_WS,4)}, s{sL} offen sc1")
        a(f"s_add_u32 s{sL}, s{sL}, 2048")
    def dma_o(k, slot):
        m = (k - 28) & 1
        for h in range(2):
            a(f"s_add_u32 m0, s{sRing}, {slot*2048 + h*1024}")
            a("s_nop 0")
            vm.issue(('d', k), f"buffer_load_dwordx4 v19, {sr(R_WO,4)}, s{sD2} offen lds")
            inc = 4 if (m == 1 and h == 1) else 8
            a(f"s_add_u32 s{sD2}, s{sD2}, {inc*896}")
    def ld_o(k, r):
        vm.issue(('l', k), f"buffer_load_dwordx4 {vr(r,4)}, v22, {sr(R_WS,4)}, s{sL2} offen sc1")
        vm.issue(('l', k), f"buffer_load_dwordx4 {vr(r+4,4)}, v23, {sr(R_WS,4)}, s{sL2} offen sc1")
        a(f"s_add_u32 s{sL2}, s{sL2}, 2048")
    for r in range(16, 64): a(f"v_mov_b32 v{ACC+r}, 0")
    a("s_waitcnt vmcnt(0)\nv_lshlrev_b32 v56, 16, v56")
    for i in range(8):
        a(f"v_lshlrev_b32 v{ACC+2*i}, 16, v{48+i}\nv_and_b32 v{ACC+2*i+1}, 0xffff0000, v{48+i}")
    for r in range(16): a(f"v_add_f32 v{ACC+r}, v56, v{ACC+r}")
    steps = [dict(dma=dma_u, ld=ld_u, tr=(14, 15, 1024), lds_is_a=False) for _ in range(28)]
    steps += [dict(dma=dma_o, ld=ld_o, tr=(20, 21, 1024), lds_is_a=True) for _ in range(8)]
    gemm_stream(a, steps, vm)
    reduce4(a, 2, red)
    for i in range(8): a(f"v_cvt_pk_bf16_f32 v{ACC+16+i}, v{ACC+2*i}, v{ACC+2*i+1}")
    for g in range(3): a(f"buffer_store_dwordx2 {vr(ACC+16+2*g,2)}, v10, {sr(R_OUT,4)}, s{sA} offen offset:{16*g}")
    a(f"""
    s_cmp_lg_u32 s{sGM}, 0
    s_cbranch_scc1 {done}
    buffer_store_dwordx2 {vr(ACC+22,2)}, v10, {sr(R_OUT,4)}, s{sA} offen offset:48
    s_branch {done}
    """)

def init_cnt(a):
    a(f"""
    v_lshlrev_b32 v4, 2, v{vLANE}
    v_add_u32 v4, {LDS_CNT}, v4
    v_mov_b32 v5, 0
    ds_write_b32 v4, v5
    s_waitcnt lgkmcnt(0)
    s_barrier
    """)

def kernel_head(a, name):
    a(f".globl {name}\n.p2align 8\n.type {name},@function\n{name}:")
def descriptor(name):
    return f""".amdhsa_kernel {name}
  .amdhsa_next_free_vgpr 256
  .amdhsa_next_free_sgpr 102
  .amdhsa_accum_offset 256
  .amdhsa_group_segment_fixed_size 0
  .amdhsa_kernarg_size 104
  .amdhsa_user_sgpr_count 2
  .amdhsa_user_sgpr_kernarg_segment_ptr 1
  .amdhsa_system_sgpr_workgroup_id_x 1
  .amdhsa_float_denorm_mode_32 3
.end_amdhsa_kernel
"""

def build_multi():
    global LDS_RED2
    a = Asm()
    names = ["p1_kernel", "p2_kernel", "p3_kernel"]
    a('.amdgcn_target "amdgcn-amd-amdhsa--gfx950"\n.text')
    kernel_head(a, names[0]); e = "end1"
    prologue(a, e); phase1(a, False, e); a(f"{e}:\ns_endpgm")
    kernel_head(a, names[1]); e = "end2"; g = "g2lab"
    prologue(a, e); init_cnt(a)
    a(f"s_cmp_ge_u32 s{sW}, 4\ns_cbranch_scc1 {g}")
    attention(a, False, e)
    a(f"{g}:"); g_setup(a); gemm1(a, False, e, (LDS_RING, RING*2048))
    a(f"{e}:\ns_endpgm")
    kernel_head(a, names[2]); e = "end3"
    prologue(a, e); init_cnt(a)
    a(f"s_cmp_lt_u32 s{sW}, 4\ns_cbranch_scc1 {e}")
    g_setup(a); gemm2(a, False, e, (LDS_RING, RING*2048))
    a(f"{e}:\ns_endpgm")
    check(a.L)
    head = open(f"cdna_kernels/{NAME}.s.ref").read().split("; Override")[0]
    ll = "".join(f"; @launch kernel={n} grid=(256,1,1) block=(512,1,1) lds={LDS_TOTAL}\n" for n in names)
    body = a.text()
    desc = '.section .rodata,"a"\n' + "".join(".p2align 6\n" + descriptor(n) for n in names)
    return head + ll + body + desc

if __name__ == "__main__":
    out = sys.argv[1] if len(sys.argv) > 1 else f"cdna_kernels/{NAME}.s"
    open(out, "w").write(build_multi())
```

```python
import sys, math, struct
sys.path.insert(0, "dev")
from asmlib import Asm, vr, sr, check

NAME = "parallel_sum__grouped_kv_mqa__mixer_token_mlp__prompt"
WS_HT = 0
WS_KV = 2 << 20
WS_U  = 5 << 20
WS_O  = 7 << 20
WS_FLG = 10 << 20
FL_H  = WS_FLG
FL_KV = WS_FLG + 8192
FL_U  = WS_FLG + 12288
FL_O  = WS_FLG + 20480
WS_EPOCH = WS_FLG + 32768
WS_STAMP = 12 << 20
WS_SIZE = 16 << 20
DBLK = 64
class O: pass
OPT = O(); OPT.stamps = False; OPT.double = False; OPT.prio_g = 0; OPT.prio_e = 3; OPT.prio_a = 0; OPT.pf2step = 6; OPT.pre = 12; OPT.lw = 5; OPT.dh = 8; OPT.pre0 = 4; OPT.gatek = 1; OPT.rdin = 2; OPT.pre1 = 0; OPT.engd = 0; OPT.kvflag = 8; OPT.attit = 4; OPT.nold = 0; OPT.nodma = 0; OPT.nokv = 0
L_XT = 0; L_WQ = 57344; L_WKV = 114688
HB_STRIDE = 912
L_HB = 141056; L_QS = 147456; L_KC = 155648; L_KS = L_KC + 1024; L_MX = L_KC
L_ST = 158720; L_RT = 159232; L_CNT = 159360; LDS_TOTAL = 159744
RING = 12; L_RING = 49152; L_RED = 0
def slotp(k): return (k + 8) % RING
C_X, C_KV, C_H, C_ST, C_Q, C_ISS, C_R1, C_R1D, C_ATT, C_R2, C_X1, C_XA, C_FL = range(13)
sXCD, sJ, sRB, sCB, sW = 3, 4, 5, 6, 7
sT0, sT1, sT2, sT3, sT4, sT5 = 8, 9, 10, 11, 12, 13
sHI = 14
P_X, P_WQ, P_WK, P_WV, P_WO, P_BX, P_W1, P_B1, P_W2, P_B2, P_OUT, P_DBG, P_WS = 16, 18, 20, 22, 24, 26, 28, 30, 32, 34, 36, 38, 40
sTAG = 42
R_X, R_WQ, R_WKV, R_WS, R_W1, R_W2, R_WO, R_OUT, R_KV = 44, 48, 52, 56, 60, 64, 68, 72, 76
R_B1, R_B2 = R_WQ, R_WKV
sONES, sSPIN, sPFW = 82, 83, 99
sG, sGM, sGN, sRing, sA, sD, sL, sFB, sDb, sD2, sLb, sL2, sOUT, sB2 = range(84, 98)
sU0, sU1, sU2, sU3, sU4, sU5 = range(84, 90)
OOB = 0x40000000
EPS = 0x3727c5ac
QSCALE = (28 ** -0.5) * math.log2(math.e)
def f32(x): return "0x%08x" % struct.unpack("<I", struct.pack("<f", x))[0]
vLANE, vJ, vHH, vL16 = 1, 2, 3, 4
MF = "v_mfma_f32_32x32x16_bf16"

def stamp(a, idx):
    if not OPT.stamps: return
    a(f"s_memrealtime s[100:101]\ns_waitcnt lgkmcnt(0)\nv_writelane_b32 v255, s100, {idx}")
    if idx in (0, 15): a(f"s_memtime s[100:101]\ns_waitcnt lgkmcnt(0)\nv_writelane_b32 v255, s100, {idx+32}")

def srd(a, r, p, size):
    a(f"s_mov_b32 s{r}, s{p}\ns_mov_b32 s{r+1}, s{p+1}\ns_mov_b32 s{r+2}, {size}\ns_mov_b32 s{r+3}, 0x20000")

def get_tag(a):
    a(f"""
    v_readfirstlane_b32 s{sTAG}, v26
    v_readfirstlane_b32 s{sTAG+1}, v27
    s_mul_i32 s{sTAG}, s{sTAG}, 0x9e3779b5
    s_mul_i32 s{sTAG+1}, s{sTAG+1}, 0x85ebca6d
    s_add_u32 s{sTAG}, s{sTAG}, 0x7f4a7c15
    s_add_u32 s{sTAG+1}, s{sTAG+1}, 0x165667b1
    """)

def set_flag(a, soff, vt=30):
    a(f"""
    v_mov_b32 v{vt}, s{sTAG}
    v_mov_b32 v{vt+1}, s{sTAG+1}
    s_waitcnt vmcnt(0)
    s_mov_b64 exec, 1
    buffer_store_dwordx2 {vr(vt,2)}, off, {sr(R_WS,4)}, s{soff} sc1
    s_mov_b64 exec, -1
    """)

def poll(a, soff, n, vo=28, vt=30, sh=3):
    lp = a.label("poll"); dn = a.label("polld")
    a(f"""
    v_min_u32 v{vo}, {n-1}, v{vLANE}
    v_lshlrev_b32 v{vo}, {sh}, v{vo}
    s_mov_b32 s{sSPIN}, 20000
    {lp}:
    buffer_load_dwordx2 {vr(vt,2)}, v{vo}, {sr(R_WS,4)}, s{soff} offen sc1
    s_waitcnt vmcnt(0)
    v_cmp_ne_u64 vcc, {sr(sTAG,2)}, {vr(vt,2)}
    s_cbranch_vccz {dn}
    s_sub_u32 s{sSPIN}, s{sSPIN}, 1
    s_cmp_lg_u32 s{sSPIN}, 0
    s_cbranch_scc1 {lp}
    {dn}:
    """)

def lds_arrive(a, cnt, nowait=False):
    a(f"""
    s_mov_b64 exec, 1
    {'' if nowait else 's_waitcnt lgkmcnt(0)'}
    ds_add_u32 v0, v29 offset:{4*cnt}
    s_mov_b64 exec, -1
    """)
def lds_wait(a, cnt, target, sleep=0):
    spin = a.label("spin")
    a(f"""
    {spin}:
    {f's_sleep {sleep}' if sleep else ''}
    ds_read_b32 v28, v0 offset:{4*cnt}
    s_waitcnt lgkmcnt(0)
    v_readfirstlane_b32 s{sT5}, v28
    s_cmp_lt_u32 s{sT5}, {target}
    s_cbranch_scc1 {spin}
    """)

def bf16_stats(a, vs, vq, vm, vr_, t):
    a(f"""
    v_mul_f32 v{vs}, {f32(1/448)}, v{vs}
    v_mul_f32 v{vq}, {f32(1/448)}, v{vq}
    v_fma_f32 v{vq}, -v{vs}, v{vs}, v{vq}
    v_max_f32 v{vq}, 0, v{vq}
    v_cvt_pk_bf16_f32 v{t}, v{vs}, v{vq}
    v_lshlrev_b32 v{vm}, 16, v{t}
    v_and_b32 v{t}, 0xffff0000, v{t}
    v_add_f32 v{t}, {EPS:#x}, v{t}
    v_cvt_pk_bf16_f32 v{t}, v{t}, v{t}
    v_and_b32 v{t}, 0xffff0000, v{t}
    v_sqrt_f32 v{t}, v{t}
    s_nop 0
    v_cvt_pk_bf16_f32 v{t}, v{t}, v{t}
    v_and_b32 v{t}, 0xffff0000, v{t}
    v_rcp_f32 v{vr_}, v{t}
    s_nop 0
    """)

def dpp_reduce(a, vs, vq, modes):
    a("s_nop 2")
    for mode in modes:
        a(f"v_add_f32_dpp v{vs}, v{vs}, v{vs} {mode} row_mask:0xf bank_mask:0xf")
        a(f"v_add_f32_dpp v{vq}, v{vq}, v{vq} {mode} row_mask:0xf bank_mask:0xf")
        a("s_nop 0")
QP1, QP2, RHM, RM = "quad_perm:[1,0,3,2]", "quad_perm:[2,3,0,1]", "row_half_mirror", "row_mirror"

def split_hi_lo(a, dst, src, t):
    a(f"""
    v_cvt_pk_bf16_f32 v{t}, v{src}, v{src}
    v_and_b32 v{t}, 0xffff0000, v{t}
    v_sub_f32 v{t}, v{src}, v{t}
    v_cvt_pk_bf16_f32 v{dst}, v{src}, v{t}
    """)

def prologue(a, end):
    a(f"s_cmp_ge_u32 s2, 256\ns_cbranch_scc1 {end}x")
    if OPT.double: a("s_memrealtime s[80:81]")
    if OPT.stamps: a("v_mov_b32 v255, 0")
    stamp(a, 0)
    a(f"""
    s_load_dwordx16 s[16:31], s[0:1], 0
    s_load_dwordx8 s[32:39], s[0:1], 64
    s_load_dwordx2 s[40:41], s[0:1], 96
    v_lshrrev_b32 v5, 6, v0
    v_and_b32 v{vLANE}, 63, v0
    v_readfirstlane_b32 s{sW}, v5
    v_and_b32 v{vJ}, 31, v0
    v_lshrrev_b32 v{vHH}, 5, v{vLANE}
    v_lshlrev_b32 v{vL16}, 4, v{vLANE}
    s_and_b32 s{sXCD}, s2, 7
    s_lshr_b32 s{sJ}, s2, 3
    s_lshr_b32 s{sT0}, s{sJ}, 3
    s_lshl_b32 s{sRB}, s{sXCD}, 2
    s_add_u32 s{sRB}, s{sRB}, s{sT0}
    s_and_b32 s{sCB}, s{sJ}, 7
    s_mov_b32 s{sHI}, 0
    s_mov_b32 s{sHI+1}, -1
    s_mov_b32 s{sONES}, 0x3f803f80
    v_lshlrev_b32 v5, 2, v{vLANE}
    v_add_u32 v5, {L_CNT}, v5
    v_mov_b32 v6, 0
    ds_write_b32 v5, v6
    v_mov_b32 v0, {L_CNT}
    v_mov_b32 v29, 1
    v_lshrrev_b32 v5, 3, v{vLANE}
    v_and_b32 v6, 7, v{vLANE}
    v_lshrrev_b32 v7, 4, v{vLANE}
    v_bfe_u32 v8, v{vLANE}, 2, 2
    v_and_b32 v9, 3, v{vLANE}
    v_and_b32 v10, 1, v7
    v_lshlrev_b32 v9, 3, v9
    v_lshl_add_u32 v9, v10, 5, v9
    """)
    p1_addr(a)
    a(f"s_cmp_ge_u32 s{sW}, 4\ns_cbranch_scc1 p1g")

def common_srds(a):
    a("s_waitcnt lgkmcnt(0)")
    srd(a, R_X, P_X, 2048 * 896)
    srd(a, R_WS, P_WS, WS_SIZE)
    stamp(a, 1)

def epoch_load(a):
    a(f"s_mov_b32 s{sT5}, {WS_EPOCH}\nbuffer_load_dwordx2 v[26:27], off, {sr(R_WS,4)}, s{sT5} sc1")

vXe, vXo, vWQd = 11, 12, 13
sNL, sXs, sXm, sNT, sXs2, sXm2, sQs, sQm, sW3 = 85, 86, 87, 88, 89, 90, 91, 92, 93
def p1_addr(a):
    a(f"""
    v_mul_u32_u24 v20, 896, v5
    v_xor_b32 v21, v6, v7
    v_lshl_add_u32 v{vXe}, v21, 4, v20
    v_xor_b32 v21, 4, v21
    v_lshl_add_u32 v{vXo}, v21, 4, v20
    v_lshlrev_b32 v21, 2, v10
    v_xor_b32 v21, v21, v6
    v_lshl_add_u32 v{vWQd}, v21, 4, v20
    s_and_b32 s{sW3}, s{sW}, 3
    s_cmp_eq_u32 s{sW3}, 3
    s_cselect_b32 s{sNL}, 1, 2
    s_bfe_u32 s{sNT}, s{sCB}, 0x10001
    s_lshl_b32 s{sT0}, s{sRB}, 1
    s_add_u32 s{sT0}, s{sT0}, s{sNT}
    s_mul_i32 s{sXs}, s{sT0}, {32*896}
    s_lshl_b32 s{sT0}, s{sW3}, 8
    s_add_u32 s{sXs}, s{sXs}, s{sT0}
    s_lshl_b32 s{sXm}, s{sW3}, 14
    s_lshl_b32 s{sT0}, s{sNT}, 12
    s_add_u32 s{sXm}, s{sXm}, s{sT0}
    """)
def rest_dma(a, after_x=None):
    srd(a, R_WQ, P_WQ, 448 * 896)
    a(f"""
    s_xor_b32 s{sXm2}, s{sXm}, 4096
    s_mul_i32 s{sT0}, s{sNT}, {2*32*896}
    s_add_u32 s{sXs2}, s{sXs}, {32*896}
    s_sub_u32 s{sXs2}, s{sXs2}, s{sT0}
    s_mul_i32 s{sQs}, s{sW3}, {128*896}
    s_mul_i32 s{sT0}, s{sCB}, 112
    s_add_u32 s{sQs}, s{sQs}, s{sT0}
    s_lshl_b32 s{sQm}, s{sW3}, 14
    """)
    if after_x: after_x()
    l1 = a.label("rd1"); l2 = a.label("rd2")
    for line in range(2):
        if line: a(f"s_cmp_eq_u32 s{sNL}, 1\ns_cbranch_scc1 {l1}")
        for b in range(4):
            a(f"""
            s_add_u32 m0, s{sXm2}, {L_XT + line*8192 + b*1024}
            s_add_u32 s{sT0}, s{sXs2}, {b*8*896 + line*128}
            buffer_load_dwordx4 v{vXo if b & 1 else vXe}, {sr(R_X,4)}, s{sT0} offen lds
            """)
    a(f"{l1}:")
    for line in range(2):
        if line:
            a("s_waitcnt vmcnt(8)")
            lds_arrive(a, C_XA, nowait=True)
            a(f"s_cmp_eq_u32 s{sNL}, 1\ns_cbranch_scc1 {l2}")
        for b in range(8):
            a(f"""
            s_add_u32 m0, s{sQm}, {L_WQ + line*8192 + b*1024}
            s_add_u32 s{sT0}, s{sQs}, {(line*64 + b*8)*896}
            buffer_load_dwordx4 v{vWQd}, {sr(R_WQ,4)}, s{sT0} offen lds
            """)
    a(f"{l2}:")

def p1_a(a):
    vXF, vWK, vWQr = 14, 18, 19
    sB, sM = 94, 96
    a(f"""
    s_and_b32 s{sT1}, s{sCB}, 1
    s_lshl_b32 s{sT2}, s{sT1}, 11
    s_xor_b32 s{sM}, s{sXm}, s{sT2}
    s_mul_i32 s{sT1}, s{sT1}, {16*896}
    s_add_u32 s{sB}, s{sXs}, s{sT1}
    s_add_u32 s{sT2}, s{sXs}, {16*896}
    s_sub_u32 s{sB+1}, s{sT2}, s{sT1}
    s_lshr_b32 s{sT3}, s{sJ}, 3
    s_lshl_b32 s{sT3}, s{sT3}, 2
    s_add_u32 s{sT3}, s{sT3}, s{sCB}
    s_sub_u32 s{sT3}, s{sT3}, 4
    s_lshl_b32 s{sT3}, s{sT3}, 2
    s_add_u32 s{sT3}, s{sT3}, s{sW}
    v_lshlrev_b32 v21, 7, v{vLANE}
    """)
    common_srds(a)
    def x_half(h):
        sk = a.label("xh")
        for line in range(2):
            if line: a(f"s_cmp_eq_u32 s{sNL}, 1\ns_cbranch_scc1 {sk}")
            for b in range(2):
                a(f"""
                s_xor_b32 m0, s{sM}, {line*8192 + h*2048 + b*1024}
                s_add_u32 s{sT0}, s{sB+h}, {b*8*896 + line*128}
                buffer_load_dwordx4 v{vXo if b else vXe}, {sr(R_X,4)}, s{sT0} offen lds
                """)
        a(f"{sk}:")
    htype = a.label("htype"); qgo = a.label("qgo"); kvred = a.label("kvred")
    x_half(0)
    a(f"s_cmp_ge_u32 s{sCB}, 4\ns_cbranch_scc1 {htype}")
    x_half(1)
    a(f"""
    s_bitcmp1_b32 s{sCB}, 0
    s_cselect_b32 s{R_WKV}, s{P_WV}, s{P_WK}
    s_cselect_b32 s{R_WKV+1}, s{P_WV+1}, s{P_WK+1}
    s_mov_b32 s{R_WKV+2}, {448*56}
    s_mov_b32 s{R_WKV+3}, 0x20000
    s_mul_i32 s{sT1}, s{sW}, 7168
    s_add_u32 m0, s{sT1}, {L_WKV}
    s_cmp_eq_u32 s{sNL}, 1
    """)
    w3 = a.label("wk3"); w3e = a.label("wk3e")
    for i in range(4): a(f"buffer_load_dwordx4 v{vL16}, {sr(R_WKV,4)}, s{sT1} offen offset:{1024*i} lds")
    a(f"""
    s_cbranch_scc1 {w3}
    s_add_u32 m0, m0, 4096
    s_add_u32 s{sT1}, s{sT1}, 4096
    """)
    for i in range(3): a(f"buffer_load_dwordx4 v{vL16}, {sr(R_WKV,4)}, s{sT1} offen offset:{1024*i} lds")
    a(f"{w3}:")
    epoch_load(a)
    a("s_barrier")
    def frag_addr():
        a(f"""
        v_lshrrev_b32 v20, 1, v{vJ}
        v_and_b32 v20, 7, v20
        v_xor_b32 v20, v20, v{vHH}
        v_lshlrev_b32 v20, 4, v20
        v_lshl_add_u32 v{vXF}, v{vJ}, 7, v20
        v_xor_b32 v{vXF+1}, 32, v{vXF}
        v_xor_b32 v{vXF+2}, 64, v{vXF}
        v_xor_b32 v{vXF+3}, 96, v{vXF}
        v_lshl_add_u32 v20, v{vHH}, 3, v8
        """)
    frag_addr()
    ACC, XF, WF = 96, 32, 64
    vS, vQ, vC = 21, 22, 23
    a(f"""
    v_mul_u32_u24 v{vWK}, 56, v20
    v_add_u32 v{vWK}, v{vWK}, v9
    s_mul_i32 s{sT1}, s{sW}, 7168
    s_add_u32 s{sT1}, s{sT1}, {L_WKV}
    v_add_u32 v{vWK}, s{sT1}, v{vWK}
    v_add_u32 v24, s{sXm}, v{vXF}
    v_xor_b32 v25, 32, v24
    v_xor_b32 v30, 64, v24
    v_xor_b32 v31, 96, v24
    v_mov_b32 v{vS}, 0
    v_mov_b32 v{vQ}, 0
    v_mov_b32 v{vC}, 0
    """)
    xa = [24, 25, 30, 31]
    l0 = a.label("kv0"); l1 = a.label("kv1a"); l2 = a.label("kv1b"); vlab = a.label("kvv")
    def skip1(lab): a(f"s_cmp_eq_u32 s{sNL}, 1\ns_cbranch_scc1 {lab}")
    a(f"s_waitcnt vmcnt(8)\ns_cmp_eq_u32 s{sNL}, 1\ns_cbranch_scc0 {l0}\ns_waitcnt vmcnt(5)\n{l0}:")
    stamp(a, 2)
    for line in range(2):
        for q in range(4): a(f"ds_read_b128 {vr(XF+16*line+4*q,4)}, v{xa[q]} offset:{L_XT + line*8192}")
    lds_arrive(a, C_X1, nowait=True)
    for line in range(2):
        if line: skip1(l1)
        for q in range(4):
            a(f"s_waitcnt lgkmcnt({8-4*line-q})")
            for i in range(4):
                r = XF + 16 * line + 4 * q + i
                a(f"v_dot2c_f32_bf16 v{vS}, s{sONES}, v{r}\nv_dot2c_f32_bf16 v{vQ}, v{r}, v{r}")
    a(f"{l1}:\ns_waitcnt vmcnt(1) lgkmcnt(0)")
    stamp(a, 18)
    for k in range(8):
        a(f"ds_read_b64_tr_b16 {vr(WF+4*k,2)}, v{vWK} offset:{k*896}")
        if k == 7: a("s_waitcnt lgkmcnt(14)")
        a(f"ds_read_b64_tr_b16 {vr(WF+4*k+2,2)}, v{vWK} offset:{k*896+224}")
    a(f"""
    s_lshl_b32 s{sT0}, s{sW}, 4
    s_add_u32 s{sT0}, s{sT0}, {L_KS}
    v_lshlrev_b32 v25, 6, v{vJ}
    v_lshl_add_u32 v24, v{vHH}, 3, v25
    v_add_u32 v24, s{sT0}, v24
    v_mov_b32 v30, v{vQ}
    v_mov_b32 v31, v{vS}
    s_bitcmp1_b32 s{sCB}, 0
    s_cbranch_scc1 {vlab}
    """)
    for isv in (0, 1):
        if isv: a(f"{vlab}:")
        for k in range(8):
            if k == 4: skip1(l2)
            a(f"s_waitcnt lgkmcnt({14-2*k})")
            A, B = (vr(XF+4*k,4), vr(WF+4*k,4)) if isv else (vr(WF+4*k,4), vr(XF+4*k,4))
            a(f"{MF} {vr(ACC,16)}, {A}, {B}, {vr(ACC,16) if k else 0}")
        if not isv: a(f"s_branch {l2}")
    a(f"{l2}:\nds_write_b64 v24, v[30:31]")
    for k in range(8):
        if k == 4: skip1(kvred)
        for i in range(4): a(f"v_dot2c_f32_bf16 v{vC}, s{sONES}, v{WF+4*k+i}")
    a(f"{kvred}:")
    stamp(a, 3)
    fin = a.label("kvfin")
    a(f"""
    s_lshl_b32 s{sT0}, s{sW}, 2
    s_add_u32 s{sT0}, s{sT0}, {L_KC}
    v_add_u32 v30, s{sT0}, v{vL16}
    s_cmp_eq_u32 s{sW}, 3
    s_cbranch_scc1 {fin}
    v_add_u32 v24, s{sT1}, v{vL16}
    """)
    for g in range(4): a(f"ds_write_b128 v24, {vr(ACC+4*g,4)} offset:{1024*g}")
    split_hi_lo(a, 24, vC, 31)
    a("ds_write_b32 v30, v24")
    lds_arrive(a, C_KV, nowait=True)
    a("s_waitcnt vmcnt(0)")
    get_tag(a)
    a(f"s_branch {qgo}")
    a(f"{fin}:")
    split_hi_lo(a, 24, vC, 31)
    a(f"""
    ds_write_b32 v30, v24
    v_add_u32 v24, {L_KS}, v25
    v_add_u32 v25, {L_WKV}, v{vL16}
    v_add_u32 v21, {L_KC}, v{vL16}
    s_lshl_b32 s{sT1}, s{sRB}, 1
    s_add_u32 s{sT1}, s{sT1}, s{sNT}
    s_lshl_b32 s{sT1}, s{sT1}, 12
    s_add_u32 s{sT1}, s{sT1}, {WS_KV}
    s_lshl_b32 s{sT4}, s{sRB}, 2
    s_add_u32 s{sT4}, s{sT4}, s{sCB}
    s_lshl_b32 s{sT4}, s{sT4}, 3
    s_add_u32 s{sT4}, s{sT4}, {FL_KV}
    s_waitcnt vmcnt(0)
    s_setprio 3
    """)
    get_tag(a)
    lds_wait(a, C_KV, 3)
    stamp(a, 4)
    for g in range(4): a(f"ds_read_b128 {vr(XF+4*g,4)}, v24 offset:{16*g}")
    a(f"ds_read_b128 {vr(112,4)}, v21")
    for w in range(3):
        for g in range(4):
            if w == 2 and g >= 2: continue
            a(f"ds_read_b128 {vr(128+16*w+4*g,4)}, v25 offset:{7168*w+1024*g}")
    a("s_waitcnt lgkmcnt(11)")
    for g in range(2, 4): a(f"ds_read_b128 {vr(128+32+4*g,4)}, v25 offset:{7168*2+1024*g}")
    for i in range(4): a(f"v_pk_add_f32 {vr(XF+4*i,2)}, {vr(XF+4*i,2)}, {vr(XF+4*i+2,2)}")
    a(f"""
    v_pk_add_f32 {vr(XF,2)}, {vr(XF,2)}, {vr(XF+4,2)}
    v_pk_add_f32 {vr(XF+8,2)}, {vr(XF+8,2)}, {vr(XF+12,2)}
    v_pk_add_f32 {vr(XF,2)}, {vr(XF,2)}, {vr(XF+8,2)}
    """)
    bf16_stats(a, XF + 1, XF, 22, 23, 21)
    vfin = a.label("vfin"); kvst = a.label("kvst")
    a(f"""
    v_cvt_pk_bf16_f32 v116, -v22, -v22
    v_lshlrev_b32 v21, 2, v{vJ}
    v_add_u32 v21, {L_RT}, v21
    ds_write_b32 v21, v23
    v_mov_b32 v117, v116
    v_mov_b32 v118, v116
    v_mov_b32 v119, v116
    v_lshlrev_b32 v21, 4, v{vHH}
    v_add_u32 v21, {L_RT}, v21
    s_waitcnt lgkmcnt(5)
    """)
    for r in range(0, 16, 2): a(f"v_pk_add_f32 {vr(128+r,2)}, {vr(128+r,2)}, {vr(144+r,2)}")
    a("s_waitcnt lgkmcnt(1)")
    for r in range(0, 16, 2): a(f"v_pk_add_f32 {vr(ACC+r,2)}, {vr(ACC+r,2)}, {vr(160+r,2)}")
    for r in range(0, 16, 2): a(f"v_pk_add_f32 {vr(ACC+r,2)}, {vr(ACC+r,2)}, {vr(128+r,2)}")
    a(f"""
    s_bitcmp1_b32 s{sCB}, 0
    s_cbranch_scc1 {vfin}
    {MF} {vr(ACC,16)}, {vr(112,4)}, {vr(116,4)}, {vr(ACC,16)}
    v_mov_b32 v22, v23
    s_nop 10
    """)
    for r in range(0, 16, 2): a(f"v_pk_mul_f32 {vr(ACC+r,2)}, {vr(ACC+r,2)}, v[22:23]")
    for i in range(8): a(f"v_cvt_pk_bf16_f32 v{120+i}, v{ACC+2*i}, v{ACC+2*i+1}")
    a(f"""
    s_mov_b64 exec, {sr(sHI,2)}
    v_mov_b32 v126, 0x3f803f80
    v_mov_b32 v127, 0x00003f80
    s_mov_b64 exec, -1
    s_branch {kvst}
    {vfin}:
    {MF} {vr(ACC,16)}, {vr(116,4)}, {vr(112,4)}, {vr(ACC,16)}
    """)
    for g in range(4): a(f"ds_read_b128 {vr(XF+4*g,4)}, v21 offset:{32*g}")
    a(f"""
    s_add_u32 s{sT1}, s{sT1}, 2048
    v_cmp_eq_u32 vcc, 28, v{vJ}
    v_mov_b32 v22, 0x3f803f80
    s_nop 1
    v_cndmask_b32 v22, 0, v22, vcc
    """)
    for i in range(8): a(f"v_mov_b32 v{120+i}, v22")
    a(f"s_waitcnt lgkmcnt(0)\ns_mov_b32 exec_lo, 0x0fffffff\ns_mov_b32 exec_hi, 0x0fffffff")
    for r in range(0, 16, 2): a(f"v_pk_mul_f32 {vr(ACC+r,2)}, {vr(ACC+r,2)}, {vr(XF+r,2)}")
    for i in range(8): a(f"v_cvt_pk_bf16_f32 v{120+i}, v{ACC+2*i}, v{ACC+2*i+1}")
    a(f"""
    s_mov_b64 exec, -1
    {kvst}:
    buffer_store_dwordx4 {vr(120,4)}, v{vL16}, {sr(R_WS,4)}, s{sT1} offen sc1
    buffer_store_dwordx4 {vr(124,4)}, v{vL16}, {sr(R_WS,4)}, s{sT1} offen offset:1024 sc1
    """)
    stamp(a, 5)
    a(f"s_branch {qgo}")
    a(f"""
    {htype}:
    s_cmp_ge_u32 s{sT3}, 53
    s_cselect_b32 s{R_WKV}, s{P_WV}, s{P_WK}
    s_cselect_b32 s{R_WKV+1}, s{P_WV+1}, s{P_WK+1}
    s_cselect_b32 s{sT1}, 53, 49
    s_mov_b32 s{R_WKV+2}, {448*896}
    s_cmp_ge_u32 s{sT3}, 49
    s_cselect_b32 s{R_WKV}, s{R_WKV}, s{P_WQ}
    s_cselect_b32 s{R_WKV+1}, s{R_WKV+1}, s{P_WQ+1}
    s_cselect_b32 s{R_WKV+2}, {448*56}, s{R_WKV+2}
    s_cselect_b32 s{sT1}, s{sT1}, 0
    s_mov_b32 s{R_WKV+3}, 0x20000
    s_sub_u32 s{sT3}, s{sT3}, s{sT1}
    s_lshl_b32 s{sT3}, s{sT3}, 13
    s_barrier
    buffer_load_dword v250, v21, {sr(R_WKV,4)}, s{sT3} offen
    """)
    epoch_load(a)
    frag_addr()
    def first_landed():
        a("s_waitcnt vmcnt(2)")
        stamp(a, 2)
        lds_arrive(a, C_X1, nowait=True)
        x_half(1)
    rest_dma(a, first_landed)
    a("s_waitcnt vmcnt(0)")
    lds_arrive(a, C_X, nowait=True)
    get_tag(a)
    a(f"s_mov_b32 s{sT4}, 0")
    QACC, B0 = 128, 32
    q2 = a.label("q2")
    a(f"""
    s_branch {q2}
    {qgo}:
    s_cmp_eq_u32 s{sW}, 3
    s_cselect_b32 s{sT4}, s{sT4}, 0
    {q2}:
    s_and_b32 s{sT0}, s{sW}, 1
    s_mul_i32 s{sT0}, s{sT0}, 56
    v_add_u32 v{vWQr}, s{sT0}, v9
    v_lshlrev_b32 v21, 5, v8
    v_and_b32 v21, 64, v21
    v_xor_b32 v{vWQr}, v{vWQr}, v21
    v_lshl_add_u32 v{vWQr}, v20, 7, v{vWQr}
    v_add_u32 v{vWQr}, {L_WQ}, v{vWQr}
    s_lshr_b32 s{sT1}, s{sW}, 1
    s_lshl_b32 s{sT0}, s{sT1}, 12
    v_mov_b32 v23, 0
    v_mov_b32 v113, 0
    v_mov_b32 v114, 0
    v_mov_b32 v115, 0
    v_mov_b32 v118, 0
    v_mov_b32 v119, 0
    """)
    for q in range(4): a(f"v_add_u32 v{vXF+q}, s{sT0}, v{vXF+q}")
    a(f"""
    s_lshl_b32 s{sT1}, s{sT1}, 8
    s_add_u32 s{sT1}, s{sT1}, {L_ST}
    v_lshl_add_u32 v24, v{vJ}, 3, s{sT1}
    """)
    lds_wait(a, C_X1, 4)
    lds_wait(a, C_X, 4)
    stamp(a, 7)
    D = 4; NB = 8
    WR = list(range(64, 112, 4)) + list(range(144, 176, 4)) + list(range(224, 252, 4)) + [120]
    def wreg(ks): return WR[ks]
    def reads(ks):
        b = wreg(ks)
        a(f"ds_read_b64_tr_b16 {vr(b,2)}, v{vWQr} offset:{ks*2048}")
        a(f"ds_read_b64_tr_b16 {vr(b+2,2)}, v{vWQr} offset:{ks*2048+512}")
        a(f"ds_read_b128 {vr(B0+4*(ks%NB),4)}, v{vXF+(ks&3)} offset:{L_XT + (ks>>2)*8192}")
    for ks in range(D): reads(ks)
    for ks in range(28):
        if ks + D < 28: reads(ks + D)
        a(f"s_waitcnt lgkmcnt({3*min(D, 27-ks)})")
        a(f"{MF} {vr(QACC,16)}, {vr(wreg(ks),4)}, {vr(B0+4*(ks%NB),4)}, {'0' if ks == 0 else vr(QACC,16)}")
        if ks == OPT.kvflag:
            nf = a.label("nofl")
            a(f"s_cmp_eq_u32 s{sT4}, 0\ns_cbranch_scc1 {nf}")
            set_flag(a, sT4)
            lds_arrive(a, C_FL, nowait=True)
            a("s_setprio 0")
            stamp(a, 6)
            a(f"{nf}:")
    stamp(a, 19)
    att_setup(a)
    a(f"buffer_load_dwordx2 v[30:31], v25, {sr(R_WS,4)}, s{sKF} offen sc1")
    for ks in range(28):
        for i in range(4): a(f"v_dot2c_f32_bf16 v23, s{sONES}, v{wreg(ks)+i}")
    nk = a.label("nokvyet")
    a(f"""
    s_waitcnt vmcnt(0)
    v_cmp_ne_u64 vcc, {sr(sTAG,2)}, v[30:31]
    s_cbranch_vccnz {nk}
    """)
    first_kv(a)
    a(f"s_mov_b32 s{sKF}, 0\n{nk}:")
    stamp(a, 8)
    lds_wait(a, C_ST, 4)
    a(f"ds_read_b64 v[116:117], v24")
    split_hi_lo(a, 112, 23, 21)
    a(f"""
    s_waitcnt lgkmcnt(0)
    v_mov_b32 v22, v117
    v_mov_b32 v23, v117
    v_mov_b32 v117, 0
    s_nop 1
    {MF} {vr(QACC,16)}, {vr(112,4)}, {vr(116,4)}, {vr(QACC,16)}
    s_lshl_b32 s{sT1}, s{sW}, 11
    s_add_u32 s{sT1}, s{sT1}, {L_QS}
    v_add_u32 v21, s{sT1}, v{vL16}
    """)
    for r in range(64, 76): a(f"v_mov_b32 v{r}, 0")
    for r in range(0, 16, 2): a(f"v_pk_mul_f32 {vr(QACC+r,2)}, {vr(QACC+r,2)}, v[22:23]")
    for i in range(8): a(f"v_cvt_pk_bf16_f32 v{32+i}, v{QACC+2*i}, v{QACC+2*i+1}")
    a(f"""
    s_mov_b64 exec, {sr(sHI,2)}
    v_mov_b32 v38, 0
    v_mov_b32 v39, 0
    s_mov_b64 exec, -1
    ds_write_b128 v21, {vr(32,4)}
    ds_write_b128 v21, {vr(36,4)} offset:1024
    """)
    lds_arrive(a, C_Q, nowait=True)

def p1_g(a):
    X = 128
    htype = a.label("gh"); stats = a.label("gstats"); pfw = a.label("gpfw")
    a(f"""
    s_sub_u32 s{sG}, s{sW}, 4
    v_min_u32 v14, 6, v6
    v_mul_u32_u24 v24, 3584, v5
    v_lshl_add_u32 v24, v14, 7, v24
    s_lshl_b32 s{sT1}, s{sG}, 6
    s_add_u32 s{sT1}, s{sT1}, s{sJ}
    s_mul_i32 s{sPFW}, s{sT1}, {8*3584}
    s_lshr_b32 s{sT2}, s{sXCD}, 1
    s_mul_i32 s{sT2}, s{sT2}, 896
    s_add_u32 s{sPFW}, s{sPFW}, s{sT2}
    """)
    common_srds(a)
    srd(a, R_W1, P_W1, 2048 * 3584)
    def stats_code(st0, st1):
        a(f"""
        v_lshrrev_b32 v14, 2, v{vLANE}
        v_and_b32 v15, 3, v{vLANE}
        v_lshlrev_b32 v15, 5, v15
        v_lshl_add_u32 v15, v14, 7, v15
        v_lshlrev_b32 v16, 1, v{vLANE}
        v_and_b32 v16, 16, v16
        v_add_u32 v15, v15, v16
        s_lshl_b32 s{sT0}, s{sG}, 11
        v_add_u32 v15, s{sT0}, v15
        v_xor_b32 v17, 16, v15
        s_lshl_b32 s{sT0}, s{sG}, 7
        s_add_u32 s{sT0}, s{sT0}, {L_ST}
        v_lshl_add_u32 v14, v14, 3, s{sT0}
        v_mov_b32 v18, 0
        v_mov_b32 v19, 0
        """)
        lds_wait(a, C_X1, 4)
        lds_wait(a, C_XA, 4)
        stamp(a, st0)
        for c in range(7):
            a(f"ds_read_b128 {vr(X+8*c,4)}, v15 offset:{L_XT + c*8192}")
            a(f"ds_read_b128 {vr(X+8*c+4,4)}, v17 offset:{L_XT + c*8192}")
        for c in range(7):
            a(f"s_waitcnt lgkmcnt({2*(6-c)})")
            for i in range(8):
                a(f"v_dot2c_f32_bf16 v18, s{sONES}, v{X+8*c+i}")
                a(f"v_dot2c_f32_bf16 v19, v{X+8*c+i}, v{X+8*c+i}")
        dpp_reduce(a, 18, 19, [QP1, QP2])
        bf16_stats(a, 18, 19, 22, 21, 16)
        a(f"""
        v_cvt_pk_bf16_f32 v20, -v22, -v22
        v_mul_f32 v21, {f32(QSCALE)}, v21
        ds_write_b64 v14, v[20:21]
        """)
        lds_arrive(a, C_ST, nowait=True)
        stamp(a, st1)
    a(f"s_cmp_ge_u32 s{sCB}, 4\ns_cbranch_scc1 {htype}")
    a("s_barrier")
    rest_dma(a)
    epoch_load(a)
    stamp(a, 2)
    stats_code(6, 7)
    a("s_waitcnt vmcnt(1)")
    lds_arrive(a, C_X, nowait=True)
    stamp(a, 3)
    a("s_waitcnt vmcnt(0)")
    get_tag(a)
    lds_wait(a, C_FL, 1)
    a(f"buffer_load_dword v249, v24, {sr(R_W1,4)}, s{sPFW} offen")
    a(f"s_branch {pfw}")
    a(f"""
    {htype}:
    s_barrier
    """)
    epoch_load(a)
    a(f"""
    s_sub_u32 s{sT1}, s{sCB}, 4
    s_lshl_b32 s{sT0}, s{sRB}, 2
    s_add_u32 s{sT0}, s{sT0}, s{sT1}
    s_lshl_b32 s{sT1}, s{sT1}, 4
    s_lshl_b32 s{sT2}, s{sG}, 2
    s_add_u32 s{sT1}, s{sT1}, s{sT2}
    v_add_u32 v11, s{sT1}, v7
    v_and_b32 v13, 1, v5
    v_lshlrev_b32 v12, 13, v13
    v_lshl_add_u32 v12, v11, 7, v12
    v_lshl_add_u32 v12, v6, 4, v12
    v_bfe_u32 v11, v11, 1, 3
    v_xor_b32 v11, v11, v6
    v_mul_u32_u24 v14, {HB_STRIDE}, v7
    v_lshl_add_u32 v14, v11, 4, v14
    v_lshl_add_u32 v14, v13, 7, v14
    s_mul_i32 s{sT2}, s{sG}, {4*HB_STRIDE}
    s_add_u32 s{sT2}, s{sT2}, {L_HB}
    v_add_u32 v14, s{sT2}, v14
    v_lshl_add_u32 v15, v{vHH}, 3, v8
    v_mul_u32_u24 v15, {HB_STRIDE}, v15
    v_add_u32 v15, v15, v9
    s_lshl_b32 s{sT2}, s{sG}, 8
    s_add_u32 s{sT2}, s{sT2}, {L_HB}
    v_add_u32 v15, s{sT2}, v15
    s_lshl_b32 s{sT2}, s{sG}, 8
    s_add_u32 s{sT2}, s{sT2}, s{sT0}
    s_lshl_b32 s{sT2}, s{sT2}, 11
    s_add_u32 s{sT2}, s{sT2}, {WS_HT}
    s_add_u32 s{sT3}, s{sT2}, {128*2048}
    s_lshl_b32 s{sT4}, s{sG}, 7
    s_add_u32 s{sT4}, s{sT4}, s{sT0}
    s_lshl_b32 s{sT4}, s{sT4}, 3
    s_add_u32 s{sT4}, s{sT4}, {FL_H}
    v_mov_b32 v17, 0xffff0000
    s_mov_b32 s96, 0x00ff00ff
    s_mov_b32 s97, 0x00ff00ff
    s_setprio 3
    """)
    for i in range(4): a(f"v_mov_b32 v{X+12+i}, 0")
    lds_wait(a, C_X1, 4)
    stamp(a, 2)
    for i in range(3): a(f"ds_read_b128 {vr(X+4*i,4)}, v12 offset:{L_XT + 16384*i}")
    a(f"s_mov_b64 exec, s[96:97]\nds_read_b128 {vr(X+12,4)}, v12 offset:{L_XT + 16384*3}\ns_mov_b64 exec, -1")
    for ln in range(2):
        a("v_mov_b32 v18, 0\nv_mov_b32 v19, 0")
        for i in range(16):
            if ln == 0 and i % 4 == 0: a(f"s_waitcnt lgkmcnt({3-i//4})")
            a(f"v_dot2c_f32_bf16 v18, s{sONES}, v{X+i}")
            a(f"v_dot2c_f32_bf16 v19, v{X+i}, v{X+i}")
        U = 32
        un = []
        for i in range(16): un += [f"v_lshlrev_b32 v{U+2*i}, 16, v{X+i}", f"v_and_b32 v{U+2*i+1}, v17, v{X+i}"]
        for x in un[:3]: a(x)
        k = 3
        for mode in (QP1, QP2, RHM, RM):
            a(f"v_add_f32_dpp v18, v18, v18 {mode} row_mask:0xf bank_mask:0xf")
            a(f"v_add_f32_dpp v19, v19, v19 {mode} row_mask:0xf bank_mask:0xf")
            a(un[k]); k += 1
        bf16_stats(a, 18, 19, 22, 20, 16)
        for x in un[k:]: a(x)
        a("v_mul_f32 v22, v22, v20")
        for i in range(16):
            if i == 12: a("s_mov_b64 exec, s[96:97]")
            a(f"""
            v_pk_fma_f32 {vr(U+2*i,2)}, {vr(U+2*i,2)}, v[20:21], v[22:23] op_sel_hi:[1,0,0] neg_lo:[0,0,1] neg_hi:[0,0,1]
            v_cvt_pk_bf16_f32 v{X+i}, v{U+2*i}, v{U+2*i+1}
            """)
            if ln == 1 and i % 4 == 3: a(f"ds_write_b128 v14, {vr(X+i-3,4)} offset:{256*(i//4)}")
        a("s_mov_b64 exec, -1")
    stamp(a, 3)
    lds_arrive(a, C_H, nowait=True)
    a("s_waitcnt vmcnt(0)")
    get_tag(a)
    lds_wait(a, C_H, 4)
    for f in range(4):
        for x in range(2): a(f"ds_read_b64_tr_b16 {vr(X+4*f+2*x,2)}, v15 offset:{x*4*HB_STRIDE + f*64}")
    for f in range(4):
        a(f"s_waitcnt lgkmcnt({2*(3-f)})")
        a(f"buffer_store_dwordx4 {vr(X+4*f,4)}, v{vL16}, {sr(R_WS,4)}, s{sT2 + (f>>1)} offen offset:{1024*(f&1)} sc1")
    stamp(a, 4)
    X = 144
    stats_code(6, 7)
    set_flag(a, sT4)
    a("s_setprio 0")
    stamp(a, 5)
    lds_arrive(a, C_FL, nowait=True)
    lds_wait(a, C_FL, 4)
    a(f"buffer_load_dword v249, v24, {sr(R_W1,4)}, s{sPFW} offen")
    a(f"{pfw}:")

sK, sKF, sKP = 94, 95, 96
AQ, AO, AS, AP, AKV = 32, 64, 128, 160, 176
def att_setup(a):
    a(f"""
    s_add_u32 s{R_KV}, s{P_WS}, {WS_KV}
    s_addc_u32 s{R_KV+1}, s{P_WS+1}, 0
    s_add_u32 s{sT0}, s{sW}, 1
    s_lshl_b32 s{R_KV+2}, s{sT0}, 16
    s_mov_b32 s{R_KV+3}, 0x20000
    v_lshlrev_b32 v5, 7, v{vLANE}
    v_lshlrev_b32 v25, 3, v{vJ}
    s_and_b32 s{sKP}, s{sJ}, 7
    s_lshl_b32 s{sKP}, s{sKP}, 13
    s_lshl_b32 s{sT0}, s{sW}, 16
    s_add_u32 s{sKP}, s{sKP}, s{sT0}
    s_lshl_b32 s{sKF}, s{sW}, 8
    s_add_u32 s{sKF}, s{sKF}, {FL_KV}
    """)
def kvload(a, buf):
    for j in range(4):
        a(f"buffer_load_dwordx4 {vr(AKV+16*buf+4*j,4)}, v{vL16}, {sr(R_KV,4)}, s{sK} offen offset:{1024*j} sc1")
    a(f"s_add_u32 s{sK}, s{sK}, 4096")
def first_kv(a):
    a(f"s_lshl_b32 s{sK}, s{sW}, 16")
    kvload(a, 0)
    a(f"buffer_load_dword v253, v5, {sr(R_KV,4)}, s{sKP} offen sc1")
    kvload(a, 1); kvload(a, 2)

def attention(a, done):
    Q, O, S, P, KV = AQ, AO, AS, AP, AKV
    NM = 20
    sIt, sRetry = sT1, sT3
    restart = a.label("att_restart"); mloop = a.label("att_mloop"); loop = a.label("att_loop"); ok = a.label("att_ok"); havekv = a.label("att_havekv")
    a(f"s_mov_b32 s{sRetry}, 0\ns_cmp_eq_u32 s{sKF}, 0\ns_cbranch_scc1 {havekv}")
    stamp(a, 9)
    poll(a, sKF, 32)
    stamp(a, 10)
    first_kv(a)
    a(f"{havekv}:")
    for i in range(1, 4):
        a(f"""
        s_add_u32 s{sT0}, s{sW}, {i}
        s_and_b32 s{sT0}, s{sT0}, 3
        s_lshl_b32 s{sT0}, s{sT0}, 11
        s_add_u32 s{sT0}, s{sT0}, {L_QS}
        v_add_u32 v{8+i}, s{sT0}, v{vL16}
        """)
    for r in range(12, 64): a(f"v_mov_b32 v{O+r}, 0")
    lds_wait(a, C_Q, 4)
    for i in range(1, 4):
        a(f"ds_read_b128 {vr(Q+8*i,4)}, v{8+i}\nds_read_b128 {vr(Q+8*i+4,4)}, v{8+i} offset:1024")
    TMP = [S, S + 16, KV + 48, P]
    def scan(kreg):
        for i in range(4): a(f"{MF} {vr(TMP[i],16)}, {vr(kreg,4)}, {vr(Q+8*i,4)}, 0")
        for i in range(4): a(f"{MF} {vr(TMP[i],16)}, {vr(kreg+4,4)}, {vr(Q+8*i+4,4)}, {vr(TMP[i],16)}")
        a("s_nop 8")
        for i in range(4):
            for j in range(8): a(f"v_max3_f32 v{NM+i}, v{TMP[i]+2*j}, v{TMP[i]+2*j+1}, v{NM+i}")
    for i in range(4): a(f"v_mov_b32 v{NM+i}, 0xff800000")
    a(f"{restart}:")
    a("s_waitcnt vmcnt(11) lgkmcnt(0)")
    stamp(a, 11)
    scan(KV)
    for i in range(4): a(f"v_mov_b32 v{8+i}, v{NM+i}")
    for r in range(8): a(f"v_mov_b32 v{KV+48+8+r}, 0")
    for i in range(4): a(f"v_permlane32_swap_b32 v{8+i}, v{NM+i}")
    for i in range(4): a(f"v_max_f32 v{NM+i}, v{8+i}, v{NM+i}")
    a(f"s_mov_b64 exec, {sr(sHI,2)}")
    for i in range(4):
        a(f"""
        v_cvt_pk_bf16_f32 v8, -v{NM+i}, 0
        v_lshlrev_b32 v9, 16, v8
        v_sub_f32_e64 v9, -v{NM+i}, v9
        v_cvt_pk_bf16_f32 v10, v9, 0
        v_lshl_or_b32 v{Q+8*i+6}, v10, 16, v8
        v_lshlrev_b32 v10, 16, v10
        v_sub_f32 v9, v9, v10
        v_cvt_pk_bf16_f32 v{Q+8*i+7}, v9, 0
        """)
        if i == 0:
            a(f"s_mov_b64 exec, -1\ns_nop 0")
            a(f"{MF} {vr(S,16)}, {vr(KV,4)}, {vr(Q,4)}, 0")
            a(f"{MF} {vr(S,16)}, {vr(KV+4,4)}, {vr(Q+4,4)}, {vr(S,16)}")
            a(f"s_mov_b64 exec, {sr(sHI,2)}")
    a("s_mov_b64 exec, -1")
    for r in range(8): a(f"v_mov_b32 v{P+8+r}, 0")
    a(f"v_mov_b32 v{S+30}, 0\nv_mov_b32 v{S+31}, 0")
    def smf(q, b, kb):
        d = vr(S + 16 * b, 16)
        return [f"{MF} {d}, {vr(KV+16*kb,4)}, {vr(Q+8*q,4)}, 0", f"{MF} {d}, {vr(KV+16*kb+4,4)}, {vr(Q+8*q+4,4)}, {d}"]
    def pv(q, b, kb):
        d = vr(O + 16 * q, 16)
        return [f"{MF} {d}, {vr(KV+16*kb+8,4)}, {vr(P+8*b,4)}, {d}", f"{MF} {d}, {vr(KV+16*kb+12,4)}, {vr(P+8*b+4,4)}, {d}"]
    def pk(b, i): return f"v_cvt_pk_bf16_f32 v{P+8*b+i}, v{S+16*b+2*i}, v{S+16*b+2*i+1}"
    a(f"s_mov_b32 s{sIt}, {OPT.attit}\ns_waitcnt vmcnt(8)")
    if OPT.nokv: a(f"s_mov_b32 s{R_KV+2}, 0")
    stamp(a, 12)
    a(".p2align 6")
    a(f"{loop}:")
    for n in range(16):
        T, q, b = n // 4, n % 4, n % 2
        va = []
        for i in range(8):
            r = S + 16 * b + 2 * i
            va += [f"v_exp_f32 v{r}, v{r}", f"v_exp_f32 v{r+1}, v{r+1}", pk(b, i - 1) if i else pk(1 - b, 7)]
        s = smf((q + 1) % 4, 1 - b, ((n + 1) // 4) % 4)
        p = pv((q - 1) % 4, 1 - b, ((n - 1) // 4) % 4)
        ins = {3: [s[0]], 9: [s[1]], 15: [p[0]], 21: [p[1]]}
        if q == 3: ins[1] = ["s_waitcnt vmcnt(8)"]
        if q == 1:
            buf = (T - 1) % 4
            for j in range(4):
                ins.setdefault(1 + 3 * j, []).insert(0, f"buffer_load_dwordx4 {vr(KV+16*buf+4*j,4)}, v{vL16}, {sr(R_KV,4)}, s{sK} offen offset:{1024*j} sc1")
            ins[13] = [f"s_add_u32 s{sK}, s{sK}, 4096"]
        if n == 15:
            ins[19] = [f"s_sub_u32 s{sIt}, s{sIt}, 1"]
            ins[22] = [f"s_cmp_lg_u32 s{sIt}, 0"]
        for i, x in enumerate(va):
            for y in ins.get(i, []): a(y)
            a(x)
    a(f"s_cbranch_scc1 {loop}")
    a(pk(1, 7)); a("s_nop 1")
    for x in pv(3, 1, 3): a(x)
    stamp(a, 13)
    a(f"""
    s_mov_b32 s{sT4}, 0x71800000
    s_waitcnt vmcnt(0)
    v_add_f32 v9, v{O+12}, v{O+28}
    s_nop 8
    v_add_f32 v10, v{O+44}, v{O+60}
    v_add_f32 v9, v9, v10
    v_cmp_nlt_f32_e64 vcc, v9, s{sT4}
    s_and_b64 vcc, vcc, {sr(sHI,2)}
    s_cbranch_scc0 {ok}
    s_cmp_lg_u32 s{sRetry}, 0
    s_cbranch_scc1 {ok}
    s_mov_b32 s{sRetry}, 1
    s_mov_b64 exec, {sr(sHI,2)}
    """)
    for i in range(4): a(f"v_mov_b32 v{Q+8*i+6}, 0\nv_mov_b32 v{Q+8*i+7}, 0")
    a(f"s_mov_b64 exec, -1\ns_lshl_b32 s{sK}, s{sW}, 16\ns_mov_b32 s{sIt}, 16")
    for r in range(64): a(f"v_mov_b32 v{O+r}, 0")
    a(f"""
    {mloop}:
    buffer_load_dwordx4 {vr(KV,4)}, v{vL16}, {sr(R_KV,4)}, s{sK} offen sc1
    buffer_load_dwordx4 {vr(KV+4,4)}, v{vL16}, {sr(R_KV,4)}, s{sK} offen offset:1024 sc1
    s_add_u32 s{sK}, s{sK}, 4096
    s_waitcnt vmcnt(0)
    """)
    scan(KV)
    a(f"""
    s_sub_u32 s{sIt}, s{sIt}, 1
    s_cmp_lg_u32 s{sIt}, 0
    s_cbranch_scc1 {mloop}
    """)
    first_kv(a)
    a(f"s_branch {restart}\n{ok}:")
    for i in range(4):
        a(f"""
        s_add_u32 s{sT0}, s{sW}, {i}
        s_and_b32 s{sT0}, s{sT0}, 3
        s_lshl_b32 s{sT1}, s{sT0}, 9
        s_add_u32 s{sT1}, s{sT1}, {L_MX + 128*i}
        v_lshl_add_u32 v{8+i}, v{vJ}, 2, s{sT1}
        s_mul_i32 s{sT1}, s{sT0}, 12288
        s_add_u32 s{sT1}, s{sT1}, {L_RED + 4096*max(i-1,0)}
        v_add_u32 v{12+i}, s{sT1}, v{vL16}
        """)
    lds_wait(a, C_R1D, 4)
    for i in range(1, 4):
        a(f"ds_write_b32 v{8+i}, v{NM+i}")
        for g in range(4): a(f"ds_write_b128 v{12+i}, {vr(O+16*i+4*g,4)} offset:{1024*g}")
    lds_arrive(a, C_ATT, nowait=True); lds_wait(a, C_ATT, 4)
    stamp(a, 16)
    for i in range(1, 4): a(f"ds_read_b32 v{NM+i}, v8 offset:{128*i}")
    for i in range(1, 4):
        for g in range(4): a(f"ds_read_b128 {vr(O+16*i+4*g,4)}, v12 offset:{4096*(i-1)+1024*g}")
    a(f"""
    s_waitcnt lgkmcnt(12)
    v_max3_f32 v9, v{NM}, v{NM+1}, v{NM+2}
    v_max_f32 v9, v9, v{NM+3}
    """)
    for i in range(4): a(f"v_sub_f32 v{NM+i}, v{NM+i}, v9")
    for i in range(4): a(f"v_exp_f32 v{NM+i}, v{NM+i}")
    a("s_nop 0")
    for r in range(16): a(f"v_mul_f32 v{O+r}, v{NM}, v{O+r}")
    for i in range(1, 4):
        a(f"s_waitcnt lgkmcnt({4*(3-i)})")
        for r in range(16): a(f"v_fmac_f32 v{O+r}, v{NM+i}, v{O+16*i+r}")
    a(f"""
    v_mov_b32 v9, v{O+12}
    v_mov_b32 v10, v{O+12}
    s_and_b32 s{sT0}, s{sW}, 1
    s_lshl_b32 s{sT1}, s{sCB}, 1
    v_permlane32_swap_b32 v9, v10
    v_rcp_f32 v10, v10
    s_add_u32 s{sT0}, s{sT0}, s{sT1}
    """)
    for r in range(16): a(f"v_mul_f32 v{O+r}, v10, v{O+r}")
    for i in range(8): a(f"v_cvt_pk_bf16_f32 v{O+16+i}, v{O+2*i}, v{O+2*i+1}")
    a(f"""
    s_mov_b64 exec, {sr(sHI,2)}
    v_mov_b32 v{O+22}, 0
    v_mov_b32 v{O+23}, 0
    s_mov_b64 exec, -1
    s_lshl_b32 s{sT0}, s{sT0}, 12
    s_lshl_b32 s{sT1}, s{sRB}, 16
    s_add_u32 s{sT0}, s{sT0}, s{sT1}
    s_lshr_b32 s{sT1}, s{sW}, 1
    s_lshl_b32 s{sT1}, s{sT1}, 10
    s_add_u32 s{sT0}, s{sT0}, s{sT1}
    s_add_u32 s{sT0}, s{sT0}, {WS_O}
    buffer_store_dwordx4 {vr(O+16,4)}, v{vL16}, {sr(R_WS,4)}, s{sT0} offen sc1
    buffer_store_dwordx4 {vr(O+20,4)}, v{vL16}, {sr(R_WS,4)}, s{sT0} offen offset:2048 sc1
    s_lshl_b32 s{sT0}, s{sRB}, 3
    s_add_u32 s{sT0}, s{sT0}, s{sCB}
    s_lshl_b32 s{sT0}, s{sT0}, 2
    s_add_u32 s{sT0}, s{sT0}, s{sW}
    s_lshl_b32 s{sT0}, s{sT0}, 3
    s_add_u32 s{sT0}, s{sT0}, {FL_O}
    """)
    stamp(a, 17)
    set_flag(a, sT0)
    a(f"s_branch {done}")

class VM:
    def __init__(self): self.q = []
    def issue(self, tag): self.q.append(tag)
    def wait(self, tags):
        idx = [i for i, t in enumerate(self.q) if t in tags]
        if not idx: return None
        n = len(self.q) - 1 - max(idx)
        assert n <= 63
        self.q = self.q[max(idx) + 1:]
        return n

ACC, AF, BF, DH = 64, 32, 128, 12
def reduce4(a, cnt, red, st0, st1):
    base, stride, off = red
    stamp(a, st0)
    for i in range(4):
        a(f"""
        s_xor_b32 s{sT0}, s{sG}, {i}
        s_mul_i32 s{sT1}, s{sT0}, {stride}
        s_add_u32 s{sT1}, s{sT1}, {base}
        v_add_u32 v{24+i}, s{sT1}, v{vL16}
        """)
    for i in range(1, 4):
        for g in range(4): a(f"ds_write_b128 v24, {vr(ACC+16*i+4*g,4)} offset:{off(4*(i-1)+g)}")
    lds_arrive(a, cnt, nowait=True); lds_wait(a, cnt, 4)
    stamp(a, st1)
    for i in range(1, 4):
        for g in range(4): a(f"ds_read_b128 {vr(ACC+16*i+4*g,4)}, v{24+i} offset:{off(4*(i-1)+g)}")
    for i in range(1, 4):
        a(f"s_waitcnt lgkmcnt({4*(3-i)})")
        for r in range(16): a(f"v_add_f32 v{ACC+r}, v{ACC+r}, v{ACC+16*i+r}")

def gpath(a, done):
    vDW1, vOUT, vDW2, vDWO, vPF = 11, 57, 58, 59, 19
    srd(a, R_W1, P_W1, 2048 * 3584)
    srd(a, R_W2, P_W2, 1792 * 4096)
    srd(a, R_WO, P_WO, 448 * 896)
    srd(a, R_OUT, P_OUT, 2048 * 896)
    srd(a, R_B1, P_B1, 1792 * 2)
    srd(a, R_B2, P_B2, 2048 * 2)
    sHasG1 = 98
    a(f"""
    s_lshr_b32 s{sGM}, s{sG}, 1
    s_and_b32 s{sGN}, s{sG}, 1
    s_lshl_b32 s{sRing}, s{sG}, 11
    s_add_u32 s{sRing}, s{sRing}, {L_RING}
    v_lshlrev_b32 v12, 2, v10
    v_xor_b32 v6, v12, v6
    v_lshlrev_b32 v6, 4, v6
    v_lshl_add_u32 v12, v8, 7, v9
    v_lshlrev_b32 v13, 5, v8
    v_and_b32 v13, 64, v13
    v_add_u32 v12, v12, v13
    v_add_u32 v12, s{sRing}, v12
    s_lshr_b32 s{sT0}, s{sJ}, 3
    s_mul_i32 s{sT0}, s{sT0}, 6
    s_add_u32 s{sT0}, s{sT0}, s{sCB}
    s_cmp_lt_u32 s{sCB}, 6
    s_cselect_b32 s{sHasG1}, 1, 0
    s_and_b32 s{sT1}, s{sXCD}, 1
    s_lshl_b32 s{sT2}, s{sT1}, 5
    s_add_u32 s{sT2}, s{sT2}, s{sJ}
    s_cmp_eq_u32 s{sT2}, 6
    s_cselect_b32 s{sT0}, 24, s{sT0}
    s_cselect_b32 s{sHasG1}, 1, s{sHasG1}
    s_mul_i32 s{sT1}, s{sT1}, 25
    s_add_u32 s{sT0}, s{sT0}, s{sT1}
    s_mul_i32 s{sA}, s{sT0}, 37
    s_lshr_b32 s{sA}, s{sA}, 8
    s_mul_i32 s{sT1}, s{sA}, 7
    s_sub_u32 s{sT3}, s{sT0}, s{sT1}
    s_lshr_b32 s{sFB}, s{sXCD}, 1
    s_mul_i32 s{sFB}, s{sFB}, 7
    s_add_u32 s{sFB}, s{sFB}, s{sT3}
    v_mul_u32_u24 v{vDW1}, 3584, v5
    v_add_u32 v{vDW1}, v{vDW1}, v6
    s_mul_i32 s{sD}, s{sG}, {512*3584}
    s_lshl_b32 s{sT0}, s{sFB}, 7
    s_add_u32 s{sD}, s{sD}, s{sT0}
    v_lshl_add_u32 v{vDW2}, v5, 12, v6
    s_mul_i32 s{sDb}, s{sG}, {448*4096}
    s_lshl_b32 s{sT0}, s{sRB}, 7
    s_add_u32 s{sDb}, s{sDb}, s{sT0}
    v_mul_u32_u24 v{vDWO}, 896, v5
    v_add_u32 v{vDWO}, v{vDWO}, v6
    s_mul_i32 s{sD2}, s{sG}, {112*896}
    s_lshl_b32 s{sT0}, s{sCB}, 7
    s_add_u32 s{sD2}, s{sD2}, s{sT0}
    s_lshl_b32 s{sT0}, s{sGM}, 6
    s_lshl_b32 s{sT1}, s{sGN}, 6
    v_lshl_add_u32 v13, v{vHH}, 10, v12
    v_xor_b32 v14, s{sT0}, v13
    v_xor_b32 v15, 64, v14
    v_lshl_add_u32 v13, v{vHH}, 9, v12
    v_xor_b32 v60, s{sT1}, v13
    v_xor_b32 v61, 64, v60
    v_xor_b32 v20, s{sT0}, v13
    v_xor_b32 v21, 64, v20
    s_lshl_b32 s{sT0}, s{sGM}, 10
    s_lshl_b32 s{sT1}, s{sGN}, 10
    v_add_u32 v16, s{sT1}, v{vL16}
    v_xor_b32 v17, 0x400, v16
    v_add_u32 v62, s{sT0}, v{vL16}
    v_xor_b32 v63, 0x400, v62
    s_lshl_b32 s{sL}, s{sA}, 7
    s_lshl_b32 s{sT0}, s{sG}, 5
    s_add_u32 s{sL}, s{sL}, s{sT0}
    s_lshl_b32 s{sL}, s{sL}, 11
    s_add_u32 s{sL}, s{sL}, {WS_HT}
    s_mul_i32 s{sLb}, s{sCB}, 112
    s_mul_i32 s{sT0}, s{sG}, 28
    s_add_u32 s{sLb}, s{sLb}, s{sT0}
    s_lshl_b32 s{sLb}, s{sLb}, 11
    s_add_u32 s{sLb}, s{sLb}, {WS_U}
    s_lshl_b32 s{sL2}, s{sRB}, 16
    s_lshl_b32 s{sT0}, s{sG}, 14
    s_add_u32 s{sL2}, s{sL2}, s{sT0}
    s_add_u32 s{sL2}, s{sL2}, {WS_O}
    v_mul_u32_u24 v{vOUT}, 896, v{vJ}
    v_lshl_add_u32 v{vOUT}, v{vHH}, 3, v{vOUT}
    s_lshl_b32 s{sT0}, s{sRB}, 1
    s_add_u32 s{sT0}, s{sT0}, s{sGN}
    s_lshl_b32 s{sB2}, s{sT0}, 6
    s_mul_i32 s{sT0}, s{sT0}, {32*896}
    s_lshl_b32 s{sT1}, s{sCB}, 7
    s_add_u32 s{sT0}, s{sT0}, s{sT1}
    s_lshl_b32 s{sT1}, s{sGM}, 6
    s_add_u32 s{sOUT}, s{sT0}, s{sT1}
    v_lshlrev_b32 v{vPF}, 7, v{vLANE}
    v_lshrrev_b32 v22, 2, v{vLANE}
    v_and_b32 v23, 3, v{vLANE}
    v_lshlrev_b32 v22, 12, v22
    v_lshl_add_u32 v22, v23, 7, v22
    v_add_u32 v234, 0x10000, v14
    v_add_u32 v235, 0x10000, v15
    v_add_u32 v236, 0x10000, v60
    v_add_u32 v237, 0x10000, v61
    v_add_u32 v238, 0x10000, v20
    v_add_u32 v239, 0x10000, v21
    """)
    for r in range(16, 64): a(f"v_mov_b32 v{ACC+r}, 0")
    vm = VM()
    N1, N2, N3 = 32, 60, 68
    def dma(k):
        out = []
        for h in range(2):
            if k < N1: v, R, sd, inc = vDW1, R_W1, sD, 8 * 3584
            elif k < N2: v, R, sd, inc = vDW2, R_W2, sDb, 8 * 4096
            else: v, R, sd, inc = vDWO, R_WO, sD2, (4 if ((k - N2) & 1 and h) else 8) * 896
            out.append((f"s_add_u32 m0, s{sRing}, {slotp(k)*8192 + h*1024}",
                        f"buffer_load_dwordx4 v{v}, {sr(R,4)}, s{sd} offen lds", f"s_add_u32 s{sd}, s{sd}, {inc}"))
        return out
    def dma_now(k):
        for m, l, adv in dma(k):
            a(m); a("s_nop 0"); a(l); a(adv); vm.issue(('d', k))
    def ld(k):
        r = BF + 8 * (k % DH)
        v, sl = (16, sL) if k < N1 else (62, sLb) if k < N2 else (16, sL2)
        off = 2048 * (k & 1)
        o = [f"buffer_load_dwordx4 {vr(r,4)}, v{v}, {sr(R_WS,4)}, s{sl} offen offset:{off} sc1",
             f"buffer_load_dwordx4 {vr(r+4,4)}, v{v+1}, {sr(R_WS,4)}, s{sl} offen offset:{off} sc1"]
        return o, (f"s_add_u32 s{sl}, s{sl}, 4096" if k & 1 else None)
    def ld_now(k):
        o, adv = ld(k)
        for x in o: a(x); vm.issue(('l', k))
        if adv: a(adv)
    def tr(k):
        b0, xo = (14, 512) if k < N1 else (60, 1024) if k < N2 else (20, 1024)
        r = AF + 8 * (k % 2); off = slotp(k) * 8192
        if off >= 65536: off -= 65536; b0 = {14: 234, 60: 236, 20: 238}[b0]
        return [f"ds_read_b64_tr_b16 {vr(r,2)}, v{b0} offset:{off}", f"ds_read_b64_tr_b16 {vr(r+2,2)}, v{b0} offset:{off+xo}",
                f"ds_read_b64_tr_b16 {vr(r+4,2)}, v{b0+1} offset:{off}", f"ds_read_b64_tr_b16 {vr(r+6,2)}, v{b0+1} offset:{off+xo}"]
    DW = RING - 1
    def pf2():
        sk = a.label("pf2s")
        a(f"""
        s_mul_i32 s{sT0}, s{sJ}, 56
        s_min_u32 s{sT1}, s{sG}, 2
        s_lshl_b32 s{sT1}, s{sT1}, 4
        s_add_u32 s{sT0}, s{sT0}, s{sT1}
        s_cmp_eq_u32 s{sG}, 3
        s_cselect_b32 s{sT1}, 8, 0
        s_add_u32 s{sT0}, s{sT0}, s{sT1}
        s_lshl_b32 s{sT0}, s{sT0}, 12
        s_lshl_b32 s{sT1}, s{sXCD}, 9
        s_add_u32 s{sT0}, s{sT0}, s{sT1}
        buffer_load_dword v252, v22, {sr(R_W2,4)}, s{sT0} offen
        s_mul_i32 s{sT0}, s{sJ}, {98*128}
        s_mul_i32 s{sT1}, s{sG}, {34*128}
        s_add_u32 s{sT0}, s{sT0}, s{sT1}
        s_cmp_ge_u32 s{sG}, 2
        s_cselect_b32 s{sT0}, {OOB}, s{sT0}
        buffer_load_dword v251, v{vPF}, {sr(R_WO,4)}, s{sT0} offen
        """)
        vm.issue('pf'); vm.issue('pf')
    state = {'nd': 0}
    def prefill(upto):
        while state['nd'] < upto: dma_now(state['nd']); state['nd'] += 1
    def segment(lo, hi, st, dlimit, catch=0):
        dh = OPT.dh
        for k in range(lo, min(hi, lo + dh - 1)): ld_now(k)
        if catch: prefill(catch)
        n = vm.wait({('d', lo)})
        if n is not None: a(f"s_waitcnt vmcnt({n})")
        for x in tr(lo): a(x)
        for k in range(lo, hi):
            n = vm.wait({('d', k + 1), ('l', k)} if k + 1 < hi else {('l', k)})
            a(f"s_waitcnt vmcnt({n}) lgkmcnt(0)" if n is not None else "s_waitcnt lgkmcnt(0)")
            if k - lo in st: stamp(a, st[k - lo])
            if lo == 0 and k == OPT.gatek: lds_wait(a, C_Q, 4)
            l = AF + 8 * (k % 2); d = BF + 8 * (k % DH)
            lds_is_a = not (N1 <= k < N2)
            mf = []
            for i in range(4):
                mi, ni = i >> 1, i & 1
                A, B = (vr(l + 4 * mi, 4), vr(d + 4 * ni, 4)) if lds_is_a else (vr(d + 4 * mi, 4), vr(l + 4 * ni, 4))
                mf.append(f"{MF} {vr(ACC+16*i,16)}, {A}, {B}, {vr(ACC+16*i,16)}")
            t = tr(k + 1) if k + 1 < hi else []
            kd = state['nd']
            dm = []
            gated = lo == 0 and k < OPT.gatek
            if kd < dlimit and kd <= k + OPT.lw and not gated:
                assert kd - RING <= k - 1 and kd >= k + 2
                dm = dma(kd); state['nd'] += 1
            kl = k + dh - 1
            lo_, adv = ld(kl) if kl < hi else ([], None)
            a(mf[0])
            for x in t: a(x)
            if dm: a(dm[0][0])
            a(mf[1])
            if lo_: a(lo_[0]); vm.issue(('l', kl))
            if lo_: a(lo_[1]); vm.issue(('l', kl))
            if adv: a(adv)
            if dm: a(dm[0][1]); vm.issue(('d', kd)); a(dm[0][2]); a(dm[1][0])
            a(mf[2])
            if dm: a(dm[1][1]); vm.issue(('d', kd)); a(dm[1][2])
            a(mf[3])
            kd = state['nd']
            if kd < dlimit and kd <= k + OPT.lw and not gated: prefill(kd + 1)
    nog1 = a.label("nog1"); join = a.label("gjoin")
    a(f"""
    s_lshl_b32 s{sT0}, s{sFB}, 7
    s_lshl_b32 s{sT1}, s{sGM}, 6
    s_add_u32 s{sT2}, s{sT0}, s{sT1}
    v_lshlrev_b32 v10, 3, v{vHH}
    s_lshr_b32 s{sT4}, s{sA}, 1
    s_lshl_b32 s{sT4}, s{sT4}, 10
    s_lshl_b32 s{sT1}, s{sG}, 8
    s_add_u32 s{sT4}, s{sT4}, s{sT1}
    s_add_u32 s{sT4}, s{sT4}, {FL_H}
    s_add_u32 s{sT3}, s{sT3}, 1
    s_lshl_b32 s{sT3}, s{sT3}, 13
    s_add_u32 s{sT3}, s{sT3}, s{sL}
    """)
    for g in range(4): a(f"buffer_load_dwordx2 {vr(48+2*g,2)}, v10, {sr(R_B1,4)}, s{sT2} offen offset:{16*g}")
    a(f"v_lshlrev_b32 v13, 1, v{vJ}")
    for g in range(4): a(f"buffer_load_dwordx2 {vr(224+2*g,2)}, v{vOUT}, {sr(R_X,4)}, s{sOUT} offen offset:{16*g}")
    a(f"buffer_load_ushort v232, v13, {sr(R_B2,4)}, s{sB2} offen")
    a(f"s_cmp_eq_u32 s{sHasG1}, 0\ns_cbranch_scc1 {nog1}")
    a(f"s_setprio {OPT.prio_g}")
    stamp(a, 8)
    if OPT.nodma: a(f"s_mov_b32 s{R_W1+2}, 0\ns_mov_b32 s{R_W2+2}, 0")
    if OPT.nold: a(f"v_mov_b32 v17, {OOB}\nv_mov_b32 v62, {OOB}\nv_mov_b32 v63, {OOB}\nv_mov_b32 v56, v16")
    prefill(OPT.pre0)
    stamp(a, 9)
    poll(a, sT4, 32); vm.q = []
    stamp(a, 10)
    a(f"buffer_load_dword v253, v{vPF}, {sr(R_WS,4)}, s{sT3} offen sc1"); vm.issue('pf')
    for i in range(8):
        a(f"v_lshlrev_b32 v{ACC+2*i}, 16, v{48+i}\nv_and_b32 v{ACC+2*i+1}, 0xffff0000, v{48+i}")
    segment(0, N1, {0: 11, 16: 12}, N1, catch=OPT.pre1)
    a(f"s_setprio {OPT.prio_e}")
    reduce4(a, C_R1, (L_RED, 12288, lambda i: 1024 * i), 13, 16)
    lds_arrive(a, C_R1D)
    k = 2 * math.sqrt(2 / math.pi) * math.log2(math.e)
    a(f"s_mov_b32 s{sT0}, {f32(-k*0.044715)}\nv_mov_b32 v18, {f32(-k)}")
    T = ACC + 16
    for r in range(16): a(f"v_mul_f32 v{T+r}, v{ACC+r}, v{ACC+r}")
    for r in range(16): a(f"v_fma_f32 v{T+r}, v{T+r}, s{sT0}, v18")
    for r in range(16): a(f"v_mul_f32 v{T+r}, v{T+r}, v{ACC+r}")
    for r in range(16): a(f"v_exp_f32 v{T+r}, v{T+r}")
    for r in range(16): a(f"v_add_f32 v{T+r}, 1.0, v{T+r}")
    for r in range(16): a(f"v_rcp_f32 v{T+r}, v{T+r}")
    a(f"""
    s_mul_i32 s{sT0}, s{sA}, 112
    s_lshl_b32 s{sT1}, s{sFB}, 2
    s_add_u32 s{sT0}, s{sT0}, s{sT1}
    s_lshl_b32 s{sT1}, s{sGM}, 1
    s_add_u32 s{sT0}, s{sT0}, s{sT1}
    s_lshl_b32 s{sT0}, s{sT0}, 11
    s_add_u32 s{sT0}, s{sT0}, {WS_U}
    """)
    for r in range(16): a(f"v_mul_f32 v{T+r}, v{T+r}, v{ACC+r}")
    for i in range(8): a(f"v_cvt_pk_bf16_f32 v{ACC+i}, v{T+2*i}, v{T+2*i+1}")
    a(f"""
    buffer_store_dwordx4 {vr(ACC,4)}, v16, {sr(R_WS,4)}, s{sT0} offen sc1
    buffer_store_dwordx4 {vr(ACC+4,4)}, v16, {sr(R_WS,4)}, s{sT0} offen offset:2048 sc1
    s_lshl_b32 s{sT0}, s{sA}, 7
    s_lshl_b32 s{sT1}, s{sFB}, 2
    s_add_u32 s{sT0}, s{sT0}, s{sT1}
    s_add_u32 s{sT0}, s{sT0}, s{sG}
    s_lshl_b32 s{sT0}, s{sT0}, 3
    s_add_u32 s{sT0}, s{sT0}, {FL_U}
    """)
    stamp(a, 17)
    set_flag(a, sT0)
    stamp(a, 27)
    a(f"s_branch {join}\n{nog1}:")
    lds_arrive(a, C_R1D)
    a(f"""
    s_lshr_b32 s{sT0}, s{sJ}, 3
    s_lshl_b32 s{sT0}, s{sT0}, 1
    s_and_b32 s{sT1}, s{sCB}, 1
    s_add_u32 s{sT0}, s{sT0}, s{sT1}
    s_sub_u32 s{sT0}, s{sT0}, 1
    s_cmp_eq_u32 s{sJ}, 6
    s_cbranch_scc1 engdone
    s_mul_i32 s{sT1}, s{sG}, 28
    s_add_u32 s{sT1}, s{sT1}, s{sT0}
    s_lshl_b32 s{sT1}, s{sT1}, 16
    s_lshl_b32 s{sT2}, s{sXCD}, 9
    s_add_u32 s{sT1}, s{sT1}, s{sT2}
    s_lshl_b32 s{sT2}, s{sT0}, 2
    s_add_u32 s{sT2}, s{sT2}, s{sG}
    s_lshl_b32 s{sT2}, s{sT2}, 13
    """)
    a(f"""
    s_sub_u32 s{sT3}, s{sT0}, s{sJ}
    s_add_u32 s{sT3}, s{sT3}, 32
    s_mul_i32 s{sT3}, s{sT3}, {8*3584}
    s_add_u32 s{sPFW}, s{sPFW}, s{sT3}
    """)
    for i in range(5):
        a(f"s_waitcnt vmcnt({OPT.engd})\nbuffer_load_dword v{249+i%2}, v24, {sr(R_W1,4)}, s{sPFW} offen\ns_add_u32 s{sPFW}, s{sPFW}, {56*3584}")
    stamp(a, 28)
    for i in range(4):
        a(f"s_waitcnt vmcnt({OPT.engd})\nbuffer_load_dword v{249+i%2}, v22, {sr(R_W2,4)}, s{sT1} offen\ns_add_u32 s{sT1}, s{sT1}, {7*16*4096}")
    stamp(a, 29)
    for i in range(2):
        a(f"s_waitcnt vmcnt({OPT.engd})\nbuffer_load_dword v{249+i%2}, v{vPF}, {sr(R_WO,4)}, s{sT2} offen\ns_add_u32 s{sT2}, s{sT2}, {28*8192}")
    a("s_waitcnt vmcnt(0)")
    stamp(a, 30)
    a(f"s_cmp_eq_u32 s{sCB}, 7\ns_cbranch_scc1 epw\nengdone:\ns_waitcnt vmcnt(0)")
    lds_wait(a, C_Q, 4)
    a(f"{join}:")
    assert state['nd'] == N1
    prefill(N1 + 4)
    for r in range(16, 64): a(f"v_mov_b32 v{ACC+r}, 0")
    a(f"""
    s_lshl_b32 s{sT0}, s{sCB}, 10
    s_mul_i32 s{sT1}, s{sG}, 224
    s_add_u32 s{sT0}, s{sT0}, s{sT1}
    s_add_u32 s{sT0}, s{sT0}, {FL_U}
    s_lshr_b32 s{sT3}, s{sJ}, 3
    s_add_u32 s{sT3}, s{sT3}, 3
    s_lshl_b32 s{sT3}, s{sT3}, 13
    s_add_u32 s{sT3}, s{sT3}, s{sLb}
    v_lshlrev_b32 v232, 16, v232
    """)
    for i in range(8):
        a(f"v_lshlrev_b32 v{ACC+2*i}, 16, v{224+i}\nv_and_b32 v{ACC+2*i+1}, 0xffff0000, v{224+i}")
    for r in range(16): a(f"v_add_f32 v{ACC+r}, v232, v{ACC+r}")
    a(f"s_setprio {OPT.prio_g}")
    prefill(N1 + OPT.pre)
    stamp(a, 18)
    poll(a, sT0, 28); vm.q = []
    stamp(a, 19)
    a(f"buffer_load_dword v253, v{vPF}, {sr(R_WS,4)}, s{sT3} offen sc1"); vm.issue('pf')
    segment(N1, N2, {0: 20, 14: 21}, N3)
    prefill(N3)
    a(f"""
    s_lshl_b32 s{sT0}, s{sRB}, 8
    s_lshl_b32 s{sT1}, s{sG}, 6
    s_add_u32 s{sT0}, s{sT0}, s{sT1}
    s_add_u32 s{sT0}, s{sT0}, {FL_O}
    v_lshl_add_u32 v{vOUT}, v{vHH}, 3, v{vOUT}
    """)
    stamp(a, 22)
    poll(a, sT0, 8); vm.q = []
    stamp(a, 23)
    a(f"s_setprio {OPT.prio_e}")
    OPT.dh = 9
    segment(N2, N3, {0: 24}, N3)
    reduce4(a, C_R2, (L_RING, 2048, lambda i: (i >> 1) * 8192 + (i & 1) * 1024), 25, 26)
    for i in range(8): a(f"v_cvt_pk_bf16_f32 v{ACC+16+i}, v{ACC+2*i}, v{ACC+2*i+1}")
    a(f"""
    s_nop 1
    v_permlane32_swap_b32 v{ACC+16}, v{ACC+18}
    v_permlane32_swap_b32 v{ACC+17}, v{ACC+19}
    v_permlane32_swap_b32 v{ACC+20}, v{ACC+22}
    v_permlane32_swap_b32 v{ACC+21}, v{ACC+23}
    buffer_store_dwordx4 {vr(ACC+16,4)}, v{vOUT}, {sr(R_OUT,4)}, s{sOUT} offen
    buffer_store_dwordx4 {vr(ACC+20,4)}, v{vOUT}, {sr(R_OUT,4)}, s{sOUT} offen offset:32
    s_branch {done}
    epw:
    s_lshl_b32 s{sT0}, s{sG}, 8
    s_add_u32 s{sT0}, s{sT0}, s2
    s_cmp_lg_u32 s{sT0}, 56
    s_cbranch_scc1 {done}
    s_setprio 0
    """)
    lds_wait(a, C_ATT, 4, sleep=8)
    for i in range(4):
        a(f"s_mov_b32 s{sT0}, {FL_O + 2048*i}")
        poll(a, sT0, 64, sh=5)
    a(f"s_mov_b32 s{sT0}, {WS_EPOCH}")
    set_flag(a, sT0)

def kend(a, e):
    a(f"{e}:")
    if OPT.stamps:
        stamp(a, 14); a("s_waitcnt vmcnt(0)"); stamp(a, 15)
        a(f"""
        s_lshl_b32 s100, s2, 3
        s_add_u32 s100, s100, s{sW}
        s_lshl_b32 s100, s100, 8
        s_add_u32 s100, s100, {WS_STAMP}
        v_lshlrev_b32 v254, 2, v{vLANE}
        buffer_store_dword v255, v254, {sr(R_WS,4)}, s100 offen
        """)
    if OPT.double:
        a(f"""
        s_waitcnt vmcnt(0)
        s_memrealtime s[16:17]
        s_waitcnt lgkmcnt(0)
        s_sub_u32 s18, s16, s80
        s_min_u32 s18, s18, 20000
        dbl:
        s_memrealtime s[20:21]
        s_waitcnt lgkmcnt(0)
        s_sub_u32 s20, s20, s16
        s_cmp_lt_u32 s20, s18
        s_cbranch_scc1 dbl
        """)
    a(f"{e}x:\ns_endpgm")

def build():
    a = Asm()
    n = NAME + "_kernel"
    a('.amdgcn_target "amdgcn-amd-amdhsa--gfx950"\n.text')
    a(f".globl {n}\n.p2align 8\n.type {n},@function\n{n}:")
    e = "fin"
    prologue(a, e)
    p1_a(a); attention(a, e)
    a("p1g:"); p1_g(a); gpath(a, e)
    kend(a, e)
    check(a.L)
    head = open(f"cdna_kernels/{NAME}.s.ref").read().split("; Override")[0]
    ll = f"; @launch grid=(256,1,1) block=(512,1,1) lds={LDS_TOTAL}\n"
    desc = f""".section .rodata,"a"
.p2align 6
.amdhsa_kernel {n}
  .amdhsa_next_free_vgpr 256
  .amdhsa_next_free_sgpr 102
  .amdhsa_accum_offset 256
  .amdhsa_group_segment_fixed_size 0
  .amdhsa_kernarg_size 104
  .amdhsa_user_sgpr_count 2
  .amdhsa_user_sgpr_kernarg_segment_ptr 1
  .amdhsa_system_sgpr_workgroup_id_x 1
  .amdhsa_float_denorm_mode_32 3
.end_amdhsa_kernel
"""
    return head + ll + a.text() + desc

if __name__ == "__main__":
    args = []
    for x in sys.argv[1:]:
        if x.startswith("--"):
            k, _, v = x[2:].partition("=")
            setattr(OPT, k, int(v) if v else True)
        else: args.append(x)
    assert all((t * 37) >> 8 == t // 7 for t in range(56))
    open(args[0] if args else f"cdna_kernels/{NAME}.s", "w").write(build())
```

```python
import sys, math, struct
sys.path.insert(0, "dev")
from asmlib import Asm, vr, sr, check

NAME = "parallel_sum__grouped_kv_mqa__mixer_token_mlp__prompt"
WS_HT = 0
WS_KV = 2 << 20
WS_U  = 5 << 20
WS_O  = 7 << 20
WS_FLG = 10 << 20
FL_H  = WS_FLG
FS = 4
FL_KV = WS_FLG + (8192 << 4)
FL_U  = WS_FLG + (12288 << 4)
FL_O  = WS_FLG + (20480 << 4)
WS_EPOCH = WS_FLG + (32768 << 4)
WS_STAMP = 12 << 20
WS_SIZE = 16 << 20
DBLK = 64
class O: pass
OPT = O(); OPT.stamps = False; OPT.double = False; OPT.prio_g = 0; OPT.prio_e = 3; OPT.prio_a = 0; OPT.pf2step = 6; OPT.pre = 12; OPT.lw = 4; OPT.dh = 8; OPT.pre0 = 4; OPT.nsg = 6; OPT.pf1pos = 3; OPT.order = 0; OPT.nogm = 0; OPT.nogv = 0; OPT.a1 = 7; OPT.b1 = 10; OPT.nl0 = 4; OPT.pfd = -100; OPT.kvpf = 1; OPT.a2 = 8; OPT.b2 = 13; OPT.ock = 5; OPT.early = 0; OPT.npf0 = 2; OPT.prio_g2 = 0; OPT.twice = 0; OPT.codepf = 1; OPT.prio_ld = 0; OPT.gatek = 8; OPT.ke = 12; OPT.fl_late = 0; OPT.rdin = 2; OPT.pre1 = 0; OPT.engd = 0; OPT.kvflag = 8; OPT.attit = 4; OPT.nold = 0; OPT.nodma = 0; OPT.nokv = 0
L_XT = 0; L_WQ = 57344; L_WKV = 114688
HB_STRIDE = 912
L_HB = 141056; L_QS = 147456; L_KC = 155648; L_KS = L_KC + 1024; L_MX = L_KC
L_ST = 158720; L_RT = 159232; L_CNT = 159360; LDS_TOTAL = 159744
RING = 12; L_RING = 49152; L_RED = 0
def slotp(k): return 8 + k % 4 if k < OPT.ke else (k - OPT.ke) % RING
C_X, C_KV, C_H, C_ST, C_Q, C_ISS, C_R1, C_R1D, C_ATT, C_R2, C_X1, C_XA, C_FL, C_PRE = range(14)
sXCD, sJ, sRB, sCB, sW = 3, 4, 5, 6, 7
sT0, sT1, sT2, sT3, sT4, sT5 = 8, 9, 10, 11, 12, 13
sHI = 14
P_X, P_WQ, P_WK, P_WV, P_WO, P_BX, P_W1, P_B1, P_W2, P_B2, P_OUT, P_DBG, P_WS = 16, 18, 20, 22, 24, 26, 28, 30, 32, 34, 36, 38, 40
sTAG = 42
R_X, R_WQ, R_WKV, R_WS, R_W1, R_W2, R_WO, R_OUT, R_KV = 44, 48, 52, 56, 60, 64, 68, 72, 76
R_B1, R_B2 = R_WKV, 20
sONES, sSPIN, sPFW = 82, 83, 99
sG, sGM, sGN, sRing, sA, sD, sL, sFB, sDb, sD2, sLb, sL2, sOUT, sB2 = range(84, 98)
sU0, sU1, sU2, sU3, sU4, sU5 = range(84, 90)
OOB = 0x40000000
EPS = 0x3727c5ac
QSCALE = (28 ** -0.5) * math.log2(math.e)
def f32(x): return "0x%08x" % struct.unpack("<I", struct.pack("<f", x))[0]
vLANE, vJ, vHH, vL16 = 1, 2, 3, 4
MF = "v_mfma_f32_32x32x16_bf16"

def stamp(a, idx):
    if not OPT.stamps: return
    if OPT.stamps == 2 and idx not in (0, 15): return
    a(f"s_memrealtime s[100:101]\ns_waitcnt lgkmcnt(0)\nv_writelane_b32 v255, s100, {idx}")
    if idx in (0, 15): a(f"s_memtime s[100:101]\ns_waitcnt lgkmcnt(0)\nv_writelane_b32 v255, s100, {idx+32}")

def srd(a, r, p, size):
    a(f"s_mov_b32 s{r}, s{p}\ns_mov_b32 s{r+1}, s{p+1}\ns_mov_b32 s{r+2}, {size}\ns_mov_b32 s{r+3}, 0x20000")

def get_tag(a):
    a(f"""
    v_readfirstlane_b32 s{sTAG}, v26
    v_readfirstlane_b32 s{sTAG+1}, v27
    s_mul_i32 s{sTAG}, s{sTAG}, 0x9e3779b5
    s_mul_i32 s{sTAG+1}, s{sTAG+1}, 0x85ebca6d
    s_add_u32 s{sTAG}, s{sTAG}, 0x7f4a7c15
    s_add_u32 s{sTAG+1}, s{sTAG+1}, 0x165667b1
    """)

def set_flag(a, soff, vt=30):
    a(f"""
    v_mov_b32 v{vt}, s{sTAG}
    v_mov_b32 v{vt+1}, s{sTAG+1}
    s_waitcnt vmcnt(0)
    s_mov_b64 exec, 1
    buffer_store_dwordx2 {vr(vt,2)}, off, {sr(R_WS,4)}, s{soff} sc1
    s_mov_b64 exec, -1
    """)

def poll(a, soff, n, vo=28, vt=30, sh=3):
    lp = a.label("poll"); dn = a.label("polld")
    a(f"""
    v_min_u32 v{vo}, {n-1}, v{vLANE}
    v_lshlrev_b32 v{vo}, {sh+FS}, v{vo}
    s_mov_b32 s{sSPIN}, 20000
    {lp}:
    buffer_load_dwordx2 {vr(vt,2)}, v{vo}, {sr(R_WS,4)}, s{soff} offen sc1
    s_waitcnt vmcnt(0)
    v_cmp_ne_u64 vcc, {sr(sTAG,2)}, {vr(vt,2)}
    s_cbranch_vccz {dn}
    s_sub_u32 s{sSPIN}, s{sSPIN}, 1
    s_cmp_lg_u32 s{sSPIN}, 0
    s_cbranch_scc1 {lp}
    {dn}:
    """)

def lds_arrive(a, cnt, nowait=False):
    a(f"""
    s_mov_b64 exec, 1
    {'' if nowait else 's_waitcnt lgkmcnt(0)'}
    ds_add_u32 v0, v29 offset:{4*cnt}
    s_mov_b64 exec, -1
    """)
def lds_wait(a, cnt, target, sleep=0):
    spin = a.label("spin")
    a(f"""
    {spin}:
    {f's_sleep {sleep}' if sleep else ''}
    ds_read_b32 v28, v0 offset:{4*cnt}
    s_waitcnt lgkmcnt(0)
    v_readfirstlane_b32 s{sT5}, v28
    s_cmp_lt_u32 s{sT5}, {target}
    s_cbranch_scc1 {spin}
    """)

def bf16_stats(a, vs, vq, vm, vr_, t):
    a(f"""
    v_mul_f32 v{vs}, {f32(1/448)}, v{vs}
    v_mul_f32 v{vq}, {f32(1/448)}, v{vq}
    v_fma_f32 v{vq}, -v{vs}, v{vs}, v{vq}
    v_max_f32 v{vq}, 0, v{vq}
    v_cvt_pk_bf16_f32 v{t}, v{vs}, v{vq}
    v_lshlrev_b32 v{vm}, 16, v{t}
    v_and_b32 v{t}, 0xffff0000, v{t}
    v_add_f32 v{t}, {EPS:#x}, v{t}
    v_cvt_pk_bf16_f32 v{t}, v{t}, v{t}
    v_and_b32 v{t}, 0xffff0000, v{t}
    v_sqrt_f32 v{t}, v{t}
    s_nop 0
    v_cvt_pk_bf16_f32 v{t}, v{t}, v{t}
    v_and_b32 v{t}, 0xffff0000, v{t}
    v_rcp_f32 v{vr_}, v{t}
    s_nop 0
    """)

def dpp_reduce(a, vs, vq, modes):
    a("s_nop 2")
    for mode in modes:
        a(f"v_add_f32_dpp v{vs}, v{vs}, v{vs} {mode} row_mask:0xf bank_mask:0xf")
        a(f"v_add_f32_dpp v{vq}, v{vq}, v{vq} {mode} row_mask:0xf bank_mask:0xf")
        a("s_nop 0")
QP1, QP2, RHM, RM = "quad_perm:[1,0,3,2]", "quad_perm:[2,3,0,1]", "row_half_mirror", "row_mirror"

def split_hi_lo(a, dst, src, t):
    a(f"""
    v_cvt_pk_bf16_f32 v{t}, v{src}, v{src}
    v_and_b32 v{t}, 0xffff0000, v{t}
    v_sub_f32 v{t}, v{src}, v{t}
    v_cvt_pk_bf16_f32 v{dst}, v{src}, v{t}
    """)

def prologue(a, end):
    a(f"s_cmp_ge_u32 s2, 256\ns_cbranch_scc1 {end}x")
    if OPT.double: a("s_memrealtime s[100:101]")
    if OPT.stamps: a("v_mov_b32 v255, 0")
    stamp(a, 0)
    a(f"""
    s_load_dwordx16 s[16:31], s[0:1], 0
    s_load_dwordx8 s[32:39], s[0:1], 64
    s_load_dwordx2 s[40:41], s[0:1], 96
    v_lshrrev_b32 v5, 6, v0
    v_and_b32 v{vLANE}, 63, v0
    v_readfirstlane_b32 s{sW}, v5
    v_and_b32 v{vJ}, 31, v0
    v_lshrrev_b32 v{vHH}, 5, v{vLANE}
    v_lshlrev_b32 v{vL16}, 4, v{vLANE}
    s_and_b32 s{sXCD}, s2, 7
    s_lshr_b32 s{sJ}, s2, 3
    """)
    if OPT.codepf:
        a(f"""
        s_cmp_lg_u32 s{sW}, 7
        s_cbranch_scc1 nocpf
        s_getpc_b64 s[{R_OUT}:{R_OUT+1}]
        cpf_here:
        s_sub_u32 s{R_OUT}, s{R_OUT}, cpf_here-{NAME}_kernel
        s_subb_u32 s{R_OUT+1}, s{R_OUT+1}, 0
        s_mov_b32 s{R_OUT+2}, code_end-{NAME}_kernel
        s_mov_b32 s{R_OUT+3}, 0x20000
        s_lshl_b32 s{sT0}, s{sJ}, 7
        v_lshlrev_b32 v6, 12, v{vLANE}
        buffer_load_dword v250, v6, {sr(R_OUT,4)}, s{sT0} offen
        nocpf:
        """)
    a(f"""
    s_lshr_b32 s{sT0}, s{sJ}, 3
    s_lshl_b32 s{sRB}, s{sXCD}, 2
    s_add_u32 s{sRB}, s{sRB}, s{sT0}
    s_and_b32 s{sCB}, s{sJ}, 7
    s_mov_b32 s{sHI}, 0
    s_mov_b32 s{sHI+1}, -1
    s_mov_b32 s{sONES}, 0x3f803f80
    v_lshlrev_b32 v5, 2, v{vLANE}
    v_add_u32 v5, {L_CNT}, v5
    v_mov_b32 v6, 0
    ds_write_b32 v5, v6
    v_mov_b32 v0, {L_CNT}
    v_mov_b32 v29, 1
    v_lshrrev_b32 v5, 3, v{vLANE}
    v_and_b32 v6, 7, v{vLANE}
    v_lshrrev_b32 v7, 4, v{vLANE}
    v_bfe_u32 v8, v{vLANE}, 2, 2
    v_and_b32 v9, 3, v{vLANE}
    v_and_b32 v10, 1, v7
    v_lshlrev_b32 v9, 3, v9
    v_lshl_add_u32 v9, v10, 5, v9
    """)
    p1_addr(a)
    a(f"s_cmp_ge_u32 s{sW}, 4\ns_cbranch_scc1 p1g")

def common_srds(a):
    a("s_waitcnt lgkmcnt(0)")
    srd(a, R_X, P_X, 2048 * 896)
    srd(a, R_WS, P_WS, WS_SIZE)
    stamp(a, 1)

def epoch_load(a):
    a(f"s_mov_b32 s{sT5}, {WS_EPOCH}\nbuffer_load_dwordx2 v[26:27], off, {sr(R_WS,4)}, s{sT5} sc1")

vXe, vXo, vWQd = 11, 12, 13
sNL, sXs, sXm, sNT, sW3 = 76, 77, 78, 79, 80
sXs2, sXm2, sQs, sQm = 26, 27, 38, 39
def p1_addr(a):
    a(f"""
    v_mul_u32_u24 v20, 896, v5
    v_xor_b32 v21, v6, v7
    v_lshl_add_u32 v{vXe}, v21, 4, v20
    v_xor_b32 v21, 4, v21
    v_lshl_add_u32 v{vXo}, v21, 4, v20
    v_lshlrev_b32 v21, 2, v10
    v_xor_b32 v21, v21, v6
    v_lshl_add_u32 v{vWQd}, v21, 4, v20
    s_and_b32 s{sW3}, s{sW}, 3
    s_cmp_eq_u32 s{sW3}, 3
    s_cselect_b32 s{sNL}, 1, 2
    s_bfe_u32 s{sNT}, s{sCB}, 0x10001
    s_lshl_b32 s{sT0}, s{sRB}, 1
    s_add_u32 s{sT0}, s{sT0}, s{sNT}
    s_mul_i32 s{sXs}, s{sT0}, {32*896}
    s_lshl_b32 s{sT0}, s{sW3}, 8
    s_add_u32 s{sXs}, s{sXs}, s{sT0}
    s_lshl_b32 s{sXm}, s{sW3}, 14
    s_lshl_b32 s{sT0}, s{sNT}, 12
    s_add_u32 s{sXm}, s{sXm}, s{sT0}
    """)
def rest_dma(a, after_x=None):
    srd(a, R_WQ, P_WQ, 448 * 896)
    a(f"""
    s_xor_b32 s{sXm2}, s{sXm}, 4096
    s_mul_i32 s{sT0}, s{sNT}, {2*32*896}
    s_add_u32 s{sXs2}, s{sXs}, {32*896}
    s_sub_u32 s{sXs2}, s{sXs2}, s{sT0}
    s_mul_i32 s{sQs}, s{sW3}, {128*896}
    s_mul_i32 s{sT0}, s{sCB}, 112
    s_add_u32 s{sQs}, s{sQs}, s{sT0}
    s_lshl_b32 s{sQm}, s{sW3}, 14
    """)
    if after_x: after_x()
    PF1 = f"buffer_load_dword v249, v{vPF1}, {sr(R_W1,4)}, s{sPFW} offen"
    if OPT.pf1pos == 0: a(PF1)
    l1 = a.label("rd1"); l2 = a.label("rd2")
    for line in range(2):
        if line: a(f"s_cmp_eq_u32 s{sNL}, 1\ns_cbranch_scc1 {l1}")
        for b in range(4):
            a(f"""
            s_add_u32 m0, s{sXm2}, {L_XT + line*8192 + b*1024}
            s_add_u32 s{sT0}, s{sXs2}, {b*8*896 + line*128}
            buffer_load_dwordx4 v{vXo if b & 1 else vXe}, {sr(R_X,4)}, s{sT0} offen lds
            """)
    a(f"{l1}:")
    if OPT.pf1pos == 1: a(PF1)
    for line in range(2):
        if line:
            a(f"s_waitcnt vmcnt({9 if OPT.pf1pos == 1 else 8})")
            lds_arrive(a, C_XA, nowait=True)
            a(f"s_cmp_eq_u32 s{sNL}, 1\ns_cbranch_scc1 {l2}")
        for b in range(8):
            a(f"""
            s_add_u32 m0, s{sQm}, {L_WQ + line*8192 + b*1024}
            s_add_u32 s{sT0}, s{sQs}, {(line*64 + b*8)*896}
            buffer_load_dwordx4 v{vWQd}, {sr(R_WQ,4)}, s{sT0} offen lds
            """)
    a(f"{l2}:")

vPF1 = 246
def pf1_addr(a):
    a(f"""
    v_min_u32 v14, 6, v6
    v_mul_u32_u24 v{vPF1}, 3584, v5
    v_lshl_add_u32 v{vPF1}, v14, 7, v{vPF1}
    s_lshl_b32 s{sT1}, s{sW3}, 6
    s_add_u32 s{sT1}, s{sT1}, s{sJ}
    s_add_u32 s{sT1}, s{sT1}, {8*OPT.npf0}
    s_mul_i32 s{sPFW}, s{sT1}, {8*3584}
    s_lshr_b32 s{sT2}, s{sXCD}, 1
    s_mul_i32 s{sT2}, s{sT2}, 896
    s_add_u32 s{sPFW}, s{sPFW}, s{sT2}
    """)
    srd(a, R_W1, P_W1, 2048 * 3584)

def stats_code(a, st0, st1, SX=64, T=40):
    a(f"""
    v_lshrrev_b32 v{T}, 2, v{vLANE}
    v_and_b32 v{T+1}, 3, v{vLANE}
    v_lshlrev_b32 v{T+1}, 5, v{T+1}
    v_lshl_add_u32 v{T+1}, v{T}, 7, v{T+1}
    v_lshlrev_b32 v{T+2}, 1, v{vLANE}
    v_and_b32 v{T+2}, 16, v{T+2}
    v_add_u32 v{T+1}, v{T+1}, v{T+2}
    s_lshl_b32 s{sT0}, s{sW3}, 11
    v_add_u32 v{T+1}, s{sT0}, v{T+1}
    v_xor_b32 v{T+3}, 16, v{T+1}
    s_lshl_b32 s{sT0}, s{sW3}, 7
    s_add_u32 s{sT0}, s{sT0}, {L_ST}
    v_lshl_add_u32 v{T}, v{T}, 3, s{sT0}
    v_mov_b32 v{T+4}, 0
    v_mov_b32 v{T+5}, 0
    """)
    lds_wait(a, C_X1, 4)
    lds_wait(a, C_XA, 4)
    stamp(a, st0)
    for c in range(7):
        a(f"ds_read_b128 {vr(SX+8*c,4)}, v{T+1} offset:{L_XT + c*8192}")
        a(f"ds_read_b128 {vr(SX+8*c+4,4)}, v{T+3} offset:{L_XT + c*8192}")
    for c in range(7):
        a(f"s_waitcnt lgkmcnt({2*(6-c)})")
        for i in range(8):
            a(f"v_dot2c_f32_bf16 v{T+4}, s{sONES}, v{SX+8*c+i}")
            a(f"v_dot2c_f32_bf16 v{T+5}, v{SX+8*c+i}, v{SX+8*c+i}")
    dpp_reduce(a, T + 4, T + 5, [QP1, QP2])
    bf16_stats(a, T + 4, T + 5, T + 3, T + 7, T + 2)
    a(f"""
    v_cvt_pk_bf16_f32 v{T+6}, -v{T+3}, -v{T+3}
    v_mul_f32 v{T+7}, {f32(QSCALE)}, v{T+7}
    ds_write_b64 v{T}, {vr(T+6,2)}
    """)
    lds_arrive(a, C_ST, nowait=True)
    stamp(a, st1)

def p1_a(a):
    vXF, vWK, vWQr = 14, 18, 19
    sB, sM = 94, 96
    a(f"""
    s_and_b32 s{sT1}, s{sCB}, 1
    s_lshl_b32 s{sT2}, s{sT1}, 11
    s_xor_b32 s{sM}, s{sXm}, s{sT2}
    s_mul_i32 s{sT1}, s{sT1}, {16*896}
    s_add_u32 s{sB}, s{sXs}, s{sT1}
    s_add_u32 s{sT2}, s{sXs}, {16*896}
    s_sub_u32 s{sB+1}, s{sT2}, s{sT1}
    s_lshr_b32 s{sT3}, s{sJ}, 3
    s_lshl_b32 s{sT3}, s{sT3}, 2
    s_add_u32 s{sT3}, s{sT3}, s{sCB}
    s_sub_u32 s{sT3}, s{sT3}, 4
    s_lshl_b32 s{sT3}, s{sT3}, 2
    s_add_u32 s{sT3}, s{sT3}, s{sW}
    v_lshlrev_b32 v21, 7, v{vLANE}
    """)
    common_srds(a)
    def x_half(h):
        sk = a.label("xh")
        for line in range(2):
            if line: a(f"s_cmp_eq_u32 s{sNL}, 1\ns_cbranch_scc1 {sk}")
            for b in range(2):
                a(f"""
                s_xor_b32 m0, s{sM}, {line*8192 + h*2048 + b*1024}
                s_add_u32 s{sT0}, s{sB+h}, {b*8*896 + line*128}
                buffer_load_dwordx4 v{vXo if b else vXe}, {sr(R_X,4)}, s{sT0} offen lds
                """)
        a(f"{sk}:")
    htype = a.label("htype"); qgo = a.label("qgo"); kvred = a.label("kvred")
    x_half(0)
    a(f"s_cmp_ge_u32 s{sCB}, 4\ns_cbranch_scc1 {htype}")
    x_half(1)
    a(f"""
    s_bitcmp1_b32 s{sCB}, 0
    s_cselect_b32 s{R_WKV}, s{P_WV}, s{P_WK}
    s_cselect_b32 s{R_WKV+1}, s{P_WV+1}, s{P_WK+1}
    s_mov_b32 s{R_WKV+2}, {448*56}
    s_mov_b32 s{R_WKV+3}, 0x20000
    s_mul_i32 s{sT1}, s{sW}, 7168
    s_add_u32 m0, s{sT1}, {L_WKV}
    s_cmp_eq_u32 s{sNL}, 1
    """)
    w3 = a.label("wk3"); w3e = a.label("wk3e")
    for i in range(4): a(f"buffer_load_dwordx4 v{vL16}, {sr(R_WKV,4)}, s{sT1} offen offset:{1024*i} lds")
    a(f"""
    s_cbranch_scc1 {w3}
    s_add_u32 m0, m0, 4096
    s_add_u32 s{sT1}, s{sT1}, 4096
    """)
    for i in range(3): a(f"buffer_load_dwordx4 v{vL16}, {sr(R_WKV,4)}, s{sT1} offen offset:{1024*i} lds")
    a(f"{w3}:")
    epoch_load(a)
    a("s_barrier")
    def frag_addr():
        a(f"""
        v_lshrrev_b32 v20, 1, v{vJ}
        v_and_b32 v20, 7, v20
        v_xor_b32 v20, v20, v{vHH}
        v_lshlrev_b32 v20, 4, v20
        v_lshl_add_u32 v{vXF}, v{vJ}, 7, v20
        v_xor_b32 v{vXF+1}, 32, v{vXF}
        v_xor_b32 v{vXF+2}, 64, v{vXF}
        v_xor_b32 v{vXF+3}, 96, v{vXF}
        v_lshl_add_u32 v20, v{vHH}, 3, v8
        """)
    frag_addr()
    ACC, XF, WF = 96, 32, 64
    vS, vQ, vC = 21, 22, 23
    a(f"""
    v_mul_u32_u24 v{vWK}, 56, v20
    v_add_u32 v{vWK}, v{vWK}, v9
    s_mul_i32 s{sT1}, s{sW}, 7168
    s_add_u32 s{sT1}, s{sT1}, {L_WKV}
    v_add_u32 v{vWK}, s{sT1}, v{vWK}
    v_add_u32 v24, s{sXm}, v{vXF}
    v_xor_b32 v25, 32, v24
    v_xor_b32 v30, 64, v24
    v_xor_b32 v31, 96, v24
    v_mov_b32 v{vS}, 0
    v_mov_b32 v{vQ}, 0
    v_mov_b32 v{vC}, 0
    """)
    xa = [24, 25, 30, 31]
    l0 = a.label("kv0"); l1 = a.label("kv1a"); l2 = a.label("kv1b"); vlab = a.label("kvv")
    def skip1(lab): a(f"s_cmp_eq_u32 s{sNL}, 1\ns_cbranch_scc1 {lab}")
    a(f"s_waitcnt vmcnt(8)\ns_cmp_eq_u32 s{sNL}, 1\ns_cbranch_scc0 {l0}\ns_waitcnt vmcnt(5)\n{l0}:")
    stamp(a, 2)
    for line in range(2):
        for q in range(4): a(f"ds_read_b128 {vr(XF+16*line+4*q,4)}, v{xa[q]} offset:{L_XT + line*8192}")
    lds_arrive(a, C_X1, nowait=True)
    for line in range(2):
        if line: skip1(l1)
        for q in range(4):
            a(f"s_waitcnt lgkmcnt({8-4*line-q})")
            for i in range(4):
                r = XF + 16 * line + 4 * q + i
                a(f"v_dot2c_f32_bf16 v{vS}, s{sONES}, v{r}\nv_dot2c_f32_bf16 v{vQ}, v{r}, v{r}")
    a(f"{l1}:\ns_waitcnt vmcnt(1) lgkmcnt(0)")
    stamp(a, 18)
    for k in range(8):
        a(f"ds_read_b64_tr_b16 {vr(WF+4*k,2)}, v{vWK} offset:{k*896}")
        if k == 7: a("s_waitcnt lgkmcnt(14)")
        a(f"ds_read_b64_tr_b16 {vr(WF+4*k+2,2)}, v{vWK} offset:{k*896+224}")
    a(f"""
    s_lshl_b32 s{sT0}, s{sW}, 4
    s_add_u32 s{sT0}, s{sT0}, {L_KS}
    v_lshlrev_b32 v25, 6, v{vJ}
    v_lshl_add_u32 v24, v{vHH}, 3, v25
    v_add_u32 v24, s{sT0}, v24
    v_mov_b32 v30, v{vQ}
    v_mov_b32 v31, v{vS}
    s_bitcmp1_b32 s{sCB}, 0
    s_cbranch_scc1 {vlab}
    """)
    for isv in (0, 1):
        if isv: a(f"{vlab}:")
        for k in range(8):
            if k == 4: skip1(l2)
            a(f"s_waitcnt lgkmcnt({14-2*k})")
            A, B = (vr(XF+4*k,4), vr(WF+4*k,4)) if isv else (vr(WF+4*k,4), vr(XF+4*k,4))
            a(f"{MF} {vr(ACC,16)}, {A}, {B}, {vr(ACC,16) if k else 0}")
        if not isv: a(f"s_branch {l2}")
    a(f"{l2}:\nds_write_b64 v24, v[30:31]")
    for k in range(8):
        if k == 4: skip1(kvred)
        for i in range(4): a(f"v_dot2c_f32_bf16 v{vC}, s{sONES}, v{WF+4*k+i}")
    a(f"{kvred}:")
    stamp(a, 3)
    fin = a.label("kvfin")
    a(f"""
    s_lshl_b32 s{sT0}, s{sW}, 2
    s_add_u32 s{sT0}, s{sT0}, {L_KC}
    v_add_u32 v30, s{sT0}, v{vL16}
    s_cmp_eq_u32 s{sW}, 3
    s_cbranch_scc1 {fin}
    v_add_u32 v24, s{sT1}, v{vL16}
    """)
    for g in range(4): a(f"ds_write_b128 v24, {vr(ACC+4*g,4)} offset:{1024*g}")
    split_hi_lo(a, 24, vC, 31)
    a("ds_write_b32 v30, v24")
    lds_arrive(a, C_KV, nowait=True)
    a("s_waitcnt vmcnt(0)")
    get_tag(a)
    a(f"s_branch {qgo}")
    a(f"{fin}:")
    split_hi_lo(a, 24, vC, 31)
    a(f"""
    ds_write_b32 v30, v24
    v_add_u32 v24, {L_KS}, v25
    v_add_u32 v25, {L_WKV}, v{vL16}
    v_add_u32 v21, {L_KC}, v{vL16}
    s_lshl_b32 s{sT1}, s{sRB}, 1
    s_add_u32 s{sT1}, s{sT1}, s{sNT}
    s_lshl_b32 s{sT1}, s{sT1}, 12
    s_add_u32 s{sT1}, s{sT1}, {WS_KV}
    s_lshl_b32 s{sT4}, s{sRB}, 2
    s_add_u32 s{sT4}, s{sT4}, s{sCB}
    s_lshl_b32 s{sT4}, s{sT4}, 3
    s_lshl_b32 s{sT4}, s{sT4}, {FS}
    s_add_u32 s{sT4}, s{sT4}, {FL_KV}
    s_waitcnt vmcnt(0)
    s_setprio 3
    """)
    get_tag(a)
    lds_wait(a, C_KV, 3)
    stamp(a, 4)
    for g in range(4): a(f"ds_read_b128 {vr(XF+4*g,4)}, v24 offset:{16*g}")
    a(f"ds_read_b128 {vr(112,4)}, v21")
    for w in range(3):
        for g in range(4):
            if w == 2 and g >= 2: continue
            a(f"ds_read_b128 {vr(128+16*w+4*g,4)}, v25 offset:{7168*w+1024*g}")
    a("s_waitcnt lgkmcnt(11)")
    for g in range(2, 4): a(f"ds_read_b128 {vr(128+32+4*g,4)}, v25 offset:{7168*2+1024*g}")
    for i in range(4): a(f"v_pk_add_f32 {vr(XF+4*i,2)}, {vr(XF+4*i,2)}, {vr(XF+4*i+2,2)}")
    a(f"""
    v_pk_add_f32 {vr(XF,2)}, {vr(XF,2)}, {vr(XF+4,2)}
    v_pk_add_f32 {vr(XF+8,2)}, {vr(XF+8,2)}, {vr(XF+12,2)}
    v_pk_add_f32 {vr(XF,2)}, {vr(XF,2)}, {vr(XF+8,2)}
    """)
    bf16_stats(a, XF + 1, XF, 22, 23, 21)
    vfin = a.label("vfin"); kvst = a.label("kvst")
    a(f"""
    v_cvt_pk_bf16_f32 v116, -v22, -v22
    v_lshlrev_b32 v21, 2, v{vJ}
    v_add_u32 v21, {L_RT}, v21
    ds_write_b32 v21, v23
    v_mov_b32 v117, v116
    v_mov_b32 v118, v116
    v_mov_b32 v119, v116
    v_lshlrev_b32 v21, 4, v{vHH}
    v_add_u32 v21, {L_RT}, v21
    s_waitcnt lgkmcnt(5)
    """)
    for r in range(0, 16, 2): a(f"v_pk_add_f32 {vr(128+r,2)}, {vr(128+r,2)}, {vr(144+r,2)}")
    a("s_waitcnt lgkmcnt(1)")
    for r in range(0, 16, 2): a(f"v_pk_add_f32 {vr(ACC+r,2)}, {vr(ACC+r,2)}, {vr(160+r,2)}")
    for r in range(0, 16, 2): a(f"v_pk_add_f32 {vr(ACC+r,2)}, {vr(ACC+r,2)}, {vr(128+r,2)}")
    a(f"""
    s_bitcmp1_b32 s{sCB}, 0
    s_cbranch_scc1 {vfin}
    {MF} {vr(ACC,16)}, {vr(112,4)}, {vr(116,4)}, {vr(ACC,16)}
    v_mov_b32 v22, v23
    s_nop 10
    """)
    for r in range(0, 16, 2): a(f"v_pk_mul_f32 {vr(ACC+r,2)}, {vr(ACC+r,2)}, v[22:23]")
    for i in range(8): a(f"v_cvt_pk_bf16_f32 v{120+i}, v{ACC+2*i}, v{ACC+2*i+1}")
    a(f"""
    s_mov_b64 exec, {sr(sHI,2)}
    v_mov_b32 v126, 0x3f803f80
    v_mov_b32 v127, 0x00003f80
    s_mov_b64 exec, -1
    s_branch {kvst}
    {vfin}:
    {MF} {vr(ACC,16)}, {vr(116,4)}, {vr(112,4)}, {vr(ACC,16)}
    """)
    for g in range(4): a(f"ds_read_b128 {vr(XF+4*g,4)}, v21 offset:{32*g}")
    a(f"""
    s_add_u32 s{sT1}, s{sT1}, 2048
    v_cmp_eq_u32 vcc, 28, v{vJ}
    v_mov_b32 v22, 0x3f803f80
    s_nop 1
    v_cndmask_b32 v22, 0, v22, vcc
    """)
    for i in range(8): a(f"v_mov_b32 v{120+i}, v22")
    a(f"s_waitcnt lgkmcnt(0)\ns_mov_b32 exec_lo, 0x0fffffff\ns_mov_b32 exec_hi, 0x0fffffff")
    for r in range(0, 16, 2): a(f"v_pk_mul_f32 {vr(ACC+r,2)}, {vr(ACC+r,2)}, {vr(XF+r,2)}")
    for i in range(8): a(f"v_cvt_pk_bf16_f32 v{120+i}, v{ACC+2*i}, v{ACC+2*i+1}")
    a(f"""
    s_mov_b64 exec, -1
    {kvst}:
    buffer_store_dwordx4 {vr(120,4)}, v{vL16}, {sr(R_WS,4)}, s{sT1} offen sc1
    buffer_store_dwordx4 {vr(124,4)}, v{vL16}, {sr(R_WS,4)}, s{sT1} offen offset:1024 sc1
    """)
    if not OPT.fl_late: lds_arrive(a, C_FL, nowait=True)
    stamp(a, 5)
    a(f"s_branch {qgo}")
    a(f"""
    {htype}:
    s_cmp_ge_u32 s{sT3}, 53
    s_cselect_b32 s{R_WKV}, s{P_WV}, s{P_WK}
    s_cselect_b32 s{R_WKV+1}, s{P_WV+1}, s{P_WK+1}
    s_cselect_b32 s{sT1}, 53, 49
    s_mov_b32 s{R_WKV+2}, {448*896}
    s_cmp_ge_u32 s{sT3}, 49
    s_cselect_b32 s{R_WKV}, s{R_WKV}, s{P_WQ}
    s_cselect_b32 s{R_WKV+1}, s{R_WKV+1}, s{P_WQ+1}
    s_cselect_b32 s{R_WKV+2}, {448*56}, s{R_WKV+2}
    s_cselect_b32 s{sT1}, s{sT1}, 0
    s_mov_b32 s{R_WKV+3}, 0x20000
    s_sub_u32 s{sT3}, s{sT3}, s{sT1}
    s_lshl_b32 s{sT3}, s{sT3}, 13
    buffer_load_dword v250, v21, {sr(R_WKV,4)}, s{sT3} offen
    """)
    epoch_load(a)
    pf1_addr(a)
    frag_addr()
    a("s_barrier")
    def first_landed():
        a("s_waitcnt vmcnt(2)")
        stamp(a, 2)
        lds_arrive(a, C_X1, nowait=True)
        if OPT.npf0:
            a(f"""
            s_lshr_b32 s{sT0}, s{sJ}, 3
            s_lshl_b32 s{sT0}, s{sT0}, 2
            s_add_u32 s{sT0}, s{sT0}, s{sCB}
            s_sub_u32 s{sT0}, s{sJ}, s{sT0}
            s_add_u32 s{sT0}, s{sT0}, {8*OPT.npf0+4}
            s_mul_i32 s{sT0}, s{sT0}, {8*3584}
            s_sub_u32 s{sT0}, s{sPFW}, s{sT0}
            """)
            for i in range(OPT.npf0 // 2):
                a(f"buffer_load_dword v{251+i%3}, v{vPF1}, {sr(R_W1,4)}, s{sT0} offen\ns_add_u32 s{sT0}, s{sT0}, {128*3584}")
        lds_wait(a, C_FL, 4)
        x_half(1)
    rest_dma(a, first_landed)
    lds_arrive(a, C_ISS, nowait=True)
    stamp(a, 3)
    stats_code(a, 4, 5)
    a("s_waitcnt vmcnt(0)")
    lds_arrive(a, C_X, nowait=True)
    get_tag(a)
    if OPT.pf1pos == 2:
        lds_wait(a, C_X, 4)
        a(f"buffer_load_dword v249, v{vPF1}, {sr(R_W1,4)}, s{sPFW} offen")
    a(f"s_mov_b32 s{sT4}, 0")
    QACC, B0 = 128, 32
    q2 = a.label("q2")
    a(f"""
    s_branch {q2}
    {qgo}:
    s_cmp_eq_u32 s{sW}, 3
    s_cselect_b32 s{sT4}, s{sT4}, 0
    {q2}:
    s_and_b32 s{sT0}, s{sW}, 1
    s_mul_i32 s{sT0}, s{sT0}, 56
    v_add_u32 v{vWQr}, s{sT0}, v9
    v_lshlrev_b32 v21, 5, v8
    v_and_b32 v21, 64, v21
    v_xor_b32 v{vWQr}, v{vWQr}, v21
    v_lshl_add_u32 v{vWQr}, v20, 7, v{vWQr}
    v_add_u32 v{vWQr}, {L_WQ}, v{vWQr}
    s_lshr_b32 s{sT1}, s{sW}, 1
    s_lshl_b32 s{sT0}, s{sT1}, 12
    v_mov_b32 v23, 0
    v_mov_b32 v113, 0
    v_mov_b32 v114, 0
    v_mov_b32 v115, 0
    v_mov_b32 v118, 0
    v_mov_b32 v119, 0
    """)
    for q in range(4): a(f"v_add_u32 v{vXF+q}, s{sT0}, v{vXF+q}")
    a(f"""
    s_lshl_b32 s{sT1}, s{sT1}, 8
    s_add_u32 s{sT1}, s{sT1}, {L_ST}
    v_lshl_add_u32 v24, v{vJ}, 3, s{sT1}
    """)
    lds_wait(a, C_X1, 4)
    lds_wait(a, C_X, 4)
    stamp(a, 7)
    D = 4; NB = 8
    WR = list(range(64, 112, 4)) + list(range(144, 176, 4)) + list(range(224, 248, 4)) + [120, 124]
    def wreg(ks): return WR[ks]
    def reads(ks):
        b = wreg(ks)
        a(f"ds_read_b64_tr_b16 {vr(b,2)}, v{vWQr} offset:{ks*2048}")
        a(f"ds_read_b64_tr_b16 {vr(b+2,2)}, v{vWQr} offset:{ks*2048+512}")
        a(f"ds_read_b128 {vr(B0+4*(ks%NB),4)}, v{vXF+(ks&3)} offset:{L_XT + (ks>>2)*8192}")
    for ks in range(D): reads(ks)
    for ks in range(28):
        if ks + D < 28: reads(ks + D)
        a(f"s_waitcnt lgkmcnt({3*min(D, 27-ks)})")
        a(f"{MF} {vr(QACC,16)}, {vr(wreg(ks),4)}, {vr(B0+4*(ks%NB),4)}, {'0' if ks == 0 else vr(QACC,16)}")
        if ks == OPT.kvflag:
            nf = a.label("nofl")
            a(f"s_cmp_eq_u32 s{sT4}, 0\ns_cbranch_scc1 {nf}")
            set_flag(a, sT4)
            if OPT.fl_late: lds_arrive(a, C_FL, nowait=True)
            a("s_setprio 0")
            stamp(a, 6)
            a(f"{nf}:")
    stamp(a, 19)
    if OPT.prio_ld: a(f"s_setprio {OPT.prio_ld}")
    att_setup(a)
    if OPT.early: a(f"buffer_load_dwordx2 v[30:31], v25, {sr(R_WS,4)}, s{sKF} offen sc1")
    for ks in range(28):
        for i in range(4): a(f"v_dot2c_f32_bf16 v23, s{sONES}, v{wreg(ks)+i}")
    if OPT.early:
        nk = a.label("nokvyet")
        a(f"""
        s_waitcnt vmcnt(0)
        v_cmp_ne_u64 vcc, {sr(sTAG,2)}, v[30:31]
        s_cbranch_vccnz {nk}
        """)
        first_kv(a)
        a(f"s_mov_b32 s{sKF}, 0\n{nk}:")
    stamp(a, 8)
    lds_wait(a, C_ST, 8)
    a(f"ds_read_b64 v[116:117], v24")
    split_hi_lo(a, 112, 23, 21)
    a(f"""
    s_waitcnt lgkmcnt(0)
    v_mov_b32 v22, v117
    v_mov_b32 v23, v117
    v_mov_b32 v117, 0
    s_nop 1
    {MF} {vr(QACC,16)}, {vr(112,4)}, {vr(116,4)}, {vr(QACC,16)}
    s_lshl_b32 s{sT1}, s{sW}, 11
    s_add_u32 s{sT1}, s{sT1}, {L_QS}
    v_add_u32 v21, s{sT1}, v{vL16}
    """)
    for r in range(64, 76): a(f"v_mov_b32 v{r}, 0")
    for r in range(0, 16, 2): a(f"v_pk_mul_f32 {vr(QACC+r,2)}, {vr(QACC+r,2)}, v[22:23]")
    for i in range(8): a(f"v_cvt_pk_bf16_f32 v{32+i}, v{QACC+2*i}, v{QACC+2*i+1}")
    a(f"""
    s_mov_b64 exec, {sr(sHI,2)}
    v_mov_b32 v38, 0
    v_mov_b32 v39, 0
    s_mov_b64 exec, -1
    ds_write_b128 v21, {vr(32,4)}
    ds_write_b128 v21, {vr(36,4)} offset:1024
    """)
    lds_arrive(a, C_Q, nowait=True)

vDW1, vDW2, vDWO, vOUT, vT1, vT2, vT3, vLN, vLM, vPF, vPF2 = 48, 49, 50, 51, 52, 54, 56, 58, 60, 62, 63
vTH, vSW = 240, 247
sHasG1 = 98
sFH, sPH, sB1o, sFU, sUS, sFUc, sPU, sFOc, sSH1 = 16, 17, 28, 29, 30, 31, 32, 33, 81
def g_setup1(a):
    srd(a, R_B1, P_B1, 1792 * 2)
    a(f"""
    s_lshr_b32 s{sGM}, s{sG}, 1
    s_and_b32 s{sGN}, s{sG}, 1
    s_lshl_b32 s{sRing}, s{sG}, 11
    s_add_u32 s{sRing}, s{sRing}, {L_RING}
    v_lshlrev_b32 v{vDWO}, 2, v10
    v_xor_b32 v{vDWO}, v{vDWO}, v6
    v_lshlrev_b32 v{vDWO}, 4, v{vDWO}
    v_lshl_add_u32 v{vT3}, v8, 7, v9
    v_lshlrev_b32 v24, 5, v8
    v_and_b32 v24, 64, v24
    v_add_u32 v{vT3}, v{vT3}, v24
    v_add_u32 v{vT3}, s{sRing}, v{vT3}
    s_lshr_b32 s{sT0}, s{sJ}, 3
    s_mul_i32 s{sT0}, s{sT0}, 6
    s_add_u32 s{sT0}, s{sT0}, s{sCB}
    s_cmp_lt_u32 s{sCB}, 6
    s_cselect_b32 s{sHasG1}, 1, 0
    s_and_b32 s{sT1}, s2, 0xf9
    s_cmp_eq_u32 s{sT1}, 48
    s_cselect_b32 s{sT0}, 24, s{sT0}
    s_cselect_b32 s{sHasG1}, 1, s{sHasG1}
    s_and_b32 s{sT1}, s{sXCD}, 1
    s_mul_i32 s{sT1}, s{sT1}, 25
    s_add_u32 s{sT0}, s{sT0}, s{sT1}
    s_mul_i32 s{sA}, s{sT0}, 37
    s_lshr_b32 s{sA}, s{sA}, 8
    s_mul_i32 s{sT1}, s{sA}, 7
    s_sub_u32 s{sPH}, s{sT0}, s{sT1}
    s_lshr_b32 s{sFB}, s{sXCD}, 1
    s_mul_i32 s{sFB}, s{sFB}, 7
    s_add_u32 s{sFB}, s{sFB}, s{sPH}
    v_mul_u32_u24 v{vDW1}, 3584, v5
    v_add_u32 v{vDW1}, v{vDW1}, v{vDWO}
    v_lshl_add_u32 v{vDW2}, v5, 12, v{vDWO}
    v_mul_u32_u24 v24, 896, v5
    v_add_u32 v{vDWO}, v24, v{vDWO}
    s_mul_i32 s{sD}, s{sG}, {512*3584}
    s_lshl_b32 s{sT0}, s{sFB}, 7
    s_add_u32 s{sD}, s{sD}, s{sT0}
    s_lshl_b32 s{sT1}, s{sGM}, 6
    s_add_u32 s{sB1o}, s{sT0}, s{sT1}
    v_lshl_add_u32 v24, v{vHH}, 10, v{vT3}
    v_xor_b32 v{vT1}, s{sT1}, v24
    v_xor_b32 v{vT1+1}, 64, v{vT1}
    v_add_u32 v{vTH}, 0x10000, v{vT1}
    v_add_u32 v{vTH+1}, 0x10000, v{vT1+1}
    s_lshl_b32 s{sT0}, s{sGN}, 10
    v_add_u32 v{vLN}, s{sT0}, v{vL16}
    v_xor_b32 v{vLN+1}, 0x400, v{vLN}
    s_lshl_b32 s{sL}, s{sA}, 18
    s_lshl_b32 s{sT0}, s{sG}, 16
    s_add_u32 s{sL}, s{sL}, s{sT0}
    s_add_u32 s{sSH1}, s{sPH}, 1
    s_lshl_b32 s{sPH}, s{sSH1}, 13
    s_add_u32 s{sPH}, s{sPH}, s{sL}
    v_lshlrev_b32 v{vPF}, 7, v{vLANE}
    v_add_u32 v{vSW}, s{sRing}, v{vL16}
    v_add_u32 v{vSW+1}, 0x10000, v{vSW}
    s_lshr_b32 s{sFH}, s{sA}, 1
    s_lshl_b32 s{sFH}, s{sFH}, 10
    s_lshl_b32 s{sT0}, s{sG}, 8
    s_add_u32 s{sFH}, s{sFH}, s{sT0}
    s_lshl_b32 s{sFH}, s{sFH}, {FS}
    s_add_u32 s{sFH}, s{sFH}, {FL_H}
    v_bfe_u32 v32, v{vJ}, 1, 3
    v_lshlrev_b32 v32, 4, v32
    v_xor_b32 v32, s{sT1}, v32
    v_lshl_add_u32 v32, v{vJ}, 7, v32
    v_lshl_add_u32 v32, v{vHH}, 3, v32
    s_lshl_b32 s{sT0}, s{sCB}, 13
    s_lshl_b32 s{sT1}, s{sGN}, 12
    s_add_u32 s{sT0}, s{sT0}, s{sT1}
    v_add_u32 v32, s{sT0}, v32
    v_xor_b32 v33, 16, v32
    v_xor_b32 v34, 32, v32
    v_xor_b32 v35, 48, v32
    """)
    assert WS_HT == 0
def g_xread(a):
    lds_wait(a, C_X1, 4)
    lds_wait(a, C_XA, 4)
    for g, v in enumerate((32, 33, 34, 35)): a(f"ds_read_b64 {vr(6+2*g,2)}, v{v} offset:{L_XT}")
    lds_arrive(a, C_ST, nowait=True)

def g_setup2(a):
    srd(a, R_W2, P_W2, 1792 * 4096)
    srd(a, R_WO, P_WO, 448 * 896)
    srd(a, R_OUT, P_OUT, 2048 * 896)
    srd(a, R_B2, P_B2, 2048 * 2)
    a(f"""
    s_mul_i32 s{sDb}, s{sG}, {448*4096}
    s_lshl_b32 s{sT0}, s{sRB}, 7
    s_add_u32 s{sDb}, s{sDb}, s{sT0}
    s_mul_i32 s{sD2}, s{sG}, {112*896}
    s_lshl_b32 s{sT0}, s{sCB}, 7
    s_add_u32 s{sD2}, s{sD2}, s{sT0}
    s_lshl_b32 s{sT0}, s{sGM}, 6
    s_lshl_b32 s{sT1}, s{sGN}, 6
    v_lshl_add_u32 v24, v{vHH}, 9, v{vT3}
    v_xor_b32 v{vT2}, s{sT1}, v24
    v_xor_b32 v{vT2+1}, 64, v{vT2}
    v_xor_b32 v{vT3}, s{sT0}, v24
    v_xor_b32 v{vT3+1}, 64, v{vT3}
    s_lshl_b32 s{sT0}, s{sGM}, 10
    v_add_u32 v{vLM}, s{sT0}, v{vL16}
    v_xor_b32 v{vLM+1}, 0x400, v{vLM}
    s_mul_i32 s{sLb}, s{sCB}, 112
    s_mul_i32 s{sT0}, s{sG}, 28
    s_add_u32 s{sLb}, s{sLb}, s{sT0}
    s_lshl_b32 s{sLb}, s{sLb}, 11
    s_add_u32 s{sLb}, s{sLb}, {WS_U}
    s_lshr_b32 s{sT0}, s{sJ}, 3
    s_add_u32 s{sT0}, s{sT0}, 3
    s_lshl_b32 s{sT0}, s{sT0}, 13
    s_add_u32 s{sPU}, s{sT0}, s{sLb}
    s_lshl_b32 s{sL2}, s{sRB}, 16
    s_lshl_b32 s{sT0}, s{sG}, 14
    s_add_u32 s{sL2}, s{sL2}, s{sT0}
    s_add_u32 s{sL2}, s{sL2}, {WS_O}
    v_mul_u32_u24 v{vOUT}, 896, v{vJ}
    v_lshl_add_u32 v{vOUT}, v{vHH}, 4, v{vOUT}
    s_lshl_b32 s{sT0}, s{sRB}, 1
    s_add_u32 s{sT0}, s{sT0}, s{sGN}
    s_lshl_b32 s{sB2}, s{sT0}, 6
    s_mul_i32 s{sT0}, s{sT0}, {32*896}
    s_lshl_b32 s{sT1}, s{sCB}, 7
    s_add_u32 s{sT0}, s{sT0}, s{sT1}
    s_lshl_b32 s{sT1}, s{sGM}, 6
    s_add_u32 s{sOUT}, s{sT0}, s{sT1}
    v_lshrrev_b32 v{vPF2}, 2, v{vLANE}
    v_and_b32 v24, 3, v{vLANE}
    v_lshlrev_b32 v{vPF2}, 12, v{vPF2}
    v_lshl_add_u32 v{vPF2}, v24, 7, v{vPF2}
    s_mul_i32 s{sT0}, s{sA}, 112
    s_lshl_b32 s{sT1}, s{sFB}, 2
    s_add_u32 s{sT0}, s{sT0}, s{sT1}
    s_lshl_b32 s{sT2}, s{sGM}, 1
    s_add_u32 s{sT0}, s{sT0}, s{sT2}
    s_lshl_b32 s{sT0}, s{sT0}, 11
    s_add_u32 s{sUS}, s{sT0}, {WS_U}
    s_lshl_b32 s{sT0}, s{sA}, 7
    s_add_u32 s{sT0}, s{sT0}, s{sT1}
    s_add_u32 s{sT0}, s{sT0}, s{sG}
    s_lshl_b32 s{sT0}, s{sT0}, 3
    s_lshl_b32 s{sT0}, s{sT0}, {FS}
    s_add_u32 s{sFU}, s{sT0}, {FL_U}
    s_lshl_b32 s{sT0}, s{sCB}, 10
    s_mul_i32 s{sT1}, s{sG}, 224
    s_add_u32 s{sT0}, s{sT0}, s{sT1}
    s_lshl_b32 s{sT0}, s{sT0}, {FS}
    s_add_u32 s{sFUc}, s{sT0}, {FL_U}
    s_lshl_b32 s{sT0}, s{sRB}, 8
    s_lshl_b32 s{sT1}, s{sG}, 6
    s_add_u32 s{sT0}, s{sT0}, s{sT1}
    s_lshl_b32 s{sT0}, s{sT0}, {FS}
    s_add_u32 s{sFOc}, s{sT0}, {FL_O}
    """)
    for i in range(2, 6): a(f"v_add_u32 v{vTH+i}, 0x10000, v{vT1+i}")

def p1_g(a):
    X, U, SX = 128, 144, 64
    htype = a.label("gh"); pfw = a.label("gpfw")
    a(f"s_sub_u32 s{sG}, s{sW}, 4")
    common_srds(a)
    pf1_addr(a)
    epoch_load(a)
    a(f"s_cmp_ge_u32 s{sCB}, 4\ns_cbranch_scc1 {htype}")
    a("s_barrier")
    rest_dma(a)
    stamp(a, 2)
    stats_code(a, 6, 7, T=14)
    a("s_waitcnt vmcnt(0)")
    lds_arrive(a, C_X, nowait=True)
    stamp(a, 3)
    get_tag(a)
    if OPT.pf1pos == 2:
        lds_wait(a, C_X, 4)
        a(f"buffer_load_dword v249, v{vPF1}, {sr(R_W1,4)}, s{sPFW} offen")
    g_setup1(a)
    lds_wait(a, C_FL, 1)
    a(f"s_branch {pfw}")
    a(f"""
    {htype}:
    s_sub_u32 s{sT1}, s{sCB}, 4
    s_lshl_b32 s{sT0}, s{sRB}, 2
    s_add_u32 s{sT0}, s{sT0}, s{sT1}
    s_lshl_b32 s{sT1}, s{sT1}, 4
    s_lshl_b32 s{sT2}, s{sG}, 2
    s_add_u32 s{sT1}, s{sT1}, s{sT2}
    v_add_u32 v11, s{sT1}, v7
    v_and_b32 v13, 1, v5
    v_lshlrev_b32 v12, 13, v13
    v_lshl_add_u32 v12, v11, 7, v12
    v_lshl_add_u32 v12, v6, 4, v12
    v_bfe_u32 v11, v11, 1, 3
    v_xor_b32 v11, v11, v6
    v_mul_u32_u24 v14, {HB_STRIDE}, v7
    v_lshl_add_u32 v14, v11, 4, v14
    v_lshl_add_u32 v14, v13, 7, v14
    s_mul_i32 s{sT2}, s{sG}, {4*HB_STRIDE}
    s_add_u32 s{sT2}, s{sT2}, {L_HB}
    v_add_u32 v14, s{sT2}, v14
    v_lshl_add_u32 v15, v{vHH}, 3, v8
    v_mul_u32_u24 v15, {HB_STRIDE}, v15
    v_add_u32 v15, v15, v9
    s_lshl_b32 s{sT2}, s{sG}, 8
    s_add_u32 s{sT2}, s{sT2}, {L_HB}
    v_add_u32 v15, s{sT2}, v15
    s_lshl_b32 s{sT2}, s{sG}, 8
    s_add_u32 s{sT2}, s{sT2}, s{sT0}
    s_lshl_b32 s{sT2}, s{sT2}, 11
    s_add_u32 s{sT2}, s{sT2}, {WS_HT}
    s_add_u32 s{sT3}, s{sT2}, {128*2048}
    s_lshl_b32 s{sT4}, s{sG}, 7
    s_add_u32 s{sT4}, s{sT4}, s{sT0}
    s_lshl_b32 s{sT4}, s{sT4}, 3
    s_lshl_b32 s{sT4}, s{sT4}, {FS}
    s_add_u32 s{sT4}, s{sT4}, {FL_H}
    v_mov_b32 v17, 0xffff0000
    s_mov_b32 vcc_lo, 0x00ff00ff
    s_mov_b32 vcc_hi, 0x00ff00ff
    """)
    for i in range(4): a(f"v_mov_b32 v{X+12+i}, 0")
    a("s_barrier\ns_setprio 3")
    lds_wait(a, C_X1, 4)
    stamp(a, 2)
    for i in range(3): a(f"ds_read_b128 {vr(X+4*i,4)}, v12 offset:{L_XT + 16384*i}")
    a(f"s_mov_b64 exec, vcc\nds_read_b128 {vr(X+12,4)}, v12 offset:{L_XT + 16384*3}\ns_mov_b64 exec, -1")
    a("v_mov_b32 v18, 0\nv_mov_b32 v19, 0")
    for i in range(16):
        if i % 4 == 0: a(f"s_waitcnt lgkmcnt({3-i//4})")
        a(f"v_dot2c_f32_bf16 v18, s{sONES}, v{X+i}")
        a(f"v_dot2c_f32_bf16 v19, v{X+i}, v{X+i}")
    un = []
    for i in range(16): un += [f"v_lshlrev_b32 v{U+2*i}, 16, v{X+i}", f"v_and_b32 v{U+2*i+1}, v17, v{X+i}"]
    un = iter(un)
    def fill(n=1):
        for _ in range(n): a(next(un))
    fill(3)
    for mode in (QP1, QP2, RHM, RM):
        a(f"v_add_f32_dpp v18, v18, v18 {mode} row_mask:0xf bank_mask:0xf")
        a(f"v_add_f32_dpp v19, v19, v19 {mode} row_mask:0xf bank_mask:0xf")
        fill()
    def rstd(v, out):
        a(f"v_and_b32 v{v}, v17, v{v}\nv_add_f32 v{v}, {EPS:#x}, v{v}\nv_cvt_pk_bf16_f32 v{v}, v{v}, v{v}\nv_and_b32 v{v}, v17, v{v}\nv_sqrt_f32 v{v}, v{v}")
        fill()
        a(f"v_cvt_pk_bf16_f32 v{v}, v{v}, v{v}\nv_and_b32 v{v}, v17, v{v}\nv_rcp_f32 v{out}, v{v}")
        fill()
    a(f"""
    v_mul_f32 v18, {f32(1/448)}, v18
    v_mul_f32 v19, {f32(1/448)}, v19
    v_fma_f32 v19, -v18, v18, v19
    v_max_f32 v19, 0, v19
    v_cvt_pk_bf16_f32 v16, v18, v19
    v_lshlrev_b32 v22, 16, v16
    """)
    rstd(16, 20)
    a(f"""
    v_sub_f32 v18, v18, v22
    v_mul_f32 v18, v18, v20
    v_mul_f32 v19, v19, v20
    v_mul_f32 v19, v19, v20
    v_cvt_pk_bf16_f32 v16, v18, v19
    v_lshlrev_b32 v18, 16, v16
    v_fma_f32 v22, v22, v20, v18
    """)
    rstd(16, 21)
    for x in un: a(x)
    a("v_mul_f32 v22, v22, v21\nv_mul_f32 v20, v20, v21")
    for i in range(16):
        if i == 12: a("s_mov_b64 exec, vcc")
        a(f"""
        v_pk_fma_f32 {vr(U+2*i,2)}, {vr(U+2*i,2)}, v[20:21], v[22:23] op_sel_hi:[1,0,0] neg_lo:[0,0,1] neg_hi:[0,0,1]
        v_cvt_pk_bf16_f32 v{X+i}, v{U+2*i}, v{U+2*i+1}
        """)
        if i % 4 == 3: a(f"ds_write_b128 v14, {vr(X+i-3,4)} offset:{256*(i//4)}")
    a("s_mov_b64 exec, -1")
    stamp(a, 3)
    lds_arrive(a, C_H, nowait=True)
    lds_wait(a, C_H, 4)
    for f in range(4):
        for x in range(2): a(f"ds_read_b64_tr_b16 {vr(X+4*f+2*x,2)}, v15 offset:{x*4*HB_STRIDE + f*64}")
    for f in range(4):
        a(f"s_waitcnt lgkmcnt({2*(3-f)})")
        a(f"buffer_store_dwordx4 {vr(X+4*f,4)}, v{vL16}, {sr(R_WS,4)}, s{sT2 + (f>>1)} offen offset:{1024*(f&1)} sc1")
    lds_arrive(a, C_FL, nowait=True)
    stamp(a, 4)
    g_setup1(a)
    a("s_waitcnt vmcnt(4)")
    get_tag(a)
    set_flag(a, sT4)
    a("s_setprio 0")
    stamp(a, 5)
    lds_wait(a, C_ISS, 4)
    a(f"{pfw}:")

sK, sKF, sKP = 94, 95, 96
AQ, AO, AS, AP, AKV = 32, 64, 128, 160, 176
def att_setup(a):
    a(f"""
    s_add_u32 s{R_KV}, s{P_WS}, {WS_KV}
    s_addc_u32 s{R_KV+1}, s{P_WS+1}, 0
    s_add_u32 s{sT0}, s{sW}, 1
    s_lshl_b32 s{R_KV+2}, s{sT0}, 16
    s_mov_b32 s{R_KV+3}, 0x20000
    v_lshlrev_b32 v5, 7, v{vLANE}
    v_lshlrev_b32 v25, {3+FS}, v{vJ}
    s_lshr_b32 s{sKP}, s{sJ}, 1
    s_and_b32 s{sKP}, s{sKP}, 4
    s_add_u32 s{sKP}, s{sKP}, s{sCB}
    s_lshl_b32 s{sKP}, s{sKP}, 13
    s_lshl_b32 s{sT0}, s{sW}, 16
    s_add_u32 s{sKP}, s{sKP}, s{sT0}
    s_and_b32 s{sT0}, s{sJ}, 0x14
    s_cmp_lg_u32 s{sT0}, 0
    s_cselect_b32 s{sKP}, {OOB}, s{sKP}
    s_lshl_b32 s{sKF}, s{sW}, 8
    s_lshl_b32 s{sKF}, s{sKF}, {FS}
    s_add_u32 s{sKF}, s{sKF}, {FL_KV}
    """)
def kvload(a, buf):
    for j in range(4):
        a(f"buffer_load_dwordx4 {vr(AKV+16*buf+4*j,4)}, v{vL16}, {sr(R_KV,4)}, s{sK} offen offset:{1024*j} sc1")
    a(f"s_add_u32 s{sK}, s{sK}, 4096")
def first_kv(a):
    a(f"s_lshl_b32 s{sK}, s{sW}, 16")
    kvload(a, 0)
    a(f"buffer_load_dword v253, v5, {sr(R_KV,4)}, s{sKP} offen sc1")
    kvload(a, 1); kvload(a, 2)

def attention(a, done):
    Q, O, S, P, KV = AQ, AO, AS, AP, AKV
    NM = 20
    sIt, sRetry, sOS, sOF = sT1, sT3, 84, 85
    vMW, vRW, vMR, vRR = 8, 12, 15, 16
    go = a.label("att_go"); mloop = a.label("att_mloop"); loop = a.label("att_loop"); ok = a.label("att_ok"); havekv = a.label("att_havekv")
    a(f"s_mov_b32 s{sRetry}, 0\ns_cmp_eq_u32 s{sKF}, 0\ns_cbranch_scc1 {havekv}")
    lds_wait(a, C_PRE, 4)
    stamp(a, 9)
    poll(a, sKF, 32)
    stamp(a, 10)
    first_kv(a)
    a(f"{havekv}:")
    for i in range(1, 4):
        a(f"""
        s_add_u32 s{sT0}, s{sW}, {i}
        s_and_b32 s{sT0}, s{sT0}, 3
        s_lshl_b32 s{sT0}, s{sT0}, 11
        s_add_u32 s{sT0}, s{sT0}, {L_QS}
        v_add_u32 v{16+i}, s{sT0}, v{vL16}
        """)
    lds_wait(a, C_Q, 4)
    for i in range(1, 4):
        a(f"ds_read_b128 {vr(Q+8*i,4)}, v{16+i}\nds_read_b128 {vr(Q+8*i+4,4)}, v{16+i} offset:1024")
    for r in range(12, 64): a(f"v_mov_b32 v{O+r}, 0")
    for i in range(4):
        a(f"""
        s_add_u32 s{sT0}, s{sW}, {i+1}
        s_and_b32 s{sT0}, s{sT0}, 3
        s_lshl_b32 s{sT2}, s{sT0}, 9
        s_add_u32 s{sT2}, s{sT2}, {L_MX + 128*i}
        v_lshl_add_u32 v{vMW+i}, v{vJ}, 2, s{sT2}
        s_mul_i32 s{sT2}, s{sT0}, 12288
        s_add_u32 s{sT2}, s{sT2}, {L_RED + 4096*(i%3)}
        v_add_u32 v{vRW+i if i < 3 else vRR}, s{sT2}, v{vL16}
        """)
    a(f"""
    v_subrev_u32 v{vMR}, 384, v{vMW+3}
    s_add_u32 s{sT0}, s{sW}, 3
    s_and_b32 s{sT2}, s{sT0}, 1
    s_lshl_b32 s{sOS}, s{sCB}, 1
    s_add_u32 s{sOS}, s{sOS}, s{sT2}
    s_lshl_b32 s{sOS}, s{sOS}, 12
    s_lshl_b32 s{sT2}, s{sRB}, 16
    s_add_u32 s{sOS}, s{sOS}, s{sT2}
    s_and_b32 s{sT2}, s{sT0}, 2
    s_lshl_b32 s{sT2}, s{sT2}, 9
    s_add_u32 s{sOS}, s{sOS}, s{sT2}
    s_add_u32 s{sOS}, s{sOS}, {WS_O}
    s_lshl_b32 s{sOF}, s{sRB}, 3
    s_add_u32 s{sOF}, s{sOF}, s{sCB}
    s_lshl_b32 s{sOF}, s{sOF}, 2
    s_add_u32 s{sOF}, s{sOF}, s{sW}
    s_lshl_b32 s{sOF}, s{sOF}, {3+FS}
    s_add_u32 s{sOF}, s{sOF}, {FL_O}
    s_mov_b32 s{sT4}, 0x71800000
    """)
    TMP = [S, S + 16, KV + 48, P]
    def scan_mf(kreg):
        for i in range(4):
            a(f"{MF} {vr(TMP[i],16)}, {vr(kreg,4)}, {vr(Q+8*i,4)}, 0")
            a(f"{MF} {vr(TMP[i],16)}, {vr(kreg+4,4)}, {vr(Q+8*i+4,4)}, {vr(TMP[i],16)}")
    a("s_waitcnt vmcnt(11) lgkmcnt(0)")
    stamp(a, 11)
    scan_mf(KV)
    a(f"s_nop 4\ns_mov_b64 exec, {sr(sHI,2)}")
    for i in range(4):
        t = TMP[i]
        a(f"v_max3_f32 v{NM+i}, v{t}, v{t+1}, v{t+2}")
        for j in range(3, 15, 2): a(f"v_max3_f32 v{NM+i}, v{t+j}, v{t+j+1}, v{NM+i}")
        a(f"""
        v_max_f32 v{NM+i}, v{t+15}, v{NM+i}
        v_cvt_pk_bf16_f32 v{Q+8*i+6}, -v{NM+i}, 0
        v_lshlrev_b32 v{NM+i}, 16, v{Q+8*i+6}
        """)
    a(f"{go}:")
    for i in range(4): a(f"ds_write_b32 v{vMW+i}, v{NM+i}")
    a("s_mov_b64 exec, -1")
    a(f"{MF} {vr(S,16)}, {vr(KV,4)}, {vr(Q,4)}, 0")
    a(f"{MF} {vr(S,16)}, {vr(KV+4,4)}, {vr(Q+4,4)}, {vr(S,16)}")
    for r in range(8): a(f"v_mov_b32 v{KV+48+8+r}, 0")
    for r in range(8): a(f"v_mov_b32 v{P+8+r}, 0")
    a(f"v_mov_b32 v{S+30}, 0\nv_mov_b32 v{S+31}, 0")
    def smf(q, b, kb):
        d = vr(S + 16 * b, 16)
        return [f"{MF} {d}, {vr(KV+16*kb,4)}, {vr(Q+8*q,4)}, 0", f"{MF} {d}, {vr(KV+16*kb+4,4)}, {vr(Q+8*q+4,4)}, {d}"]
    def pv(q, b, kb):
        d = vr(O + 16 * q, 16)
        return [f"{MF} {d}, {vr(KV+16*kb+8,4)}, {vr(P+8*b,4)}, {d}", f"{MF} {d}, {vr(KV+16*kb+12,4)}, {vr(P+8*b+4,4)}, {d}"]
    def pk(b, i): return f"v_cvt_pk_bf16_f32 v{P+8*b+i}, v{S+16*b+2*i}, v{S+16*b+2*i+1}"
    def owrite(i): return [f"ds_write_b128 v{vRW+i}, {vr(O+16*i+4*g,4)} offset:{1024*g}" for g in range(4)]
    a(f"s_mov_b32 s{sIt}, {OPT.attit-1}\ns_waitcnt vmcnt(8)")
    stamp(a, 12)
    if OPT.prio_ld: a(f"s_setprio {OPT.prio_a}")
    def body(lastit):
        for n in range(16):
            T, q, b = n // 4, n % 4, n % 2
            va = []
            for i in range(8):
                r = S + 16 * b + 2 * i
                va += [f"v_exp_f32 v{r}, v{r}", f"v_exp_f32 v{r+1}, v{r+1}", pk(b, i - 1) if i else pk(1 - b, 7)]
            s = smf((q + 1) % 4, 1 - b, ((n + 1) // 4) % 4)
            p = pv((q - 1) % 4, 1 - b, ((n - 1) // 4) % 4)
            pos = [[3, 9, 15, 21], [3, 7, 15, 19]][OPT.order]
            ins = {pos[0]: [s[0]], pos[1]: [s[1]], pos[2]: [p[0]], pos[3]: [p[1]]}
            if lastit and n == 15: ins = {pos[0]: [p[0]], pos[1]: [p[1]]}
            if q == 3 and not (lastit and T == 3):
                ins[1] = [f"s_waitcnt vmcnt({7 if not lastit or T == 0 else 4 if T == 1 else 0})"]
            if not lastit or T == 0:
                buf = (T - 1) % 4
                ins[11] = [f"buffer_load_dwordx4 {vr(KV+16*buf+4*q,4)}, v{vL16}, {sr(R_KV,4)}, s{sK} offen offset:{1024*q} sc1"]
                if OPT.prio_ld:
                    ins[10] = [f"s_setprio {OPT.prio_ld}"]
                    ins[13] = [f"s_setprio {OPT.prio_a}"]
                if q == 3: ins[14] = [f"s_add_u32 s{sK}, s{sK}, 4096"]
            if n == 15 and not lastit:
                ins[17] = [f"s_sub_u32 s{sIt}, s{sIt}, 1"]
                ins[22] = [f"s_cmp_lg_u32 s{sIt}, 0"]
            if lastit and n == 14:
                for g, x in enumerate(owrite(0)): ins.setdefault([10, 13, 17, 22][g], []).append(x)
            if lastit and n == 15:
                for g, x in enumerate(owrite(1)): ins.setdefault([8, 10, 13, 16][g], []).append(x)
                for g, x in enumerate(owrite(2)[:2]): ins.setdefault([20, 22][g], []).append(x)
            for i, x in enumerate(va):
                for y in ins.get(i, []): a(y)
                a(x)
    if OPT.attit > 1:
        a(".p2align 6")
        a(f"{loop}:")
        body(False)
        a(f"s_cbranch_scc1 {loop}")
    lds_wait(a, C_R1D, 4)
    body(True)
    if OPT.prio_ld: a(f"s_setprio {OPT.prio_ld}")
    a(pk(1, 7))
    for x in owrite(2)[2:]: a(x)
    for x in pv(3, 1, 3): a(x)
    stamp(a, 13)
    a(f"""
    v_add_f32 v17, v{O+12}, v{O+28}
    v_add_f32 v17, v17, v{O+44}
    s_nop 9
    v_add_f32 v17, v17, v{O+60}
    v_cmp_nlt_f32_e64 vcc, v17, s{sT4}
    s_and_b64 vcc, vcc, {sr(sHI,2)}
    s_cbranch_scc0 {ok}
    s_cmp_lg_u32 s{sRetry}, 0
    s_cbranch_scc1 {ok}
    s_mov_b32 s{sRetry}, 1
    s_waitcnt lgkmcnt(0)
    s_mov_b64 exec, {sr(sHI,2)}
    """)
    for i in range(4): a(f"v_mov_b32 v{Q+8*i+6}, 0\nv_mov_b32 v{Q+8*i+7}, 0")
    a(f"s_mov_b64 exec, -1\ns_lshl_b32 s{sK}, s{sW}, 16\ns_mov_b32 s{sIt}, 16")
    for r in range(64): a(f"v_mov_b32 v{O+r}, 0")
    for i in range(4): a(f"v_mov_b32 v{NM+i}, 0xff800000")
    a(f"""
    {mloop}:
    buffer_load_dwordx4 {vr(KV,4)}, v{vL16}, {sr(R_KV,4)}, s{sK} offen sc1
    buffer_load_dwordx4 {vr(KV+4,4)}, v{vL16}, {sr(R_KV,4)}, s{sK} offen offset:1024 sc1
    s_add_u32 s{sK}, s{sK}, 4096
    s_waitcnt vmcnt(0)
    """)
    scan_mf(KV)
    a("s_nop 11")
    for i in range(4):
        for j in range(8): a(f"v_max3_f32 v{NM+i}, v{TMP[i]+2*j}, v{TMP[i]+2*j+1}, v{NM+i}")
    a(f"""
    s_sub_u32 s{sIt}, s{sIt}, 1
    s_cmp_lg_u32 s{sIt}, 0
    s_cbranch_scc1 {mloop}
    """)
    first_kv(a)
    for i in range(4): a(f"v_mov_b32 v{S+i}, v{NM+i}")
    a("s_nop 1")
    for i in range(4): a(f"v_permlane32_swap_b32 v{S+i}, v{NM+i}")
    for i in range(4): a(f"v_max_f32 v{NM+i}, v{S+i}, v{NM+i}")
    a(f"s_mov_b64 exec, {sr(sHI,2)}")
    for i in range(4):
        a(f"""
        v_sub_f32 v{NM+i}, 0, v{NM+i}
        v_cvt_pk_bf16_f32 v17, v{NM+i}, 0
        v_lshlrev_b32 v18, 16, v17
        v_sub_f32 v18, v{NM+i}, v18
        v_cvt_pk_bf16_f32 v19, v18, 0
        v_lshl_or_b32 v{Q+8*i+6}, v19, 16, v17
        v_lshlrev_b32 v19, 16, v19
        v_sub_f32 v18, v18, v19
        v_cvt_pk_bf16_f32 v{Q+8*i+7}, v18, 0
        """)
    a(f"s_waitcnt vmcnt(11)\ns_branch {go}\n{ok}:")
    lds_arrive(a, C_ATT, nowait=True); lds_wait(a, C_ATT, 4)
    stamp(a, 16)
    OW = O + 48
    for i in range(4): a(f"ds_read_b32 v{NM+i}, v{vMR} offset:{128*i}")
    for i in range(3):
        for g in range(4):
            if i == 2 and g == 3: a("s_waitcnt lgkmcnt(11)")
            a(f"ds_read_b128 {vr(O+16*i+4*g,4)}, v{vRR} offset:{4096*i+1024*g}")
    a(f"""
    v_min3_f32 v17, v{NM}, v{NM+1}, v{NM+2}
    v_min_f32 v17, v17, v{NM+3}
    """)
    for i in (3, 0, 1, 2): a(f"v_sub_f32 v{NM+i}, v17, v{NM+i}")
    for i in (3, 0, 1, 2): a(f"v_exp_f32 v{NM+i}, v{NM+i}")
    for r in range(16): a(f"v_mul_f32 v{OW+r}, v{NM+3}, v{OW+r}")
    for i in range(3):
        a(f"s_waitcnt lgkmcnt({4*(2-i)})")
        R = [12] + [r for r in range(16) if r != 12] if i == 2 else range(16)
        for n, r in enumerate(R):
            a(f"v_fmac_f32 v{OW+r}, v{NM+i}, v{O+16*i+r}")
            if i == 2 and n == 0: a(f"v_mov_b32 v17, v{OW+12}\nv_mov_b32 v18, v{OW+12}")
            if i == 2 and n == 2: a("v_permlane32_swap_b32 v17, v18")
            if i == 2 and n == 3: a("v_rcp_f32 v18, v18")
    for h in range(2):
        for r in range(8 * h, 8 * h + 8): a(f"v_mul_f32 v{OW+r}, v18, v{OW+r}")
        for i in range(4 * h, 4 * h + 4): a(f"v_cvt_pk_bf16_f32 v{O+i}, v{OW+2*i}, v{OW+2*i+1}")
        if h: a(f"s_mov_b64 exec, {sr(sHI,2)}\nv_mov_b32 v{O+6}, 0\nv_mov_b32 v{O+7}, 0\ns_mov_b64 exec, -1")
        a(f"buffer_store_dwordx4 {vr(O+4*h,4)}, v{vL16}, {sr(R_WS,4)}, s{sOS} offen offset:{2048*h} sc1")
    stamp(a, 17)
    set_flag(a, sOF)
    a(f"s_branch {done}")

class VM:
    def __init__(self): self.q = []
    def issue(self, tag): self.q.append(tag)
    def wait(self, tags):
        idx = [i for i, t in enumerate(self.q) if t in tags]
        if not idx: return None
        n = len(self.q) - 1 - max(idx)
        assert n <= 63
        self.q = self.q[max(idx) + 1:]
        return n

ACC, AF, BF, DH, SG = 64, 32, 128, 8, 192
def reduce4(a, cnt, red, st0, st1):
    base, stride, off = red
    stamp(a, st0)
    for i in range(4):
        a(f"""
        s_xor_b32 s{sT0}, s{sG}, {i}
        s_mul_i32 s{sT1}, s{sT0}, {stride}
        s_add_u32 s{sT1}, s{sT1}, {base}
        v_add_u32 v{24+i}, s{sT1}, v{vL16}
        """)
    for i in range(1, 4):
        for g in range(4): a(f"ds_write_b128 v24, {vr(ACC+16*i+4*g,4)} offset:{off(4*(i-1)+g)}")
    lds_arrive(a, cnt, nowait=True); lds_wait(a, cnt, 4)
    stamp(a, st1)
    for i in range(1, 4):
        for g in range(4): a(f"ds_read_b128 {vr(ACC+16*i+4*g,4)}, v{24+i} offset:{off(4*(i-1)+g)}")
    for i in range(1, 4):
        a(f"s_waitcnt lgkmcnt({4*(3-i)})")
        for r in range(16): a(f"v_add_f32 v{ACC+r}, v{ACC+r}, v{ACC+16*i+r}")

def gpath(a, done):
    vm = VM()
    N1, N2, N3 = 32, 60, 68
    nsg = OPT.nsg
    staged = {OPT.pre0 + i: i for i in range(nsg)}
    staged.update({N1 + OPT.pre + i: i for i in range(nsg)})
    def wsrc(k, h):
        if k < N1: return vDW1, R_W1, sD, 8 * 3584
        if k < N2: return vDW2, R_W2, sDb, 8 * 4096
        return vDWO, R_WO, sD2, (4 if ((k - N2) & 1 and h) else 8) * 896
    def dma(k):
        out = []
        for h in range(2):
            v, R, sd, inc = wsrc(k, h)
            out.append((f"s_add_u32 m0, s{sRing}, {slotp(k)*8192 + h*1024}",
                        f"buffer_load_dwordx4 v{v}, {sr(R,4)}, s{sd} offen lds", f"s_add_u32 s{sd}, s{sd}, {inc}"))
        return out
    state = {'nd': 0}
    def prefill(upto):
        while state['nd'] < upto:
            k = state['nd']; state['nd'] += 1
            if k in staged:
                for h in range(2):
                    v, R, sd, inc = wsrc(k, h)
                    a(f"buffer_load_dwordx4 {vr(SG+8*staged[k]+4*h,4)}, v{v}, {sr(R,4)}, s{sd} offen")
                    a(f"s_add_u32 s{sd}, s{sd}, {inc}"); vm.issue(('s', k))
            else:
                for m, l, adv in dma(k): a(m); a(adv.replace("s_add_u32", "s_nop 0 ;") if False else "s_nop 0"); a(l); a(adv); vm.issue(('d', k))
    def swrite(k):
        off = slotp(k) * 8192; v = vSW
        if off >= 65536: off -= 65536; v += 1
        return [f"ds_write_b128 v{v}, {vr(SG+8*staged[k]+4*h,4)} offset:{off+1024*h}" for h in range(2)]
    def ld(k):
        r = BF + 8 * (k % DH)
        v, sl = (vLN, sL) if k < N1 else (vLM, sLb) if k < N2 else (vLN, sL2)
        off = 2048 * (k & 1)
        o = [f"buffer_load_dwordx4 {vr(r,4)}, v{v}, {sr(R_WS,4)}, s{sl} offen offset:{off} sc1",
             f"buffer_load_dwordx4 {vr(r+4,4)}, v{v+1}, {sr(R_WS,4)}, s{sl} offen offset:{off} sc1"]
        return o, (f"s_add_u32 s{sl}, s{sl}, 4096" if k & 1 else None)
    def ld_now(k):
        o, adv = ld(k)
        for x in o: a(x); vm.issue(('l', k))
        if adv: a(adv)
    def tr(k):
        b0, xo = (vT1, 512) if k < N1 else (vT2, 1024) if k < N2 else (vT3, 1024)
        r = AF + 8 * (k % 2); off = slotp(k) * 8192
        if off >= 65536: off -= 65536; b0 += vTH - vT1
        return [f"ds_read_b64_tr_b16 {vr(r,2)}, v{b0} offset:{off}", f"ds_read_b64_tr_b16 {vr(r+2,2)}, v{b0} offset:{off+xo}",
                f"ds_read_b64_tr_b16 {vr(r+4,2)}, v{b0+1} offset:{off}", f"ds_read_b64_tr_b16 {vr(r+6,2)}, v{b0+1} offset:{off+xo}"]
    state['nl'] = 0
    def free(kd, k):
        if kd >= OPT.ke and k < OPT.gatek and slotp(kd) < 8: return False
        prev = [j for j in range(kd) if slotp(j) == slotp(kd)]
        return not prev or prev[-1] <= k - 1
    def begin(lo, nld, pfi=None, after=None):
        state['nl'] = lo
        for k in range(lo, lo + nld):
            ld_now(k); state['nl'] += 1
            if pfi and k == lo + 1: a(pfi); vm.issue('pf')
        if after: after()
        n = vm.wait({('d', lo)})
        if n is not None: a(f"s_waitcnt vmcnt({n})")
        for x in tr(lo): a(x)
    def run(lo, hi, last, dlimit, llimit, first=None, hooks={}):
        dh = OPT.dh
        for k in range(lo, hi):
            need = {('l', k)}
            if k + 1 < last: need.add(('d', k + 1))
            if k + 3 in staged: need.add(('s', k + 3))
            need |= hooks.get(('need', k), set())
            n = vm.wait(need)
            a(f"s_waitcnt vmcnt({n}) lgkmcnt(0)" if n is not None else "s_waitcnt lgkmcnt(0)")
            if k in hooks: hooks[k]()
            l = AF + 8 * (k % 2); d = BF + 8 * (k % DH)
            lds_is_a = not (N1 <= k < N2)
            mf = []
            for i in range(4):
                mi, ni = i >> 1, i & 1
                A, B = (vr(l + 4 * mi, 4), vr(d + 4 * ni, 4)) if lds_is_a else (vr(d + 4 * mi, 4), vr(l + 4 * ni, 4))
                c = "0" if k == first and i else vr(ACC + 16 * i, 16)
                mf.append(f"{MF} {vr(ACC+16*i,16)}, {A}, {B}, {c}" if not OPT.nogm else "s_nop 0")
            t = tr(k + 1) if k + 1 < last else []
            sw = swrite(k + 3) if k + 3 in staged else []
            assert not sw or free(k + 3, k)
            kd = state['nd']; dm = []
            if kd < dlimit and kd <= k + OPT.lw and free(kd, k) and kd not in staged:
                assert kd >= k + 2
                dm = dma(kd); state['nd'] += 1
            lo_, adv = ([], None)
            kl = state['nl']
            if kl < llimit and kl <= k + dh - 1: lo_, adv = ld(kl); state['nl'] += 1
            a(mf[0])
            for x in t: a(x)
            if dm: a(dm[0][0])
            a(mf[1])
            if lo_: a(lo_[0]); vm.issue(('l', kl))
            if lo_: a(lo_[1]); vm.issue(('l', kl))
            if adv: a(adv)
            if dm: a(dm[0][1]); vm.issue(('d', kd)); a(dm[0][2]); a(dm[1][0])
            a(mf[2])
            if dm: a(dm[1][1]); vm.issue(('d', kd)); a(dm[1][2])
            for x in sw: a(x)
            a(mf[3])
            kd = state['nd']
            if kd < dlimit and kd <= k + OPT.lw and free(kd, k) and kd not in staged: prefill(kd + 1)
            kl = state['nl']
            if kl < llimit and kl <= k + dh - 1: ld_now(kl); state['nl'] += 1
    def flagload(soff, n):
        a(f"v_min_u32 v28, {n-1}, v{vLANE}\nv_lshlrev_b32 v28, {3+FS}, v28")
        a(f"buffer_load_dwordx2 v[30:31], v28, {sr(R_WS,4)}, s{soff} offen sc1"); vm.issue('fl')
    def flagcheck(okl):
        a(f"v_cmp_ne_u64 vcc, {sr(sTAG,2)}, v[30:31]\ns_cbranch_vccz {okl}")
    def fill_poll(upA, upB, soff, n):
        prefill(upA)
        flagload(soff, n)
        prefill(upB)
        w = vm.wait({'fl'})
        a(f"s_waitcnt vmcnt({w})")
        okl = a.label("flok")
        flagcheck(okl)
        poll(a, soff, n)
        a(f"{okl}:")
    nog1 = a.label("nog1"); join = a.label("gjoin")
    g_xread(a)
    a(f"s_cmp_eq_u32 s{sHasG1}, 0\ns_cbranch_scc1 {nog1}")
    a(f"s_setprio {OPT.prio_g}")
    stamp(a, 8)
    if OPT.nodma: a(f"s_mov_b32 s{R_W1+2}, 0")
    a(f"v_lshlrev_b32 v23, 3, v{vHH}")
    for g in range(4): a(f"buffer_load_dwordx2 {vr(14+2*g,2)}, v23, {sr(R_B1,4)}, s{sB1o} offen offset:{16*g}")
    for g in range(4): vm.issue('b')
    prefill(OPT.a1)
    lds_arrive(a, C_PRE, nowait=True)
    stamp(a, 9)
    fill_poll(OPT.a1, OPT.b1, sFH, 32)
    stamp(a, 10)
    def init1():
        for i in range(8): a(f"v_lshlrev_b32 v{ACC+2*i}, 16, v{14+i}\nv_and_b32 v{ACC+2*i+1}, 0xffff0000, v{14+i}")
    def cpf(sid, val, saddr):
        sk = a.label("cpf")
        a(f"s_cmp_lg_u32 s{sid}, {val}\ns_cbranch_scc1 {sk}\nbuffer_load_dword v253, v{vPF}, {sr(R_WS,4)}, s{saddr} offen sc1\n{sk}:")
    def mkhooks(hl):
        d = {}
        for k, f in hl: d.setdefault(k, []).append(f)
        return {k: (lambda fs=fs: [f() for f in fs]) for k, fs in d.items()}
    begin(0, OPT.nl0, None, init1)
    hl = [(0, lambda: stamp(a, 11)), (16, lambda: stamp(a, 12)), (OPT.gatek, lambda: lds_wait(a, C_Q, 4)), (20, lambda: g_setup2(a))]
    for b in range(2, 8): hl.append((max(0, 4 * b - OPT.pfd), lambda b=b: cpf(sSH1, b, sPH)))
    for i, k in enumerate(range(OPT.b1, OPT.pre0 + nsg)): hl.append((i, lambda k=k: prefill(k + 1)))
    run(0, N1, N1, N1, N1, first=0, hooks=mkhooks(hl))
    a(f"s_setprio {OPT.prio_e}")
    reduce4(a, C_R1, (L_RED, 12288, lambda i: 1024 * i), 13, 16)
    lds_arrive(a, C_R1D, nowait=True)
    k = 2 * math.sqrt(2 / math.pi) * math.log2(math.e)
    a(f"s_mov_b32 s{sT0}, {f32(-k*0.044715)}\nv_mov_b32 v18, {f32(-k)}")
    T = ACC + 16
    for h in range(2):
        R = range(8 * h, 8 * h + 8)
        for r in R: a(f"v_mul_f32 v{T+r}, v{ACC+r}, v{ACC+r}")
        for r in R: a(f"v_fma_f32 v{T+r}, v{T+r}, s{sT0}, v18")
        for r in R: a(f"v_mul_f32 v{T+r}, v{T+r}, v{ACC+r}")
        for r in R: a(f"v_exp_f32 v{T+r}, v{T+r}")
        for r in R: a(f"v_add_f32 v{T+r}, 1.0, v{T+r}")
        for r in R: a(f"v_rcp_f32 v{T+r}, v{T+r}")
        for r in R: a(f"v_mul_f32 v{T+r}, v{T+r}, v{ACC+r}")
        for i in range(4 * h, 4 * h + 4): a(f"v_cvt_pk_bf16_f32 v{T+16+i}, v{T+2*i}, v{T+2*i+1}")
        a(f"buffer_store_dwordx4 {vr(T+16+4*h,4)}, v{vLN}, {sr(R_WS,4)}, s{sUS} offen offset:{2048*h} sc1")
    stamp(a, 17)
    set_flag(a, sFU)
    stamp(a, 27)
    a(f"s_branch {join}\n{nog1}:")
    lds_arrive(a, C_R1D, nowait=True)
    lds_arrive(a, C_PRE, nowait=True)
    g_setup2(a)
    a(f"""
    s_lshr_b32 s{sT0}, s{sJ}, 3
    s_lshl_b32 s{sT0}, s{sT0}, 1
    s_and_b32 s{sT1}, s{sCB}, 1
    s_add_u32 s{sT0}, s{sT0}, s{sT1}
    s_sub_u32 s{sT0}, s{sT0}, 1
    s_cmp_eq_u32 s{sJ}, 6
    s_cbranch_scc1 engdone
    s_mul_i32 s{sT1}, s{sG}, 28
    s_add_u32 s{sT1}, s{sT1}, s{sT0}
    s_lshl_b32 s{sT1}, s{sT1}, 16
    s_lshl_b32 s{sT2}, s{sXCD}, 9
    s_add_u32 s{sT1}, s{sT1}, s{sT2}
    s_lshl_b32 s{sT2}, s{sT0}, 2
    s_add_u32 s{sT2}, s{sT2}, s{sG}
    s_lshl_b32 s{sT2}, s{sT2}, 13
    s_sub_u32 s{sT3}, s{sT0}, s{sJ}
    s_add_u32 s{sT3}, s{sT3}, {32 if OPT.pf1pos < 3 else 0}
    s_mul_i32 s{sT3}, s{sT3}, {8*3584}
    s_add_u32 s{sPFW}, s{sPFW}, s{sT3}
    """)
    lds_wait(a, C_X, 4, sleep=1)
    for i in range(((32 if OPT.pf1pos < 3 else 64) - 8 * OPT.npf0 + 6) // 7):
        a(f"s_waitcnt vmcnt({OPT.engd})\nbuffer_load_dword v{249+i%2}, v{vPF1}, {sr(R_W1,4)}, s{sPFW} offen\ns_add_u32 s{sPFW}, s{sPFW}, {56*3584}")
    stamp(a, 28)
    for i in range(4):
        a(f"s_waitcnt vmcnt({OPT.engd})\nbuffer_load_dword v{249+i%2}, v{vPF2}, {sr(R_W2,4)}, s{sT1} offen\ns_add_u32 s{sT1}, s{sT1}, {7*16*4096}")
    stamp(a, 29)
    for i in range(2):
        a(f"s_waitcnt vmcnt({OPT.engd})\nbuffer_load_dword v{249+i%2}, v{vPF}, {sr(R_WO,4)}, s{sT2} offen\ns_add_u32 s{sT2}, s{sT2}, {28*8192}")
    a("s_waitcnt vmcnt(0)")
    stamp(a, 30)
    a(f"s_cmp_eq_u32 s{sCB}, 7\ns_cbranch_scc1 epw\nengdone:")
    lds_wait(a, C_Q, 4)
    a(f"{join}:")
    assert state['nd'] == N1
    a(f"s_setprio {OPT.prio_g2}")
    a(f"v_lshlrev_b32 v23, 1, v{vJ}")
    a(f"buffer_load_ushort v22, v23, {sr(R_B2,4)}, s{sB2} offen")
    vm.q = ['b']
    prefill(N1 + OPT.a2)
    stamp(a, 18)
    fill_poll(N1 + OPT.a2, N1 + OPT.b2, sFUc, 28)
    stamp(a, 19)
    def init2():
        a("v_lshlrev_b32 v22, 16, v22")
        for i in range(8): a(f"v_lshlrev_b32 v{ACC+2*i}, 16, v{6+i}\nv_and_b32 v{ACC+2*i+1}, 0xffff0000, v{6+i}")
        for r in range(16): a(f"v_add_f32 v{ACC+r}, v22, v{ACC+r}")
        a(f"s_lshr_b32 s{sSH1}, s{sJ}, 3")
    begin(N1, OPT.nl0, None, init2)
    KC = N2 - OPT.ock
    hl = [(N1, lambda: stamp(a, 20)), (N1 + 14, lambda: stamp(a, 21)), (KC - 3, lambda: flagload(sFOc, 8))]
    for b in range(3, 7): hl.append((N1 + max(0, 4 * b - OPT.pfd), lambda b=b: cpf(sSH1, b - 3, sPU)))
    for i, k in enumerate(range(N1 + OPT.b2, N1 + OPT.pre + nsg)): hl.append((N1 + i, lambda k=k: prefill(k + 1)))
    run(N1, KC, N2, N3, N2, first=N1, hooks=mkhooks(hl))
    w = vm.wait({'fl'})
    if w is not None: a(f"s_waitcnt vmcnt({w})")
    ordy = a.label("ordy"); red2 = a.label("red2")
    flagcheck(ordy)
    sv = (list(vm.q), dict(state))
    run(KC, N2, N2, N3, N2)
    prefill(N3)
    stamp(a, 22)
    poll(a, sFOc, 8); vm.q = []
    stamp(a, 23)
    a(f"s_setprio {OPT.prio_e}")
    begin(N2, 8)
    run(N2, N3, N3, N3, N3, hooks={N2: lambda: stamp(a, 24)})
    a(f"s_branch {red2}\n{ordy}:")
    vm.q = sv[0]; state.update(sv[1])
    run(KC, N3, N3, N3, N3, hooks={N2: lambda: stamp(a, 24)})
    a(f"{red2}:")
    reduce4(a, C_R2, (L_RING, 2048, lambda i: (i >> 1) * 8192 + (i & 1) * 1024), 25, 26)
    for i in range(8): a(f"v_cvt_pk_bf16_f32 v{ACC+16+i}, v{ACC+2*i}, v{ACC+2*i+1}")
    a(f"""
    s_nop 1
    v_permlane32_swap_b32 v{ACC+16}, v{ACC+18}
    v_permlane32_swap_b32 v{ACC+17}, v{ACC+19}
    v_permlane32_swap_b32 v{ACC+20}, v{ACC+22}
    v_permlane32_swap_b32 v{ACC+21}, v{ACC+23}
    buffer_store_dwordx4 {vr(ACC+16,4)}, v{vOUT}, {sr(R_OUT,4)}, s{sOUT} offen
    buffer_store_dwordx4 {vr(ACC+20,4)}, v{vOUT}, {sr(R_OUT,4)}, s{sOUT} offen offset:32
    s_branch {done}
    epw:
    s_lshl_b32 s{sT0}, s{sG}, 8
    s_add_u32 s{sT0}, s{sT0}, s2
    s_cmp_lg_u32 s{sT0}, 56
    s_cbranch_scc1 {done}
    """)
    lds_wait(a, C_ATT, 4, sleep=8)
    for i in range(4):
        a(f"s_mov_b32 s{sT0}, {FL_O + (2048*i << FS)}")
        poll(a, sT0, 64, sh=5)
    a(f"s_mov_b32 s{sT0}, {WS_EPOCH}")
    set_flag(a, sT0)

def kend(a, e):
    a(f"{e}:")
    if OPT.stamps:
        stamp(a, 14); a("s_waitcnt vmcnt(0)"); stamp(a, 15)
        a(f"""
        s_lshl_b32 s100, s2, 3
        s_add_u32 s100, s100, s{sW}
        s_lshl_b32 s100, s100, 8
        s_add_u32 s100, s100, {WS_STAMP}
        v_lshlrev_b32 v254, 2, v{vLANE}
        buffer_store_dword v255, v254, {sr(R_WS,4)}, s100 offen
        """)
    if OPT.double:
        a(f"""
        s_waitcnt vmcnt(0)
        s_memrealtime s[16:17]
        s_waitcnt lgkmcnt(0)
        s_sub_u32 s18, s16, s100
        s_min_u32 s18, s18, 20000
        dbl:
        s_memrealtime s[20:21]
        s_waitcnt lgkmcnt(0)
        s_sub_u32 s20, s20, s16
        s_cmp_lt_u32 s20, s18
        s_cbranch_scc1 dbl
        """)
    a(f"{e}x:\ns_endpgm\ncode_end:")

def build():
    a = Asm()
    n = NAME + "_kernel"
    a('.amdgcn_target "amdgcn-amd-amdhsa--gfx950"\n.text')
    a(f".globl {n}\n.p2align 8\n.type {n},@function\n{n}:")
    e = "fin"
    prologue(a, e)
    p1_a(a); attention(a, e)
    a("p1g:"); p1_g(a); gpath(a, e)
    kend(a, e)
    if OPT.nogv:
        i0 = a.L.index("p1g:")
        i1 = [i for i, l in enumerate(a.L) if l.startswith("gpfw")][0]
        a.L = [("s_nop 0" if (i > i1 and l.startswith("buffer_load_dwordx4")) else l) for i, l in enumerate(a.L)]
    check(a.L)
    head = open(f"refhead.txt").read().split("; Override")[0]
    ll = f"; @launch grid=(256,1,1) block=(512,1,1) lds={LDS_TOTAL}\n"
    desc = f""".section .rodata,"a"
.p2align 6
.amdhsa_kernel {n}
  .amdhsa_next_free_vgpr 256
  .amdhsa_next_free_sgpr 102
  .amdhsa_accum_offset 256
  .amdhsa_group_segment_fixed_size 0
  .amdhsa_kernarg_size 104
  .amdhsa_user_sgpr_count 2
  .amdhsa_user_sgpr_kernarg_segment_ptr 1
  .amdhsa_system_sgpr_workgroup_id_x 1
  .amdhsa_float_denorm_mode_32 3
.end_amdhsa_kernel
"""
    return head + ll + a.text() + desc

if __name__ == "__main__":
    args = []
    for x in sys.argv[1:]:
        if x.startswith("--"):
            k, _, v = x[2:].partition("=")
            if k == "FS": FS = int(v)
            else: setattr(OPT, k, int(v) if v else True)
        else: args.append(x)
    assert all((t * 37) >> 8 == t // 7 for t in range(56))
    open(args[0] if args else f"cdna_kernels/{NAME}.s", "w").write(build())
```

```python
import sys, math, struct
sys.path.insert(0, "dev")
from asmlib import Asm, vr, sr, check

NAME = "parallel_sum__grouped_kv_mqa__mixer_token_mlp__prompt"
WS_HT = 0
WS_KV = 2 << 20
WS_U  = 5 << 20
WS_O  = 7 << 20
WS_FLG = 10 << 20
FL_H  = WS_FLG
FS = 4
FL_KV = WS_FLG + (8192 << 4)
FL_U  = WS_FLG + (12288 << 4)
FL_O  = WS_FLG + (20480 << 4)
WS_EPOCH = WS_FLG + (32768 << 4)
WS_STAMP = 12 << 20
WS_SIZE = 16 << 20
DBLK = 64
class O: pass
OPT = O(); OPT.stamps = False; OPT.double = False; OPT.prio_g = 0; OPT.prio_e = 3; OPT.prio_a = 0; OPT.pf2step = 6; OPT.pre = 12; OPT.lw = 4; OPT.lw2 = 11; OPT.odeep = 1; OPT.fine = 0; OPT.prio_b = 0; OPT.kp = 0; OPT.prio_g1b = 0; OPT.fine0 = 2; OPT.dh = 5; OPT.pre0 = 4; OPT.nsg = 6; OPT.nsg2 = 9; OPT.e0 = 4; OPT.e1 = 8; OPT.e2 = 11; OPT.pf1pos = 3; OPT.order = 1; OPT.nogm = 0; OPT.nogv = 0; OPT.a1 = 7; OPT.b1 = 10; OPT.nl0 = 4; OPT.pfd = -100; OPT.kvpf = 1; OPT.a2 = 17; OPT.b2 = 21; OPT.ock = 5; OPT.early = 0; OPT.npf0 = 2; OPT.prio_g2 = 0; OPT.twice = 0; OPT.codepf = 1; OPT.prio_ld = 0; OPT.gatek = 8; OPT.ke = 12; OPT.fl_late = 0; OPT.rdin = 2; OPT.pre1 = 0; OPT.engd = 0; OPT.eng = 7; OPT.engw = 1; OPT.ra = 0; OPT.rb = 0; OPT.nou = 0; OPT.now2 = 0; OPT.dropw = 0; OPT.nocomb = 0; OPT.kvflag = 8; OPT.attit = 4; OPT.nold = 0; OPT.nodma = 0; OPT.nokv = 0
L_XT = 0; L_WQ = 57344; L_WKV = 114688
HB_STRIDE = 912
L_HB = 141056; L_QS = 147456; L_KC = 155648; L_KS = L_KC + 1024; L_MX = L_KC
L_ST = 158720; L_RT = 159232; L_CNT = 159360; LDS_TOTAL = 159744
RING = 12; L_RING = 49152; L_RED = 0
def slotp(k): return 8 + k % 4 if k < OPT.ke else (k - OPT.ke) % RING
C_X, C_KV, C_H, C_ST, C_Q, C_ISS, C_R1, C_R1D, C_ATT, C_R2, C_X1, C_XA, C_FL, C_PRE, C_KS = range(15)
sXCD, sJ, sRB, sCB, sW = 3, 4, 5, 6, 7
sT0, sT1, sT2, sT3, sT4, sT5 = 8, 9, 10, 11, 12, 13
sHI = 14
P_X, P_WQ, P_WK, P_WV, P_WO, P_BX, P_W1, P_B1, P_W2, P_B2, P_OUT, P_DBG, P_WS = 16, 18, 20, 22, 24, 26, 28, 30, 32, 34, 36, 38, 40
sTAG = 42
R_X, R_WQ, R_WKV, R_WS, R_W1, R_W2, R_WO, R_OUT, R_KV = 44, 48, 52, 56, 60, 64, 68, 72, 76
R_B1, R_B2 = R_WKV, 20
sONES, sSPIN, sPFW = 82, 83, 99
sG, sGM, sGN, sRing, sA, sD, sL, sFB, sDb, sD2, sLb, sL2, sOUT, sB2 = range(84, 98)
sU0, sU1, sU2, sU3, sU4, sU5 = range(84, 90)
OOB = 0x40000000
EPS = 0x3727c5ac
QSCALE = (28 ** -0.5) * math.log2(math.e)
def f32(x): return "0x%08x" % struct.unpack("<I", struct.pack("<f", x))[0]
vLANE, vJ, vHH, vL16 = 1, 2, 3, 4
MF = "v_mfma_f32_32x32x16_bf16"

def stamp(a, idx):
    if not OPT.stamps: return
    if OPT.stamps == 2 and idx not in (0, 15): return
    a(f"s_memrealtime s[100:101]\ns_waitcnt lgkmcnt(0)\nv_writelane_b32 v255, s100, {idx}")
    if idx in (0, 15): a(f"s_memtime s[100:101]\ns_waitcnt lgkmcnt(0)\nv_writelane_b32 v255, s100, {idx+32}")

def srd(a, r, p, size):
    a(f"s_mov_b32 s{r}, s{p}\ns_mov_b32 s{r+1}, s{p+1}\ns_mov_b32 s{r+2}, {size}\ns_mov_b32 s{r+3}, 0x20000")

def get_tag(a):
    a(f"""
    s_waitcnt lgkmcnt(0)
    s_mul_i32 s{sTAG}, s{sTAG}, 0x9e3779b5
    s_mul_i32 s{sTAG+1}, s{sTAG+1}, 0x85ebca6d
    s_add_u32 s{sTAG}, s{sTAG}, 0x7f4a7c15
    s_add_u32 s{sTAG+1}, s{sTAG+1}, 0x165667b1
    """)

def set_flag(a, soff, vt=30):
    a(f"""
    v_mov_b32 v{vt}, s{sTAG}
    v_mov_b32 v{vt+1}, s{sTAG+1}
    s_waitcnt vmcnt(0)
    s_mov_b64 exec, 1
    buffer_store_dwordx2 {vr(vt,2)}, off, {sr(R_WS,4)}, s{soff} sc1
    s_mov_b64 exec, -1
    """)

def poll(a, soff, n, vo=28, vt=30, sh=3):
    lp = a.label("poll"); dn = a.label("polld")
    a(f"""
    s_setprio 3
    v_min_u32 v{vo}, {n-1}, v{vLANE}
    v_lshlrev_b32 v{vo}, {sh+FS}, v{vo}
    s_mov_b32 s{sSPIN}, 20000
    {lp}:
    buffer_load_dwordx2 {vr(vt,2)}, v{vo}, {sr(R_WS,4)}, s{soff} offen sc1
    s_waitcnt vmcnt(0)
    v_cmp_ne_u64 vcc, {sr(sTAG,2)}, {vr(vt,2)}
    s_cbranch_vccz {dn}
    s_sub_u32 s{sSPIN}, s{sSPIN}, 1
    s_cmp_lg_u32 s{sSPIN}, 0
    s_cbranch_scc1 {lp}
    {dn}:
    s_setprio 0
    """)

def lds_arrive(a, cnt, nowait=False):
    a(f"""
    s_mov_b64 exec, 1
    {'' if nowait else 's_waitcnt lgkmcnt(0)'}
    ds_add_u32 v0, v29 offset:{4*cnt}
    s_mov_b64 exec, -1
    """)
def lds_wait(a, cnt, target, sleep=0):
    spin = a.label("spin")
    a(f"""
    {spin}:
    {f's_sleep {sleep}' if sleep else ''}
    ds_read_b32 v28, v0 offset:{4*cnt}
    s_waitcnt lgkmcnt(0)
    v_readfirstlane_b32 s{sT5}, v28
    s_cmp_lt_u32 s{sT5}, {target}
    s_cbranch_scc1 {spin}
    """)

def bf16_stats(a, vs, vq, vm, vr_, t):
    a(f"""
    v_mul_f32 v{vs}, {f32(1/448)}, v{vs}
    v_mul_f32 v{vq}, {f32(1/448)}, v{vq}
    v_fma_f32 v{vq}, -v{vs}, v{vs}, v{vq}
    v_max_f32 v{vq}, 0, v{vq}
    v_cvt_pk_bf16_f32 v{t}, v{vs}, v{vq}
    v_lshlrev_b32 v{vm}, 16, v{t}
    v_and_b32 v{t}, 0xffff0000, v{t}
    v_add_f32 v{t}, {EPS:#x}, v{t}
    v_cvt_pk_bf16_f32 v{t}, v{t}, v{t}
    v_and_b32 v{t}, 0xffff0000, v{t}
    v_sqrt_f32 v{t}, v{t}
    s_nop 0
    v_cvt_pk_bf16_f32 v{t}, v{t}, v{t}
    v_and_b32 v{t}, 0xffff0000, v{t}
    v_rcp_f32 v{vr_}, v{t}
    s_nop 0
    """)

def dpp_reduce(a, vs, vq, modes):
    a("s_nop 2")
    for mode in modes:
        a(f"v_add_f32_dpp v{vs}, v{vs}, v{vs} {mode} row_mask:0xf bank_mask:0xf")
        a(f"v_add_f32_dpp v{vq}, v{vq}, v{vq} {mode} row_mask:0xf bank_mask:0xf")
        a("s_nop 0")
QP1, QP2, RHM, RM = "quad_perm:[1,0,3,2]", "quad_perm:[2,3,0,1]", "row_half_mirror", "row_mirror"

def split_hi_lo(a, dst, src, t):
    a(f"""
    v_cvt_pk_bf16_f32 v{t}, v{src}, v{src}
    v_and_b32 v{t}, 0xffff0000, v{t}
    v_sub_f32 v{t}, v{src}, v{t}
    v_cvt_pk_bf16_f32 v{dst}, v{src}, v{t}
    """)

def prologue(a, end):
    a(f"s_cmp_ge_u32 s2, 256\ns_cbranch_scc1 {end}x")
    if OPT.double: a("s_memrealtime s[100:101]")
    if OPT.stamps: a("v_mov_b32 v255, 0")
    stamp(a, 0)
    a(f"""
    s_load_dwordx16 s[16:31], s[0:1], 0
    s_load_dwordx8 s[32:39], s[0:1], 64
    s_load_dwordx2 s[40:41], s[0:1], 96
    v_lshrrev_b32 v5, 6, v0
    v_and_b32 v{vLANE}, 63, v0
    v_readfirstlane_b32 s{sW}, v5
    v_and_b32 v{vJ}, 31, v0
    v_lshrrev_b32 v{vHH}, 5, v{vLANE}
    v_lshlrev_b32 v{vL16}, 4, v{vLANE}
    s_and_b32 s{sXCD}, s2, 7
    s_lshr_b32 s{sJ}, s2, 3
    """)
    if OPT.codepf:
        a(f"""
        s_cmp_lg_u32 s{sW}, 7
        s_cbranch_scc1 nocpf
        s_getpc_b64 s[{R_OUT}:{R_OUT+1}]
        cpf_here:
        s_sub_u32 s{R_OUT}, s{R_OUT}, cpf_here-{NAME}_kernel
        s_subb_u32 s{R_OUT+1}, s{R_OUT+1}, 0
        s_mov_b32 s{R_OUT+2}, code_end-{NAME}_kernel
        s_mov_b32 s{R_OUT+3}, 0x20000
        s_lshl_b32 s{sT0}, s{sJ}, 7
        v_lshlrev_b32 v6, 12, v{vLANE}
        buffer_load_dword v250, v6, {sr(R_OUT,4)}, s{sT0} offen
        nocpf:
        """)
    a(f"""
    s_lshr_b32 s{sT0}, s{sJ}, 3
    s_lshl_b32 s{sRB}, s{sXCD}, 2
    s_add_u32 s{sRB}, s{sRB}, s{sT0}
    s_and_b32 s{sCB}, s{sJ}, 7
    s_mov_b32 s{sHI}, 0
    s_mov_b32 s{sHI+1}, -1
    s_mov_b32 s{sONES}, 0x3f803f80
    v_lshlrev_b32 v5, 2, v{vLANE}
    v_add_u32 v5, {L_CNT}, v5
    v_mov_b32 v6, 0
    ds_write_b32 v5, v6
    v_mov_b32 v0, {L_CNT}
    v_mov_b32 v29, 1
    v_lshrrev_b32 v5, 3, v{vLANE}
    v_and_b32 v6, 7, v{vLANE}
    v_lshrrev_b32 v7, 4, v{vLANE}
    v_bfe_u32 v8, v{vLANE}, 2, 2
    v_and_b32 v9, 3, v{vLANE}
    v_and_b32 v10, 1, v7
    v_lshlrev_b32 v9, 3, v9
    v_lshl_add_u32 v9, v10, 5, v9
    """)
    p1_addr(a)
    a(f"s_cmp_ge_u32 s{sW}, 4\ns_cbranch_scc1 p1g")

def common_srds(a):
    a(f"s_mov_b32 s{sT5}, {WS_EPOCH}\ns_waitcnt lgkmcnt(0)")
    stamp(a, 1)
    a(f"s_load_dwordx2 {sr(sTAG,2)}, {sr(P_WS,2)}, s{sT5}")
    srd(a, R_X, P_X, 2048 * 896)
    srd(a, R_WS, P_WS, WS_SIZE)

def epoch_load(a): pass

vXe, vXo, vWQd = 11, 12, 13
sNL, sXs, sXm, sNT, sW3 = 76, 77, 78, 79, 80
sXs2, sXm2, sQs, sQm = 26, 27, 38, 39
def p1_addr(a):
    a(f"""
    v_mul_u32_u24 v20, 896, v5
    v_xor_b32 v21, v6, v7
    v_lshl_add_u32 v{vXe}, v21, 4, v20
    v_xor_b32 v21, 4, v21
    v_lshl_add_u32 v{vXo}, v21, 4, v20
    v_lshlrev_b32 v21, 2, v10
    v_xor_b32 v21, v21, v6
    v_lshl_add_u32 v{vWQd}, v21, 4, v20
    s_and_b32 s{sW3}, s{sW}, 3
    s_cmp_eq_u32 s{sW3}, 3
    s_cselect_b32 s{sNL}, 1, 2
    s_bfe_u32 s{sNT}, s{sCB}, 0x10001
    s_and_b32 s{sT0}, s{sCB}, 1
    s_cmp_ge_u32 s{sCB}, 6
    s_cselect_b32 s{sNT}, s{sT0}, s{sNT}
    s_lshl_b32 s{sT0}, s{sRB}, 1
    s_add_u32 s{sT0}, s{sT0}, s{sNT}
    s_mul_i32 s{sXs}, s{sT0}, {32*896}
    s_lshl_b32 s{sT0}, s{sW3}, 8
    s_add_u32 s{sXs}, s{sXs}, s{sT0}
    s_lshl_b32 s{sXm}, s{sW3}, 14
    s_lshl_b32 s{sT0}, s{sNT}, 12
    s_add_u32 s{sXm}, s{sXm}, s{sT0}
    """)
def rest_dma(a, after_x=None):
    srd(a, R_WQ, P_WQ, 448 * 896)
    a(f"""
    s_xor_b32 s{sXm2}, s{sXm}, 4096
    s_mul_i32 s{sT0}, s{sNT}, {2*32*896}
    s_add_u32 s{sXs2}, s{sXs}, {32*896}
    s_sub_u32 s{sXs2}, s{sXs2}, s{sT0}
    s_mul_i32 s{sQs}, s{sW3}, {128*896}
    s_mul_i32 s{sT0}, s{sCB}, 112
    s_add_u32 s{sQs}, s{sQs}, s{sT0}
    s_lshl_b32 s{sQm}, s{sW3}, 14
    """)
    if after_x: after_x()
    PF1 = f"buffer_load_dword v249, v{vPF1}, {sr(R_W1,4)}, s{sPFW} offen"
    if OPT.pf1pos == 0: a(PF1)
    l1 = a.label("rd1"); l2 = a.label("rd2")
    for line in range(2):
        if line: a(f"s_cmp_eq_u32 s{sNL}, 1\ns_cbranch_scc1 {l1}")
        for b in range(4):
            a(f"""
            s_add_u32 m0, s{sXm2}, {L_XT + line*8192 + b*1024}
            s_add_u32 s{sT0}, s{sXs2}, {b*8*896 + line*128}
            buffer_load_dwordx4 v{vXo if b & 1 else vXe}, {sr(R_X,4)}, s{sT0} offen lds
            """)
    a(f"{l1}:")
    if OPT.pf1pos == 1: a(PF1)
    for line in range(2):
        if line:
            a(f"s_waitcnt vmcnt({9 if OPT.pf1pos == 1 else 8})")
            lds_arrive(a, C_XA, nowait=True)
            a(f"s_cmp_eq_u32 s{sNL}, 1\ns_cbranch_scc1 {l2}")
        for b in range(8):
            a(f"""
            s_add_u32 m0, s{sQm}, {L_WQ + line*8192 + b*1024}
            s_add_u32 s{sT0}, s{sQs}, {(line*64 + b*8)*896}
            buffer_load_dwordx4 v{vWQd}, {sr(R_WQ,4)}, s{sT0} offen lds
            """)
    a(f"{l2}:")

vPF1 = 246
def pf1_addr(a):
    a(f"""
    v_min_u32 v14, 6, v6
    v_mul_u32_u24 v{vPF1}, 3584, v5
    v_lshl_add_u32 v{vPF1}, v14, 7, v{vPF1}
    s_lshl_b32 s{sT1}, s{sW3}, 6
    s_lshr_b32 s{sT2}, s{sJ}, 3
    s_lshl_b32 s{sT2}, s{sT2}, 1
    s_add_u32 s{sT1}, s{sT1}, s{sT2}
    s_and_b32 s{sT2}, s{sCB}, 1
    s_add_u32 s{sT1}, s{sT1}, s{sT2}
    s_sub_u32 s{sT1}, s{sT1}, 1
    s_mul_i32 s{sPFW}, s{sT1}, {8*3584}
    s_lshr_b32 s{sT2}, s{sXCD}, 1
    s_mul_i32 s{sT2}, s{sT2}, 896
    s_add_u32 s{sPFW}, s{sPFW}, s{sT2}
    """)
    srd(a, R_W1, P_W1, 2048 * 3584)

def stats_code(a, st0, st1, sRBk, SX=128, T=40):
    a(f"""
    v_lshrrev_b32 v{T}, 2, v{vLANE}
    v_and_b32 v{T+1}, 3, v{vLANE}
    v_lshlrev_b32 v{T+1}, 5, v{T+1}
    v_lshl_add_u32 v{T+1}, v{T}, 7, v{T+1}
    v_lshlrev_b32 v{T+2}, 1, v{vLANE}
    v_and_b32 v{T+2}, 16, v{T+2}
    v_add_u32 v{T+1}, v{T+1}, v{T+2}
    s_lshl_b32 s{sT0}, s{sRBk}, 11
    v_add_u32 v{T+1}, s{sT0}, v{T+1}
    v_xor_b32 v{T+3}, 16, v{T+1}
    s_lshl_b32 s{sT0}, s{sRBk}, 7
    s_add_u32 s{sT0}, s{sT0}, {L_ST}
    v_lshl_add_u32 v{T}, v{T}, 3, s{sT0}
    v_mov_b32 v{T+4}, 0
    v_mov_b32 v{T+5}, 0
    """)
    lds_wait(a, C_X1, 4)
    lds_wait(a, C_XA, 4)
    stamp(a, st0)
    for c in range(7):
        a(f"ds_read_b128 {vr(SX+8*c,4)}, v{T+1} offset:{L_XT + c*8192}")
        a(f"ds_read_b128 {vr(SX+8*c+4,4)}, v{T+3} offset:{L_XT + c*8192}")
    for c in range(7):
        a(f"s_waitcnt lgkmcnt({2*(6-c)})")
        for i in range(8):
            a(f"v_dot2c_f32_bf16 v{T+4}, s{sONES}, v{SX+8*c+i}")
            a(f"v_dot2c_f32_bf16 v{T+5}, v{SX+8*c+i}, v{SX+8*c+i}")
    dpp_reduce(a, T + 4, T + 5, [QP1, QP2])
    bf16_stats(a, T + 4, T + 5, T + 3, T + 7, T + 2)
    a(f"""
    v_cvt_pk_bf16_f32 v{T+6}, -v{T+3}, -v{T+3}
    v_mul_f32 v{T+7}, {f32(QSCALE)}, v{T+7}
    ds_write_b64 v{T}, {vr(T+6,2)}
    """)
    lds_arrive(a, C_ST, nowait=True)
    stamp(a, st1)

def p1_a(a):
    vXF, vWK, vWQr = 14, 18, 19
    sB, sM = 94, 96
    a(f"""
    s_and_b32 s{sT1}, s{sCB}, 1
    s_lshl_b32 s{sT2}, s{sT1}, 11
    s_xor_b32 s{sM}, s{sXm}, s{sT2}
    s_lshr_b32 s{sT3}, s{sJ}, 3
    s_lshl_b32 s{sT3}, s{sT3}, 1
    s_add_u32 s{sT3}, s{sT3}, s{sT1}
    s_mul_i32 s{sT1}, s{sT1}, {16*896}
    s_add_u32 s{sB}, s{sXs}, s{sT1}
    s_add_u32 s{sT2}, s{sXs}, {16*896}
    s_sub_u32 s{sB+1}, s{sT2}, s{sT1}
    v_lshlrev_b32 v21, 7, v{vLANE}
    s_mov_b32 s{sT4}, 0
    """)
    common_srds(a)
    def x_half(h):
        sk = a.label("xh")
        for line in range(2):
            if line: a(f"s_cmp_eq_u32 s{sNL}, 1\ns_cbranch_scc1 {sk}")
            for b in range(2):
                a(f"""
                s_xor_b32 m0, s{sM}, {line*8192 + h*2048 + b*1024}
                s_add_u32 s{sT0}, s{sB+h}, {b*8*896 + line*128}
                buffer_load_dwordx4 v{vXo if b else vXe}, {sr(R_X,4)}, s{sT0} offen lds
                """)
        a(f"{sk}:")
    def frag_addr():
        a(f"""
        v_lshrrev_b32 v20, 1, v{vJ}
        v_and_b32 v20, 7, v20
        v_xor_b32 v20, v20, v{vHH}
        v_lshlrev_b32 v20, 4, v20
        v_lshl_add_u32 v{vXF}, v{vJ}, 7, v20
        v_xor_b32 v{vXF+1}, 32, v{vXF}
        v_xor_b32 v{vXF+2}, 64, v{vXF}
        v_xor_b32 v{vXF+3}, 96, v{vXF}
        v_lshl_add_u32 v20, v{vHH}, 3, v8
        """)
    nop_ = a.label("notp"); other = a.label("notkv"); htype = a.label("htype"); qgo = a.label("qgo"); dostats = a.label("dostats"); poststats = a.label("poststats")
    a(f"""
    s_and_b32 s{sT0}, s{sCB}, 6
    s_cmp_lg_u32 s{sT0}, 4
    s_cbranch_scc1 {nop_}
    s_lshl_b32 s{sT0}, s{sT3}, 2
    s_add_u32 s{sT0}, s{sT0}, s{sW}
    s_cmp_eq_u32 s{sT3}, 1
    s_cselect_b32 s{R_WKV}, s{P_WV}, s{P_WK}
    s_cselect_b32 s{R_WKV+1}, s{P_WV+1}, s{P_WK+1}
    s_mov_b32 s{R_WKV+2}, {448*896}
    s_sub_u32 s{sT1}, s{sT0}, 8
    s_cmp_lt_u32 s{sT3}, 2
    s_cselect_b32 s{R_WKV}, s{R_WKV}, s{P_WQ}
    s_cselect_b32 s{R_WKV+1}, s{R_WKV+1}, s{P_WQ+1}
    s_cselect_b32 s{R_WKV+2}, {448*56}, s{R_WKV+2}
    s_cselect_b32 s{sT1}, s{sW}, s{sT1}
    s_mov_b32 s{R_WKV+3}, 0x20000
    s_lshl_b32 s{sT1}, s{sT1}, 13
    buffer_load_dword v250, v21, {sr(R_WKV,4)}, s{sT1} offen
    """)
    srd(a, R_WQ, P_WQ, 448 * 896)
    a(f"""
    s_add_u32 s{sT0}, s{sT0}, 24
    s_lshl_b32 s{sT0}, s{sT0}, 13
    buffer_load_dword v251, v21, {sr(R_WQ,4)}, s{sT0} offen
    {nop_}:
    """)
    x_half(0); x_half(1)
    a(f"s_cmp_ge_u32 s{sCB}, 4\ns_cbranch_scc1 {other}")
    a(f"""
    s_bitcmp1_b32 s{sCB}, 0
    s_cselect_b32 s{R_WKV}, s{P_WV}, s{P_WK}
    s_cselect_b32 s{R_WKV+1}, s{P_WV+1}, s{P_WK+1}
    s_mov_b32 s{R_WKV+2}, {448*56}
    s_mov_b32 s{R_WKV+3}, 0x20000
    s_mul_i32 s{sT1}, s{sW}, 7168
    s_add_u32 m0, s{sT1}, {L_WKV}
    s_cmp_eq_u32 s{sNL}, 1
    """)
    w3 = a.label("wk3")
    for i in range(4): a(f"buffer_load_dwordx4 v{vL16}, {sr(R_WKV,4)}, s{sT1} offen offset:{1024*i} lds")
    a(f"""
    s_cbranch_scc1 {w3}
    s_add_u32 m0, m0, 4096
    s_add_u32 s{sT1}, s{sT1}, 4096
    """)
    for i in range(3): a(f"buffer_load_dwordx4 v{vL16}, {sr(R_WKV,4)}, s{sT1} offen offset:{1024*i} lds")
    a(f"{w3}:")
    epoch_load(a)
    a("s_barrier")
    frag_addr()
    ACC, XF, WF = 96, 32, 64
    vQ, vS, vC = 22, 23, 21
    a(f"""
    v_mul_u32_u24 v{vWK}, 56, v20
    v_add_u32 v{vWK}, v{vWK}, v9
    s_mul_i32 s{sT1}, s{sW}, 7168
    s_add_u32 s{sT1}, s{sT1}, {L_WKV}
    v_add_u32 v{vWK}, s{sT1}, v{vWK}
    v_add_u32 v24, s{sXm}, v{vXF}
    v_xor_b32 v25, 32, v24
    v_xor_b32 v30, 64, v24
    v_xor_b32 v31, 96, v24
    v_mov_b32 v{vS}, 0
    v_mov_b32 v{vQ}, 0
    v_mov_b32 v{vC}, 0
    s_lshl_b32 s{sT0}, s{sW}, 4
    s_add_u32 s{sT0}, s{sT0}, {L_KS}
    v_lshlrev_b32 v120, 6, v{vJ}
    v_lshl_add_u32 v121, v{vHH}, 3, v120
    v_add_u32 v121, s{sT0}, v121
    s_lshl_b32 s{sT0}, s{sW}, 2
    s_add_u32 s{sT0}, s{sT0}, {L_KC}
    v_add_u32 v122, s{sT0}, v{vL16}
    v_add_u32 v123, s{sT1}, v{vL16}
    """)
    xa = [24, 25, 30, 31]
    l0 = a.label("kv0"); l1 = a.label("kv1a"); l2 = a.label("kv1b"); l3 = a.label("kv1c"); vlab = a.label("kvv"); fin = a.label("kvfin")
    def skip1(lab): a(f"s_cmp_eq_u32 s{sNL}, 1\ns_cbranch_scc1 {lab}")
    a(f"s_waitcnt vmcnt(7)\ns_cmp_eq_u32 s{sNL}, 1\ns_cbranch_scc0 {l0}\ns_waitcnt vmcnt(4)\n{l0}:")
    stamp(a, 2)
    for line in range(2):
        for q in range(4): a(f"ds_read_b128 {vr(XF+16*line+4*q,4)}, v{xa[q]} offset:{L_XT + line*8192}")
    lds_arrive(a, C_X1, nowait=True)
    for line in range(2):
        if line: skip1(l1)
        for q in range(4):
            a(f"s_waitcnt lgkmcnt({8-4*line-q})")
            for i in range(4):
                r = XF + 16 * line + 4 * q + i
                a(f"v_dot2c_f32_bf16 v{vS}, s{sONES}, v{r}\nv_dot2c_f32_bf16 v{vQ}, v{r}, v{r}")
    a(f"{l1}:\ns_waitcnt vmcnt(0) lgkmcnt(0)\ns_nop 1\nds_write_b64 v121, v[22:23]")
    stamp(a, 18)
    for k in range(8):
        if k == 7: a("s_waitcnt lgkmcnt(13)")
        a(f"ds_read_b64_tr_b16 {vr(WF+4*k,2)}, v{vWK} offset:{k*896}")
        a(f"ds_read_b64_tr_b16 {vr(WF+4*k+2,2)}, v{vWK} offset:{k*896+224}")
    for k in range(8):
        if k == 4: skip1(l3)
        a(f"s_waitcnt lgkmcnt({14-2*k})")
        for i in range(4): a(f"v_dot2c_f32_bf16 v{vC}, s{sONES}, v{WF+4*k+i}")
    a(f"{l3}:\ns_bitcmp1_b32 s{sCB}, 0\ns_cbranch_scc1 {vlab}")
    for isv in (0, 1):
        if isv: a(f"{vlab}:")
        for k in range(8):
            if k == 4: skip1(fin)
            A, B = (vr(XF+4*k,4), vr(WF+4*k,4)) if isv else (vr(WF+4*k,4), vr(XF+4*k,4))
            a(f"{MF} {vr(ACC,16)}, {A}, {B}, {vr(ACC,16) if k else 0}")
            if k == 0:
                split_hi_lo(a, 24, vC, 31)
                a("ds_write_b32 v122, v24")
                lds_arrive(a, C_KS, nowait=True)
        if not isv: a(f"s_branch {l2}")
    a(f"""
    {l2}:
    s_lshl_b32 s{sT2}, s{sNT}, 1
    s_xor_b32 s{sT2}, s{sT2}, 2
    s_add_u32 s{sT2}, s{sT2}, s{sW}
    """)
    get_tag(a)
    a("s_nop 3")
    for g in range(4): a(f"ds_write_b128 v123, {vr(ACC+4*g,4)} offset:{1024*g}")
    lds_arrive(a, C_KV, nowait=True)
    stamp(a, 3)
    a(f"s_cmp_lt_u32 s{sW}, 2\ns_cbranch_scc1 {dostats}")
    lds_arrive(a, C_ST, nowait=True)
    a(f"s_branch {qgo}")
    vfin = a.label("vfin"); kvst = a.label("kvst"); vf2 = a.label("vf2"); cm = a.label("kvcm")
    a(f"""
    {fin}:
    s_setprio 3
    v_add_u32 v24, {L_KS}, v120
    v_add_u32 v25, {L_WKV}, v{vL16}
    v_add_u32 v21, {L_KC}, v{vL16}
    s_lshl_b32 s{sT1}, s{sRB}, 1
    s_add_u32 s{sT1}, s{sT1}, s{sNT}
    s_lshl_b32 s{sT1}, s{sT1}, 12
    s_add_u32 s{sT1}, s{sT1}, {WS_KV}
    s_lshl_b32 s{sT4}, s{sRB}, 2
    s_add_u32 s{sT4}, s{sT4}, s{sCB}
    s_lshl_b32 s{sT4}, s{sT4}, {3+FS}
    s_add_u32 s{sT4}, s{sT4}, {FL_KV}
    s_lshl_b32 s{sT0}, s{sNT}, 8
    s_add_u32 s{sT0}, s{sT0}, {L_ST}
    v_lshl_add_u32 v30, v{vJ}, 3, s{sT0}
    s_waitcnt vmcnt(0)
    """)
    get_tag(a)
    lds_wait(a, C_KS, 4)
    for g in range(4): a(f"ds_read_b128 {vr(XF+4*g,4)}, v24 offset:{16*g}")
    a(f"ds_read_b128 {vr(112,4)}, v21\ns_waitcnt lgkmcnt(1)")
    for i in range(4): a(f"v_pk_add_f32 {vr(XF+4*i,2)}, {vr(XF+4*i,2)}, {vr(XF+4*i+2,2)}")
    a(f"""
    v_pk_add_f32 {vr(XF,2)}, {vr(XF,2)}, {vr(XF+4,2)}
    v_pk_add_f32 {vr(XF+8,2)}, {vr(XF+8,2)}, {vr(XF+12,2)}
    v_pk_add_f32 {vr(XF,2)}, {vr(XF,2)}, {vr(XF+8,2)}
    """)
    bf16_stats(a, XF + 1, XF, 22, 23, 21)
    a(f"""
    v_cvt_pk_bf16_f32 v116, -v22, -v22
    v_lshlrev_b32 v21, 2, v{vJ}
    v_add_u32 v21, {L_RT}, v21
    ds_write_b32 v21, v23
    v_mul_f32 v117, {f32(QSCALE)}, v23
    v_lshlrev_b32 v21, 4, v{vHH}
    v_add_u32 v21, {L_RT}, v21
    ds_write_b64 v30, v[116:117]
    v_mov_b32 v118, v116
    v_mov_b32 v119, v116
    v_mov_b32 v22, v23
    """)
    lds_arrive(a, C_ST, nowait=True)
    a(f"""
    s_waitcnt lgkmcnt(0)
    v_mov_b32 v117, v116
    s_bitcmp1_b32 s{sCB}, 0
    s_cbranch_scc1 {vfin}
    {MF} {vr(ACC,16)}, {vr(112,4)}, {vr(116,4)}, {vr(ACC,16)}
    s_branch {cm}
    {vfin}:
    {MF} {vr(ACC,16)}, {vr(116,4)}, {vr(112,4)}, {vr(ACC,16)}
    """)
    for g in range(4): a(f"ds_read_b128 {vr(XF+4*g,4)}, v21 offset:{32*g}")
    a(f"""
    s_add_u32 s{sT1}, s{sT1}, 2048
    v_cmp_eq_u32 vcc, 28, v{vJ}
    v_mov_b32 v24, 0x3f803f80
    s_nop 1
    v_cndmask_b32 v24, 0, v24, vcc
    """)
    for i in range(8): a(f"v_mov_b32 v{120+i}, v24")
    a(f"{cm}:")
    lds_wait(a, C_KV, 3)
    stamp(a, 4)
    for w in range(3):
        for g in range(4): a(f"ds_read_b128 {vr(128+16*w+4*g,4)}, v25 offset:{7168*w+1024*g}")
    for w in range(3):
        a(f"s_waitcnt lgkmcnt({8-4*w})")
        for r in range(0, 16, 2): a(f"v_pk_add_f32 {vr(ACC+r,2)}, {vr(ACC+r,2)}, {vr(128+16*w+r,2)}")
    a(f"s_bitcmp1_b32 s{sCB}, 0\ns_cbranch_scc1 {vf2}")
    for r in range(0, 16, 2): a(f"v_pk_mul_f32 {vr(ACC+r,2)}, {vr(ACC+r,2)}, v[22:23]")
    for i in range(8): a(f"v_cvt_pk_bf16_f32 v{120+i}, v{ACC+2*i}, v{ACC+2*i+1}")
    a(f"""
    s_mov_b64 exec, {sr(sHI,2)}
    v_mov_b32 v126, 0x3f803f80
    v_mov_b32 v127, 0x00003f80
    s_branch {kvst}
    {vf2}:
    s_mov_b32 exec_lo, 0x0fffffff
    s_mov_b32 exec_hi, 0x0fffffff
    """)
    for r in range(0, 16, 2): a(f"v_pk_mul_f32 {vr(ACC+r,2)}, {vr(ACC+r,2)}, {vr(XF+r,2)}")
    for i in range(8): a(f"v_cvt_pk_bf16_f32 v{120+i}, v{ACC+2*i}, v{ACC+2*i+1}")
    a(f"""
    {kvst}:
    s_mov_b64 exec, -1
    buffer_store_dwordx4 {vr(120,4)}, v{vL16}, {sr(R_WS,4)}, s{sT1} offen sc1
    buffer_store_dwordx4 {vr(124,4)}, v{vL16}, {sr(R_WS,4)}, s{sT1} offen offset:1024 sc1
    """)
    stamp(a, 5)
    if OPT.kvflag < 0:
        set_flag(a, sT4)
        a(f"s_mov_b32 s{sT4}, 0\ns_setprio 0")
        stamp(a, 6)
    if not OPT.fl_late or OPT.kvflag < 0: lds_arrive(a, C_FL, nowait=True)
    a(f"s_branch {qgo}")
    a(f"{other}:")
    epoch_load(a)
    pf1_addr(a)
    frag_addr()
    a(f"s_mov_b32 s{sT2}, s{sW}\ns_barrier\ns_waitcnt vmcnt(0)")
    stamp(a, 2)
    lds_arrive(a, C_X1, nowait=True)
    a(f"s_cmp_ge_u32 s{sCB}, 6\ns_cbranch_scc1 {htype}")
    lds_arrive(a, C_FL, nowait=True)
    a("s_waitcnt vmcnt(0)")
    get_tag(a)
    a(f"s_branch {dostats}\n{htype}:")
    def early():
        ne = a.label("noearly")
        a(f"s_cmp_eq_u32 s{sJ}, 6\ns_cbranch_scc1 {ne}")
        for i in range(OPT.npf0):
            a(f"buffer_load_dword v{251+i%3}, v{vPF1}, {sr(R_W1,4)}, s{sPFW} offen\ns_add_u32 s{sPFW}, s{sPFW}, {56*3584}")
        lds_wait(a, C_FL, 4)
        a(f"{ne}:")
    rest_dma(a, early)
    lds_arrive(a, C_ISS, nowait=True)
    get_tag(a)
    stamp(a, 3)
    a(f"{dostats}:")
    stats_code(a, 20, 21, sT2)
    a(f"s_cmp_lt_u32 s{sCB}, 6\ns_cbranch_scc1 {qgo}\ns_waitcnt vmcnt(0)")
    lds_arrive(a, C_X, nowait=True)
    QACC, B0 = 128, 32
    a(f"""
    {qgo}:
    s_and_b32 s{sT0}, s{sW}, 1
    s_mul_i32 s{sT0}, s{sT0}, 56
    v_add_u32 v{vWQr}, s{sT0}, v9
    v_lshlrev_b32 v21, 5, v8
    v_and_b32 v21, 64, v21
    v_xor_b32 v{vWQr}, v{vWQr}, v21
    v_lshl_add_u32 v{vWQr}, v20, 7, v{vWQr}
    v_add_u32 v{vWQr}, {L_WQ}, v{vWQr}
    s_lshr_b32 s{sT1}, s{sW}, 1
    s_lshl_b32 s{sT0}, s{sT1}, 12
    v_mov_b32 v23, 0
    v_mov_b32 v113, 0
    v_mov_b32 v114, 0
    v_mov_b32 v115, 0
    v_mov_b32 v118, 0
    v_mov_b32 v119, 0
    """)
    for q in range(4): a(f"v_add_u32 v{vXF+q}, s{sT0}, v{vXF+q}")
    a(f"""
    s_lshl_b32 s{sT1}, s{sT1}, 8
    s_add_u32 s{sT1}, s{sT1}, {L_ST}
    v_lshl_add_u32 v24, v{vJ}, 3, s{sT1}
    """)
    lds_wait(a, C_X1, 4)
    lds_wait(a, C_X, 4)
    stamp(a, 7)
    D = 4; NB = 8
    WR = list(range(64, 112, 4)) + list(range(144, 176, 4)) + list(range(224, 248, 4)) + [120, 124]
    def wreg(ks): return WR[ks]
    def reads(ks):
        b = wreg(ks)
        a(f"ds_read_b64_tr_b16 {vr(b,2)}, v{vWQr} offset:{ks*2048}")
        a(f"ds_read_b64_tr_b16 {vr(b+2,2)}, v{vWQr} offset:{ks*2048+512}")
        a(f"ds_read_b128 {vr(B0+4*(ks%NB),4)}, v{vXF+(ks&3)} offset:{L_XT + (ks>>2)*8192}")
    for ks in range(D): reads(ks)
    for ks in range(28):
        if ks + D < 28: reads(ks + D)
        a(f"s_waitcnt lgkmcnt({3*min(D, 27-ks)})")
        a(f"{MF} {vr(QACC,16)}, {vr(wreg(ks),4)}, {vr(B0+4*(ks%NB),4)}, {'0' if ks == 0 else vr(QACC,16)}")
        if ks == OPT.kvflag:
            nf = a.label("nofl")
            a(f"s_cmp_eq_u32 s{sT4}, 0\ns_cbranch_scc1 {nf}")
            set_flag(a, sT4)
            if OPT.fl_late: lds_arrive(a, C_FL, nowait=True)
            a("s_setprio 0")
            stamp(a, 6)
            a(f"{nf}:")
    stamp(a, 19)
    if OPT.prio_ld: a(f"s_setprio {OPT.prio_ld}")
    att_setup(a)
    if OPT.early: a(f"buffer_load_dwordx2 v[30:31], v25, {sr(R_WS,4)}, s{sKF} offen sc1")
    for ks in range(28):
        for i in range(4): a(f"v_dot2c_f32_bf16 v23, s{sONES}, v{wreg(ks)+i}")
    if OPT.early:
        nk = a.label("nokvyet")
        a(f"""
        s_waitcnt vmcnt(0)
        v_cmp_ne_u64 vcc, {sr(sTAG,2)}, v[30:31]
        s_cbranch_vccnz {nk}
        """)
        first_kv(a)
        a(f"s_mov_b32 s{sKF}, 0\n{nk}:")
    stamp(a, 8)
    lds_wait(a, C_ST, 8)
    a(f"ds_read_b64 v[116:117], v24")
    split_hi_lo(a, 112, 23, 21)
    a(f"""
    s_waitcnt lgkmcnt(0)
    v_mov_b32 v22, v117
    v_mov_b32 v23, v117
    v_mov_b32 v117, 0
    s_nop 1
    {MF} {vr(QACC,16)}, {vr(112,4)}, {vr(116,4)}, {vr(QACC,16)}
    s_lshl_b32 s{sT1}, s{sW}, 11
    s_add_u32 s{sT1}, s{sT1}, {L_QS}
    v_add_u32 v21, s{sT1}, v{vL16}
    """)
    for r in range(64, 76): a(f"v_mov_b32 v{r}, 0")
    for r in range(0, 16, 2): a(f"v_pk_mul_f32 {vr(QACC+r,2)}, {vr(QACC+r,2)}, v[22:23]")
    for i in range(8): a(f"v_cvt_pk_bf16_f32 v{32+i}, v{QACC+2*i}, v{QACC+2*i+1}")
    a(f"""
    s_mov_b64 exec, {sr(sHI,2)}
    v_mov_b32 v38, 0
    v_mov_b32 v39, 0
    s_mov_b64 exec, -1
    ds_write_b128 v21, {vr(32,4)}
    ds_write_b128 v21, {vr(36,4)} offset:1024
    """)
    lds_arrive(a, C_Q, nowait=True)

vDW1, vDW2, vDWO, vOUT, vT1, vT2, vT3, vLN, vLM, vPF, vPF2 = 48, 49, 50, 51, 52, 54, 56, 58, 60, 62, 63
vTH, vSW = 240, 247
sHasG1 = 98
sLb0, sLbE, sDb0, sDbE = 34, 35, 36, 37
sFH, sPH, sB1o, sFU, sUS, sFUc, sPU, sFOc, sSH1 = 16, 17, 28, 29, 30, 31, 32, 33, 81
def g_setup1(a, mid=None):
    srd(a, R_B1, P_B1, 1792 * 2)
    a(f"""
    s_lshr_b32 s{sGM}, s{sG}, 1
    s_and_b32 s{sGN}, s{sG}, 1
    s_lshl_b32 s{sRing}, s{sG}, 11
    s_add_u32 s{sRing}, s{sRing}, {L_RING}
    v_lshlrev_b32 v{vDWO}, 2, v10
    v_xor_b32 v{vDWO}, v{vDWO}, v6
    v_lshlrev_b32 v{vDWO}, 4, v{vDWO}
    v_lshl_add_u32 v{vT3}, v8, 7, v9
    v_lshlrev_b32 v24, 5, v8
    v_and_b32 v24, 64, v24
    v_add_u32 v{vT3}, v{vT3}, v24
    v_add_u32 v{vT3}, s{sRing}, v{vT3}
    s_lshr_b32 s{sT0}, s{sJ}, 3
    s_mul_i32 s{sT0}, s{sT0}, 6
    s_add_u32 s{sT0}, s{sT0}, s{sCB}
    s_cmp_lt_u32 s{sCB}, 6
    s_cselect_b32 s{sHasG1}, 1, 0
    s_and_b32 s{sT1}, s2, 0xf9
    s_cmp_eq_u32 s{sT1}, 48
    s_cselect_b32 s{sT0}, 24, s{sT0}
    s_cselect_b32 s{sHasG1}, 1, s{sHasG1}
    s_and_b32 s{sT1}, s{sXCD}, 1
    s_mul_i32 s{sT1}, s{sT1}, 25
    s_add_u32 s{sT0}, s{sT0}, s{sT1}
    s_mul_i32 s{sA}, s{sT0}, 37
    s_lshr_b32 s{sA}, s{sA}, 8
    s_mul_i32 s{sT1}, s{sA}, 7
    s_sub_u32 s{sPH}, s{sT0}, s{sT1}
    s_lshr_b32 s{sFB}, s{sXCD}, 1
    s_mul_i32 s{sFB}, s{sFB}, 7
    s_add_u32 s{sFB}, s{sFB}, s{sPH}
    """)
    if mid: mid()
    a(f"""
    v_mul_u32_u24 v{vDW1}, 3584, v5
    v_add_u32 v{vDW1}, v{vDW1}, v{vDWO}
    v_lshl_add_u32 v{vDW2}, v5, 12, v{vDWO}
    v_mul_u32_u24 v24, 896, v5
    v_add_u32 v{vDWO}, v24, v{vDWO}
    s_mul_i32 s{sD}, s{sG}, {512*3584}
    s_lshl_b32 s{sT0}, s{sFB}, 7
    s_add_u32 s{sD}, s{sD}, s{sT0}
    s_lshl_b32 s{sT1}, s{sGM}, 6
    s_add_u32 s{sB1o}, s{sT0}, s{sT1}
    v_lshl_add_u32 v24, v{vHH}, 10, v{vT3}
    v_xor_b32 v{vT1}, s{sT1}, v24
    v_xor_b32 v{vT1+1}, 64, v{vT1}
    v_add_u32 v{vTH}, 0x10000, v{vT1}
    v_add_u32 v{vTH+1}, 0x10000, v{vT1+1}
    s_lshl_b32 s{sT0}, s{sGN}, 10
    v_add_u32 v{vLN}, s{sT0}, v{vL16}
    v_xor_b32 v{vLN+1}, 0x400, v{vLN}
    s_lshl_b32 s{sL}, s{sA}, 18
    s_lshl_b32 s{sT0}, s{sG}, 16
    s_add_u32 s{sL}, s{sL}, s{sT0}
    s_add_u32 s{sSH1}, s{sPH}, 1
    s_lshl_b32 s{sPH}, s{sSH1}, 13
    s_add_u32 s{sPH}, s{sPH}, s{sL}
    v_lshlrev_b32 v{vPF}, 7, v{vLANE}
    v_add_u32 v{vSW}, s{sRing}, v{vL16}
    v_add_u32 v{vSW+1}, 0x10000, v{vSW}
    s_lshr_b32 s{sFH}, s{sA}, 1
    s_lshl_b32 s{sFH}, s{sFH}, 9
    s_lshl_b32 s{sT0}, s{sG}, 7
    s_add_u32 s{sFH}, s{sFH}, s{sT0}
    s_lshl_b32 s{sFH}, s{sFH}, {FS}
    s_add_u32 s{sFH}, s{sFH}, {FL_H}
    v_bfe_u32 v32, v{vJ}, 1, 3
    v_lshlrev_b32 v32, 4, v32
    v_xor_b32 v32, s{sT1}, v32
    v_lshl_add_u32 v32, v{vJ}, 7, v32
    v_lshl_add_u32 v32, v{vHH}, 3, v32
    s_lshl_b32 s{sT0}, s{sCB}, 13
    s_lshl_b32 s{sT1}, s{sGN}, 12
    s_add_u32 s{sT0}, s{sT0}, s{sT1}
    v_add_u32 v32, s{sT0}, v32
    v_xor_b32 v33, 16, v32
    v_xor_b32 v34, 32, v32
    v_xor_b32 v35, 48, v32
    """)
    assert WS_HT == 0
def g_xread(a):
    lds_wait(a, C_X1, 4)
    lds_wait(a, C_XA, 4)
    for g, v in enumerate((32, 33, 34, 35)): a(f"ds_read_b64 {vr(6+2*g,2)}, v{v} offset:{L_XT}")
    lds_arrive(a, C_ST, nowait=True)

def g_setup2(a):
    srd(a, R_W2, P_W2, 1792 * 4096)
    srd(a, R_WO, P_WO, 448 * 896)
    srd(a, R_OUT, P_OUT, 2048 * 896)
    srd(a, R_B2, P_B2, 2048 * 2)
    a(f"""
    s_mul_i32 s{sDb}, s{sG}, {448*4096}
    s_lshl_b32 s{sT0}, s{sRB}, 7
    s_add_u32 s{sDb}, s{sDb}, s{sT0}
    s_mul_i32 s{sD2}, s{sG}, {112*896}
    s_lshl_b32 s{sT0}, s{sCB}, 7
    s_add_u32 s{sD2}, s{sD2}, s{sT0}
    s_lshl_b32 s{sT0}, s{sGM}, 6
    s_lshl_b32 s{sT1}, s{sGN}, 6
    v_lshl_add_u32 v24, v{vHH}, 9, v{vT3}
    v_xor_b32 v{vT2}, s{sT1}, v24
    v_xor_b32 v{vT2+1}, 64, v{vT2}
    v_xor_b32 v{vT3}, s{sT0}, v24
    v_xor_b32 v{vT3+1}, 64, v{vT3}
    s_lshl_b32 s{sT0}, s{sGM}, 10
    v_add_u32 v{vLM}, s{sT0}, v{vL16}
    v_xor_b32 v{vLM+1}, 0x400, v{vLM}
    s_mul_i32 s{sLb}, s{sCB}, 112
    s_mul_i32 s{sT0}, s{sG}, 28
    s_add_u32 s{sLb}, s{sLb}, s{sT0}
    s_lshl_b32 s{sLb}, s{sLb}, 11
    s_add_u32 s{sLb}, s{sLb}, {WS_U}
    s_lshr_b32 s{sT0}, s{sJ}, 3
    s_add_u32 s{sT0}, s{sT0}, 3
    s_lshl_b32 s{sT0}, s{sT0}, 13
    s_add_u32 s{sPU}, s{sT0}, s{sLb}
    s_lshl_b32 s{sL2}, s{sRB}, 16
    s_lshl_b32 s{sT0}, s{sG}, 14
    s_add_u32 s{sL2}, s{sL2}, s{sT0}
    s_add_u32 s{sL2}, s{sL2}, {WS_O}
    v_mul_u32_u24 v{vOUT}, 896, v{vJ}
    v_lshl_add_u32 v{vOUT}, v{vHH}, 4, v{vOUT}
    s_lshl_b32 s{sT0}, s{sRB}, 1
    s_add_u32 s{sT0}, s{sT0}, s{sGN}
    s_lshl_b32 s{sB2}, s{sT0}, 6
    s_mul_i32 s{sT0}, s{sT0}, {32*896}
    s_lshl_b32 s{sT1}, s{sCB}, 7
    s_add_u32 s{sT0}, s{sT0}, s{sT1}
    s_lshl_b32 s{sT1}, s{sGM}, 6
    s_add_u32 s{sOUT}, s{sT0}, s{sT1}
    v_lshrrev_b32 v{vPF2}, 2, v{vLANE}
    v_and_b32 v24, 3, v{vLANE}
    v_lshlrev_b32 v{vPF2}, 12, v{vPF2}
    v_lshl_add_u32 v{vPF2}, v24, 7, v{vPF2}
    s_mul_i32 s{sT0}, s{sA}, 112
    s_lshl_b32 s{sT1}, s{sFB}, 2
    s_add_u32 s{sT0}, s{sT0}, s{sT1}
    s_lshl_b32 s{sT2}, s{sGM}, 1
    s_add_u32 s{sT0}, s{sT0}, s{sT2}
    s_lshl_b32 s{sT0}, s{sT0}, 11
    s_add_u32 s{sUS}, s{sT0}, {WS_U}
    s_lshl_b32 s{sT0}, s{sA}, 7
    s_add_u32 s{sT0}, s{sT0}, s{sT1}
    s_add_u32 s{sT0}, s{sT0}, s{sG}
    s_lshl_b32 s{sT0}, s{sT0}, 3
    s_lshl_b32 s{sT0}, s{sT0}, {FS}
    s_add_u32 s{sFU}, s{sT0}, {FL_U}
    s_lshl_b32 s{sT0}, s{sCB}, 10
    s_mul_i32 s{sT1}, s{sG}, 224
    s_add_u32 s{sT0}, s{sT0}, s{sT1}
    s_lshl_b32 s{sT0}, s{sT0}, {FS}
    s_add_u32 s{sFUc}, s{sT0}, {FL_U}
    s_lshl_b32 s{sT0}, s{sRB}, 8
    s_lshl_b32 s{sT1}, s{sG}, 6
    s_add_u32 s{sT0}, s{sT0}, s{sT1}
    s_lshl_b32 s{sT0}, s{sT0}, {FS}
    s_add_u32 s{sFOc}, s{sT0}, {FL_O}
    """)
    for i in range(2, 6): a(f"v_add_u32 v{vTH+i}, 0x10000, v{vT1+i}")
    if OPT.ra or OPT.rb:
        a(f"""
        s_lshr_b32 s{sT0}, s{sJ}, 3
        s_mul_i32 s{sT0}, s{sT0}, {OPT.ra}
        s_mul_i32 s{sT1}, s{sXCD}, {OPT.rb}
        s_add_u32 s{sT0}, s{sT0}, s{sT1}
        s_mul_i32 s{sT1}, s{sT0}, 2341
        s_lshr_b32 s{sT1}, s{sT1}, 16
        s_mul_i32 s{sT1}, s{sT1}, 28
        s_sub_u32 s{sT0}, s{sT0}, s{sT1}
        s_mov_b32 s{sLb0}, s{sLb}
        s_add_u32 s{sLbE}, s{sLb}, {28*2048}
        s_mov_b32 s{sDb0}, s{sDb}
        s_add_u32 s{sDbE}, s{sDb}, {28*16*4096}
        s_lshl_b32 s{sT1}, s{sT0}, 11
        s_add_u32 s{sLb}, s{sLb}, s{sT1}
        s_lshl_b32 s{sT1}, s{sT0}, 16
        s_add_u32 s{sDb}, s{sDb}, s{sT1}
        """)
        assert all((x * 2341) >> 16 == x // 28 for x in range(200))
    if OPT.nou: a(f"v_mov_b32 v{vLM}, {OOB}\nv_mov_b32 v{vLM+1}, {OOB}")
    if OPT.now2: a(f"v_mov_b32 v{vDW2}, {OOB}")

L_HB2 = L_WKV
def p1_g(a):
    X, U = 128, 160
    htype = a.label("gh"); pfw = a.label("gpfw")
    a(f"s_sub_u32 s{sG}, s{sW}, 4")
    common_srds(a)
    pf1_addr(a)
    epoch_load(a)
    a(f"s_cmp_ge_u32 s{sCB}, 6\ns_cbranch_scc1 {htype}")
    a("s_barrier")
    rest_dma(a)
    stamp(a, 2)
    get_tag(a)
    g_setup1(a, lambda: (a("s_waitcnt vmcnt(0)"), lds_arrive(a, C_X, nowait=True), stamp(a, 3)))
    lds_wait(a, C_FL, 1)
    a(f"s_branch {pfw}")
    a(f"""
    {htype}:
    s_lshl_b32 s{sT0}, s{sRB}, 1
    s_add_u32 s{sT0}, s{sT0}, s{sNT}
    s_lshl_b32 s{sT1}, s{sNT}, 5
    s_lshl_b32 s{sT2}, s{sG}, 2
    s_add_u32 s{sT1}, s{sT1}, s{sT2}
    v_add_u32 v11, s{sT1}, v7
    v_and_b32 v13, 1, v5
    v_lshlrev_b32 v12, 13, v13
    v_lshl_add_u32 v12, v11, 7, v12
    v_lshl_add_u32 v12, v6, 4, v12
    v_bfe_u32 v11, v11, 1, 3
    v_xor_b32 v11, v11, v6
    v_mul_u32_u24 v14, {HB_STRIDE}, v7
    v_lshl_add_u32 v14, v11, 4, v14
    v_lshl_add_u32 v14, v13, 7, v14
    s_mul_i32 s{sT2}, s{sG}, {4*HB_STRIDE}
    s_add_u32 s{sT2}, s{sT2}, {L_HB2}
    v_add_u32 v14, s{sT2}, v14
    v_lshl_add_u32 v15, v{vHH}, 3, v8
    v_mul_u32_u24 v15, {HB_STRIDE}, v15
    v_add_u32 v15, v15, v9
    s_lshl_b32 s{sT2}, s{sG}, 8
    s_add_u32 s{sT2}, s{sT2}, {L_HB2}
    v_add_u32 v15, s{sT2}, v15
    s_lshl_b32 s{sT2}, s{sG}, 19
    s_lshl_b32 s{sT3}, s{sT0}, 12
    s_add_u32 s{sT2}, s{sT2}, s{sT3}
    s_add_u32 s{sT3}, s{sT2}, {128*2048}
    s_lshl_b32 s{sT4}, s{sG}, 6
    s_add_u32 s{sT4}, s{sT4}, s{sT0}
    s_lshl_b32 s{sT4}, s{sT4}, {3+FS}
    s_add_u32 s{sT4}, s{sT4}, {FL_H}
    v_mov_b32 v17, 0xffff0000
    s_mov_b32 vcc_lo, 0x00ff00ff
    s_mov_b32 vcc_hi, 0x00ff00ff
    """)
    for p in range(2):
        for i in range(4): a(f"v_mov_b32 v{X+16*p+12+i}, 0")
    S = [32, 40]
    for p in range(2): a(f"v_mov_b32 v{S[p]}, 0\nv_mov_b32 v{S[p]+1}, 0")
    a("s_barrier\ns_setprio 3")
    lds_wait(a, C_X1, 4)
    stamp(a, 2)
    for p in range(2):
        for i in range(3): a(f"ds_read_b128 {vr(X+16*p+4*i,4)}, v12 offset:{L_XT + 16384*i + 2048*p}")
        a(f"s_mov_b64 exec, vcc\nds_read_b128 {vr(X+16*p+12,4)}, v12 offset:{L_XT + 16384*3 + 2048*p}\ns_mov_b64 exec, -1")
    for p in range(2):
        for i in range(16):
            if i % 4 == 0: a(f"s_waitcnt lgkmcnt({7-4*p-i//4})")
            a(f"v_dot2c_f32_bf16 v{S[p]}, s{sONES}, v{X+16*p+i}")
            a(f"v_dot2c_f32_bf16 v{S[p]+1}, v{X+16*p+i}, v{X+16*p+i}")
    un = []
    for i in range(32): un += [f"v_lshlrev_b32 v{U+2*i}, 16, v{X+i}", f"v_and_b32 v{U+2*i+1}, v17, v{X+i}"]
    for x in un[:3]: a(x)
    def both(txt):
        for line in txt.strip().split("\n"):
            for p in range(2): a(line.strip().format(s=S[p], q=S[p]+1, t=S[p]+2, r=S[p]+4, r2=S[p]+5, m=S[p]+6))
    for mode in (QP1, QP2, RHM, RM):
        both("v_add_f32_dpp v{s}, v{s}, v{s} %s row_mask:0xf bank_mask:0xf\nv_add_f32_dpp v{q}, v{q}, v{q} %s row_mask:0xf bank_mask:0xf" % (mode, mode))
    rstd = """
    v_and_b32 v{t}, v17, v{t}
    v_add_f32 v{t}, %#x, v{t}
    v_cvt_pk_bf16_f32 v{t}, v{t}, v{t}
    v_and_b32 v{t}, v17, v{t}
    v_sqrt_f32 v{t}, v{t}
    v_cvt_pk_bf16_f32 v{t}, v{t}, v{t}
    v_and_b32 v{t}, v17, v{t}
    v_rcp_f32 v{%s}, v{t}
    """
    both("""
    v_mul_f32 v{s}, %s, v{s}
    v_mul_f32 v{q}, %s, v{q}
    v_fma_f32 v{q}, -v{s}, v{s}, v{q}
    v_max_f32 v{q}, 0, v{q}
    v_cvt_pk_bf16_f32 v{t}, v{s}, v{q}
    v_lshlrev_b32 v{m}, 16, v{t}
    """ % (f32(1/448), f32(1/448)))
    both(rstd % (EPS, "r"))
    both("""
    v_sub_f32 v{s}, v{s}, v{m}
    v_mul_f32 v{s}, v{s}, v{r}
    v_mul_f32 v{q}, v{q}, v{r}
    v_mul_f32 v{q}, v{q}, v{r}
    v_cvt_pk_bf16_f32 v{t}, v{s}, v{q}
    v_lshlrev_b32 v{s}, 16, v{t}
    v_fma_f32 v{m}, v{m}, v{r}, v{s}
    """)
    both(rstd % (EPS, "r2"))
    for x in un[3:]: a(x)
    both("v_mul_f32 v{m}, v{m}, v{r2}\nv_mul_f32 v{r}, v{r}, v{r2}")
    for p in range(2):
        for i in range(16):
            if i == 12: a("s_mov_b64 exec, vcc")
            u = U + 32 * p + 2 * i
            a(f"""
            v_pk_fma_f32 {vr(u,2)}, {vr(u,2)}, {vr(S[p]+4,2)}, {vr(S[p]+6,2)} op_sel_hi:[1,0,0] neg_lo:[0,0,1] neg_hi:[0,0,1]
            v_cvt_pk_bf16_f32 v{X+16*p+i}, v{u}, v{u+1}
            """)
            if i % 4 == 3: a(f"ds_write_b128 v14, {vr(X+16*p+i-3,4)} offset:{256*(i//4) + 16*HB_STRIDE*p}")
        a("s_mov_b64 exec, -1")
    stamp(a, 3)
    lds_arrive(a, C_H, nowait=True)
    lds_wait(a, C_H, 4)
    n = 0
    for p in range(2):
        for f in range(4):
            for x in range(2):
                if n == 15: a("s_waitcnt lgkmcnt(14)")
                a(f"ds_read_b64_tr_b16 {vr(U+16*p+4*f+2*x,2)}, v15 offset:{x*4*HB_STRIDE + f*64 + 16*HB_STRIDE*p}"); n += 1
    for p in range(2):
        for f in range(4):
            a(f"s_waitcnt lgkmcnt({14-8*p-2*f})")
            a(f"buffer_store_dwordx4 {vr(U+16*p+4*f,4)}, v{vL16}, {sr(R_WS,4)}, s{sT2 + (f>>1)} offen offset:{1024*(f&1) + 2048*p} sc1")
    lds_arrive(a, C_FL, nowait=True)
    stamp(a, 4)
    g_setup1(a)
    get_tag(a)
    set_flag(a, sT4)
    a("s_setprio 0")
    stamp(a, 5)
    lds_wait(a, C_FL, 4)
    lds_wait(a, C_ISS, 4)
    a(f"{pfw}:")

sK, sKF, sKP = 94, 95, 96
AQ, AO, AS, AP, AKV = 32, 64, 128, 160, 176
def att_setup(a):
    a(f"""
    s_add_u32 s{R_KV}, s{P_WS}, {WS_KV}
    s_addc_u32 s{R_KV+1}, s{P_WS+1}, 0
    s_add_u32 s{sT0}, s{sW}, 1
    s_lshl_b32 s{R_KV+2}, s{sT0}, 16
    s_mov_b32 s{R_KV+3}, 0x20000
    v_lshlrev_b32 v5, 7, v{vLANE}
    v_lshlrev_b32 v25, {3+FS}, v{vJ}
    s_lshr_b32 s{sKP}, s{sJ}, 1
    s_and_b32 s{sKP}, s{sKP}, 4
    s_add_u32 s{sKP}, s{sKP}, s{sCB}
    s_lshl_b32 s{sKP}, s{sKP}, 13
    s_lshl_b32 s{sT0}, s{sW}, 16
    s_add_u32 s{sKP}, s{sKP}, s{sT0}
    s_and_b32 s{sT0}, s{sJ}, 0x14
    s_cmp_lg_u32 s{sT0}, 0
    s_cselect_b32 s{sKP}, {OOB}, s{sKP}
    s_lshl_b32 s{sKF}, s{sW}, 8
    s_lshl_b32 s{sKF}, s{sKF}, {FS}
    s_add_u32 s{sKF}, s{sKF}, {FL_KV}
    """)
def kvload(a, buf):
    for j in range(4):
        a(f"buffer_load_dwordx4 {vr(AKV+16*buf+4*j,4)}, v{vL16}, {sr(R_KV,4)}, s{sK} offen offset:{1024*j} sc1")
    a(f"s_add_u32 s{sK}, s{sK}, 4096")
def first_kv(a):
    a(f"s_lshl_b32 s{sK}, s{sW}, 16")
    kvload(a, 0)
    a(f"buffer_load_dword v253, v5, {sr(R_KV,4)}, s{sKP} offen sc1")
    kvload(a, 1); kvload(a, 2)

def attention(a, done):
    Q, O, S, P, KV = AQ, AO, AS, AP, AKV
    NM = 20
    sIt, sRetry, sOS, sOF = sT1, sT3, 84, 85
    vMW, vRW, vMR, vRR = 8, 12, 15, 16
    go = a.label("att_go"); mloop = a.label("att_mloop"); loop = a.label("att_loop"); ok = a.label("att_ok"); havekv = a.label("att_havekv")
    a(f"s_mov_b32 s{sRetry}, 0\ns_cmp_eq_u32 s{sKF}, 0\ns_cbranch_scc1 {havekv}")
    lds_wait(a, C_PRE, 4)
    stamp(a, 9)
    poll(a, sKF, 32)
    stamp(a, 10)
    first_kv(a)
    a(f"{havekv}:")
    for i in range(1, 4):
        a(f"""
        s_add_u32 s{sT0}, s{sW}, {i}
        s_and_b32 s{sT0}, s{sT0}, 3
        s_lshl_b32 s{sT0}, s{sT0}, 11
        s_add_u32 s{sT0}, s{sT0}, {L_QS}
        v_add_u32 v{16+i}, s{sT0}, v{vL16}
        """)
    lds_wait(a, C_Q, 4)
    for i in range(1, 4):
        a(f"ds_read_b128 {vr(Q+8*i,4)}, v{16+i}\nds_read_b128 {vr(Q+8*i+4,4)}, v{16+i} offset:1024")
    for r in range(12, 64): a(f"v_mov_b32 v{O+r}, 0")
    for i in range(4):
        a(f"""
        s_add_u32 s{sT0}, s{sW}, {i+1}
        s_and_b32 s{sT0}, s{sT0}, 3
        s_lshl_b32 s{sT2}, s{sT0}, 9
        s_add_u32 s{sT2}, s{sT2}, {L_MX + 128*i}
        v_lshl_add_u32 v{vMW+i}, v{vJ}, 2, s{sT2}
        s_mul_i32 s{sT2}, s{sT0}, 12288
        s_add_u32 s{sT2}, s{sT2}, {L_RED + 4096*(i%3)}
        v_add_u32 v{vRW+i if i < 3 else vRR}, s{sT2}, v{vL16}
        """)
    a(f"""
    v_subrev_u32 v{vMR}, 384, v{vMW+3}
    s_add_u32 s{sT0}, s{sW}, 3
    s_and_b32 s{sT2}, s{sT0}, 1
    s_lshl_b32 s{sOS}, s{sCB}, 1
    s_add_u32 s{sOS}, s{sOS}, s{sT2}
    s_lshl_b32 s{sOS}, s{sOS}, 12
    s_lshl_b32 s{sT2}, s{sRB}, 16
    s_add_u32 s{sOS}, s{sOS}, s{sT2}
    s_and_b32 s{sT2}, s{sT0}, 2
    s_lshl_b32 s{sT2}, s{sT2}, 9
    s_add_u32 s{sOS}, s{sOS}, s{sT2}
    s_add_u32 s{sOS}, s{sOS}, {WS_O}
    s_lshl_b32 s{sOF}, s{sRB}, 3
    s_add_u32 s{sOF}, s{sOF}, s{sCB}
    s_lshl_b32 s{sOF}, s{sOF}, 2
    s_add_u32 s{sOF}, s{sOF}, s{sW}
    s_lshl_b32 s{sOF}, s{sOF}, {3+FS}
    s_add_u32 s{sOF}, s{sOF}, {FL_O}
    s_mov_b32 s{sT4}, 0x71800000
    """)
    TMP = [S, S + 16, KV + 48, P]
    def scan_mf(kreg):
        for i in range(4):
            a(f"{MF} {vr(TMP[i],16)}, {vr(kreg,4)}, {vr(Q+8*i,4)}, 0")
            a(f"{MF} {vr(TMP[i],16)}, {vr(kreg+4,4)}, {vr(Q+8*i+4,4)}, {vr(TMP[i],16)}")
    a("s_waitcnt vmcnt(11) lgkmcnt(0)")
    stamp(a, 11)
    scan_mf(KV)
    a(f"s_nop 4\ns_mov_b64 exec, {sr(sHI,2)}")
    for i in range(4):
        t = TMP[i]
        a(f"v_max3_f32 v{NM+i}, v{t}, v{t+1}, v{t+2}")
        for j in range(3, 15, 2): a(f"v_max3_f32 v{NM+i}, v{t+j}, v{t+j+1}, v{NM+i}")
        a(f"""
        v_max_f32 v{NM+i}, v{t+15}, v{NM+i}
        v_cvt_pk_bf16_f32 v{Q+8*i+6}, -v{NM+i}, 0
        v_lshlrev_b32 v{NM+i}, 16, v{Q+8*i+6}
        """)
    a(f"{go}:")
    for i in range(4): a(f"ds_write_b32 v{vMW+i}, v{NM+i}")
    a("s_mov_b64 exec, -1")
    a(f"{MF} {vr(S,16)}, {vr(KV,4)}, {vr(Q,4)}, 0")
    a(f"{MF} {vr(S,16)}, {vr(KV+4,4)}, {vr(Q+4,4)}, {vr(S,16)}")
    for r in range(8): a(f"v_mov_b32 v{KV+48+8+r}, 0")
    for r in range(8): a(f"v_mov_b32 v{P+8+r}, 0")
    a(f"v_mov_b32 v{S+30}, 0\nv_mov_b32 v{S+31}, 0")
    def smf(q, b, kb):
        d = vr(S + 16 * b, 16)
        return [f"{MF} {d}, {vr(KV+16*kb,4)}, {vr(Q+8*q,4)}, 0", f"{MF} {d}, {vr(KV+16*kb+4,4)}, {vr(Q+8*q+4,4)}, {d}"]
    def pv(q, b, kb):
        d = vr(O + 16 * q, 16)
        return [f"{MF} {d}, {vr(KV+16*kb+8,4)}, {vr(P+8*b,4)}, {d}", f"{MF} {d}, {vr(KV+16*kb+12,4)}, {vr(P+8*b+4,4)}, {d}"]
    def pk(b, i): return f"v_cvt_pk_bf16_f32 v{P+8*b+i}, v{S+16*b+2*i}, v{S+16*b+2*i+1}"
    def owrite(i): return ['s_nop 0'] * 4 if OPT.nocomb else [f"ds_write_b128 v{vRW+i}, {vr(O+16*i+4*g,4)} offset:{1024*g}" for g in range(4)]
    a(f"s_mov_b32 s{sIt}, {OPT.attit-1}\ns_waitcnt vmcnt(8)")
    stamp(a, 12)
    if OPT.prio_ld: a(f"s_setprio {OPT.prio_a}")
    def body(lastit):
        for n in range(16):
            T, q, b = n // 4, n % 4, n % 2
            if lastit and n == 14: lds_wait(a, C_R1D, 4)
            va = []
            for i in range(8):
                r = S + 16 * b + 2 * i
                va += [f"v_exp_f32 v{r}, v{r}", f"v_exp_f32 v{r+1}, v{r+1}", pk(b, i - 1) if i else pk(1 - b, 7)]
            s = smf((q + 1) % 4, 1 - b, ((n + 1) // 4) % 4)
            p = pv((q - 1) % 4, 1 - b, ((n - 1) // 4) % 4)
            pos = [[3, 9, 15, 21], [3, 7, 15, 19]][OPT.order]
            ins = {pos[0]: [s[0]], pos[1]: [s[1]], pos[2]: [p[0]], pos[3]: [p[1]]}
            if lastit and n == 15: ins = {pos[0]: [p[0]], pos[1]: [p[1]]}
            if q == 3 and not (lastit and T == 3):
                ins[1] = [f"s_waitcnt vmcnt({7 if not lastit or T == 0 else 4 if T == 1 else 0})"]
            if not lastit or T == 0:
                buf = (T - 1) % 4
                ins[11] = [f"buffer_load_dwordx4 {vr(KV+16*buf+4*q,4)}, v{vL16}, {sr(R_KV,4)}, s{sK} offen offset:{1024*q} sc1"]
                if OPT.prio_ld:
                    ins[10] = [f"s_setprio {OPT.prio_ld}"]
                    ins[13] = [f"s_setprio {OPT.prio_a}"]
                if q == 3: ins[14] = [f"s_add_u32 s{sK}, s{sK}, 4096"]
            if n == 15 and not lastit:
                ins[17] = [f"s_sub_u32 s{sIt}, s{sIt}, 1"]
                ins[22] = [f"s_cmp_lg_u32 s{sIt}, 0"]
            if lastit and n == 14:
                for g, x in enumerate(owrite(0)): ins.setdefault([10, 13, 17, 22][g], []).append(x)
            if lastit and n == 15:
                for g, x in enumerate(owrite(1)): ins.setdefault([8, 10, 13, 16][g], []).append(x)
                for g, x in enumerate(owrite(2)[:2]): ins.setdefault([20, 22][g], []).append(x)
            for i, x in enumerate(va):
                for y in ins.get(i, []): a(y)
                a(x)
    if OPT.attit > 1:
        a(".p2align 6")
        a(f"{loop}:")
        body(False)
        a(f"s_cbranch_scc1 {loop}")
    body(True)
    if OPT.prio_ld: a(f"s_setprio {OPT.prio_ld}")
    a(pk(1, 7))
    for x in owrite(2)[2:]: a(x)
    for x in pv(3, 1, 3): a(x)
    stamp(a, 13)
    a(f"""
    v_add_f32 v17, v{O+12}, v{O+28}
    v_add_f32 v17, v17, v{O+44}
    s_nop 9
    v_add_f32 v17, v17, v{O+60}
    v_cmp_nlt_f32_e64 vcc, v17, s{sT4}
    s_and_b64 vcc, vcc, {sr(sHI,2)}
    s_cbranch_scc0 {ok}
    s_cmp_lg_u32 s{sRetry}, 0
    s_cbranch_scc1 {ok}
    s_mov_b32 s{sRetry}, 1
    s_waitcnt lgkmcnt(0)
    s_mov_b64 exec, {sr(sHI,2)}
    """)
    for i in range(4): a(f"v_mov_b32 v{Q+8*i+6}, 0\nv_mov_b32 v{Q+8*i+7}, 0")
    a(f"s_mov_b64 exec, -1\ns_lshl_b32 s{sK}, s{sW}, 16\ns_mov_b32 s{sIt}, 16")
    for r in range(64): a(f"v_mov_b32 v{O+r}, 0")
    for i in range(4): a(f"v_mov_b32 v{NM+i}, 0xff800000")
    a(f"""
    {mloop}:
    buffer_load_dwordx4 {vr(KV,4)}, v{vL16}, {sr(R_KV,4)}, s{sK} offen sc1
    buffer_load_dwordx4 {vr(KV+4,4)}, v{vL16}, {sr(R_KV,4)}, s{sK} offen offset:1024 sc1
    s_add_u32 s{sK}, s{sK}, 4096
    s_waitcnt vmcnt(0)
    """)
    scan_mf(KV)
    a("s_nop 11")
    for i in range(4):
        for j in range(8): a(f"v_max3_f32 v{NM+i}, v{TMP[i]+2*j}, v{TMP[i]+2*j+1}, v{NM+i}")
    a(f"""
    s_sub_u32 s{sIt}, s{sIt}, 1
    s_cmp_lg_u32 s{sIt}, 0
    s_cbranch_scc1 {mloop}
    """)
    first_kv(a)
    for i in range(4): a(f"v_mov_b32 v{S+i}, v{NM+i}")
    a("s_nop 1")
    for i in range(4): a(f"v_permlane32_swap_b32 v{S+i}, v{NM+i}")
    for i in range(4): a(f"v_max_f32 v{NM+i}, v{S+i}, v{NM+i}")
    a(f"s_mov_b64 exec, {sr(sHI,2)}")
    for i in range(4):
        a(f"""
        v_sub_f32 v{NM+i}, 0, v{NM+i}
        v_cvt_pk_bf16_f32 v17, v{NM+i}, 0
        v_lshlrev_b32 v18, 16, v17
        v_sub_f32 v18, v{NM+i}, v18
        v_cvt_pk_bf16_f32 v19, v18, 0
        v_lshl_or_b32 v{Q+8*i+6}, v19, 16, v17
        v_lshlrev_b32 v19, 16, v19
        v_sub_f32 v18, v18, v19
        v_cvt_pk_bf16_f32 v{Q+8*i+7}, v18, 0
        """)
    a(f"s_waitcnt vmcnt(11)\ns_branch {go}\n{ok}:")
    lds_arrive(a, C_ATT, nowait=True)
    if not OPT.nocomb: lds_wait(a, C_ATT, 4)
    stamp(a, 16)
    OW = O + 48
    if OPT.nocomb: a(f"v_mov_b32 v17, v{OW+12}\nv_mov_b32 v18, v{OW+12}\ns_nop 1\nv_permlane32_swap_b32 v17, v18\nv_rcp_f32 v18, v18\ns_branch nocomb")
    for i in range(4): a(f"ds_read_b32 v{NM+i}, v{vMR} offset:{128*i}")
    for i in range(3):
        for g in range(4):
            if i == 2 and g == 3: a("s_waitcnt lgkmcnt(11)")
            a(f"ds_read_b128 {vr(O+16*i+4*g,4)}, v{vRR} offset:{4096*i+1024*g}")
    a(f"""
    v_min3_f32 v17, v{NM}, v{NM+1}, v{NM+2}
    v_min_f32 v17, v17, v{NM+3}
    """)
    for i in (3, 0, 1, 2): a(f"v_sub_f32 v{NM+i}, v17, v{NM+i}")
    for i in (3, 0, 1, 2): a(f"v_exp_f32 v{NM+i}, v{NM+i}")
    for r in range(16): a(f"v_mul_f32 v{OW+r}, v{NM+3}, v{OW+r}")
    for i in range(3):
        a(f"s_waitcnt lgkmcnt({4*(2-i)})")
        R = [12] + [r for r in range(16) if r != 12] if i == 2 else range(16)
        for n, r in enumerate(R):
            a(f"v_fmac_f32 v{OW+r}, v{NM+i}, v{O+16*i+r}")
            if i == 2 and n == 0: a(f"v_mov_b32 v17, v{OW+12}\nv_mov_b32 v18, v{OW+12}")
            if i == 2 and n == 2: a("v_permlane32_swap_b32 v17, v18")
            if i == 2 and n == 3: a("v_rcp_f32 v18, v18")
    a("nocomb:")
    for h in range(2):
        for r in range(8 * h, 8 * h + 8): a(f"v_mul_f32 v{OW+r}, v18, v{OW+r}")
        for i in range(4 * h, 4 * h + 4): a(f"v_cvt_pk_bf16_f32 v{O+i}, v{OW+2*i}, v{OW+2*i+1}")
        if h: a(f"s_mov_b64 exec, {sr(sHI,2)}\nv_mov_b32 v{O+6}, 0\nv_mov_b32 v{O+7}, 0\ns_mov_b64 exec, -1")
        a(f"buffer_store_dwordx4 {vr(O+4*h,4)}, v{vL16}, {sr(R_WS,4)}, s{sOS} offen offset:{2048*h} sc1")
    stamp(a, 17)
    set_flag(a, sOF)
    a(f"s_branch {done}")

class VM:
    def __init__(self): self.q = []
    def issue(self, tag):
        if OPT.dropw and tag[0] == 'd' and tag[1] >= OPT.dropw: return
        self.q.append(tag)
    def wait(self, tags):
        idx = [i for i, t in enumerate(self.q) if t in tags]
        if not idx: return None
        n = len(self.q) - 1 - max(idx)
        assert n <= 63
        self.q = self.q[max(idx) + 1:]
        return n

ACC, AF, BF, DH, SG = 64, 32, 128, 8, 192
def reduce4(a, cnt, red, st0, st1, h0=None, h1=None, h2=None):
    base, stride, off = red
    stamp(a, st0)
    if h0: h0()
    for i in range(4):
        a(f"""
        s_xor_b32 s{sT0}, s{sG}, {i}
        s_mul_i32 s{sT1}, s{sT0}, {stride}
        s_add_u32 s{sT1}, s{sT1}, {base}
        v_add_u32 v{24+i}, s{sT1}, v{vL16}
        """)
    for i in range(1, 4):
        for g in range(4): a(f"ds_write_b128 v24, {vr(ACC+16*i+4*g,4)} offset:{off(4*(i-1)+g)}")
    lds_arrive(a, cnt, nowait=True)
    if h1: h1()
    lds_wait(a, cnt, 4)
    stamp(a, st1)
    for i in range(1, 4):
        for g in range(4): a(f"ds_read_b128 {vr(ACC+16*i+4*g,4)}, v{24+i} offset:{off(4*(i-1)+g)}")
    if h2: h2()
    for i in range(1, 4):
        a(f"s_waitcnt lgkmcnt({4*(3-i)})")
        for r in range(16): a(f"v_add_f32 v{ACC+r}, v{ACC+r}, v{ACC+16*i+r}")

def gpath(a, done):
    global DH, SG
    DH = OPT.dh; SG = BF + 8 * DH
    assert SG + 8 * max(OPT.nsg, OPT.nsg2) <= 240
    vm = VM()
    N1, N2, N3 = 32, 60, 68
    nsg = OPT.nsg
    staged = {OPT.pre0 + i: i for i in range(nsg)}
    nsg2 = OPT.nsg2
    staged.update({N1 + OPT.pre + i: i for i in range(nsg2)})
    def wsrc(k, h):
        if k < N1: return vDW1, R_W1, sD, 8 * 3584
        if k < N2: return vDW2, R_W2, sDb, 8 * 4096
        return vDWO, R_WO, sD2, (4 if ((k - N2) & 1 and h) else 8) * 896
    rot = OPT.ra or OPT.rb
    def wadv(k, h):
        v, R, sd, inc = wsrc(k, h)
        t = f"s_add_u32 s{sd}, s{sd}, {inc}"
        if rot and N1 <= k < N2 and h and k & 1: t += f"\ns_cmp_eq_u32 s{sd}, s{sDbE}\ns_cselect_b32 s{sd}, s{sDb0}, s{sd}"
        return t
    def dma(k):
        out = []
        for h in range(2):
            v, R, sd, inc = wsrc(k, h)
            out.append((f"s_add_u32 m0, s{sRing}, {slotp(k)*8192 + h*1024}",
                        f"buffer_load_dwordx4 v{v}, {sr(R,4)}, s{sd} offen lds" if not (OPT.dropw and k >= OPT.dropw) else "s_nop 0", wadv(k, h)))
        return out
    state = {'nd': 0}
    def prefill(upto):
        while state['nd'] < upto:
            k = state['nd']; state['nd'] += 1
            if k in staged:
                for h in range(2):
                    v, R, sd, inc = wsrc(k, h)
                    a(f"buffer_load_dwordx4 {vr(SG+8*staged[k]+4*h,4)}, v{v}, {sr(R,4)}, s{sd} offen")
                    a(wadv(k, h)); vm.issue(('s', k))
            else:
                for m, l, adv in dma(k): a(m); a(adv.replace("s_add_u32", "s_nop 0 ;") if False else "s_nop 0"); a(l); a(adv); vm.issue(('d', k))
    def swrite(k):
        off = slotp(k) * 8192; v = vSW
        if off >= 65536: off -= 65536; v += 1
        return [f"ds_write_b128 v{v}, {vr(SG+8*staged[k]+4*h,4)} offset:{off+1024*h}" for h in range(2)]
    def breg(k): return SG + 8 * (k - N2) if (k >= N2 and OPT.odeep) else BF + 8 * (k % DH)
    def ld(k):
        r = breg(k)
        v, sl = (vLN, sL) if k < N1 else (vLM, sLb) if k < N2 else (vLN, sL2)
        off = 2048 * (k & 1)
        o = [f"buffer_load_dwordx4 {vr(r,4)}, v{v}, {sr(R_WS,4)}, s{sl} offen offset:{off} sc1",
             f"buffer_load_dwordx4 {vr(r+4,4)}, v{v+1}, {sr(R_WS,4)}, s{sl} offen offset:{off} sc1"]
        adv = f"s_add_u32 s{sl}, s{sl}, 4096"
        if rot and N1 <= k < N2: adv += f"\ns_cmp_eq_u32 s{sl}, s{sLbE}\ns_cselect_b32 s{sl}, s{sLb0}, s{sl}"
        return o, (adv if k & 1 else None)
    def ld_now(k):
        o, adv = ld(k)
        for x in o: a(x); vm.issue(('l', k))
        if adv: a(adv)
    def tr(k):
        b0, xo = (vT1, 512) if k < N1 else (vT2, 1024) if k < N2 else (vT3, 1024)
        r = AF + 8 * (k % 2); off = slotp(k) * 8192
        if off >= 65536: off -= 65536; b0 += vTH - vT1
        return [f"ds_read_b64_tr_b16 {vr(r,2)}, v{b0} offset:{off}", f"ds_read_b64_tr_b16 {vr(r+2,2)}, v{b0} offset:{off+xo}",
                f"ds_read_b64_tr_b16 {vr(r+4,2)}, v{b0+1} offset:{off}", f"ds_read_b64_tr_b16 {vr(r+6,2)}, v{b0+1} offset:{off+xo}"]
    state['nl'] = 0
    def b2load(): a(f"v_lshlrev_b32 v23, 1, v{vJ}\nbuffer_load_ushort v5, v23, {sr(R_B2,4)}, s{sB2} offen")
    def init2():
        a("v_lshlrev_b32 v5, 16, v5")
        for i in range(8): a(f"v_lshlrev_b32 v{ACC+2*i}, 16, v{6+i}\nv_and_b32 v{ACC+2*i+1}, 0xffff0000, v{6+i}")
        for r in range(16): a(f"v_add_f32 v{ACC+r}, v5, v{ACC+r}")
        a(f"v_min_u32 v26, 27, v{vLANE}\nv_lshlrev_b32 v26, {3+FS}, v26\nv_min_u32 v27, 7, v{vLANE}\nv_lshlrev_b32 v27, {3+FS}, v27")
    def free(kd, k):
        if kd >= OPT.ke and k < OPT.gatek and slotp(kd) < 8: return False
        prev = [j for j in range(kd) if slotp(j) == slotp(kd)]
        return not prev or prev[-1] <= k - 1
    def begin(lo, nld, pfi=None, after=None):
        state['nl'] = lo
        for k in range(lo, lo + nld):
            ld_now(k); state['nl'] += 1
            if pfi and k == lo + 1: a(pfi); vm.issue('pf')
        if after: after()
        n = vm.wait({('d', lo)})
        if n is not None: a(f"s_waitcnt vmcnt({n})")
        for x in tr(lo): a(x)
    def run(lo, hi, last, dlimit, llimit, first=None, hooks={}):
        dh = OPT.dh
        for k in range(lo, hi):
            need = {('l', k)}
            if k + 1 < last: need.add(('d', k + 1))
            if k + 3 in staged: need.add(('s', k + 3))
            need |= hooks.get(('need', k), set())
            n = vm.wait(need)
            a(f"s_waitcnt vmcnt({n}) lgkmcnt(0)" if n is not None else "s_waitcnt lgkmcnt(0)")
            if k in hooks: hooks[k]()
            if OPT.fine and k % 4 == 0 and OPT.stamps == 1 and 0 <= k // 4 - OPT.fine0 < 15: stamp(a, 48 + k // 4 - OPT.fine0)
            l = AF + 8 * (k % 2); d = breg(k)
            lds_is_a = not (N1 <= k < N2)
            mf = []
            for i in range(4):
                mi, ni = i >> 1, i & 1
                A, B = (vr(l + 4 * mi, 4), vr(d + 4 * ni, 4)) if lds_is_a else (vr(d + 4 * mi, 4), vr(l + 4 * ni, 4))
                c = "0" if k == first and i else vr(ACC + 16 * i, 16)
                mf.append(f"{MF} {vr(ACC+16*i,16)}, {A}, {B}, {c}" if not OPT.nogm else "s_nop 0")
            t = tr(k + 1) if k + 1 < last else []
            sw = swrite(k + 3) if k + 3 in staged else []
            assert not sw or free(k + 3, k)
            kd = state['nd']; dm = []
            if kd < dlimit and kd <= k + (OPT.lw if k < N1 else OPT.lw2) and free(kd, k) and kd not in staged:
                assert kd >= k + 2
                dm = dma(kd); state['nd'] += 1
            lo_, adv = ([], None)
            kl = state['nl']
            if kl < llimit and (kl <= k + dh - 1 or (kl >= N2 and OPT.odeep)): lo_, adv = ld(kl); state['nl'] += 1
            a(mf[0])
            for x in t: a(x)
            if dm: a(dm[0][0])
            a(mf[1])
            if lo_: a(lo_[0]); vm.issue(('l', kl))
            if lo_: a(lo_[1]); vm.issue(('l', kl))
            if adv: a(adv)
            if dm: a(dm[0][1]); vm.issue(('d', kd)); a(dm[0][2]); a(dm[1][0])
            a(mf[2])
            if dm: a(dm[1][1]); vm.issue(('d', kd)); a(dm[1][2])
            for x in sw: a(x)
            a(mf[3])
            kd = state['nd']
            if kd < dlimit and kd <= k + (OPT.lw if k < N1 else OPT.lw2) and free(kd, k) and kd not in staged: prefill(kd + 1)
            kl = state['nl']
            if kl < llimit and (kl <= k + dh - 1 or (kl >= N2 and OPT.odeep)): ld_now(kl); state['nl'] += 1
    def flagload(soff, n):
        vo = {16: 28, 28: 26, 8: 27}[n]
        if n == 16: a(f"v_min_u32 v28, {n-1}, v{vLANE}\nv_lshlrev_b32 v28, {3+FS}, v28")
        a(f"buffer_load_dwordx2 v[30:31], v{vo}, {sr(R_WS,4)}, s{soff} offen sc1"); vm.issue('fl')
    def flagcheck(okl, pr=0):
        a(f"s_setprio 3\nv_cmp_ne_u64 vcc, {sr(sTAG,2)}, v[30:31]\ns_setprio {pr}\ns_cbranch_vccz {okl}")
    def fill_poll(upA, upB, soff, n, mid=None):
        prefill(upA)
        flagload(soff, n)
        prefill(upB)
        if mid: mid()
        w = vm.wait({'fl'})
        a(f"s_waitcnt vmcnt({w})")
        okl = a.label("flok")
        flagcheck(okl)
        poll(a, soff, n)
        a(f"{okl}:")
    nog1 = a.label("nog1"); join = a.label("gjoin")
    g_xread(a)
    a(f"s_cmp_eq_u32 s{sHasG1}, 0\ns_cbranch_scc1 {nog1}")
    a(f"s_setprio {OPT.prio_g}")
    stamp(a, 8)
    if OPT.nodma: a(f"s_mov_b32 s{R_W1+2}, 0")
    a(f"v_lshlrev_b32 v23, 3, v{vHH}")
    for g in range(4): a(f"buffer_load_dwordx2 {vr(14+2*g,2)}, v23, {sr(R_B1,4)}, s{sB1o} offen offset:{16*g}")
    for g in range(4): vm.issue('b')
    prefill(OPT.a1)
    lds_arrive(a, C_PRE, nowait=True)
    stamp(a, 9)
    fill_poll(OPT.a1, OPT.b1, sFH, 16, lambda: (g_setup2(a), b2load(), vm.issue('b2')))
    stamp(a, 10)
    def init1():
        for i in range(8): a(f"v_lshlrev_b32 v{ACC+2*i}, 16, v{14+i}\nv_and_b32 v{ACC+2*i+1}, 0xffff0000, v{14+i}")
    def cpf(sid, val, saddr):
        sk = a.label("cpf")
        a(f"s_cmp_lg_u32 s{sid}, {val}\ns_cbranch_scc1 {sk}\nbuffer_load_dword v253, v{vPF}, {sr(R_WS,4)}, s{saddr} offen sc1\n{sk}:")
    def mkhooks(hl):
        d = {}
        for k, f in hl: d.setdefault(k, []).append(f)
        return {k: (lambda fs=fs: [f() for f in fs]) for k, fs in d.items()}
    a('s_setprio 3')
    begin(0, OPT.nl0, None, init1)
    a(f's_setprio {OPT.prio_g}')
    hl = [(0, lambda: stamp(a, 11)), (16, lambda: stamp(a, 12)), (OPT.gatek, lambda: (a('s_setprio 3'), lds_wait(a, C_Q, 4), a(f's_setprio {OPT.prio_g}')))]
    if OPT.kp: hl.append((OPT.kp, lambda: a(f's_setprio {OPT.prio_g1b}')))
    for b in range(2, 8): hl.append((max(0, 4 * b - OPT.pfd), lambda b=b: cpf(sSH1, b, sPH)))
    for i, k in enumerate(range(OPT.b1, OPT.pre0 + nsg)): hl.append((i, lambda k=k: prefill(k + 1)))
    run(0, N1, N1, N1, N1, first=0, hooks=mkhooks(hl))
    a(f"s_setprio {OPT.prio_e}")
    reduce4(a, C_R1, (L_RED, 12288, lambda i: 1024 * i), 13, 16,
            lambda: prefill(N1 + OPT.e0), lambda: prefill(N1 + OPT.e1), lambda: prefill(N1 + OPT.e2))
    lds_arrive(a, C_R1D, nowait=True)
    k = 2 * math.sqrt(2 / math.pi) * math.log2(math.e)
    a(f"s_mov_b32 s{sT0}, {f32(-k*0.044715)}\nv_mov_b32 v18, {f32(-k)}")
    T = ACC + 16
    for h in range(2):
        R = range(8 * h, 8 * h + 8)
        for r in R: a(f"v_mul_f32 v{T+r}, v{ACC+r}, v{ACC+r}")
        for r in R: a(f"v_fma_f32 v{T+r}, v{T+r}, s{sT0}, v18")
        for r in R: a(f"v_mul_f32 v{T+r}, v{T+r}, v{ACC+r}")
        for r in R: a(f"v_exp_f32 v{T+r}, v{T+r}")
        for r in R: a(f"v_add_f32 v{T+r}, 1.0, v{T+r}")
        for r in R: a(f"v_rcp_f32 v{T+r}, v{T+r}")
        for r in R: a(f"v_mul_f32 v{T+r}, v{T+r}, v{ACC+r}")
        for i in range(4 * h, 4 * h + 4): a(f"v_cvt_pk_bf16_f32 v{T+16+i}, v{T+2*i}, v{T+2*i+1}")
        a(f"buffer_store_dwordx4 {vr(T+16+4*h,4)}, v{vLN}, {sr(R_WS,4)}, s{sUS} offen offset:{2048*h} sc1")
    stamp(a, 17)
    init2()
    set_flag(a, sFU)
    stamp(a, 27)
    a(f"s_branch {join}\n{nog1}:")
    lds_arrive(a, C_R1D, nowait=True)
    lds_arrive(a, C_PRE, nowait=True)
    g_setup2(a)
    b2load()
    a(f"""
    s_lshr_b32 s{sT0}, s{sJ}, 3
    s_lshl_b32 s{sT0}, s{sT0}, 1
    s_and_b32 s{sT1}, s{sCB}, 1
    s_add_u32 s{sT0}, s{sT0}, s{sT1}
    s_sub_u32 s{sT0}, s{sT0}, 1
    s_cmp_eq_u32 s{sJ}, 6
    s_cbranch_scc1 engdone
    s_mul_i32 s{sT1}, s{sG}, 28
    s_add_u32 s{sT1}, s{sT1}, s{sT0}
    s_lshl_b32 s{sT1}, s{sT1}, 16
    s_lshl_b32 s{sT2}, s{sXCD}, 9
    s_add_u32 s{sT1}, s{sT1}, s{sT2}
    s_lshl_b32 s{sT2}, s{sT0}, 2
    s_add_u32 s{sT2}, s{sT2}, s{sG}
    s_lshl_b32 s{sT2}, s{sT2}, 13
    s_add_u32 s{sPFW}, s{sPFW}, {OPT.npf0*56*3584}
    """)
    if OPT.engw: lds_wait(a, C_X, 4, sleep=1)
    for i in range(10 - OPT.npf0 if OPT.eng & 1 else 0):
        a(f"s_waitcnt vmcnt({OPT.engd})\nbuffer_load_dword v{249+i%2}, v{vPF1}, {sr(R_W1,4)}, s{sPFW} offen\ns_add_u32 s{sPFW}, s{sPFW}, {56*3584}")
    stamp(a, 28)
    for i in range(4 if OPT.eng & 2 else 0):
        a(f"s_waitcnt vmcnt({OPT.engd})\nbuffer_load_dword v{249+i%2}, v{vPF2}, {sr(R_W2,4)}, s{sT1} offen\ns_add_u32 s{sT1}, s{sT1}, {7*16*4096}")
    stamp(a, 29)
    a(f"""
    s_cmp_lg_u32 s{sCB}, 7
    s_cbranch_scc1 engdone
    s_lshr_b32 s{sT2}, s{sJ}, 3
    s_lshl_b32 s{sT2}, s{sT2}, 2
    s_add_u32 s{sT2}, s{sT2}, s{sG}
    s_lshl_b32 s{sT2}, s{sT2}, 13
    """)
    for i in range(4 if OPT.eng & 4 else 0):
        a(f"s_waitcnt vmcnt({OPT.engd})\nbuffer_load_dword v{249+i%2}, v{vPF}, {sr(R_WO,4)}, s{sT2} offen\ns_add_u32 s{sT2}, s{sT2}, {16*8192}")
    stamp(a, 30)
    a(f"s_branch epw\nengdone:\ns_waitcnt vmcnt(0)")
    lds_wait(a, C_Q, 4)
    state['nd'] = N1
    prefill(N1 + OPT.e2)
    init2()
    a(f"s_waitcnt vmcnt(0)\n{join}:")
    a(f"s_setprio {OPT.prio_b}")
    vm.q = []
    prefill(N1 + OPT.a2)
    stamp(a, 18)
    fill_poll(N1 + OPT.a2, N1 + OPT.b2, sFUc, 28)
    stamp(a, 19)
    begin(N1, OPT.nl0)
    a(f"s_setprio {OPT.prio_g2}\ns_lshr_b32 s{sSH1}, s{sJ}, 3")
    assert not OPT.odeep or (SG + 64 <= 240 and N1 + OPT.pre + nsg2 - 3 <= N2 - OPT.ock)
    KC = N2 - OPT.ock
    hl = [(N1, lambda: stamp(a, 20)), (N1 + 14, lambda: stamp(a, 21)), (KC - 3, lambda: flagload(sFOc, 8))]
    for b in range(3, 7): hl.append((N1 + max(0, 4 * b - OPT.pfd), lambda b=b: cpf(sSH1, b - 3, sPU)))
    for i, k in enumerate(range(N1 + OPT.b2, N1 + OPT.pre + nsg2)): hl.append((N1 + i, lambda k=k: prefill(k + 1)))
    run(N1, KC, N2, N3, N2, first=N1, hooks=mkhooks(hl))
    w = vm.wait({'fl'})
    if w is not None: a(f"s_waitcnt vmcnt({w})")
    ordy = a.label("ordy"); red2 = a.label("red2")
    flagcheck(ordy)
    sv = (list(vm.q), dict(state))
    run(KC, N2, N2, N3, N2)
    prefill(N3)
    stamp(a, 22)
    poll(a, sFOc, 8); vm.q = []
    stamp(a, 23)
    a(f"s_setprio {OPT.prio_e}")
    begin(N2, 8 if OPT.odeep else min(8, DH))
    run(N2, N3, N3, N3, N3, hooks={N2: lambda: stamp(a, 24)})
    a(f"s_branch {red2}\n{ordy}:")
    vm.q = sv[0]; state.update(sv[1])
    run(KC, N3, N3, N3, N3, hooks={N2: lambda: stamp(a, 24)})
    a(f"{red2}:")
    reduce4(a, C_R2, (L_RING, 2048, lambda i: (i >> 1) * 8192 + (i & 1) * 1024), 25, 26)
    for i in range(8): a(f"v_cvt_pk_bf16_f32 v{ACC+16+i}, v{ACC+2*i}, v{ACC+2*i+1}")
    a(f"""
    s_nop 1
    v_permlane32_swap_b32 v{ACC+16}, v{ACC+18}
    v_permlane32_swap_b32 v{ACC+17}, v{ACC+19}
    v_permlane32_swap_b32 v{ACC+20}, v{ACC+22}
    v_permlane32_swap_b32 v{ACC+21}, v{ACC+23}
    buffer_store_dwordx4 {vr(ACC+16,4)}, v{vOUT}, {sr(R_OUT,4)}, s{sOUT} offen
    buffer_store_dwordx4 {vr(ACC+20,4)}, v{vOUT}, {sr(R_OUT,4)}, s{sOUT} offen offset:32
    s_branch {done}
    epw:
    s_lshl_b32 s{sT0}, s{sG}, 8
    s_add_u32 s{sT0}, s{sT0}, s2
    s_cmp_lg_u32 s{sT0}, 56
    s_cbranch_scc1 {done}
    """)
    lds_wait(a, C_ATT, 4, sleep=8)
    for i in range(4):
        a(f"s_mov_b32 s{sT0}, {FL_O + (2048*i << FS)}")
        poll(a, sT0, 64, sh=5)
    a(f"s_mov_b32 s{sT0}, {WS_EPOCH}")
    set_flag(a, sT0)

def kend(a, e):
    a(f"{e}:")
    if OPT.stamps:
        stamp(a, 14); a("s_waitcnt vmcnt(0)"); stamp(a, 15)
        a(f"""
        s_lshl_b32 s100, s2, 3
        s_add_u32 s100, s100, s{sW}
        s_lshl_b32 s100, s100, 8
        s_add_u32 s100, s100, {WS_STAMP}
        v_lshlrev_b32 v254, 2, v{vLANE}
        buffer_store_dword v255, v254, {sr(R_WS,4)}, s100 offen
        """)
    if OPT.double:
        a(f"""
        s_waitcnt vmcnt(0)
        s_memrealtime s[16:17]
        s_waitcnt lgkmcnt(0)
        s_sub_u32 s18, s16, s100
        s_min_u32 s18, s18, 20000
        dbl:
        s_memrealtime s[20:21]
        s_waitcnt lgkmcnt(0)
        s_sub_u32 s20, s20, s16
        s_cmp_lt_u32 s20, s18
        s_cbranch_scc1 dbl
        """)
    a(f"{e}x:\ns_endpgm\ncode_end:")

def build():
    a = Asm()
    n = NAME + "_kernel"
    a('.amdgcn_target "amdgcn-amd-amdhsa--gfx950"\n.text')
    a(f".globl {n}\n.p2align 8\n.type {n},@function\n{n}:")
    e = "fin"
    prologue(a, e)
    p1_a(a); attention(a, e)
    a("p1g:"); p1_g(a); gpath(a, e)
    kend(a, e)
    if OPT.nogv:
        i0 = a.L.index("p1g:")
        i1 = [i for i, l in enumerate(a.L) if l.startswith("gpfw")][0]
        a.L = [("s_nop 0" if (i > i1 and l.startswith("buffer_load_dwordx4")) else l) for i, l in enumerate(a.L)]
    check(a.L)
    head = open(f"refhead.txt").read().split("; Override")[0]
    ll = f"; @launch grid=(256,1,1) block=(512,1,1) lds={LDS_TOTAL}\n"
    desc = f""".section .rodata,"a"
.p2align 6
.amdhsa_kernel {n}
  .amdhsa_next_free_vgpr 256
  .amdhsa_next_free_sgpr 102
  .amdhsa_accum_offset 256
  .amdhsa_group_segment_fixed_size 0
  .amdhsa_kernarg_size 104
  .amdhsa_user_sgpr_count 2
  .amdhsa_user_sgpr_kernarg_segment_ptr 1
  .amdhsa_system_sgpr_workgroup_id_x 1
  .amdhsa_float_denorm_mode_32 3
.end_amdhsa_kernel
"""
    return head + ll + a.text() + desc

if __name__ == "__main__":
    args = []
    for x in sys.argv[1:]:
        if x.startswith("--"):
            k, _, v = x[2:].partition("=")
            if k == "FS": FS = int(v)
            else: setattr(OPT, k, int(v) if v else True)
        else: args.append(x)
    assert all((t * 37) >> 8 == t // 7 for t in range(56))
    open(args[0] if args else f"cdna_kernels/{NAME}.s", "w").write(build())
```

```python
import sys, math, struct
sys.path.insert(0, "dev")
from asmlib import Asm, vr, sr, check

NAME = "parallel_sum__grouped_kv_mqa__mixer_token_mlp__prompt"
WS_HT = 0
WS_KV = 2 << 20
WS_U  = 5 << 20
WS_O  = 7 << 20
WS_FLG = 10 << 20
FL_H  = WS_FLG
FS = 4
FL_KV = WS_FLG + (8192 << 4)
FL_U  = WS_FLG + (12288 << 4)
FL_O  = WS_FLG + (20480 << 4)
WS_EPOCH = WS_FLG + (32768 << 4)
WS_STAMP = 12 << 20
WS_SIZE = 16 << 20
DBLK = 64
class O: pass
OPT = O(); OPT.stamps = False; OPT.double = False; OPT.prio_g = 0; OPT.prio_e = 3; OPT.prio_a = 0; OPT.pf2step = 6; OPT.pre = 12; OPT.lw = 4; OPT.lw2 = 11; OPT.odeep = 1; OPT.fine = 0; OPT.prio_b = 0; OPT.kp = 0; OPT.amp = -1; OPT.ampg = 0; OPT.prio_g1b = 0; OPT.fine0 = 2; OPT.dh = 5; OPT.pre0 = 4; OPT.nsg = 6; OPT.nsg2 = 9; OPT.e0 = 4; OPT.e1 = 8; OPT.e2 = 11; OPT.pf1pos = 3; OPT.order = 1; OPT.nogm = 0; OPT.nogv = 0; OPT.a1 = 7; OPT.b1 = 10; OPT.nl0 = 4; OPT.pfd = -100; OPT.kvpf = 1; OPT.a2 = 17; OPT.b2 = 21; OPT.ock = 5; OPT.early = 0; OPT.npf0 = 2; OPT.prio_g2 = 0; OPT.twice = 0; OPT.codepf = 1; OPT.prio_ld = 0; OPT.gatek = 8; OPT.ke = 12; OPT.fl_late = 0; OPT.rdin = 2; OPT.pre1 = 0; OPT.engd = 0; OPT.eng = 7; OPT.engw = 1; OPT.ra = 0; OPT.rb = 0; OPT.nou = 0; OPT.now2 = 0; OPT.dropw = 0; OPT.nocomb = 0; OPT.kvflag = 8; OPT.attit = 4; OPT.nold = 0; OPT.nodma = 0; OPT.nokv = 0
L_XT = 0; L_WQ = 57344; L_WKV = 114688
HB_STRIDE = 912
L_HB = 141056; L_QS = 147456; L_KC = 155648; L_KS = L_KC + 1024; L_MX = L_KC
L_ST = 158720; L_RT = 159232; L_CNT = 159360; LDS_TOTAL = 159744
RING = 12; L_RING = 49152; L_RED = 0
def slotp(k): return 8 + k % 4 if k < OPT.ke else (k - OPT.ke) % RING
C_X, C_KV, C_H, C_ST, C_Q, C_ISS, C_R1, C_R1D, C_ATT, C_R2, C_X1, C_XA, C_FL, C_PRE, C_KS = range(15)
sXCD, sJ, sRB, sCB, sW = 3, 4, 5, 6, 7
sT0, sT1, sT2, sT3, sT4, sT5 = 8, 9, 10, 11, 12, 13
sHI = 14
P_X, P_WQ, P_WK, P_WV, P_WO, P_BX, P_W1, P_B1, P_W2, P_B2, P_OUT, P_DBG, P_WS = 16, 18, 20, 22, 24, 26, 28, 30, 32, 34, 36, 38, 40
sTAG = 42
R_X, R_WQ, R_WKV, R_WS, R_W1, R_W2, R_WO, R_OUT, R_KV = 44, 48, 52, 56, 60, 64, 68, 72, 76
R_B1, R_B2 = R_WKV, 20
sONES, sSPIN, sPFW = 82, 83, 99
sG, sGM, sGN, sRing, sA, sD, sL, sFB, sDb, sD2, sLb, sL2, sOUT, sB2 = range(84, 98)
sU0, sU1, sU2, sU3, sU4, sU5 = range(84, 90)
OOB = 0x40000000
EPS = 0x3727c5ac
QSCALE = (28 ** -0.5) * math.log2(math.e)
def f32(x): return "0x%08x" % struct.unpack("<I", struct.pack("<f", x))[0]
vLANE, vJ, vHH, vL16 = 1, 2, 3, 4
MF = "v_mfma_f32_32x32x16_bf16"

def stamp(a, idx):
    if OPT.amp >= 0:
        if idx == 0: a("v_mov_b32 v255, 0\ns_memrealtime s[100:101]\ns_waitcnt lgkmcnt(0)\nv_writelane_b32 v255, s100, 0")
        elif idx == OPT.amp: a("s_memrealtime s[100:101]\ns_waitcnt lgkmcnt(0)\nv_writelane_b32 v255, s100, 1")
        return
    if not OPT.stamps: return
    if OPT.stamps == 2 and idx not in (0, 15): return
    a(f"s_memrealtime s[100:101]\ns_waitcnt lgkmcnt(0)\nv_writelane_b32 v255, s100, {idx}")
    if idx in (0, 15): a(f"s_memtime s[100:101]\ns_waitcnt lgkmcnt(0)\nv_writelane_b32 v255, s100, {idx+32}")

def srd(a, r, p, size):
    a(f"s_mov_b32 s{r}, s{p}\ns_mov_b32 s{r+1}, s{p+1}\ns_mov_b32 s{r+2}, {size}\ns_mov_b32 s{r+3}, 0x20000")

def get_tag(a):
    a(f"""
    s_waitcnt lgkmcnt(0)
    s_mul_i32 s{sTAG}, s{sTAG}, 0x9e3779b5
    s_mul_i32 s{sTAG+1}, s{sTAG+1}, 0x85ebca6d
    s_add_u32 s{sTAG}, s{sTAG}, 0x7f4a7c15
    s_add_u32 s{sTAG+1}, s{sTAG+1}, 0x165667b1
    """)

def set_flag(a, soff, vt=30):
    a(f"""
    v_mov_b32 v{vt}, s{sTAG}
    v_mov_b32 v{vt+1}, s{sTAG+1}
    s_waitcnt vmcnt(0)
    s_mov_b64 exec, 1
    buffer_store_dwordx2 {vr(vt,2)}, off, {sr(R_WS,4)}, s{soff} sc1
    s_mov_b64 exec, -1
    """)

def poll(a, soff, n, vo=28, vt=30, sh=3):
    lp = a.label("poll"); dn = a.label("polld")
    a(f"""
    s_setprio 3
    v_min_u32 v{vo}, {n-1}, v{vLANE}
    v_lshlrev_b32 v{vo}, {sh+FS}, v{vo}
    s_mov_b32 s{sSPIN}, 20000
    {lp}:
    buffer_load_dwordx2 {vr(vt,2)}, v{vo}, {sr(R_WS,4)}, s{soff} offen sc1
    s_waitcnt vmcnt(0)
    v_cmp_ne_u64 vcc, {sr(sTAG,2)}, {vr(vt,2)}
    s_cbranch_vccz {dn}
    s_sub_u32 s{sSPIN}, s{sSPIN}, 1
    s_cmp_lg_u32 s{sSPIN}, 0
    s_cbranch_scc1 {lp}
    {dn}:
    s_setprio 0
    """)

def lds_arrive(a, cnt, nowait=False):
    a(f"""
    s_mov_b64 exec, 1
    {'' if nowait else 's_waitcnt lgkmcnt(0)'}
    ds_add_u32 v0, v29 offset:{4*cnt}
    s_mov_b64 exec, -1
    """)
def lds_wait(a, cnt, target, sleep=0):
    spin = a.label("spin")
    a(f"""
    {spin}:
    {f's_sleep {sleep}' if sleep else ''}
    ds_read_b32 v28, v0 offset:{4*cnt}
    s_waitcnt lgkmcnt(0)
    v_readfirstlane_b32 s{sT5}, v28
    s_cmp_lt_u32 s{sT5}, {target}
    s_cbranch_scc1 {spin}
    """)

def bf16_stats(a, vs, vq, vm, vr_, t):
    a(f"""
    v_mul_f32 v{vs}, {f32(1/448)}, v{vs}
    v_mul_f32 v{vq}, {f32(1/448)}, v{vq}
    v_fma_f32 v{vq}, -v{vs}, v{vs}, v{vq}
    v_max_f32 v{vq}, 0, v{vq}
    v_cvt_pk_bf16_f32 v{t}, v{vs}, v{vq}
    v_lshlrev_b32 v{vm}, 16, v{t}
    v_and_b32 v{t}, 0xffff0000, v{t}
    v_add_f32 v{t}, {EPS:#x}, v{t}
    v_cvt_pk_bf16_f32 v{t}, v{t}, v{t}
    v_and_b32 v{t}, 0xffff0000, v{t}
    v_sqrt_f32 v{t}, v{t}
    s_nop 0
    v_cvt_pk_bf16_f32 v{t}, v{t}, v{t}
    v_and_b32 v{t}, 0xffff0000, v{t}
    v_rcp_f32 v{vr_}, v{t}
    s_nop 0
    """)

def dpp_reduce(a, vs, vq, modes):
    a("s_nop 2")
    for mode in modes:
        a(f"v_add_f32_dpp v{vs}, v{vs}, v{vs} {mode} row_mask:0xf bank_mask:0xf")
        a(f"v_add_f32_dpp v{vq}, v{vq}, v{vq} {mode} row_mask:0xf bank_mask:0xf")
        a("s_nop 0")
QP1, QP2, RHM, RM = "quad_perm:[1,0,3,2]", "quad_perm:[2,3,0,1]", "row_half_mirror", "row_mirror"

def split_hi_lo(a, dst, src, t):
    a(f"""
    v_cvt_pk_bf16_f32 v{t}, v{src}, v{src}
    v_and_b32 v{t}, 0xffff0000, v{t}
    v_sub_f32 v{t}, v{src}, v{t}
    v_cvt_pk_bf16_f32 v{dst}, v{src}, v{t}
    """)

def prologue(a, end):
    a(f"s_cmp_ge_u32 s2, 256\ns_cbranch_scc1 {end}x")
    if OPT.double: a("s_memrealtime s[100:101]")
    if OPT.stamps: a("v_mov_b32 v255, 0")
    stamp(a, 0)
    a(f"""
    s_load_dwordx16 s[16:31], s[0:1], 0
    s_load_dwordx8 s[32:39], s[0:1], 64
    s_load_dwordx2 s[40:41], s[0:1], 96
    v_lshrrev_b32 v5, 6, v0
    v_and_b32 v{vLANE}, 63, v0
    v_readfirstlane_b32 s{sW}, v5
    v_and_b32 v{vJ}, 31, v0
    v_lshrrev_b32 v{vHH}, 5, v{vLANE}
    v_lshlrev_b32 v{vL16}, 4, v{vLANE}
    s_and_b32 s{sXCD}, s2, 7
    s_lshr_b32 s{sJ}, s2, 3
    """)
    if OPT.codepf:
        a(f"""
        s_cmp_lg_u32 s{sW}, 7
        s_cbranch_scc1 nocpf
        s_getpc_b64 s[{R_OUT}:{R_OUT+1}]
        cpf_here:
        s_sub_u32 s{R_OUT}, s{R_OUT}, cpf_here-{NAME}_kernel
        s_subb_u32 s{R_OUT+1}, s{R_OUT+1}, 0
        s_mov_b32 s{R_OUT+2}, code_end-{NAME}_kernel
        s_mov_b32 s{R_OUT+3}, 0x20000
        s_lshl_b32 s{sT0}, s{sJ}, 7
        v_lshlrev_b32 v6, 12, v{vLANE}
        buffer_load_dword v250, v6, {sr(R_OUT,4)}, s{sT0} offen
        nocpf:
        """)
    a(f"""
    s_lshr_b32 s{sT0}, s{sJ}, 3
    s_lshl_b32 s{sRB}, s{sXCD}, 2
    s_add_u32 s{sRB}, s{sRB}, s{sT0}
    s_and_b32 s{sCB}, s{sJ}, 7
    s_mov_b32 s{sHI}, 0
    s_mov_b32 s{sHI+1}, -1
    s_mov_b32 s{sONES}, 0x3f803f80
    v_lshlrev_b32 v5, 2, v{vLANE}
    v_add_u32 v5, {L_CNT}, v5
    v_mov_b32 v6, 0
    ds_write_b32 v5, v6
    v_mov_b32 v0, {L_CNT}
    v_mov_b32 v29, 1
    v_lshrrev_b32 v5, 3, v{vLANE}
    v_and_b32 v6, 7, v{vLANE}
    v_lshrrev_b32 v7, 4, v{vLANE}
    v_bfe_u32 v8, v{vLANE}, 2, 2
    v_and_b32 v9, 3, v{vLANE}
    v_and_b32 v10, 1, v7
    v_lshlrev_b32 v9, 3, v9
    v_lshl_add_u32 v9, v10, 5, v9
    """)
    p1_addr(a)
    a(f"s_cmp_ge_u32 s{sW}, 4\ns_cbranch_scc1 p1g")

def common_srds(a):
    a(f"s_mov_b32 s{sT5}, {WS_EPOCH}\ns_waitcnt lgkmcnt(0)")
    stamp(a, 1)
    a(f"s_load_dwordx2 {sr(sTAG,2)}, {sr(P_WS,2)}, s{sT5}")
    srd(a, R_X, P_X, 2048 * 896)
    srd(a, R_WS, P_WS, WS_SIZE)

def epoch_load(a): pass

vXe, vXo, vWQd = 11, 12, 13
sNL, sXs, sXm, sNT, sW3 = 76, 77, 78, 79, 80
sXs2, sXm2, sQs, sQm = 26, 27, 38, 39
def p1_addr(a):
    a(f"""
    v_mul_u32_u24 v20, 896, v5
    v_xor_b32 v21, v6, v7
    v_lshl_add_u32 v{vXe}, v21, 4, v20
    v_xor_b32 v21, 4, v21
    v_lshl_add_u32 v{vXo}, v21, 4, v20
    v_lshlrev_b32 v21, 2, v10
    v_xor_b32 v21, v21, v6
    v_lshl_add_u32 v{vWQd}, v21, 4, v20
    s_and_b32 s{sW3}, s{sW}, 3
    s_cmp_eq_u32 s{sW3}, 3
    s_cselect_b32 s{sNL}, 1, 2
    s_bfe_u32 s{sNT}, s{sCB}, 0x10001
    s_and_b32 s{sT0}, s{sCB}, 1
    s_cmp_ge_u32 s{sCB}, 6
    s_cselect_b32 s{sNT}, s{sT0}, s{sNT}
    s_lshl_b32 s{sT0}, s{sRB}, 1
    s_add_u32 s{sT0}, s{sT0}, s{sNT}
    s_mul_i32 s{sXs}, s{sT0}, {32*896}
    s_lshl_b32 s{sT0}, s{sW3}, 8
    s_add_u32 s{sXs}, s{sXs}, s{sT0}
    s_lshl_b32 s{sXm}, s{sW3}, 14
    s_lshl_b32 s{sT0}, s{sNT}, 12
    s_add_u32 s{sXm}, s{sXm}, s{sT0}
    """)
def rest_dma(a, after_x=None):
    srd(a, R_WQ, P_WQ, 448 * 896)
    a(f"""
    s_xor_b32 s{sXm2}, s{sXm}, 4096
    s_mul_i32 s{sT0}, s{sNT}, {2*32*896}
    s_add_u32 s{sXs2}, s{sXs}, {32*896}
    s_sub_u32 s{sXs2}, s{sXs2}, s{sT0}
    s_mul_i32 s{sQs}, s{sW3}, {128*896}
    s_mul_i32 s{sT0}, s{sCB}, 112
    s_add_u32 s{sQs}, s{sQs}, s{sT0}
    s_lshl_b32 s{sQm}, s{sW3}, 14
    """)
    if after_x: after_x()
    PF1 = f"buffer_load_dword v249, v{vPF1}, {sr(R_W1,4)}, s{sPFW} offen"
    if OPT.pf1pos == 0: a(PF1)
    l1 = a.label("rd1"); l2 = a.label("rd2")
    for line in range(2):
        if line: a(f"s_cmp_eq_u32 s{sNL}, 1\ns_cbranch_scc1 {l1}")
        for b in range(4):
            a(f"""
            s_add_u32 m0, s{sXm2}, {L_XT + line*8192 + b*1024}
            s_add_u32 s{sT0}, s{sXs2}, {b*8*896 + line*128}
            buffer_load_dwordx4 v{vXo if b & 1 else vXe}, {sr(R_X,4)}, s{sT0} offen lds
            """)
    a(f"{l1}:")
    if OPT.pf1pos == 1: a(PF1)
    for line in range(2):
        if line:
            a(f"s_waitcnt vmcnt({9 if OPT.pf1pos == 1 else 8})")
            lds_arrive(a, C_XA, nowait=True)
            a(f"s_cmp_eq_u32 s{sNL}, 1\ns_cbranch_scc1 {l2}")
        for b in range(8):
            a(f"""
            s_add_u32 m0, s{sQm}, {L_WQ + line*8192 + b*1024}
            s_add_u32 s{sT0}, s{sQs}, {(line*64 + b*8)*896}
            buffer_load_dwordx4 v{vWQd}, {sr(R_WQ,4)}, s{sT0} offen lds
            """)
    a(f"{l2}:")

vPF1 = 246
def pf1_addr(a):
    a(f"""
    v_min_u32 v14, 6, v6
    v_mul_u32_u24 v{vPF1}, 3584, v5
    v_lshl_add_u32 v{vPF1}, v14, 7, v{vPF1}
    s_lshl_b32 s{sT1}, s{sW3}, 6
    s_lshr_b32 s{sT2}, s{sJ}, 3
    s_lshl_b32 s{sT2}, s{sT2}, 1
    s_add_u32 s{sT1}, s{sT1}, s{sT2}
    s_and_b32 s{sT2}, s{sCB}, 1
    s_add_u32 s{sT1}, s{sT1}, s{sT2}
    s_sub_u32 s{sT1}, s{sT1}, 1
    s_mul_i32 s{sPFW}, s{sT1}, {8*3584}
    s_lshr_b32 s{sT2}, s{sXCD}, 1
    s_mul_i32 s{sT2}, s{sT2}, 896
    s_add_u32 s{sPFW}, s{sPFW}, s{sT2}
    """)
    srd(a, R_W1, P_W1, 2048 * 3584)

def stats_code(a, st0, st1, sRBk, SX=128, T=40):
    a(f"""
    v_lshrrev_b32 v{T}, 2, v{vLANE}
    v_and_b32 v{T+1}, 3, v{vLANE}
    v_lshlrev_b32 v{T+1}, 5, v{T+1}
    v_lshl_add_u32 v{T+1}, v{T}, 7, v{T+1}
    v_lshlrev_b32 v{T+2}, 1, v{vLANE}
    v_and_b32 v{T+2}, 16, v{T+2}
    v_add_u32 v{T+1}, v{T+1}, v{T+2}
    s_lshl_b32 s{sT0}, s{sRBk}, 11
    v_add_u32 v{T+1}, s{sT0}, v{T+1}
    v_xor_b32 v{T+3}, 16, v{T+1}
    s_lshl_b32 s{sT0}, s{sRBk}, 7
    s_add_u32 s{sT0}, s{sT0}, {L_ST}
    v_lshl_add_u32 v{T}, v{T}, 3, s{sT0}
    v_mov_b32 v{T+4}, 0
    v_mov_b32 v{T+5}, 0
    """)
    lds_wait(a, C_X1, 4)
    lds_wait(a, C_XA, 4)
    stamp(a, st0)
    for c in range(7):
        a(f"ds_read_b128 {vr(SX+8*c,4)}, v{T+1} offset:{L_XT + c*8192}")
        a(f"ds_read_b128 {vr(SX+8*c+4,4)}, v{T+3} offset:{L_XT + c*8192}")
    for c in range(7):
        a(f"s_waitcnt lgkmcnt({2*(6-c)})")
        for i in range(8):
            a(f"v_dot2c_f32_bf16 v{T+4}, s{sONES}, v{SX+8*c+i}")
            a(f"v_dot2c_f32_bf16 v{T+5}, v{SX+8*c+i}, v{SX+8*c+i}")
    dpp_reduce(a, T + 4, T + 5, [QP1, QP2])
    bf16_stats(a, T + 4, T + 5, T + 3, T + 7, T + 2)
    a(f"""
    v_cvt_pk_bf16_f32 v{T+6}, -v{T+3}, -v{T+3}
    v_mul_f32 v{T+7}, {f32(QSCALE)}, v{T+7}
    ds_write_b64 v{T}, {vr(T+6,2)}
    """)
    lds_arrive(a, C_ST, nowait=True)
    stamp(a, st1)

def p1_a(a):
    vXF, vWK, vWQr = 14, 18, 19
    sB, sM = 94, 96
    a(f"""
    s_and_b32 s{sT1}, s{sCB}, 1
    s_lshl_b32 s{sT2}, s{sT1}, 11
    s_xor_b32 s{sM}, s{sXm}, s{sT2}
    s_lshr_b32 s{sT3}, s{sJ}, 3
    s_lshl_b32 s{sT3}, s{sT3}, 1
    s_add_u32 s{sT3}, s{sT3}, s{sT1}
    s_mul_i32 s{sT1}, s{sT1}, {16*896}
    s_add_u32 s{sB}, s{sXs}, s{sT1}
    s_add_u32 s{sT2}, s{sXs}, {16*896}
    s_sub_u32 s{sB+1}, s{sT2}, s{sT1}
    v_lshlrev_b32 v21, 7, v{vLANE}
    s_mov_b32 s{sT4}, 0
    """)
    common_srds(a)
    def x_half(h):
        sk = a.label("xh")
        for line in range(2):
            if line: a(f"s_cmp_eq_u32 s{sNL}, 1\ns_cbranch_scc1 {sk}")
            for b in range(2):
                a(f"""
                s_xor_b32 m0, s{sM}, {line*8192 + h*2048 + b*1024}
                s_add_u32 s{sT0}, s{sB+h}, {b*8*896 + line*128}
                buffer_load_dwordx4 v{vXo if b else vXe}, {sr(R_X,4)}, s{sT0} offen lds
                """)
        a(f"{sk}:")
    def frag_addr():
        a(f"""
        v_lshrrev_b32 v20, 1, v{vJ}
        v_and_b32 v20, 7, v20
        v_xor_b32 v20, v20, v{vHH}
        v_lshlrev_b32 v20, 4, v20
        v_lshl_add_u32 v{vXF}, v{vJ}, 7, v20
        v_xor_b32 v{vXF+1}, 32, v{vXF}
        v_xor_b32 v{vXF+2}, 64, v{vXF}
        v_xor_b32 v{vXF+3}, 96, v{vXF}
        v_lshl_add_u32 v20, v{vHH}, 3, v8
        """)
    nop_ = a.label("notp"); other = a.label("notkv"); htype = a.label("htype"); qgo = a.label("qgo"); dostats = a.label("dostats"); poststats = a.label("poststats")
    a(f"""
    s_and_b32 s{sT0}, s{sCB}, 6
    s_cmp_lg_u32 s{sT0}, 4
    s_cbranch_scc1 {nop_}
    s_lshl_b32 s{sT0}, s{sT3}, 2
    s_add_u32 s{sT0}, s{sT0}, s{sW}
    s_cmp_eq_u32 s{sT3}, 1
    s_cselect_b32 s{R_WKV}, s{P_WV}, s{P_WK}
    s_cselect_b32 s{R_WKV+1}, s{P_WV+1}, s{P_WK+1}
    s_mov_b32 s{R_WKV+2}, {448*896}
    s_sub_u32 s{sT1}, s{sT0}, 8
    s_cmp_lt_u32 s{sT3}, 2
    s_cselect_b32 s{R_WKV}, s{R_WKV}, s{P_WQ}
    s_cselect_b32 s{R_WKV+1}, s{R_WKV+1}, s{P_WQ+1}
    s_cselect_b32 s{R_WKV+2}, {448*56}, s{R_WKV+2}
    s_cselect_b32 s{sT1}, s{sW}, s{sT1}
    s_mov_b32 s{R_WKV+3}, 0x20000
    s_lshl_b32 s{sT1}, s{sT1}, 13
    buffer_load_dword v250, v21, {sr(R_WKV,4)}, s{sT1} offen
    """)
    srd(a, R_WQ, P_WQ, 448 * 896)
    a(f"""
    s_add_u32 s{sT0}, s{sT0}, 24
    s_lshl_b32 s{sT0}, s{sT0}, 13
    buffer_load_dword v251, v21, {sr(R_WQ,4)}, s{sT0} offen
    {nop_}:
    """)
    x_half(0); x_half(1)
    a(f"s_cmp_ge_u32 s{sCB}, 4\ns_cbranch_scc1 {other}")
    a(f"""
    s_bitcmp1_b32 s{sCB}, 0
    s_cselect_b32 s{R_WKV}, s{P_WV}, s{P_WK}
    s_cselect_b32 s{R_WKV+1}, s{P_WV+1}, s{P_WK+1}
    s_mov_b32 s{R_WKV+2}, {448*56}
    s_mov_b32 s{R_WKV+3}, 0x20000
    s_mul_i32 s{sT1}, s{sW}, 7168
    s_add_u32 m0, s{sT1}, {L_WKV}
    s_cmp_eq_u32 s{sNL}, 1
    """)
    w3 = a.label("wk3")
    for i in range(4): a(f"buffer_load_dwordx4 v{vL16}, {sr(R_WKV,4)}, s{sT1} offen offset:{1024*i} lds")
    a(f"""
    s_cbranch_scc1 {w3}
    s_add_u32 m0, m0, 4096
    s_add_u32 s{sT1}, s{sT1}, 4096
    """)
    for i in range(3): a(f"buffer_load_dwordx4 v{vL16}, {sr(R_WKV,4)}, s{sT1} offen offset:{1024*i} lds")
    a(f"{w3}:")
    epoch_load(a)
    a("s_barrier")
    frag_addr()
    ACC, XF, WF = 96, 32, 64
    vQ, vS, vC = 22, 23, 21
    a(f"""
    v_mul_u32_u24 v{vWK}, 56, v20
    v_add_u32 v{vWK}, v{vWK}, v9
    s_mul_i32 s{sT1}, s{sW}, 7168
    s_add_u32 s{sT1}, s{sT1}, {L_WKV}
    v_add_u32 v{vWK}, s{sT1}, v{vWK}
    v_add_u32 v24, s{sXm}, v{vXF}
    v_xor_b32 v25, 32, v24
    v_xor_b32 v30, 64, v24
    v_xor_b32 v31, 96, v24
    v_mov_b32 v{vS}, 0
    v_mov_b32 v{vQ}, 0
    v_mov_b32 v{vC}, 0
    s_lshl_b32 s{sT0}, s{sW}, 4
    s_add_u32 s{sT0}, s{sT0}, {L_KS}
    v_lshlrev_b32 v120, 6, v{vJ}
    v_lshl_add_u32 v121, v{vHH}, 3, v120
    v_add_u32 v121, s{sT0}, v121
    s_lshl_b32 s{sT0}, s{sW}, 2
    s_add_u32 s{sT0}, s{sT0}, {L_KC}
    v_add_u32 v122, s{sT0}, v{vL16}
    v_add_u32 v123, s{sT1}, v{vL16}
    """)
    xa = [24, 25, 30, 31]
    l0 = a.label("kv0"); l1 = a.label("kv1a"); l2 = a.label("kv1b"); l3 = a.label("kv1c"); vlab = a.label("kvv"); fin = a.label("kvfin")
    def skip1(lab): a(f"s_cmp_eq_u32 s{sNL}, 1\ns_cbranch_scc1 {lab}")
    a(f"s_waitcnt vmcnt(7)\ns_cmp_eq_u32 s{sNL}, 1\ns_cbranch_scc0 {l0}\ns_waitcnt vmcnt(4)\n{l0}:")
    stamp(a, 2)
    for line in range(2):
        for q in range(4): a(f"ds_read_b128 {vr(XF+16*line+4*q,4)}, v{xa[q]} offset:{L_XT + line*8192}")
    lds_arrive(a, C_X1, nowait=True)
    for line in range(2):
        if line: skip1(l1)
        for q in range(4):
            a(f"s_waitcnt lgkmcnt({8-4*line-q})")
            for i in range(4):
                r = XF + 16 * line + 4 * q + i
                a(f"v_dot2c_f32_bf16 v{vS}, s{sONES}, v{r}\nv_dot2c_f32_bf16 v{vQ}, v{r}, v{r}")
    a(f"{l1}:\ns_waitcnt vmcnt(0) lgkmcnt(0)\ns_nop 1\nds_write_b64 v121, v[22:23]")
    stamp(a, 18)
    for k in range(8):
        if k == 7: a("s_waitcnt lgkmcnt(13)")
        a(f"ds_read_b64_tr_b16 {vr(WF+4*k,2)}, v{vWK} offset:{k*896}")
        a(f"ds_read_b64_tr_b16 {vr(WF+4*k+2,2)}, v{vWK} offset:{k*896+224}")
    for k in range(8):
        if k == 4: skip1(l3)
        a(f"s_waitcnt lgkmcnt({14-2*k})")
        for i in range(4): a(f"v_dot2c_f32_bf16 v{vC}, s{sONES}, v{WF+4*k+i}")
    a(f"{l3}:\ns_bitcmp1_b32 s{sCB}, 0\ns_cbranch_scc1 {vlab}")
    for isv in (0, 1):
        if isv: a(f"{vlab}:")
        for k in range(8):
            if k == 4: skip1(fin)
            A, B = (vr(XF+4*k,4), vr(WF+4*k,4)) if isv else (vr(WF+4*k,4), vr(XF+4*k,4))
            a(f"{MF} {vr(ACC,16)}, {A}, {B}, {vr(ACC,16) if k else 0}")
            if k == 0:
                split_hi_lo(a, 24, vC, 31)
                a("ds_write_b32 v122, v24")
                lds_arrive(a, C_KS, nowait=True)
        if not isv: a(f"s_branch {l2}")
    a(f"""
    {l2}:
    s_lshl_b32 s{sT2}, s{sNT}, 1
    s_xor_b32 s{sT2}, s{sT2}, 2
    s_add_u32 s{sT2}, s{sT2}, s{sW}
    """)
    get_tag(a)
    a("s_nop 3")
    for g in range(4): a(f"ds_write_b128 v123, {vr(ACC+4*g,4)} offset:{1024*g}")
    lds_arrive(a, C_KV, nowait=True)
    stamp(a, 3)
    a(f"s_cmp_lt_u32 s{sW}, 2\ns_cbranch_scc1 {dostats}")
    lds_arrive(a, C_ST, nowait=True)
    a(f"s_branch {qgo}")
    vfin = a.label("vfin"); kvst = a.label("kvst"); vf2 = a.label("vf2"); cm = a.label("kvcm")
    a(f"""
    {fin}:
    s_setprio 3
    v_add_u32 v24, {L_KS}, v120
    v_add_u32 v25, {L_WKV}, v{vL16}
    v_add_u32 v21, {L_KC}, v{vL16}
    s_lshl_b32 s{sT1}, s{sRB}, 1
    s_add_u32 s{sT1}, s{sT1}, s{sNT}
    s_lshl_b32 s{sT1}, s{sT1}, 12
    s_add_u32 s{sT1}, s{sT1}, {WS_KV}
    s_lshl_b32 s{sT4}, s{sRB}, 2
    s_add_u32 s{sT4}, s{sT4}, s{sCB}
    s_lshl_b32 s{sT4}, s{sT4}, {3+FS}
    s_add_u32 s{sT4}, s{sT4}, {FL_KV}
    s_lshl_b32 s{sT0}, s{sNT}, 8
    s_add_u32 s{sT0}, s{sT0}, {L_ST}
    v_lshl_add_u32 v30, v{vJ}, 3, s{sT0}
    s_waitcnt vmcnt(0)
    """)
    get_tag(a)
    lds_wait(a, C_KS, 4)
    for g in range(4): a(f"ds_read_b128 {vr(XF+4*g,4)}, v24 offset:{16*g}")
    a(f"ds_read_b128 {vr(112,4)}, v21\ns_waitcnt lgkmcnt(1)")
    for i in range(4): a(f"v_pk_add_f32 {vr(XF+4*i,2)}, {vr(XF+4*i,2)}, {vr(XF+4*i+2,2)}")
    a(f"""
    v_pk_add_f32 {vr(XF,2)}, {vr(XF,2)}, {vr(XF+4,2)}
    v_pk_add_f32 {vr(XF+8,2)}, {vr(XF+8,2)}, {vr(XF+12,2)}
    v_pk_add_f32 {vr(XF,2)}, {vr(XF,2)}, {vr(XF+8,2)}
    """)
    bf16_stats(a, XF + 1, XF, 22, 23, 21)
    a(f"""
    v_cvt_pk_bf16_f32 v116, -v22, -v22
    v_lshlrev_b32 v21, 2, v{vJ}
    v_add_u32 v21, {L_RT}, v21
    ds_write_b32 v21, v23
    v_mul_f32 v117, {f32(QSCALE)}, v23
    v_lshlrev_b32 v21, 4, v{vHH}
    v_add_u32 v21, {L_RT}, v21
    ds_write_b64 v30, v[116:117]
    v_mov_b32 v118, v116
    v_mov_b32 v119, v116
    v_mov_b32 v22, v23
    """)
    lds_arrive(a, C_ST, nowait=True)
    a(f"""
    s_waitcnt lgkmcnt(0)
    v_mov_b32 v117, v116
    s_bitcmp1_b32 s{sCB}, 0
    s_cbranch_scc1 {vfin}
    {MF} {vr(ACC,16)}, {vr(112,4)}, {vr(116,4)}, {vr(ACC,16)}
    s_branch {cm}
    {vfin}:
    {MF} {vr(ACC,16)}, {vr(116,4)}, {vr(112,4)}, {vr(ACC,16)}
    """)
    for g in range(4): a(f"ds_read_b128 {vr(XF+4*g,4)}, v21 offset:{32*g}")
    a(f"""
    s_add_u32 s{sT1}, s{sT1}, 2048
    v_cmp_eq_u32 vcc, 28, v{vJ}
    v_mov_b32 v24, 0x3f803f80
    s_nop 1
    v_cndmask_b32 v24, 0, v24, vcc
    """)
    for i in range(8): a(f"v_mov_b32 v{120+i}, v24")
    a(f"{cm}:")
    lds_wait(a, C_KV, 3)
    stamp(a, 4)
    for w in range(3):
        for g in range(4): a(f"ds_read_b128 {vr(128+16*w+4*g,4)}, v25 offset:{7168*w+1024*g}")
    for w in range(3):
        a(f"s_waitcnt lgkmcnt({8-4*w})")
        for r in range(0, 16, 2): a(f"v_pk_add_f32 {vr(ACC+r,2)}, {vr(ACC+r,2)}, {vr(128+16*w+r,2)}")
    a(f"s_bitcmp1_b32 s{sCB}, 0\ns_cbranch_scc1 {vf2}")
    for r in range(0, 16, 2): a(f"v_pk_mul_f32 {vr(ACC+r,2)}, {vr(ACC+r,2)}, v[22:23]")
    for i in range(8): a(f"v_cvt_pk_bf16_f32 v{120+i}, v{ACC+2*i}, v{ACC+2*i+1}")
    a(f"""
    s_mov_b64 exec, {sr(sHI,2)}
    v_mov_b32 v126, 0x3f803f80
    v_mov_b32 v127, 0x00003f80
    s_branch {kvst}
    {vf2}:
    s_mov_b32 exec_lo, 0x0fffffff
    s_mov_b32 exec_hi, 0x0fffffff
    """)
    for r in range(0, 16, 2): a(f"v_pk_mul_f32 {vr(ACC+r,2)}, {vr(ACC+r,2)}, {vr(XF+r,2)}")
    for i in range(8): a(f"v_cvt_pk_bf16_f32 v{120+i}, v{ACC+2*i}, v{ACC+2*i+1}")
    a(f"""
    {kvst}:
    s_mov_b64 exec, -1
    buffer_store_dwordx4 {vr(120,4)}, v{vL16}, {sr(R_WS,4)}, s{sT1} offen sc1
    buffer_store_dwordx4 {vr(124,4)}, v{vL16}, {sr(R_WS,4)}, s{sT1} offen offset:1024 sc1
    """)
    stamp(a, 5)
    if OPT.kvflag < 0:
        set_flag(a, sT4)
        a(f"s_mov_b32 s{sT4}, 0\ns_setprio 0")
        stamp(a, 6)
    if not OPT.fl_late or OPT.kvflag < 0: lds_arrive(a, C_FL, nowait=True)
    a(f"s_branch {qgo}")
    a(f"{other}:")
    epoch_load(a)
    pf1_addr(a)
    frag_addr()
    a(f"s_mov_b32 s{sT2}, s{sW}\ns_barrier\ns_waitcnt vmcnt(0)")
    stamp(a, 2)
    lds_arrive(a, C_X1, nowait=True)
    a(f"s_cmp_ge_u32 s{sCB}, 6\ns_cbranch_scc1 {htype}")
    lds_arrive(a, C_FL, nowait=True)
    a("s_waitcnt vmcnt(0)")
    get_tag(a)
    a(f"s_branch {dostats}\n{htype}:")
    def early():
        ne = a.label("noearly")
        a(f"s_cmp_eq_u32 s{sJ}, 6\ns_cbranch_scc1 {ne}")
        for i in range(OPT.npf0):
            a(f"buffer_load_dword v{251+i%3}, v{vPF1}, {sr(R_W1,4)}, s{sPFW} offen\ns_add_u32 s{sPFW}, s{sPFW}, {56*3584}")
        lds_wait(a, C_FL, 4)
        a(f"{ne}:")
    rest_dma(a, early)
    lds_arrive(a, C_ISS, nowait=True)
    get_tag(a)
    stamp(a, 3)
    a(f"{dostats}:")
    stats_code(a, 20, 21, sT2)
    a(f"s_cmp_lt_u32 s{sCB}, 6\ns_cbranch_scc1 {qgo}\ns_waitcnt vmcnt(0)")
    lds_arrive(a, C_X, nowait=True)
    QACC, B0 = 128, 32
    a(f"""
    {qgo}:
    s_and_b32 s{sT0}, s{sW}, 1
    s_mul_i32 s{sT0}, s{sT0}, 56
    v_add_u32 v{vWQr}, s{sT0}, v9
    v_lshlrev_b32 v21, 5, v8
    v_and_b32 v21, 64, v21
    v_xor_b32 v{vWQr}, v{vWQr}, v21
    v_lshl_add_u32 v{vWQr}, v20, 7, v{vWQr}
    v_add_u32 v{vWQr}, {L_WQ}, v{vWQr}
    s_lshr_b32 s{sT1}, s{sW}, 1
    s_lshl_b32 s{sT0}, s{sT1}, 12
    v_mov_b32 v23, 0
    v_mov_b32 v113, 0
    v_mov_b32 v114, 0
    v_mov_b32 v115, 0
    v_mov_b32 v118, 0
    v_mov_b32 v119, 0
    """)
    for q in range(4): a(f"v_add_u32 v{vXF+q}, s{sT0}, v{vXF+q}")
    a(f"""
    s_lshl_b32 s{sT1}, s{sT1}, 8
    s_add_u32 s{sT1}, s{sT1}, {L_ST}
    v_lshl_add_u32 v24, v{vJ}, 3, s{sT1}
    """)
    lds_wait(a, C_X1, 4)
    lds_wait(a, C_X, 4)
    stamp(a, 7)
    D = 4; NB = 8
    WR = list(range(64, 112, 4)) + list(range(144, 176, 4)) + list(range(224, 248, 4)) + [120, 124]
    def wreg(ks): return WR[ks]
    def reads(ks):
        b = wreg(ks)
        a(f"ds_read_b64_tr_b16 {vr(b,2)}, v{vWQr} offset:{ks*2048}")
        a(f"ds_read_b64_tr_b16 {vr(b+2,2)}, v{vWQr} offset:{ks*2048+512}")
        a(f"ds_read_b128 {vr(B0+4*(ks%NB),4)}, v{vXF+(ks&3)} offset:{L_XT + (ks>>2)*8192}")
    for ks in range(D): reads(ks)
    for ks in range(28):
        if ks + D < 28: reads(ks + D)
        a(f"s_waitcnt lgkmcnt({3*min(D, 27-ks)})")
        a(f"{MF} {vr(QACC,16)}, {vr(wreg(ks),4)}, {vr(B0+4*(ks%NB),4)}, {'0' if ks == 0 else vr(QACC,16)}")
        if ks == OPT.kvflag:
            nf = a.label("nofl")
            a(f"s_cmp_eq_u32 s{sT4}, 0\ns_cbranch_scc1 {nf}")
            set_flag(a, sT4)
            if OPT.fl_late: lds_arrive(a, C_FL, nowait=True)
            a("s_setprio 0")
            stamp(a, 6)
            a(f"{nf}:")
    stamp(a, 19)
    if OPT.prio_ld: a(f"s_setprio {OPT.prio_ld}")
    att_setup(a)
    if OPT.early: a(f"buffer_load_dwordx2 v[30:31], v25, {sr(R_WS,4)}, s{sKF} offen sc1")
    for ks in range(28):
        for i in range(4): a(f"v_dot2c_f32_bf16 v23, s{sONES}, v{wreg(ks)+i}")
    if OPT.early:
        nk = a.label("nokvyet")
        a(f"""
        s_waitcnt vmcnt(0)
        v_cmp_ne_u64 vcc, {sr(sTAG,2)}, v[30:31]
        s_cbranch_vccnz {nk}
        """)
        first_kv(a)
        a(f"s_mov_b32 s{sKF}, 0\n{nk}:")
    stamp(a, 8)
    lds_wait(a, C_ST, 8)
    a(f"ds_read_b64 v[116:117], v24")
    split_hi_lo(a, 112, 23, 21)
    a(f"""
    s_waitcnt lgkmcnt(0)
    v_mov_b32 v22, v117
    v_mov_b32 v23, v117
    v_mov_b32 v117, 0
    s_nop 1
    {MF} {vr(QACC,16)}, {vr(112,4)}, {vr(116,4)}, {vr(QACC,16)}
    s_lshl_b32 s{sT1}, s{sW}, 11
    s_add_u32 s{sT1}, s{sT1}, {L_QS}
    v_add_u32 v21, s{sT1}, v{vL16}
    """)
    for r in range(64, 76): a(f"v_mov_b32 v{r}, 0")
    for r in range(0, 16, 2): a(f"v_pk_mul_f32 {vr(QACC+r,2)}, {vr(QACC+r,2)}, v[22:23]")
    for i in range(8): a(f"v_cvt_pk_bf16_f32 v{32+i}, v{QACC+2*i}, v{QACC+2*i+1}")
    a(f"""
    s_mov_b64 exec, {sr(sHI,2)}
    v_mov_b32 v38, 0
    v_mov_b32 v39, 0
    s_mov_b64 exec, -1
    ds_write_b128 v21, {vr(32,4)}
    ds_write_b128 v21, {vr(36,4)} offset:1024
    """)
    lds_arrive(a, C_Q, nowait=True)

vDW1, vDW2, vDWO, vOUT, vT1, vT2, vT3, vLN, vLM, vPF, vPF2 = 48, 49, 50, 51, 52, 54, 56, 58, 60, 62, 63
vTH, vSW = 240, 247
sHasG1 = 98
sLb0, sLbE, sDb0, sDbE = 34, 35, 36, 37
sFH, sPH, sB1o, sFU, sUS, sFUc, sPU, sFOc, sSH1 = 16, 17, 28, 29, 30, 31, 32, 33, 81
def g_setup1(a, mid=None):
    srd(a, R_B1, P_B1, 1792 * 2)
    a(f"""
    s_lshr_b32 s{sGM}, s{sG}, 1
    s_and_b32 s{sGN}, s{sG}, 1
    s_lshl_b32 s{sRing}, s{sG}, 11
    s_add_u32 s{sRing}, s{sRing}, {L_RING}
    v_lshlrev_b32 v{vDWO}, 2, v10
    v_xor_b32 v{vDWO}, v{vDWO}, v6
    v_lshlrev_b32 v{vDWO}, 4, v{vDWO}
    v_lshl_add_u32 v{vT3}, v8, 7, v9
    v_lshlrev_b32 v24, 5, v8
    v_and_b32 v24, 64, v24
    v_add_u32 v{vT3}, v{vT3}, v24
    v_add_u32 v{vT3}, s{sRing}, v{vT3}
    s_lshr_b32 s{sT0}, s{sJ}, 3
    s_mul_i32 s{sT0}, s{sT0}, 6
    s_add_u32 s{sT0}, s{sT0}, s{sCB}
    s_cmp_lt_u32 s{sCB}, 6
    s_cselect_b32 s{sHasG1}, 1, 0
    s_and_b32 s{sT1}, s2, 0xf9
    s_cmp_eq_u32 s{sT1}, 48
    s_cselect_b32 s{sT0}, 24, s{sT0}
    s_cselect_b32 s{sHasG1}, 1, s{sHasG1}
    s_and_b32 s{sT1}, s{sXCD}, 1
    s_mul_i32 s{sT1}, s{sT1}, 25
    s_add_u32 s{sT0}, s{sT0}, s{sT1}
    s_mul_i32 s{sA}, s{sT0}, 37
    s_lshr_b32 s{sA}, s{sA}, 8
    s_mul_i32 s{sT1}, s{sA}, 7
    s_sub_u32 s{sPH}, s{sT0}, s{sT1}
    s_lshr_b32 s{sFB}, s{sXCD}, 1
    s_mul_i32 s{sFB}, s{sFB}, 7
    s_add_u32 s{sFB}, s{sFB}, s{sPH}
    """)
    if mid: mid()
    a(f"""
    v_mul_u32_u24 v{vDW1}, 3584, v5
    v_add_u32 v{vDW1}, v{vDW1}, v{vDWO}
    v_lshl_add_u32 v{vDW2}, v5, 12, v{vDWO}
    v_mul_u32_u24 v24, 896, v5
    v_add_u32 v{vDWO}, v24, v{vDWO}
    s_mul_i32 s{sD}, s{sG}, {512*3584}
    s_lshl_b32 s{sT0}, s{sFB}, 7
    s_add_u32 s{sD}, s{sD}, s{sT0}
    s_lshl_b32 s{sT1}, s{sGM}, 6
    s_add_u32 s{sB1o}, s{sT0}, s{sT1}
    v_lshl_add_u32 v24, v{vHH}, 10, v{vT3}
    v_xor_b32 v{vT1}, s{sT1}, v24
    v_xor_b32 v{vT1+1}, 64, v{vT1}
    v_add_u32 v{vTH}, 0x10000, v{vT1}
    v_add_u32 v{vTH+1}, 0x10000, v{vT1+1}
    s_lshl_b32 s{sT0}, s{sGN}, 10
    v_add_u32 v{vLN}, s{sT0}, v{vL16}
    v_xor_b32 v{vLN+1}, 0x400, v{vLN}
    s_lshl_b32 s{sL}, s{sA}, 18
    s_lshl_b32 s{sT0}, s{sG}, 16
    s_add_u32 s{sL}, s{sL}, s{sT0}
    s_add_u32 s{sSH1}, s{sPH}, 1
    s_lshl_b32 s{sPH}, s{sSH1}, 13
    s_add_u32 s{sPH}, s{sPH}, s{sL}
    v_lshlrev_b32 v{vPF}, 7, v{vLANE}
    v_add_u32 v{vSW}, s{sRing}, v{vL16}
    v_add_u32 v{vSW+1}, 0x10000, v{vSW}
    s_lshr_b32 s{sFH}, s{sA}, 1
    s_lshl_b32 s{sFH}, s{sFH}, 9
    s_lshl_b32 s{sT0}, s{sG}, 7
    s_add_u32 s{sFH}, s{sFH}, s{sT0}
    s_lshl_b32 s{sFH}, s{sFH}, {FS}
    s_add_u32 s{sFH}, s{sFH}, {FL_H}
    v_bfe_u32 v32, v{vJ}, 1, 3
    v_lshlrev_b32 v32, 4, v32
    v_xor_b32 v32, s{sT1}, v32
    v_lshl_add_u32 v32, v{vJ}, 7, v32
    v_lshl_add_u32 v32, v{vHH}, 3, v32
    s_lshl_b32 s{sT0}, s{sCB}, 13
    s_lshl_b32 s{sT1}, s{sGN}, 12
    s_add_u32 s{sT0}, s{sT0}, s{sT1}
    v_add_u32 v32, s{sT0}, v32
    v_xor_b32 v33, 16, v32
    v_xor_b32 v34, 32, v32
    v_xor_b32 v35, 48, v32
    """)
    assert WS_HT == 0
def g_xread(a):
    lds_wait(a, C_X1, 4)
    lds_wait(a, C_XA, 4)
    for g, v in enumerate((32, 33, 34, 35)): a(f"ds_read_b64 {vr(6+2*g,2)}, v{v} offset:{L_XT}")
    lds_arrive(a, C_ST, nowait=True)

def g_setup2(a):
    srd(a, R_W2, P_W2, 1792 * 4096)
    srd(a, R_WO, P_WO, 448 * 896)
    srd(a, R_OUT, P_OUT, 2048 * 896)
    srd(a, R_B2, P_B2, 2048 * 2)
    a(f"""
    s_mul_i32 s{sDb}, s{sG}, {448*4096}
    s_lshl_b32 s{sT0}, s{sRB}, 7
    s_add_u32 s{sDb}, s{sDb}, s{sT0}
    s_mul_i32 s{sD2}, s{sG}, {112*896}
    s_lshl_b32 s{sT0}, s{sCB}, 7
    s_add_u32 s{sD2}, s{sD2}, s{sT0}
    s_lshl_b32 s{sT0}, s{sGM}, 6
    s_lshl_b32 s{sT1}, s{sGN}, 6
    v_lshl_add_u32 v24, v{vHH}, 9, v{vT3}
    v_xor_b32 v{vT2}, s{sT1}, v24
    v_xor_b32 v{vT2+1}, 64, v{vT2}
    v_xor_b32 v{vT3}, s{sT0}, v24
    v_xor_b32 v{vT3+1}, 64, v{vT3}
    s_lshl_b32 s{sT0}, s{sGM}, 10
    v_add_u32 v{vLM}, s{sT0}, v{vL16}
    v_xor_b32 v{vLM+1}, 0x400, v{vLM}
    s_mul_i32 s{sLb}, s{sCB}, 112
    s_mul_i32 s{sT0}, s{sG}, 28
    s_add_u32 s{sLb}, s{sLb}, s{sT0}
    s_lshl_b32 s{sLb}, s{sLb}, 11
    s_add_u32 s{sLb}, s{sLb}, {WS_U}
    s_lshr_b32 s{sT0}, s{sJ}, 3
    s_add_u32 s{sT0}, s{sT0}, 3
    s_lshl_b32 s{sT0}, s{sT0}, 13
    s_add_u32 s{sPU}, s{sT0}, s{sLb}
    s_lshl_b32 s{sL2}, s{sRB}, 16
    s_lshl_b32 s{sT0}, s{sG}, 14
    s_add_u32 s{sL2}, s{sL2}, s{sT0}
    s_add_u32 s{sL2}, s{sL2}, {WS_O}
    v_mul_u32_u24 v{vOUT}, 896, v{vJ}
    v_lshl_add_u32 v{vOUT}, v{vHH}, 4, v{vOUT}
    s_lshl_b32 s{sT0}, s{sRB}, 1
    s_add_u32 s{sT0}, s{sT0}, s{sGN}
    s_lshl_b32 s{sB2}, s{sT0}, 6
    s_mul_i32 s{sT0}, s{sT0}, {32*896}
    s_lshl_b32 s{sT1}, s{sCB}, 7
    s_add_u32 s{sT0}, s{sT0}, s{sT1}
    s_lshl_b32 s{sT1}, s{sGM}, 6
    s_add_u32 s{sOUT}, s{sT0}, s{sT1}
    v_lshrrev_b32 v{vPF2}, 2, v{vLANE}
    v_and_b32 v24, 3, v{vLANE}
    v_lshlrev_b32 v{vPF2}, 12, v{vPF2}
    v_lshl_add_u32 v{vPF2}, v24, 7, v{vPF2}
    s_mul_i32 s{sT0}, s{sA}, 112
    s_lshl_b32 s{sT1}, s{sFB}, 2
    s_add_u32 s{sT0}, s{sT0}, s{sT1}
    s_lshl_b32 s{sT2}, s{sGM}, 1
    s_add_u32 s{sT0}, s{sT0}, s{sT2}
    s_lshl_b32 s{sT0}, s{sT0}, 11
    s_add_u32 s{sUS}, s{sT0}, {WS_U}
    s_lshl_b32 s{sT0}, s{sA}, 7
    s_add_u32 s{sT0}, s{sT0}, s{sT1}
    s_add_u32 s{sT0}, s{sT0}, s{sG}
    s_lshl_b32 s{sT0}, s{sT0}, 3
    s_lshl_b32 s{sT0}, s{sT0}, {FS}
    s_add_u32 s{sFU}, s{sT0}, {FL_U}
    s_lshl_b32 s{sT0}, s{sCB}, 10
    s_mul_i32 s{sT1}, s{sG}, 224
    s_add_u32 s{sT0}, s{sT0}, s{sT1}
    s_lshl_b32 s{sT0}, s{sT0}, {FS}
    s_add_u32 s{sFUc}, s{sT0}, {FL_U}
    s_lshl_b32 s{sT0}, s{sRB}, 8
    s_lshl_b32 s{sT1}, s{sG}, 6
    s_add_u32 s{sT0}, s{sT0}, s{sT1}
    s_lshl_b32 s{sT0}, s{sT0}, {FS}
    s_add_u32 s{sFOc}, s{sT0}, {FL_O}
    """)
    for i in range(2, 6): a(f"v_add_u32 v{vTH+i}, 0x10000, v{vT1+i}")
    if OPT.ra or OPT.rb:
        a(f"""
        s_lshr_b32 s{sT0}, s{sJ}, 3
        s_mul_i32 s{sT0}, s{sT0}, {OPT.ra}
        s_mul_i32 s{sT1}, s{sXCD}, {OPT.rb}
        s_add_u32 s{sT0}, s{sT0}, s{sT1}
        s_mul_i32 s{sT1}, s{sT0}, 2341
        s_lshr_b32 s{sT1}, s{sT1}, 16
        s_mul_i32 s{sT1}, s{sT1}, 28
        s_sub_u32 s{sT0}, s{sT0}, s{sT1}
        s_mov_b32 s{sLb0}, s{sLb}
        s_add_u32 s{sLbE}, s{sLb}, {28*2048}
        s_mov_b32 s{sDb0}, s{sDb}
        s_add_u32 s{sDbE}, s{sDb}, {28*16*4096}
        s_lshl_b32 s{sT1}, s{sT0}, 11
        s_add_u32 s{sLb}, s{sLb}, s{sT1}
        s_lshl_b32 s{sT1}, s{sT0}, 16
        s_add_u32 s{sDb}, s{sDb}, s{sT1}
        """)
        assert all((x * 2341) >> 16 == x // 28 for x in range(200))
    if OPT.nou: a(f"v_mov_b32 v{vLM}, {OOB}\nv_mov_b32 v{vLM+1}, {OOB}")
    if OPT.now2: a(f"v_mov_b32 v{vDW2}, {OOB}")

L_HB2 = L_WKV
def p1_g(a):
    X, U = 128, 160
    htype = a.label("gh"); pfw = a.label("gpfw")
    a(f"s_sub_u32 s{sG}, s{sW}, 4")
    common_srds(a)
    pf1_addr(a)
    epoch_load(a)
    a(f"s_cmp_ge_u32 s{sCB}, 6\ns_cbranch_scc1 {htype}")
    a("s_barrier")
    rest_dma(a)
    stamp(a, 2)
    get_tag(a)
    g_setup1(a, lambda: (a("s_waitcnt vmcnt(0)"), lds_arrive(a, C_X, nowait=True), stamp(a, 3)))
    lds_wait(a, C_FL, 1)
    a(f"s_branch {pfw}")
    a(f"""
    {htype}:
    s_lshl_b32 s{sT0}, s{sRB}, 1
    s_add_u32 s{sT0}, s{sT0}, s{sNT}
    s_lshl_b32 s{sT1}, s{sNT}, 5
    s_lshl_b32 s{sT2}, s{sG}, 2
    s_add_u32 s{sT1}, s{sT1}, s{sT2}
    v_add_u32 v11, s{sT1}, v7
    v_and_b32 v13, 1, v5
    v_lshlrev_b32 v12, 13, v13
    v_lshl_add_u32 v12, v11, 7, v12
    v_lshl_add_u32 v12, v6, 4, v12
    v_bfe_u32 v11, v11, 1, 3
    v_xor_b32 v11, v11, v6
    v_mul_u32_u24 v14, {HB_STRIDE}, v7
    v_lshl_add_u32 v14, v11, 4, v14
    v_lshl_add_u32 v14, v13, 7, v14
    s_mul_i32 s{sT2}, s{sG}, {4*HB_STRIDE}
    s_add_u32 s{sT2}, s{sT2}, {L_HB2}
    v_add_u32 v14, s{sT2}, v14
    v_lshl_add_u32 v15, v{vHH}, 3, v8
    v_mul_u32_u24 v15, {HB_STRIDE}, v15
    v_add_u32 v15, v15, v9
    s_lshl_b32 s{sT2}, s{sG}, 8
    s_add_u32 s{sT2}, s{sT2}, {L_HB2}
    v_add_u32 v15, s{sT2}, v15
    s_lshl_b32 s{sT2}, s{sG}, 19
    s_lshl_b32 s{sT3}, s{sT0}, 12
    s_add_u32 s{sT2}, s{sT2}, s{sT3}
    s_add_u32 s{sT3}, s{sT2}, {128*2048}
    s_lshl_b32 s{sT4}, s{sG}, 6
    s_add_u32 s{sT4}, s{sT4}, s{sT0}
    s_lshl_b32 s{sT4}, s{sT4}, {3+FS}
    s_add_u32 s{sT4}, s{sT4}, {FL_H}
    v_mov_b32 v17, 0xffff0000
    s_mov_b32 vcc_lo, 0x00ff00ff
    s_mov_b32 vcc_hi, 0x00ff00ff
    """)
    for p in range(2):
        for i in range(4): a(f"v_mov_b32 v{X+16*p+12+i}, 0")
    S = [32, 40]
    for p in range(2): a(f"v_mov_b32 v{S[p]}, 0\nv_mov_b32 v{S[p]+1}, 0")
    a("s_barrier\ns_setprio 3")
    lds_wait(a, C_X1, 4)
    stamp(a, 2)
    for p in range(2):
        for i in range(3): a(f"ds_read_b128 {vr(X+16*p+4*i,4)}, v12 offset:{L_XT + 16384*i + 2048*p}")
        a(f"s_mov_b64 exec, vcc\nds_read_b128 {vr(X+16*p+12,4)}, v12 offset:{L_XT + 16384*3 + 2048*p}\ns_mov_b64 exec, -1")
    for p in range(2):
        for i in range(16):
            if i % 4 == 0: a(f"s_waitcnt lgkmcnt({7-4*p-i//4})")
            a(f"v_dot2c_f32_bf16 v{S[p]}, s{sONES}, v{X+16*p+i}")
            a(f"v_dot2c_f32_bf16 v{S[p]+1}, v{X+16*p+i}, v{X+16*p+i}")
    un = []
    for i in range(32): un += [f"v_lshlrev_b32 v{U+2*i}, 16, v{X+i}", f"v_and_b32 v{U+2*i+1}, v17, v{X+i}"]
    for x in un[:3]: a(x)
    def both(txt):
        for line in txt.strip().split("\n"):
            for p in range(2): a(line.strip().format(s=S[p], q=S[p]+1, t=S[p]+2, r=S[p]+4, r2=S[p]+5, m=S[p]+6))
    for mode in (QP1, QP2, RHM, RM):
        both("v_add_f32_dpp v{s}, v{s}, v{s} %s row_mask:0xf bank_mask:0xf\nv_add_f32_dpp v{q}, v{q}, v{q} %s row_mask:0xf bank_mask:0xf" % (mode, mode))
    rstd = """
    v_and_b32 v{t}, v17, v{t}
    v_add_f32 v{t}, %#x, v{t}
    v_cvt_pk_bf16_f32 v{t}, v{t}, v{t}
    v_and_b32 v{t}, v17, v{t}
    v_sqrt_f32 v{t}, v{t}
    v_cvt_pk_bf16_f32 v{t}, v{t}, v{t}
    v_and_b32 v{t}, v17, v{t}
    v_rcp_f32 v{%s}, v{t}
    """
    both("""
    v_mul_f32 v{s}, %s, v{s}
    v_mul_f32 v{q}, %s, v{q}
    v_fma_f32 v{q}, -v{s}, v{s}, v{q}
    v_max_f32 v{q}, 0, v{q}
    v_cvt_pk_bf16_f32 v{t}, v{s}, v{q}
    v_lshlrev_b32 v{m}, 16, v{t}
    """ % (f32(1/448), f32(1/448)))
    both(rstd % (EPS, "r"))
    both("""
    v_sub_f32 v{s}, v{s}, v{m}
    v_mul_f32 v{s}, v{s}, v{r}
    v_mul_f32 v{q}, v{q}, v{r}
    v_mul_f32 v{q}, v{q}, v{r}
    v_cvt_pk_bf16_f32 v{t}, v{s}, v{q}
    v_lshlrev_b32 v{s}, 16, v{t}
    v_fma_f32 v{m}, v{m}, v{r}, v{s}
    """)
    both(rstd % (EPS, "r2"))
    for x in un[3:]: a(x)
    both("v_mul_f32 v{m}, v{m}, v{r2}\nv_mul_f32 v{r}, v{r}, v{r2}")
    for p in range(2):
        for i in range(16):
            if i == 12: a("s_mov_b64 exec, vcc")
            u = U + 32 * p + 2 * i
            a(f"""
            v_pk_fma_f32 {vr(u,2)}, {vr(u,2)}, {vr(S[p]+4,2)}, {vr(S[p]+6,2)} op_sel_hi:[1,0,0] neg_lo:[0,0,1] neg_hi:[0,0,1]
            v_cvt_pk_bf16_f32 v{X+16*p+i}, v{u}, v{u+1}
            """)
            if i % 4 == 3: a(f"ds_write_b128 v14, {vr(X+16*p+i-3,4)} offset:{256*(i//4) + 16*HB_STRIDE*p}")
        a("s_mov_b64 exec, -1")
    stamp(a, 3)
    lds_arrive(a, C_H, nowait=True)
    lds_wait(a, C_H, 4)
    n = 0
    for p in range(2):
        for f in range(4):
            for x in range(2):
                if n == 15: a("s_waitcnt lgkmcnt(14)")
                a(f"ds_read_b64_tr_b16 {vr(U+16*p+4*f+2*x,2)}, v15 offset:{x*4*HB_STRIDE + f*64 + 16*HB_STRIDE*p}"); n += 1
    for p in range(2):
        for f in range(4):
            a(f"s_waitcnt lgkmcnt({14-8*p-2*f})")
            a(f"buffer_store_dwordx4 {vr(U+16*p+4*f,4)}, v{vL16}, {sr(R_WS,4)}, s{sT2 + (f>>1)} offen offset:{1024*(f&1) + 2048*p} sc1")
    lds_arrive(a, C_FL, nowait=True)
    stamp(a, 4)
    g_setup1(a)
    get_tag(a)
    set_flag(a, sT4)
    a("s_setprio 0")
    stamp(a, 5)
    lds_wait(a, C_FL, 4)
    lds_wait(a, C_ISS, 4)
    a(f"{pfw}:")

sK, sKF, sKP = 94, 95, 96
AQ, AO, AS, AP, AKV = 32, 64, 128, 160, 176
def att_setup(a):
    a(f"""
    s_add_u32 s{R_KV}, s{P_WS}, {WS_KV}
    s_addc_u32 s{R_KV+1}, s{P_WS+1}, 0
    s_add_u32 s{sT0}, s{sW}, 1
    s_lshl_b32 s{R_KV+2}, s{sT0}, 16
    s_mov_b32 s{R_KV+3}, 0x20000
    v_lshlrev_b32 v5, 7, v{vLANE}
    v_lshlrev_b32 v25, {3+FS}, v{vJ}
    s_lshr_b32 s{sKP}, s{sJ}, 1
    s_and_b32 s{sKP}, s{sKP}, 4
    s_add_u32 s{sKP}, s{sKP}, s{sCB}
    s_lshl_b32 s{sKP}, s{sKP}, 13
    s_lshl_b32 s{sT0}, s{sW}, 16
    s_add_u32 s{sKP}, s{sKP}, s{sT0}
    s_and_b32 s{sT0}, s{sJ}, 0x14
    s_cmp_lg_u32 s{sT0}, 0
    s_cselect_b32 s{sKP}, {OOB}, s{sKP}
    s_lshl_b32 s{sKF}, s{sW}, 8
    s_lshl_b32 s{sKF}, s{sKF}, {FS}
    s_add_u32 s{sKF}, s{sKF}, {FL_KV}
    """)
def kvload(a, buf):
    for j in range(4):
        a(f"buffer_load_dwordx4 {vr(AKV+16*buf+4*j,4)}, v{vL16}, {sr(R_KV,4)}, s{sK} offen offset:{1024*j} sc1")
    a(f"s_add_u32 s{sK}, s{sK}, 4096")
def first_kv(a):
    a(f"s_lshl_b32 s{sK}, s{sW}, 16")
    kvload(a, 0)
    a(f"buffer_load_dword v253, v5, {sr(R_KV,4)}, s{sKP} offen sc1")
    kvload(a, 1); kvload(a, 2)

def attention(a, done):
    Q, O, S, P, KV = AQ, AO, AS, AP, AKV
    NM = 20
    sIt, sRetry, sOS, sOF = sT1, sT3, 84, 85
    vMW, vRW, vMR, vRR = 8, 12, 15, 16
    go = a.label("att_go"); mloop = a.label("att_mloop"); loop = a.label("att_loop"); ok = a.label("att_ok"); havekv = a.label("att_havekv")
    a(f"s_mov_b32 s{sRetry}, 0\ns_cmp_eq_u32 s{sKF}, 0\ns_cbranch_scc1 {havekv}")
    lds_wait(a, C_PRE, 4)
    stamp(a, 9)
    poll(a, sKF, 32)
    stamp(a, 10)
    first_kv(a)
    a(f"{havekv}:")
    for i in range(1, 4):
        a(f"""
        s_add_u32 s{sT0}, s{sW}, {i}
        s_and_b32 s{sT0}, s{sT0}, 3
        s_lshl_b32 s{sT0}, s{sT0}, 11
        s_add_u32 s{sT0}, s{sT0}, {L_QS}
        v_add_u32 v{16+i}, s{sT0}, v{vL16}
        """)
    lds_wait(a, C_Q, 4)
    for i in range(1, 4):
        a(f"ds_read_b128 {vr(Q+8*i,4)}, v{16+i}\nds_read_b128 {vr(Q+8*i+4,4)}, v{16+i} offset:1024")
    for r in range(12, 64): a(f"v_mov_b32 v{O+r}, 0")
    for i in range(4):
        a(f"""
        s_add_u32 s{sT0}, s{sW}, {i+1}
        s_and_b32 s{sT0}, s{sT0}, 3
        s_lshl_b32 s{sT2}, s{sT0}, 9
        s_add_u32 s{sT2}, s{sT2}, {L_MX + 128*i}
        v_lshl_add_u32 v{vMW+i}, v{vJ}, 2, s{sT2}
        s_mul_i32 s{sT2}, s{sT0}, 12288
        s_add_u32 s{sT2}, s{sT2}, {L_RED + 4096*(i%3)}
        v_add_u32 v{vRW+i if i < 3 else vRR}, s{sT2}, v{vL16}
        """)
    a(f"""
    v_subrev_u32 v{vMR}, 384, v{vMW+3}
    s_add_u32 s{sT0}, s{sW}, 3
    s_and_b32 s{sT2}, s{sT0}, 1
    s_lshl_b32 s{sOS}, s{sCB}, 1
    s_add_u32 s{sOS}, s{sOS}, s{sT2}
    s_lshl_b32 s{sOS}, s{sOS}, 12
    s_lshl_b32 s{sT2}, s{sRB}, 16
    s_add_u32 s{sOS}, s{sOS}, s{sT2}
    s_and_b32 s{sT2}, s{sT0}, 2
    s_lshl_b32 s{sT2}, s{sT2}, 9
    s_add_u32 s{sOS}, s{sOS}, s{sT2}
    s_add_u32 s{sOS}, s{sOS}, {WS_O}
    s_lshl_b32 s{sOF}, s{sRB}, 3
    s_add_u32 s{sOF}, s{sOF}, s{sCB}
    s_lshl_b32 s{sOF}, s{sOF}, 2
    s_add_u32 s{sOF}, s{sOF}, s{sW}
    s_lshl_b32 s{sOF}, s{sOF}, {3+FS}
    s_add_u32 s{sOF}, s{sOF}, {FL_O}
    s_mov_b32 s{sT4}, 0x71800000
    """)
    TMP = [S, S + 16, KV + 48, P]
    def scan_mf(kreg):
        for i in range(4):
            a(f"{MF} {vr(TMP[i],16)}, {vr(kreg,4)}, {vr(Q+8*i,4)}, 0")
            a(f"{MF} {vr(TMP[i],16)}, {vr(kreg+4,4)}, {vr(Q+8*i+4,4)}, {vr(TMP[i],16)}")
    a("s_waitcnt vmcnt(11) lgkmcnt(0)")
    stamp(a, 11)
    scan_mf(KV)
    a(f"s_nop 4\ns_mov_b64 exec, {sr(sHI,2)}")
    for i in range(4):
        t = TMP[i]
        a(f"v_max3_f32 v{NM+i}, v{t}, v{t+1}, v{t+2}")
        for j in range(3, 15, 2): a(f"v_max3_f32 v{NM+i}, v{t+j}, v{t+j+1}, v{NM+i}")
        a(f"""
        v_max_f32 v{NM+i}, v{t+15}, v{NM+i}
        v_cvt_pk_bf16_f32 v{Q+8*i+6}, -v{NM+i}, 0
        v_lshlrev_b32 v{NM+i}, 16, v{Q+8*i+6}
        """)
    a(f"{go}:")
    for i in range(4): a(f"ds_write_b32 v{vMW+i}, v{NM+i}")
    a("s_mov_b64 exec, -1")
    a(f"{MF} {vr(S,16)}, {vr(KV,4)}, {vr(Q,4)}, 0")
    a(f"{MF} {vr(S,16)}, {vr(KV+4,4)}, {vr(Q+4,4)}, {vr(S,16)}")
    for r in range(8): a(f"v_mov_b32 v{KV+48+8+r}, 0")
    for r in range(8): a(f"v_mov_b32 v{P+8+r}, 0")
    a(f"v_mov_b32 v{S+30}, 0\nv_mov_b32 v{S+31}, 0")
    def smf(q, b, kb):
        d = vr(S + 16 * b, 16)
        return [f"{MF} {d}, {vr(KV+16*kb,4)}, {vr(Q+8*q,4)}, 0", f"{MF} {d}, {vr(KV+16*kb+4,4)}, {vr(Q+8*q+4,4)}, {d}"]
    def pv(q, b, kb):
        d = vr(O + 16 * q, 16)
        return [f"{MF} {d}, {vr(KV+16*kb+8,4)}, {vr(P+8*b,4)}, {d}", f"{MF} {d}, {vr(KV+16*kb+12,4)}, {vr(P+8*b+4,4)}, {d}"]
    def pk(b, i): return f"v_cvt_pk_bf16_f32 v{P+8*b+i}, v{S+16*b+2*i}, v{S+16*b+2*i+1}"
    def owrite(i): return ['s_nop 0'] * 4 if OPT.nocomb else [f"ds_write_b128 v{vRW+i}, {vr(O+16*i+4*g,4)} offset:{1024*g}" for g in range(4)]
    a(f"s_mov_b32 s{sIt}, {OPT.attit-1}\ns_waitcnt vmcnt(8)")
    stamp(a, 12)
    if OPT.prio_ld: a(f"s_setprio {OPT.prio_a}")
    def body(lastit):
        for n in range(16):
            T, q, b = n // 4, n % 4, n % 2
            if lastit and n == 14: lds_wait(a, C_R1D, 4)
            va = []
            for i in range(8):
                r = S + 16 * b + 2 * i
                va += [f"v_exp_f32 v{r}, v{r}", f"v_exp_f32 v{r+1}, v{r+1}", pk(b, i - 1) if i else pk(1 - b, 7)]
            s = smf((q + 1) % 4, 1 - b, ((n + 1) // 4) % 4)
            p = pv((q - 1) % 4, 1 - b, ((n - 1) // 4) % 4)
            pos = [[3, 9, 15, 21], [3, 7, 15, 19]][OPT.order]
            ins = {pos[0]: [s[0]], pos[1]: [s[1]], pos[2]: [p[0]], pos[3]: [p[1]]}
            if lastit and n == 15: ins = {pos[0]: [p[0]], pos[1]: [p[1]]}
            if q == 3 and not (lastit and T == 3):
                ins[1] = [f"s_waitcnt vmcnt({7 if not lastit or T == 0 else 4 if T == 1 else 0})"]
            if not lastit or T == 0:
                buf = (T - 1) % 4
                ins[11] = [f"buffer_load_dwordx4 {vr(KV+16*buf+4*q,4)}, v{vL16}, {sr(R_KV,4)}, s{sK} offen offset:{1024*q} sc1"]
                if OPT.prio_ld:
                    ins[10] = [f"s_setprio {OPT.prio_ld}"]
                    ins[13] = [f"s_setprio {OPT.prio_a}"]
                if q == 3: ins[14] = [f"s_add_u32 s{sK}, s{sK}, 4096"]
            if n == 15 and not lastit:
                ins[17] = [f"s_sub_u32 s{sIt}, s{sIt}, 1"]
                ins[22] = [f"s_cmp_lg_u32 s{sIt}, 0"]
            if lastit and n == 14:
                for g, x in enumerate(owrite(0)): ins.setdefault([10, 13, 17, 22][g], []).append(x)
            if lastit and n == 15:
                for g, x in enumerate(owrite(1)): ins.setdefault([8, 10, 13, 16][g], []).append(x)
                for g, x in enumerate(owrite(2)[:2]): ins.setdefault([20, 22][g], []).append(x)
            for i, x in enumerate(va):
                for y in ins.get(i, []): a(y)
                a(x)
    if OPT.attit > 1:
        a(".p2align 6")
        a(f"{loop}:")
        body(False)
        a(f"s_cbranch_scc1 {loop}")
    body(True)
    if OPT.prio_ld: a(f"s_setprio {OPT.prio_ld}")
    a(pk(1, 7))
    for x in owrite(2)[2:]: a(x)
    for x in pv(3, 1, 3): a(x)
    stamp(a, 13)
    a(f"""
    v_add_f32 v17, v{O+12}, v{O+28}
    v_add_f32 v17, v17, v{O+44}
    s_nop 9
    v_add_f32 v17, v17, v{O+60}
    v_cmp_nlt_f32_e64 vcc, v17, s{sT4}
    s_and_b64 vcc, vcc, {sr(sHI,2)}
    s_cbranch_scc0 {ok}
    s_cmp_lg_u32 s{sRetry}, 0
    s_cbranch_scc1 {ok}
    s_mov_b32 s{sRetry}, 1
    s_waitcnt lgkmcnt(0)
    s_mov_b64 exec, {sr(sHI,2)}
    """)
    for i in range(4): a(f"v_mov_b32 v{Q+8*i+6}, 0\nv_mov_b32 v{Q+8*i+7}, 0")
    a(f"s_mov_b64 exec, -1\ns_lshl_b32 s{sK}, s{sW}, 16\ns_mov_b32 s{sIt}, 16")
    for r in range(64): a(f"v_mov_b32 v{O+r}, 0")
    for i in range(4): a(f"v_mov_b32 v{NM+i}, 0xff800000")
    a(f"""
    {mloop}:
    buffer_load_dwordx4 {vr(KV,4)}, v{vL16}, {sr(R_KV,4)}, s{sK} offen sc1
    buffer_load_dwordx4 {vr(KV+4,4)}, v{vL16}, {sr(R_KV,4)}, s{sK} offen offset:1024 sc1
    s_add_u32 s{sK}, s{sK}, 4096
    s_waitcnt vmcnt(0)
    """)
    scan_mf(KV)
    a("s_nop 11")
    for i in range(4):
        for j in range(8): a(f"v_max3_f32 v{NM+i}, v{TMP[i]+2*j}, v{TMP[i]+2*j+1}, v{NM+i}")
    a(f"""
    s_sub_u32 s{sIt}, s{sIt}, 1
    s_cmp_lg_u32 s{sIt}, 0
    s_cbranch_scc1 {mloop}
    """)
    first_kv(a)
    for i in range(4): a(f"v_mov_b32 v{S+i}, v{NM+i}")
    a("s_nop 1")
    for i in range(4): a(f"v_permlane32_swap_b32 v{S+i}, v{NM+i}")
    for i in range(4): a(f"v_max_f32 v{NM+i}, v{S+i}, v{NM+i}")
    a(f"s_mov_b64 exec, {sr(sHI,2)}")
    for i in range(4):
        a(f"""
        v_sub_f32 v{NM+i}, 0, v{NM+i}
        v_cvt_pk_bf16_f32 v17, v{NM+i}, 0
        v_lshlrev_b32 v18, 16, v17
        v_sub_f32 v18, v{NM+i}, v18
        v_cvt_pk_bf16_f32 v19, v18, 0
        v_lshl_or_b32 v{Q+8*i+6}, v19, 16, v17
        v_lshlrev_b32 v19, 16, v19
        v_sub_f32 v18, v18, v19
        v_cvt_pk_bf16_f32 v{Q+8*i+7}, v18, 0
        """)
    a(f"s_waitcnt vmcnt(11)\ns_branch {go}\n{ok}:")
    lds_arrive(a, C_ATT, nowait=True)
    if not OPT.nocomb: lds_wait(a, C_ATT, 4)
    stamp(a, 16)
    OW = O + 48
    if OPT.nocomb: a(f"v_mov_b32 v17, v{OW+12}\nv_mov_b32 v18, v{OW+12}\ns_nop 1\nv_permlane32_swap_b32 v17, v18\nv_rcp_f32 v18, v18\ns_branch nocomb")
    for i in range(4): a(f"ds_read_b32 v{NM+i}, v{vMR} offset:{128*i}")
    for i in range(3):
        for g in range(4):
            if i == 2 and g == 3: a("s_waitcnt lgkmcnt(11)")
            a(f"ds_read_b128 {vr(O+16*i+4*g,4)}, v{vRR} offset:{4096*i+1024*g}")
    a(f"""
    v_min3_f32 v17, v{NM}, v{NM+1}, v{NM+2}
    v_min_f32 v17, v17, v{NM+3}
    """)
    for i in (3, 0, 1, 2): a(f"v_sub_f32 v{NM+i}, v17, v{NM+i}")
    for i in (3, 0, 1, 2): a(f"v_exp_f32 v{NM+i}, v{NM+i}")
    for r in range(16): a(f"v_mul_f32 v{OW+r}, v{NM+3}, v{OW+r}")
    for i in range(3):
        a(f"s_waitcnt lgkmcnt({4*(2-i)})")
        R = [12] + [r for r in range(16) if r != 12] if i == 2 else range(16)
        for n, r in enumerate(R):
            a(f"v_fmac_f32 v{OW+r}, v{NM+i}, v{O+16*i+r}")
            if i == 2 and n == 0: a(f"v_mov_b32 v17, v{OW+12}\nv_mov_b32 v18, v{OW+12}")
            if i == 2 and n == 2: a("v_permlane32_swap_b32 v17, v18")
            if i == 2 and n == 3: a("v_rcp_f32 v18, v18")
    a("nocomb:")
    for h in range(2):
        for r in range(8 * h, 8 * h + 8): a(f"v_mul_f32 v{OW+r}, v18, v{OW+r}")
        for i in range(4 * h, 4 * h + 4): a(f"v_cvt_pk_bf16_f32 v{O+i}, v{OW+2*i}, v{OW+2*i+1}")
        if h: a(f"s_mov_b64 exec, {sr(sHI,2)}\nv_mov_b32 v{O+6}, 0\nv_mov_b32 v{O+7}, 0\ns_mov_b64 exec, -1")
        a(f"buffer_store_dwordx4 {vr(O+4*h,4)}, v{vL16}, {sr(R_WS,4)}, s{sOS} offen offset:{2048*h} sc1")
    stamp(a, 17)
    set_flag(a, sOF)
    a(f"s_branch {done}")

class VM:
    def __init__(self): self.q = []
    def issue(self, tag):
        if OPT.dropw and tag[0] == 'd' and tag[1] >= OPT.dropw: return
        self.q.append(tag)
    def wait(self, tags):
        idx = [i for i, t in enumerate(self.q) if t in tags]
        if not idx: return None
        n = len(self.q) - 1 - max(idx)
        assert n <= 63
        self.q = self.q[max(idx) + 1:]
        return n

ACC, AF, BF, DH, SG = 64, 32, 128, 8, 192
def reduce4(a, cnt, red, st0, st1, h0=None, h1=None, h2=None):
    base, stride, off = red
    stamp(a, st0)
    if h0: h0()
    for i in range(4):
        a(f"""
        s_xor_b32 s{sT0}, s{sG}, {i}
        s_mul_i32 s{sT1}, s{sT0}, {stride}
        s_add_u32 s{sT1}, s{sT1}, {base}
        v_add_u32 v{24+i}, s{sT1}, v{vL16}
        """)
    for i in range(1, 4):
        for g in range(4): a(f"ds_write_b128 v24, {vr(ACC+16*i+4*g,4)} offset:{off(4*(i-1)+g)}")
    lds_arrive(a, cnt, nowait=True)
    if h1: h1()
    lds_wait(a, cnt, 4)
    stamp(a, st1)
    for i in range(1, 4):
        for g in range(4): a(f"ds_read_b128 {vr(ACC+16*i+4*g,4)}, v{24+i} offset:{off(4*(i-1)+g)}")
    if h2: h2()
    for i in range(1, 4):
        a(f"s_waitcnt lgkmcnt({4*(3-i)})")
        for r in range(16): a(f"v_add_f32 v{ACC+r}, v{ACC+r}, v{ACC+16*i+r}")

def gpath(a, done):
    global DH, SG
    DH = OPT.dh; SG = BF + 8 * DH
    assert SG + 8 * max(OPT.nsg, OPT.nsg2) <= 240
    vm = VM()
    N1, N2, N3 = 32, 60, 68
    nsg = OPT.nsg
    staged = {OPT.pre0 + i: i for i in range(nsg)}
    nsg2 = OPT.nsg2
    staged.update({N1 + OPT.pre + i: i for i in range(nsg2)})
    def wsrc(k, h):
        if k < N1: return vDW1, R_W1, sD, 8 * 3584
        if k < N2: return vDW2, R_W2, sDb, 8 * 4096
        return vDWO, R_WO, sD2, (4 if ((k - N2) & 1 and h) else 8) * 896
    rot = OPT.ra or OPT.rb
    def wadv(k, h):
        v, R, sd, inc = wsrc(k, h)
        t = f"s_add_u32 s{sd}, s{sd}, {inc}"
        if rot and N1 <= k < N2 and h and k & 1: t += f"\ns_cmp_eq_u32 s{sd}, s{sDbE}\ns_cselect_b32 s{sd}, s{sDb0}, s{sd}"
        return t
    def dma(k):
        out = []
        for h in range(2):
            v, R, sd, inc = wsrc(k, h)
            out.append((f"s_add_u32 m0, s{sRing}, {slotp(k)*8192 + h*1024}",
                        f"buffer_load_dwordx4 v{v}, {sr(R,4)}, s{sd} offen lds" if not (OPT.dropw and k >= OPT.dropw) else "s_nop 0", wadv(k, h)))
        return out
    state = {'nd': 0}
    def prefill(upto):
        while state['nd'] < upto:
            k = state['nd']; state['nd'] += 1
            if k in staged:
                for h in range(2):
                    v, R, sd, inc = wsrc(k, h)
                    a(f"buffer_load_dwordx4 {vr(SG+8*staged[k]+4*h,4)}, v{v}, {sr(R,4)}, s{sd} offen")
                    a(wadv(k, h)); vm.issue(('s', k))
            else:
                for m, l, adv in dma(k): a(m); a(adv.replace("s_add_u32", "s_nop 0 ;") if False else "s_nop 0"); a(l); a(adv); vm.issue(('d', k))
    def swrite(k):
        off = slotp(k) * 8192; v = vSW
        if off >= 65536: off -= 65536; v += 1
        return [f"ds_write_b128 v{v}, {vr(SG+8*staged[k]+4*h,4)} offset:{off+1024*h}" for h in range(2)]
    def breg(k): return SG + 8 * (k - N2) if (k >= N2 and OPT.odeep) else BF + 8 * (k % DH)
    def ld(k):
        r = breg(k)
        v, sl = (vLN, sL) if k < N1 else (vLM, sLb) if k < N2 else (vLN, sL2)
        off = 2048 * (k & 1)
        o = [f"buffer_load_dwordx4 {vr(r,4)}, v{v}, {sr(R_WS,4)}, s{sl} offen offset:{off} sc1",
             f"buffer_load_dwordx4 {vr(r+4,4)}, v{v+1}, {sr(R_WS,4)}, s{sl} offen offset:{off} sc1"]
        adv = f"s_add_u32 s{sl}, s{sl}, 4096"
        if rot and N1 <= k < N2: adv += f"\ns_cmp_eq_u32 s{sl}, s{sLbE}\ns_cselect_b32 s{sl}, s{sLb0}, s{sl}"
        return o, (adv if k & 1 else None)
    def ld_now(k):
        o, adv = ld(k)
        for x in o: a(x); vm.issue(('l', k))
        if adv: a(adv)
    def tr(k):
        b0, xo = (vT1, 512) if k < N1 else (vT2, 1024) if k < N2 else (vT3, 1024)
        r = AF + 8 * (k % 2); off = slotp(k) * 8192
        if off >= 65536: off -= 65536; b0 += vTH - vT1
        return [f"ds_read_b64_tr_b16 {vr(r,2)}, v{b0} offset:{off}", f"ds_read_b64_tr_b16 {vr(r+2,2)}, v{b0} offset:{off+xo}",
                f"ds_read_b64_tr_b16 {vr(r+4,2)}, v{b0+1} offset:{off}", f"ds_read_b64_tr_b16 {vr(r+6,2)}, v{b0+1} offset:{off+xo}"]
    state['nl'] = 0
    def b2load(): a(f"v_lshlrev_b32 v23, 1, v{vJ}\nbuffer_load_ushort v5, v23, {sr(R_B2,4)}, s{sB2} offen")
    def init2():
        a("v_lshlrev_b32 v5, 16, v5")
        for i in range(8): a(f"v_lshlrev_b32 v{ACC+2*i}, 16, v{6+i}\nv_and_b32 v{ACC+2*i+1}, 0xffff0000, v{6+i}")
        for r in range(16): a(f"v_add_f32 v{ACC+r}, v5, v{ACC+r}")
        a(f"v_min_u32 v26, 27, v{vLANE}\nv_lshlrev_b32 v26, {3+FS}, v26\nv_min_u32 v27, 7, v{vLANE}\nv_lshlrev_b32 v27, {3+FS}, v27")
    def free(kd, k):
        if kd >= OPT.ke and k < OPT.gatek and slotp(kd) < 8: return False
        prev = [j for j in range(kd) if slotp(j) == slotp(kd)]
        return not prev or prev[-1] <= k - 1
    def begin(lo, nld, pfi=None, after=None):
        state['nl'] = lo
        for k in range(lo, lo + nld):
            ld_now(k); state['nl'] += 1
            if pfi and k == lo + 1: a(pfi); vm.issue('pf')
        if after: after()
        n = vm.wait({('d', lo)})
        if n is not None: a(f"s_waitcnt vmcnt({n})")
        for x in tr(lo): a(x)
    def run(lo, hi, last, dlimit, llimit, first=None, hooks={}):
        dh = OPT.dh
        for k in range(lo, hi):
            need = {('l', k)}
            if k + 1 < last: need.add(('d', k + 1))
            if k + 3 in staged: need.add(('s', k + 3))
            need |= hooks.get(('need', k), set())
            n = vm.wait(need)
            a(f"s_waitcnt vmcnt({n}) lgkmcnt(0)" if n is not None else "s_waitcnt lgkmcnt(0)")
            if k in hooks: hooks[k]()
            if OPT.fine and k % 4 == 0 and OPT.stamps == 1 and 0 <= k // 4 - OPT.fine0 < 15: stamp(a, 48 + k // 4 - OPT.fine0)
            l = AF + 8 * (k % 2); d = breg(k)
            lds_is_a = not (N1 <= k < N2)
            mf = []
            for i in range(4):
                mi, ni = i >> 1, i & 1
                A, B = (vr(l + 4 * mi, 4), vr(d + 4 * ni, 4)) if lds_is_a else (vr(d + 4 * mi, 4), vr(l + 4 * ni, 4))
                c = "0" if k == first and i else vr(ACC + 16 * i, 16)
                mf.append(f"{MF} {vr(ACC+16*i,16)}, {A}, {B}, {c}" if not OPT.nogm else "s_nop 0")
            t = tr(k + 1) if k + 1 < last else []
            sw = swrite(k + 3) if k + 3 in staged else []
            assert not sw or free(k + 3, k)
            kd = state['nd']; dm = []
            if kd < dlimit and kd <= k + (OPT.lw if k < N1 else OPT.lw2) and free(kd, k) and kd not in staged:
                assert kd >= k + 2
                dm = dma(kd); state['nd'] += 1
            lo_, adv = ([], None)
            kl = state['nl']
            if kl < llimit and (kl <= k + dh - 1 or (kl >= N2 and OPT.odeep)): lo_, adv = ld(kl); state['nl'] += 1
            a(mf[0])
            for x in t: a(x)
            if dm: a(dm[0][0])
            a(mf[1])
            if lo_: a(lo_[0]); vm.issue(('l', kl))
            if lo_: a(lo_[1]); vm.issue(('l', kl))
            if adv: a(adv)
            if dm: a(dm[0][1]); vm.issue(('d', kd)); a(dm[0][2]); a(dm[1][0])
            a(mf[2])
            if dm: a(dm[1][1]); vm.issue(('d', kd)); a(dm[1][2])
            for x in sw: a(x)
            a(mf[3])
            kd = state['nd']
            if kd < dlimit and kd <= k + (OPT.lw if k < N1 else OPT.lw2) and free(kd, k) and kd not in staged: prefill(kd + 1)
            kl = state['nl']
            if kl < llimit and (kl <= k + dh - 1 or (kl >= N2 and OPT.odeep)): ld_now(kl); state['nl'] += 1
    def flagload(soff, n):
        vo = {16: 28, 28: 26, 8: 27}[n]
        if n == 16: a(f"v_min_u32 v28, {n-1}, v{vLANE}\nv_lshlrev_b32 v28, {3+FS}, v28")
        a(f"buffer_load_dwordx2 v[30:31], v{vo}, {sr(R_WS,4)}, s{soff} offen sc1"); vm.issue('fl')
    def flagcheck(okl, pr=0):
        a(f"s_setprio 3\nv_cmp_ne_u64 vcc, {sr(sTAG,2)}, v[30:31]\ns_setprio {pr}\ns_cbranch_vccz {okl}")
    def fill_poll(upA, upB, soff, n, mid=None):
        prefill(upA)
        flagload(soff, n)
        prefill(upB)
        if mid: mid()
        w = vm.wait({'fl'})
        a(f"s_waitcnt vmcnt({w})")
        okl = a.label("flok")
        flagcheck(okl)
        poll(a, soff, n)
        a(f"{okl}:")
    nog1 = a.label("nog1"); join = a.label("gjoin")
    g_xread(a)
    a(f"s_cmp_eq_u32 s{sHasG1}, 0\ns_cbranch_scc1 {nog1}")
    a(f"s_setprio {OPT.prio_g}")
    stamp(a, 8)
    if OPT.nodma: a(f"s_mov_b32 s{R_W1+2}, 0")
    a(f"v_lshlrev_b32 v23, 3, v{vHH}")
    for g in range(4): a(f"buffer_load_dwordx2 {vr(14+2*g,2)}, v23, {sr(R_B1,4)}, s{sB1o} offen offset:{16*g}")
    for g in range(4): vm.issue('b')
    prefill(OPT.a1)
    lds_arrive(a, C_PRE, nowait=True)
    stamp(a, 9)
    fill_poll(OPT.a1, OPT.b1, sFH, 16, lambda: (g_setup2(a), b2load(), vm.issue('b2')))
    stamp(a, 10)
    def init1():
        for i in range(8): a(f"v_lshlrev_b32 v{ACC+2*i}, 16, v{14+i}\nv_and_b32 v{ACC+2*i+1}, 0xffff0000, v{14+i}")
    def cpf(sid, val, saddr):
        sk = a.label("cpf")
        a(f"s_cmp_lg_u32 s{sid}, {val}\ns_cbranch_scc1 {sk}\nbuffer_load_dword v253, v{vPF}, {sr(R_WS,4)}, s{saddr} offen sc1\n{sk}:")
    def mkhooks(hl):
        d = {}
        for k, f in hl: d.setdefault(k, []).append(f)
        return {k: (lambda fs=fs: [f() for f in fs]) for k, fs in d.items()}
    a('s_setprio 3')
    begin(0, OPT.nl0, None, init1)
    a(f's_setprio {OPT.prio_g}')
    hl = [(0, lambda: stamp(a, 11)), (16, lambda: stamp(a, 12)), (OPT.gatek, lambda: (a('s_setprio 3'), lds_wait(a, C_Q, 4), a(f's_setprio {OPT.prio_g}')))]
    if OPT.kp: hl.append((OPT.kp, lambda: a(f's_setprio {OPT.prio_g1b}')))
    for b in range(2, 8): hl.append((max(0, 4 * b - OPT.pfd), lambda b=b: cpf(sSH1, b, sPH)))
    for i, k in enumerate(range(OPT.b1, OPT.pre0 + nsg)): hl.append((i, lambda k=k: prefill(k + 1)))
    run(0, N1, N1, N1, N1, first=0, hooks=mkhooks(hl))
    a(f"s_setprio {OPT.prio_e}")
    reduce4(a, C_R1, (L_RED, 12288, lambda i: 1024 * i), 13, 16,
            lambda: prefill(N1 + OPT.e0), lambda: prefill(N1 + OPT.e1), lambda: prefill(N1 + OPT.e2))
    lds_arrive(a, C_R1D, nowait=True)
    k = 2 * math.sqrt(2 / math.pi) * math.log2(math.e)
    a(f"s_mov_b32 s{sT0}, {f32(-k*0.044715)}\nv_mov_b32 v18, {f32(-k)}")
    T = ACC + 16
    for h in range(2):
        R = range(8 * h, 8 * h + 8)
        for r in R: a(f"v_mul_f32 v{T+r}, v{ACC+r}, v{ACC+r}")
        for r in R: a(f"v_fma_f32 v{T+r}, v{T+r}, s{sT0}, v18")
        for r in R: a(f"v_mul_f32 v{T+r}, v{T+r}, v{ACC+r}")
        for r in R: a(f"v_exp_f32 v{T+r}, v{T+r}")
        for r in R: a(f"v_add_f32 v{T+r}, 1.0, v{T+r}")
        for r in R: a(f"v_rcp_f32 v{T+r}, v{T+r}")
        for r in R: a(f"v_mul_f32 v{T+r}, v{T+r}, v{ACC+r}")
        for i in range(4 * h, 4 * h + 4): a(f"v_cvt_pk_bf16_f32 v{T+16+i}, v{T+2*i}, v{T+2*i+1}")
        a(f"buffer_store_dwordx4 {vr(T+16+4*h,4)}, v{vLN}, {sr(R_WS,4)}, s{sUS} offen offset:{2048*h} sc1")
    stamp(a, 17)
    init2()
    set_flag(a, sFU)
    stamp(a, 27)
    a(f"s_branch {join}\n{nog1}:")
    lds_arrive(a, C_R1D, nowait=True)
    lds_arrive(a, C_PRE, nowait=True)
    g_setup2(a)
    b2load()
    a(f"""
    s_lshr_b32 s{sT0}, s{sJ}, 3
    s_lshl_b32 s{sT0}, s{sT0}, 1
    s_and_b32 s{sT1}, s{sCB}, 1
    s_add_u32 s{sT0}, s{sT0}, s{sT1}
    s_sub_u32 s{sT0}, s{sT0}, 1
    s_cmp_eq_u32 s{sJ}, 6
    s_cbranch_scc1 engdone
    s_mul_i32 s{sT1}, s{sG}, 28
    s_add_u32 s{sT1}, s{sT1}, s{sT0}
    s_lshl_b32 s{sT1}, s{sT1}, 16
    s_lshl_b32 s{sT2}, s{sXCD}, 9
    s_add_u32 s{sT1}, s{sT1}, s{sT2}
    s_lshl_b32 s{sT2}, s{sT0}, 2
    s_add_u32 s{sT2}, s{sT2}, s{sG}
    s_lshl_b32 s{sT2}, s{sT2}, 13
    s_add_u32 s{sPFW}, s{sPFW}, {OPT.npf0*56*3584}
    """)
    if OPT.engw: lds_wait(a, C_X, 4, sleep=1)
    for i in range(10 - OPT.npf0 if OPT.eng & 1 else 0):
        a(f"s_waitcnt vmcnt({OPT.engd})\nbuffer_load_dword v{249+i%2}, v{vPF1}, {sr(R_W1,4)}, s{sPFW} offen\ns_add_u32 s{sPFW}, s{sPFW}, {56*3584}")
    stamp(a, 28)
    for i in range(4 if OPT.eng & 2 else 0):
        a(f"s_waitcnt vmcnt({OPT.engd})\nbuffer_load_dword v{249+i%2}, v{vPF2}, {sr(R_W2,4)}, s{sT1} offen\ns_add_u32 s{sT1}, s{sT1}, {7*16*4096}")
    stamp(a, 29)
    a(f"""
    s_cmp_lg_u32 s{sCB}, 7
    s_cbranch_scc1 engdone
    s_lshr_b32 s{sT2}, s{sJ}, 3
    s_lshl_b32 s{sT2}, s{sT2}, 2
    s_add_u32 s{sT2}, s{sT2}, s{sG}
    s_lshl_b32 s{sT2}, s{sT2}, 13
    """)
    for i in range(4 if OPT.eng & 4 else 0):
        a(f"s_waitcnt vmcnt({OPT.engd})\nbuffer_load_dword v{249+i%2}, v{vPF}, {sr(R_WO,4)}, s{sT2} offen\ns_add_u32 s{sT2}, s{sT2}, {16*8192}")
    stamp(a, 30)
    a(f"s_branch epw\nengdone:\ns_waitcnt vmcnt(0)")
    lds_wait(a, C_Q, 4)
    state['nd'] = N1
    prefill(N1 + OPT.e2)
    init2()
    a(f"s_waitcnt vmcnt(0)\n{join}:")
    a(f"s_setprio {OPT.prio_b}")
    vm.q = []
    prefill(N1 + OPT.a2)
    stamp(a, 18)
    fill_poll(N1 + OPT.a2, N1 + OPT.b2, sFUc, 28)
    stamp(a, 19)
    begin(N1, OPT.nl0)
    a(f"s_setprio {OPT.prio_g2}\ns_lshr_b32 s{sSH1}, s{sJ}, 3")
    assert not OPT.odeep or (SG + 64 <= 240 and N1 + OPT.pre + nsg2 - 3 <= N2 - OPT.ock)
    KC = N2 - OPT.ock
    hl = [(N1, lambda: stamp(a, 20)), (N1 + 14, lambda: stamp(a, 21)), (KC - 3, lambda: flagload(sFOc, 8))]
    for b in range(3, 7): hl.append((N1 + max(0, 4 * b - OPT.pfd), lambda b=b: cpf(sSH1, b - 3, sPU)))
    for i, k in enumerate(range(N1 + OPT.b2, N1 + OPT.pre + nsg2)): hl.append((N1 + i, lambda k=k: prefill(k + 1)))
    run(N1, KC, N2, N3, N2, first=N1, hooks=mkhooks(hl))
    w = vm.wait({'fl'})
    if w is not None: a(f"s_waitcnt vmcnt({w})")
    ordy = a.label("ordy"); red2 = a.label("red2")
    flagcheck(ordy)
    sv = (list(vm.q), dict(state))
    run(KC, N2, N2, N3, N2)
    prefill(N3)
    stamp(a, 22)
    poll(a, sFOc, 8); vm.q = []
    stamp(a, 23)
    a(f"s_setprio {OPT.prio_e}")
    begin(N2, 8 if OPT.odeep else min(8, DH))
    run(N2, N3, N3, N3, N3, hooks={N2: lambda: stamp(a, 24)})
    a(f"s_branch {red2}\n{ordy}:")
    vm.q = sv[0]; state.update(sv[1])
    run(KC, N3, N3, N3, N3, hooks={N2: lambda: stamp(a, 24)})
    a(f"{red2}:")
    reduce4(a, C_R2, (L_RING, 2048, lambda i: (i >> 1) * 8192 + (i & 1) * 1024), 25, 26)
    for i in range(8): a(f"v_cvt_pk_bf16_f32 v{ACC+16+i}, v{ACC+2*i}, v{ACC+2*i+1}")
    a(f"""
    s_nop 1
    v_permlane32_swap_b32 v{ACC+16}, v{ACC+18}
    v_permlane32_swap_b32 v{ACC+17}, v{ACC+19}
    v_permlane32_swap_b32 v{ACC+20}, v{ACC+22}
    v_permlane32_swap_b32 v{ACC+21}, v{ACC+23}
    buffer_store_dwordx4 {vr(ACC+16,4)}, v{vOUT}, {sr(R_OUT,4)}, s{sOUT} offen
    buffer_store_dwordx4 {vr(ACC+20,4)}, v{vOUT}, {sr(R_OUT,4)}, s{sOUT} offen offset:32
    s_branch {done}
    epw:
    s_lshl_b32 s{sT0}, s{sG}, 8
    s_add_u32 s{sT0}, s{sT0}, s2
    s_cmp_lg_u32 s{sT0}, 56
    s_cbranch_scc1 {done}
    """)
    lds_wait(a, C_ATT, 4, sleep=8)
    for i in range(4):
        a(f"s_mov_b32 s{sT0}, {FL_O + (2048*i << FS)}")
        poll(a, sT0, 64, sh=5)
    a(f"s_mov_b32 s{sT0}, {WS_EPOCH}")
    set_flag(a, sT0)

def kend(a, e):
    a(f"{e}:")
    if OPT.stamps:
        stamp(a, 14); a("s_waitcnt vmcnt(0)"); stamp(a, 15)
        a(f"""
        s_lshl_b32 s100, s2, 3
        s_add_u32 s100, s100, s{sW}
        s_lshl_b32 s100, s100, 8
        s_add_u32 s100, s100, {WS_STAMP}
        v_lshlrev_b32 v254, 2, v{vLANE}
        buffer_store_dword v255, v254, {sr(R_WS,4)}, s100 offen
        """)
    if OPT.amp >= 0:
        if OPT.amp == 14: stamp(a, 14)
        a(f"""
        s_cmp_ge_u32 s{sW}, 4
        s_cbranch_scc{0 if OPT.ampg else 1} {e}x
        s_nop 4
        v_readlane_b32 s16, v255, 0
        v_readlane_b32 s17, v255, 1
        s_nop 4
        s_cmp_eq_u32 s17, 0
        s_cbranch_scc1 {e}x
        s_sub_u32 s18, s17, s16
        s_min_u32 s18, s18, 4000
        s_mul_i32 s18, s18, 5
        s_add_u32 s18, s18, 4000
        ampl:
        s_memrealtime s[20:21]
        s_waitcnt lgkmcnt(0)
        s_sub_u32 s20, s20, s16
        s_cmp_lt_u32 s20, s18
        s_cbranch_scc1 ampl
        """)
    if OPT.double:
        a(f"""
        s_waitcnt vmcnt(0)
        s_memrealtime s[16:17]
        s_waitcnt lgkmcnt(0)
        s_sub_u32 s18, s16, s100
        s_min_u32 s18, s18, 20000
        dbl:
        s_memrealtime s[20:21]
        s_waitcnt lgkmcnt(0)
        s_sub_u32 s20, s20, s16
        s_cmp_lt_u32 s20, s18
        s_cbranch_scc1 dbl
        """)
    a(f"{e}x:\ns_endpgm\ncode_end:")

def build():
    a = Asm()
    n = NAME + "_kernel"
    a('.amdgcn_target "amdgcn-amd-amdhsa--gfx950"\n.text')
    a(f".globl {n}\n.p2align 8\n.type {n},@function\n{n}:")
    e = "fin"
    prologue(a, e)
    p1_a(a); attention(a, e)
    a("p1g:"); p1_g(a); gpath(a, e)
    kend(a, e)
    if OPT.nogv:
        i0 = a.L.index("p1g:")
        i1 = [i for i, l in enumerate(a.L) if l.startswith("gpfw")][0]
        a.L = [("s_nop 0" if (i > i1 and l.startswith("buffer_load_dwordx4")) else l) for i, l in enumerate(a.L)]
    check(a.L)
    head = open(f"refhead.txt").read().split("; Override")[0]
    ll = f"; @launch grid=(256,1,1) block=(512,1,1) lds={LDS_TOTAL}\n"
    desc = f""".section .rodata,"a"
.p2align 6
.amdhsa_kernel {n}
  .amdhsa_next_free_vgpr 256
  .amdhsa_next_free_sgpr 102
  .amdhsa_accum_offset 256
  .amdhsa_group_segment_fixed_size 0
  .amdhsa_kernarg_size 104
  .amdhsa_user_sgpr_count 2
  .amdhsa_user_sgpr_kernarg_segment_ptr 1
  .amdhsa_system_sgpr_workgroup_id_x 1
  .amdhsa_float_denorm_mode_32 3
.end_amdhsa_kernel
"""
    return head + ll + a.text() + desc

if __name__ == "__main__":
    args = []
    for x in sys.argv[1:]:
        if x.startswith("--"):
            k, _, v = x[2:].partition("=")
            if k == "FS": FS = int(v)
            else: setattr(OPT, k, int(v) if v else True)
        else: args.append(x)
    assert all((t * 37) >> 8 == t // 7 for t in range(56))
    open(args[0] if args else f"cdna_kernels/{NAME}.s", "w").write(build())
```

```python
import sys, math, struct
sys.path.insert(0, "dev")
from asmlib import Asm, vr, sr, check

NAME = "parallel_sum__grouped_kv_mqa__mixer_token_mlp__prompt"
WS_HT = 0
WS_KV = 2 << 20
WS_U  = 5 << 20
WS_O  = 7 << 20
WS_FLG = 10 << 20
FL_H  = WS_FLG
FS = 4
FL_KV = WS_FLG + (8192 << 4)
FL_U  = WS_FLG + (12288 << 4)
FL_O  = WS_FLG + (20480 << 4)
WS_EPOCH = WS_FLG + (32768 << 4)
WS_STAMP = 12 << 20
WS_SIZE = 16 << 20
DBLK = 64
class O: pass
OPT = O(); OPT.stamps = False; OPT.double = False; OPT.prio_g = 0; OPT.prio_e = 3; OPT.prio_a = 0; OPT.pf2step = 6; OPT.pre = 12; OPT.lw = 6; OPT.lw2 = 11; OPT.odeep = 1; OPT.fine = 0; OPT.prio_b = 0; OPT.kp = 0; OPT.pdefer = 0; OPT.lsleep = 1; OPT.psleep = 0; OPT.npfa = 9; OPT.prio_t = 3; OPT.ka = 0; OPT.amp = -1; OPT.ampg = 0; OPT.prio_g1b = 0; OPT.fine0 = 2; OPT.dh = 5; OPT.pre0 = 4; OPT.nsg = 6; OPT.nsg2 = 9; OPT.e0 = 4; OPT.e1 = 8; OPT.e2 = 11; OPT.pf1pos = 3; OPT.order = 1; OPT.nogm = 0; OPT.nogv = 0; OPT.a1 = 4; OPT.b1 = 10; OPT.nl0 = 4; OPT.pfd = -100; OPT.kvpf = 1; OPT.a2 = 17; OPT.b2 = 21; OPT.ock = 5; OPT.early = 0; OPT.npf0 = 2; OPT.prio_g2 = 0; OPT.twice = 0; OPT.codepf = 1; OPT.prio_ld = 0; OPT.gatek = 8; OPT.ke = 12; OPT.fl_late = 0; OPT.rdin = 2; OPT.pre1 = 0; OPT.engd = 0; OPT.eng = 7; OPT.engw = 1; OPT.ra = 0; OPT.rb = 0; OPT.nou = 0; OPT.now2 = 0; OPT.dropw = 0; OPT.nocomb = 0; OPT.kvflag = 8; OPT.attit = 4; OPT.nold = 0; OPT.nodma = 0; OPT.nokv = 0
L_XT = 0; L_WQ = 57344; L_WKV = 114688
HB_STRIDE = 912
L_HB = 141056; L_QS = 147456; L_KC = 155648; L_KS = L_KC + 1024; L_MX = L_KC
L_ST = 158720; L_RT = 159232; L_CNT = 159360; LDS_TOTAL = 159744
RING = 12; L_RING = 49152; L_RED = 0
def slotp(k): return 8 + k % 4 if k < OPT.ke else (k - OPT.ke) % RING
C_X, C_KV, C_H, C_ST, C_Q, C_ISS, C_R1, C_R1D, C_ATT, C_R2, C_X1, C_XA, C_FL, C_PRE, C_KS, C_GO = range(16)
sXCD, sJ, sRB, sCB, sW = 3, 4, 5, 6, 7
sT0, sT1, sT2, sT3, sT4, sT5 = 8, 9, 10, 11, 12, 13
sHI = 14
P_X, P_WQ, P_WK, P_WV, P_WO, P_BX, P_W1, P_B1, P_W2, P_B2, P_OUT, P_DBG, P_WS = 16, 18, 20, 22, 24, 26, 28, 30, 32, 34, 36, 38, 40
sTAG = 42
R_X, R_WQ, R_WKV, R_WS, R_W1, R_W2, R_WO, R_OUT, R_KV = 44, 48, 52, 56, 60, 64, 68, 72, 76
R_B1, R_B2 = R_WKV, 20
sONES, sSPIN, sPFW = 82, 83, 99
sG, sGM, sGN, sRing, sA, sD, sL, sFB, sDb, sD2, sLb, sL2, sOUT, sB2 = range(84, 98)
sU0, sU1, sU2, sU3, sU4, sU5 = range(84, 90)
OOB = 0x40000000
EPS = 0x3727c5ac
QSCALE = (28 ** -0.5) * math.log2(math.e)
def f32(x): return "0x%08x" % struct.unpack("<I", struct.pack("<f", x))[0]
vLANE, vJ, vHH, vL16 = 1, 2, 3, 4
MF = "v_mfma_f32_32x32x16_bf16"

def stamp(a, idx):
    if OPT.amp >= 0:
        if idx == 0: a("v_mov_b32 v255, 0\ns_memrealtime s[100:101]\ns_waitcnt lgkmcnt(0)\nv_writelane_b32 v255, s100, 0")
        elif idx == OPT.amp: a("s_memrealtime s[100:101]\ns_waitcnt lgkmcnt(0)\nv_writelane_b32 v255, s100, 1")
        return
    if not OPT.stamps: return
    if OPT.stamps == 2 and idx not in (0, 15): return
    a(f"s_memrealtime s[100:101]\ns_waitcnt lgkmcnt(0)\nv_writelane_b32 v255, s100, {idx}")
    if idx in (0, 15): a(f"s_memtime s[100:101]\ns_waitcnt lgkmcnt(0)\nv_writelane_b32 v255, s100, {idx+32}")

def srd(a, r, p, size):
    a(f"s_mov_b32 s{r}, s{p}\ns_mov_b32 s{r+1}, s{p+1}\ns_mov_b32 s{r+2}, {size}\ns_mov_b32 s{r+3}, 0x20000")

def get_tag(a):
    a(f"""
    s_waitcnt lgkmcnt(0)
    s_mul_i32 s{sTAG}, s{sTAG}, 0x9e3779b5
    s_mul_i32 s{sTAG+1}, s{sTAG+1}, 0x85ebca6d
    s_add_u32 s{sTAG}, s{sTAG}, 0x7f4a7c15
    s_add_u32 s{sTAG+1}, s{sTAG+1}, 0x165667b1
    """)

def set_flag(a, soff, vt=30):
    a(f"""
    v_mov_b32 v{vt}, s{sTAG}
    v_mov_b32 v{vt+1}, s{sTAG+1}
    s_waitcnt vmcnt(0)
    s_mov_b64 exec, 1
    buffer_store_dwordx2 {vr(vt,2)}, off, {sr(R_WS,4)}, s{soff} sc1
    s_mov_b64 exec, -1
    """)

def poll(a, soff, n, vo=28, vt=30, sh=3):
    lp = a.label("poll"); dn = a.label("polld")
    a(f"""
    s_setprio 3
    v_min_u32 v{vo}, {n-1}, v{vLANE}
    v_lshlrev_b32 v{vo}, {sh+FS}, v{vo}
    s_mov_b32 s{sSPIN}, 20000
    {lp}:
    buffer_load_dwordx2 {vr(vt,2)}, v{vo}, {sr(R_WS,4)}, s{soff} offen sc1
    s_waitcnt vmcnt(0)
    v_cmp_ne_u64 vcc, {sr(sTAG,2)}, {vr(vt,2)}
    s_cbranch_vccz {dn}
    {f's_sleep {OPT.psleep}' if OPT.psleep else ''}
    s_sub_u32 s{sSPIN}, s{sSPIN}, 1
    s_cmp_lg_u32 s{sSPIN}, 0
    s_cbranch_scc1 {lp}
    {dn}:
    s_setprio 0
    """)

def lds_arrive(a, cnt, nowait=False):
    a(f"""
    s_mov_b64 exec, 1
    {'' if nowait else 's_waitcnt lgkmcnt(0)'}
    ds_add_u32 v0, v29 offset:{4*cnt}
    s_mov_b64 exec, -1
    """)
def lds_wait(a, cnt, target, sleep=0):
    spin = a.label("spin"); ent = a.label("spe")
    sleep = sleep or OPT.lsleep
    if sleep: a(f"s_branch {ent}\n{spin}:\ns_sleep {sleep}\n{ent}:")
    else: a(f"{spin}:")
    a(f"""
    ds_read_b32 v28, v0 offset:{4*cnt}
    s_waitcnt lgkmcnt(0)
    v_readfirstlane_b32 s{sT5}, v28
    s_cmp_lt_u32 s{sT5}, {target}
    s_cbranch_scc1 {spin}
    """)

def bf16_stats(a, vs, vq, vm, vr_, t):
    a(f"""
    v_mul_f32 v{vs}, {f32(1/448)}, v{vs}
    v_mul_f32 v{vq}, {f32(1/448)}, v{vq}
    v_fma_f32 v{vq}, -v{vs}, v{vs}, v{vq}
    v_max_f32 v{vq}, 0, v{vq}
    v_cvt_pk_bf16_f32 v{t}, v{vs}, v{vq}
    v_lshlrev_b32 v{vm}, 16, v{t}
    v_and_b32 v{t}, 0xffff0000, v{t}
    v_add_f32 v{t}, {EPS:#x}, v{t}
    v_cvt_pk_bf16_f32 v{t}, v{t}, v{t}
    v_and_b32 v{t}, 0xffff0000, v{t}
    v_sqrt_f32 v{t}, v{t}
    s_nop 0
    v_cvt_pk_bf16_f32 v{t}, v{t}, v{t}
    v_and_b32 v{t}, 0xffff0000, v{t}
    v_rcp_f32 v{vr_}, v{t}
    s_nop 0
    """)

def dpp_reduce(a, vs, vq, modes):
    a("s_nop 2")
    for mode in modes:
        a(f"v_add_f32_dpp v{vs}, v{vs}, v{vs} {mode} row_mask:0xf bank_mask:0xf")
        a(f"v_add_f32_dpp v{vq}, v{vq}, v{vq} {mode} row_mask:0xf bank_mask:0xf")
        a("s_nop 0")
QP1, QP2, RHM, RM = "quad_perm:[1,0,3,2]", "quad_perm:[2,3,0,1]", "row_half_mirror", "row_mirror"

def split_hi_lo(a, dst, src, t):
    a(f"""
    v_cvt_pk_bf16_f32 v{t}, v{src}, v{src}
    v_and_b32 v{t}, 0xffff0000, v{t}
    v_sub_f32 v{t}, v{src}, v{t}
    v_cvt_pk_bf16_f32 v{dst}, v{src}, v{t}
    """)

def prologue(a, end):
    a(f"s_cmp_ge_u32 s2, 256\ns_cbranch_scc1 {end}x")
    if OPT.double: a("s_memrealtime s[100:101]")
    if OPT.stamps: a("v_mov_b32 v255, 0")
    stamp(a, 0)
    a(f"""
    s_load_dwordx16 s[16:31], s[0:1], 0
    s_load_dwordx8 s[32:39], s[0:1], 64
    s_load_dwordx2 s[40:41], s[0:1], 96
    v_lshrrev_b32 v5, 6, v0
    v_and_b32 v{vLANE}, 63, v0
    v_readfirstlane_b32 s{sW}, v5
    v_and_b32 v{vJ}, 31, v0
    v_lshrrev_b32 v{vHH}, 5, v{vLANE}
    v_lshlrev_b32 v{vL16}, 4, v{vLANE}
    s_and_b32 s{sXCD}, s2, 7
    s_lshr_b32 s{sJ}, s2, 3
    """)
    if OPT.codepf:
        a(f"""
        s_cmp_lg_u32 s{sW}, 7
        s_cbranch_scc1 nocpf
        s_getpc_b64 s[{R_OUT}:{R_OUT+1}]
        cpf_here:
        s_sub_u32 s{R_OUT}, s{R_OUT}, cpf_here-{NAME}_kernel
        s_subb_u32 s{R_OUT+1}, s{R_OUT+1}, 0
        s_mov_b32 s{R_OUT+2}, code_end-{NAME}_kernel
        s_mov_b32 s{R_OUT+3}, 0x20000
        s_lshl_b32 s{sT0}, s{sJ}, 7
        v_lshlrev_b32 v6, 12, v{vLANE}
        buffer_load_dword v250, v6, {sr(R_OUT,4)}, s{sT0} offen
        nocpf:
        """)
    a(f"""
    s_lshr_b32 s{sT0}, s{sJ}, 3
    s_lshl_b32 s{sRB}, s{sXCD}, 2
    s_add_u32 s{sRB}, s{sRB}, s{sT0}
    s_and_b32 s{sCB}, s{sJ}, 7
    s_mov_b32 s{sHI}, 0
    s_mov_b32 s{sHI+1}, -1
    s_mov_b32 s{sONES}, 0x3f803f80
    v_lshlrev_b32 v5, 2, v{vLANE}
    v_add_u32 v5, {L_CNT}, v5
    v_mov_b32 v6, 0
    ds_write_b32 v5, v6
    v_mov_b32 v0, {L_CNT}
    v_mov_b32 v29, 1
    v_lshrrev_b32 v5, 3, v{vLANE}
    v_and_b32 v6, 7, v{vLANE}
    v_lshrrev_b32 v7, 4, v{vLANE}
    v_bfe_u32 v8, v{vLANE}, 2, 2
    v_and_b32 v9, 3, v{vLANE}
    v_and_b32 v10, 1, v7
    v_lshlrev_b32 v9, 3, v9
    v_lshl_add_u32 v9, v10, 5, v9
    """)
    p1_addr(a)
    a(f"s_cmp_ge_u32 s{sW}, 4\ns_cbranch_scc1 p1g")

def common_srds(a):
    a(f"s_mov_b32 s{sT5}, {WS_EPOCH}\ns_waitcnt lgkmcnt(0)")
    stamp(a, 1)
    a(f"s_load_dwordx2 {sr(sTAG,2)}, {sr(P_WS,2)}, s{sT5}")
    srd(a, R_X, P_X, 2048 * 896)
    srd(a, R_WS, P_WS, WS_SIZE)

def epoch_load(a): pass

vXe, vXo, vWQd = 11, 12, 13
sNL, sXs, sXm, sNT, sW3 = 76, 77, 78, 79, 80
sXs2, sXm2, sQs, sQm = 26, 27, 38, 39
def p1_addr(a):
    a(f"""
    v_mul_u32_u24 v20, 896, v5
    v_xor_b32 v21, v6, v7
    v_lshl_add_u32 v{vXe}, v21, 4, v20
    v_xor_b32 v21, 4, v21
    v_lshl_add_u32 v{vXo}, v21, 4, v20
    v_lshlrev_b32 v21, 2, v10
    v_xor_b32 v21, v21, v6
    v_lshl_add_u32 v{vWQd}, v21, 4, v20
    s_and_b32 s{sW3}, s{sW}, 3
    s_cmp_eq_u32 s{sW3}, 3
    s_cselect_b32 s{sNL}, 1, 2
    s_bfe_u32 s{sNT}, s{sCB}, 0x10001
    s_lshl_b32 s{sT0}, s{sRB}, 1
    s_add_u32 s{sT0}, s{sT0}, s{sNT}
    s_mul_i32 s{sXs}, s{sT0}, {32*896}
    s_lshl_b32 s{sT0}, s{sW3}, 8
    s_add_u32 s{sXs}, s{sXs}, s{sT0}
    s_lshl_b32 s{sXm}, s{sW3}, 14
    s_lshl_b32 s{sT0}, s{sNT}, 12
    s_add_u32 s{sXm}, s{sXm}, s{sT0}
    """)
def rest_dma(a, after_x=None):
    srd(a, R_WQ, P_WQ, 448 * 896)
    a(f"""
    s_xor_b32 s{sXm2}, s{sXm}, 4096
    s_mul_i32 s{sT0}, s{sNT}, {2*32*896}
    s_add_u32 s{sXs2}, s{sXs}, {32*896}
    s_sub_u32 s{sXs2}, s{sXs2}, s{sT0}
    s_mul_i32 s{sQs}, s{sW3}, {128*896}
    s_mul_i32 s{sT0}, s{sCB}, 112
    s_add_u32 s{sQs}, s{sQs}, s{sT0}
    s_lshl_b32 s{sQm}, s{sW3}, 14
    """)
    if after_x: after_x()
    PF1 = f"buffer_load_dword v249, v{vPF1}, {sr(R_W1,4)}, s{sPFW} offen"
    if OPT.pf1pos == 0: a(PF1)
    l1 = a.label("rd1"); l2 = a.label("rd2")
    for line in range(2):
        if line: a(f"s_cmp_eq_u32 s{sNL}, 1\ns_cbranch_scc1 {l1}")
        for b in range(4):
            a(f"""
            s_add_u32 m0, s{sXm2}, {L_XT + line*8192 + b*1024}
            s_add_u32 s{sT0}, s{sXs2}, {b*8*896 + line*128}
            buffer_load_dwordx4 v{vXo if b & 1 else vXe}, {sr(R_X,4)}, s{sT0} offen lds
            """)
    a(f"{l1}:")
    if OPT.pf1pos == 1: a(PF1)
    for line in range(2):
        if line:
            a(f"s_waitcnt vmcnt({9 if OPT.pf1pos == 1 else 8})")
            lds_arrive(a, C_XA, nowait=True)
            a(f"s_cmp_eq_u32 s{sNL}, 1\ns_cbranch_scc1 {l2}")
        for b in range(8):
            a(f"""
            s_add_u32 m0, s{sQm}, {L_WQ + line*8192 + b*1024}
            s_add_u32 s{sT0}, s{sQs}, {(line*64 + b*8)*896}
            buffer_load_dwordx4 v{vWQd}, {sr(R_WQ,4)}, s{sT0} offen lds
            """)
    a(f"{l2}:")

vPF1 = 246
def pf1_addr(a):
    a(f"""
    v_min_u32 v14, 6, v6
    v_mul_u32_u24 v{vPF1}, 3584, v5
    v_lshl_add_u32 v{vPF1}, v14, 7, v{vPF1}
    s_lshl_b32 s{sT1}, s{sW3}, 6
    s_lshr_b32 s{sT2}, s{sJ}, 3
    s_lshl_b32 s{sT2}, s{sT2}, 1
    s_add_u32 s{sT1}, s{sT1}, s{sT2}
    s_and_b32 s{sT2}, s{sCB}, 1
    s_add_u32 s{sT1}, s{sT1}, s{sT2}
    s_sub_u32 s{sT1}, s{sT1}, 1
    s_mul_i32 s{sPFW}, s{sT1}, {8*3584}
    s_lshr_b32 s{sT2}, s{sXCD}, 1
    s_mul_i32 s{sT2}, s{sT2}, 896
    s_add_u32 s{sPFW}, s{sPFW}, s{sT2}
    """)
    srd(a, R_W1, P_W1, 2048 * 3584)

def stats_code(a, st0, st1, sRBk, SX=128, T=40):
    a(f"""
    v_lshrrev_b32 v{T}, 2, v{vLANE}
    v_and_b32 v{T+1}, 3, v{vLANE}
    v_lshlrev_b32 v{T+1}, 5, v{T+1}
    v_lshl_add_u32 v{T+1}, v{T}, 7, v{T+1}
    v_lshlrev_b32 v{T+2}, 1, v{vLANE}
    v_and_b32 v{T+2}, 16, v{T+2}
    v_add_u32 v{T+1}, v{T+1}, v{T+2}
    s_lshl_b32 s{sT0}, s{sRBk}, 11
    v_add_u32 v{T+1}, s{sT0}, v{T+1}
    v_xor_b32 v{T+3}, 16, v{T+1}
    s_lshl_b32 s{sT0}, s{sRBk}, 7
    s_add_u32 s{sT0}, s{sT0}, {L_ST}
    v_lshl_add_u32 v{T}, v{T}, 3, s{sT0}
    v_mov_b32 v{T+4}, 0
    v_mov_b32 v{T+5}, 0
    """)
    lds_wait(a, C_X1, 4)
    lds_wait(a, C_XA, 4)
    stamp(a, st0)
    for c in range(7):
        a(f"ds_read_b128 {vr(SX+8*c,4)}, v{T+1} offset:{L_XT + c*8192}")
        a(f"ds_read_b128 {vr(SX+8*c+4,4)}, v{T+3} offset:{L_XT + c*8192}")
    for c in range(7):
        a(f"s_waitcnt lgkmcnt({2*(6-c)})")
        for i in range(8):
            a(f"v_dot2c_f32_bf16 v{T+4}, s{sONES}, v{SX+8*c+i}")
            a(f"v_dot2c_f32_bf16 v{T+5}, v{SX+8*c+i}, v{SX+8*c+i}")
    dpp_reduce(a, T + 4, T + 5, [QP1, QP2])
    bf16_stats(a, T + 4, T + 5, T + 3, T + 7, T + 2)
    a(f"""
    v_cvt_pk_bf16_f32 v{T+6}, -v{T+3}, -v{T+3}
    v_mul_f32 v{T+7}, {f32(QSCALE)}, v{T+7}
    ds_write_b64 v{T}, {vr(T+6,2)}
    """)
    lds_arrive(a, C_ST, nowait=True)
    stamp(a, st1)

def p1_a(a):
    vXF, vWK, vWQr = 14, 18, 19
    sB, sM = 94, 96
    a(f"""
    s_and_b32 s{sT1}, s{sCB}, 1
    s_lshl_b32 s{sT2}, s{sT1}, 11
    s_xor_b32 s{sM}, s{sXm}, s{sT2}
    s_lshr_b32 s{sT3}, s{sJ}, 3
    s_lshl_b32 s{sT3}, s{sT3}, 1
    s_add_u32 s{sT3}, s{sT3}, s{sT1}
    s_mul_i32 s{sT1}, s{sT1}, {16*896}
    s_add_u32 s{sB}, s{sXs}, s{sT1}
    s_add_u32 s{sT2}, s{sXs}, {16*896}
    s_sub_u32 s{sB+1}, s{sT2}, s{sT1}
    v_lshlrev_b32 v21, 7, v{vLANE}
    s_mov_b32 s{sT4}, 0
    """)
    common_srds(a)
    def x_half(h):
        sk = a.label("xh")
        for line in range(2):
            if line: a(f"s_cmp_eq_u32 s{sNL}, 1\ns_cbranch_scc1 {sk}")
            for b in range(2):
                a(f"""
                s_xor_b32 m0, s{sM}, {line*8192 + h*2048 + b*1024}
                s_add_u32 s{sT0}, s{sB+h}, {b*8*896 + line*128}
                buffer_load_dwordx4 v{vXo if b else vXe}, {sr(R_X,4)}, s{sT0} offen lds
                """)
        a(f"{sk}:")
    def frag_addr():
        a(f"""
        v_lshrrev_b32 v20, 1, v{vJ}
        v_and_b32 v20, 7, v20
        v_xor_b32 v20, v20, v{vHH}
        v_lshlrev_b32 v20, 4, v20
        v_lshl_add_u32 v{vXF}, v{vJ}, 7, v20
        v_xor_b32 v{vXF+1}, 32, v{vXF}
        v_xor_b32 v{vXF+2}, 64, v{vXF}
        v_xor_b32 v{vXF+3}, 96, v{vXF}
        v_lshl_add_u32 v20, v{vHH}, 3, v8
        """)
    nop_ = a.label("notp"); other = a.label("notkv"); htype = a.label("htype"); qgo = a.label("qgo"); dostats = a.label("dostats"); poststats = a.label("poststats")
    x_half(0)
    a(f"s_cmp_ge_u32 s{sCB}, 4\ns_cbranch_scc1 {other}")
    x_half(1)
    a(f"""
    s_bitcmp1_b32 s{sCB}, 0
    s_cselect_b32 s{R_WKV}, s{P_WV}, s{P_WK}
    s_cselect_b32 s{R_WKV+1}, s{P_WV+1}, s{P_WK+1}
    s_mov_b32 s{R_WKV+2}, {448*56}
    s_mov_b32 s{R_WKV+3}, 0x20000
    s_mul_i32 s{sT1}, s{sW}, 7168
    s_add_u32 m0, s{sT1}, {L_WKV}
    s_cmp_eq_u32 s{sNL}, 1
    """)
    w3 = a.label("wk3")
    for i in range(4): a(f"buffer_load_dwordx4 v{vL16}, {sr(R_WKV,4)}, s{sT1} offen offset:{1024*i} lds")
    a(f"""
    s_cbranch_scc1 {w3}
    s_add_u32 m0, m0, 4096
    s_add_u32 s{sT1}, s{sT1}, 4096
    """)
    for i in range(3): a(f"buffer_load_dwordx4 v{vL16}, {sr(R_WKV,4)}, s{sT1} offen offset:{1024*i} lds")
    a(f"{w3}:")
    epoch_load(a)
    a("s_barrier")
    frag_addr()
    ACC, XF, WF = 96, 32, 64
    vQ, vS, vC = 22, 23, 21
    a(f"""
    v_mul_u32_u24 v{vWK}, 56, v20
    v_add_u32 v{vWK}, v{vWK}, v9
    s_mul_i32 s{sT1}, s{sW}, 7168
    s_add_u32 s{sT1}, s{sT1}, {L_WKV}
    v_add_u32 v{vWK}, s{sT1}, v{vWK}
    v_add_u32 v24, s{sXm}, v{vXF}
    v_xor_b32 v25, 32, v24
    v_xor_b32 v30, 64, v24
    v_xor_b32 v31, 96, v24
    v_mov_b32 v{vS}, 0
    v_mov_b32 v{vQ}, 0
    v_mov_b32 v{vC}, 0
    s_lshl_b32 s{sT0}, s{sW}, 4
    s_add_u32 s{sT0}, s{sT0}, {L_KS}
    v_lshlrev_b32 v120, 6, v{vJ}
    v_lshl_add_u32 v121, v{vHH}, 3, v120
    v_add_u32 v121, s{sT0}, v121
    s_lshl_b32 s{sT0}, s{sW}, 2
    s_add_u32 s{sT0}, s{sT0}, {L_KC}
    v_add_u32 v122, s{sT0}, v{vL16}
    v_add_u32 v123, s{sT1}, v{vL16}
    """)
    xa = [24, 25, 30, 31]
    l0 = a.label("kv0"); l1 = a.label("kv1a"); l2 = a.label("kv1b"); l3 = a.label("kv1c"); vlab = a.label("kvv"); fin = a.label("kvfin")
    def skip1(lab): a(f"s_cmp_eq_u32 s{sNL}, 1\ns_cbranch_scc1 {lab}")
    a(f"s_waitcnt vmcnt(7)\ns_cmp_eq_u32 s{sNL}, 1\ns_cbranch_scc0 {l0}\ns_waitcnt vmcnt(4)\n{l0}:")
    stamp(a, 2)
    for line in range(2):
        for q in range(4): a(f"ds_read_b128 {vr(XF+16*line+4*q,4)}, v{xa[q]} offset:{L_XT + line*8192}")
    lds_arrive(a, C_X1, nowait=True)
    for line in range(2):
        if line: skip1(l1)
        for q in range(4):
            a(f"s_waitcnt lgkmcnt({8-4*line-q})")
            for i in range(4):
                r = XF + 16 * line + 4 * q + i
                a(f"v_dot2c_f32_bf16 v{vS}, s{sONES}, v{r}\nv_dot2c_f32_bf16 v{vQ}, v{r}, v{r}")
    a(f"{l1}:\ns_waitcnt vmcnt(0) lgkmcnt(0)\ns_nop 1\nds_write_b64 v121, v[22:23]")
    stamp(a, 18)
    for k in range(8):
        if k == 7: a("s_waitcnt lgkmcnt(13)")
        a(f"ds_read_b64_tr_b16 {vr(WF+4*k,2)}, v{vWK} offset:{k*896}")
        a(f"ds_read_b64_tr_b16 {vr(WF+4*k+2,2)}, v{vWK} offset:{k*896+224}")
    for k in range(8):
        if k == 4: skip1(l3)
        a(f"s_waitcnt lgkmcnt({14-2*k})")
        for i in range(4): a(f"v_dot2c_f32_bf16 v{vC}, s{sONES}, v{WF+4*k+i}")
    a(f"{l3}:\ns_bitcmp1_b32 s{sCB}, 0\ns_cbranch_scc1 {vlab}")
    for isv in (0, 1):
        if isv: a(f"{vlab}:")
        for k in range(8):
            if k == 4: skip1(fin)
            A, B = (vr(XF+4*k,4), vr(WF+4*k,4)) if isv else (vr(WF+4*k,4), vr(XF+4*k,4))
            a(f"{MF} {vr(ACC,16)}, {A}, {B}, {vr(ACC,16) if k else 0}")
            if k == 0:
                split_hi_lo(a, 24, vC, 31)
                a("ds_write_b32 v122, v24")
                lds_arrive(a, C_KS, nowait=True)
        if not isv: a(f"s_branch {l2}")
    a(f"""
    {l2}:
    s_lshl_b32 s{sT2}, s{sNT}, 1
    s_xor_b32 s{sT2}, s{sT2}, 2
    s_add_u32 s{sT2}, s{sT2}, s{sW}
    """)
    get_tag(a)
    a("s_nop 3")
    for g in range(4): a(f"ds_write_b128 v123, {vr(ACC+4*g,4)} offset:{1024*g}")
    lds_arrive(a, C_KV, nowait=True)
    stamp(a, 3)
    a(f"s_cmp_lt_u32 s{sW}, 2\ns_cbranch_scc1 {dostats}")
    lds_arrive(a, C_ST, nowait=True)
    a(f"s_branch {qgo}")
    vfin = a.label("vfin"); kvst = a.label("kvst"); vf2 = a.label("vf2"); cm = a.label("kvcm")
    a(f"""
    {fin}:
    s_setprio 3
    v_add_u32 v24, {L_KS}, v120
    v_add_u32 v25, {L_WKV}, v{vL16}
    v_add_u32 v21, {L_KC}, v{vL16}
    s_lshl_b32 s{sT1}, s{sRB}, 1
    s_add_u32 s{sT1}, s{sT1}, s{sNT}
    s_lshl_b32 s{sT1}, s{sT1}, 12
    s_add_u32 s{sT1}, s{sT1}, {WS_KV}
    s_lshl_b32 s{sT4}, s{sRB}, 2
    s_add_u32 s{sT4}, s{sT4}, s{sCB}
    s_lshl_b32 s{sT4}, s{sT4}, {3+FS}
    s_add_u32 s{sT4}, s{sT4}, {FL_KV}
    s_lshl_b32 s{sT0}, s{sNT}, 8
    s_add_u32 s{sT0}, s{sT0}, {L_ST}
    v_lshl_add_u32 v30, v{vJ}, 3, s{sT0}
    s_waitcnt vmcnt(0)
    """)
    get_tag(a)
    lds_wait(a, C_KS, 4)
    for g in range(4): a(f"ds_read_b128 {vr(XF+4*g,4)}, v24 offset:{16*g}")
    a(f"ds_read_b128 {vr(112,4)}, v21\ns_waitcnt lgkmcnt(1)")
    for i in range(4): a(f"v_pk_add_f32 {vr(XF+4*i,2)}, {vr(XF+4*i,2)}, {vr(XF+4*i+2,2)}")
    a(f"""
    v_pk_add_f32 {vr(XF,2)}, {vr(XF,2)}, {vr(XF+4,2)}
    v_pk_add_f32 {vr(XF+8,2)}, {vr(XF+8,2)}, {vr(XF+12,2)}
    v_pk_add_f32 {vr(XF,2)}, {vr(XF,2)}, {vr(XF+8,2)}
    """)
    bf16_stats(a, XF + 1, XF, 22, 23, 21)
    a(f"""
    v_cvt_pk_bf16_f32 v116, -v22, -v22
    v_lshlrev_b32 v21, 2, v{vJ}
    v_add_u32 v21, {L_RT}, v21
    ds_write_b32 v21, v23
    v_mul_f32 v117, {f32(QSCALE)}, v23
    v_lshlrev_b32 v21, 4, v{vHH}
    v_add_u32 v21, {L_RT}, v21
    ds_write_b64 v30, v[116:117]
    v_mov_b32 v118, v116
    v_mov_b32 v119, v116
    v_mov_b32 v22, v23
    """)
    lds_arrive(a, C_ST, nowait=True)
    a(f"""
    s_waitcnt lgkmcnt(0)
    v_mov_b32 v117, v116
    s_bitcmp1_b32 s{sCB}, 0
    s_cbranch_scc1 {vfin}
    {MF} {vr(ACC,16)}, {vr(112,4)}, {vr(116,4)}, {vr(ACC,16)}
    s_branch {cm}
    {vfin}:
    {MF} {vr(ACC,16)}, {vr(116,4)}, {vr(112,4)}, {vr(ACC,16)}
    """)
    for g in range(4): a(f"ds_read_b128 {vr(XF+4*g,4)}, v21 offset:{32*g}")
    a(f"""
    s_add_u32 s{sT1}, s{sT1}, 2048
    v_cmp_eq_u32 vcc, 28, v{vJ}
    v_mov_b32 v24, 0x3f803f80
    s_nop 1
    v_cndmask_b32 v24, 0, v24, vcc
    """)
    for i in range(8): a(f"v_mov_b32 v{120+i}, v24")
    a(f"{cm}:")
    lds_wait(a, C_KV, 3)
    stamp(a, 4)
    for w in range(3):
        for g in range(4): a(f"ds_read_b128 {vr(128+16*w+4*g,4)}, v25 offset:{7168*w+1024*g}")
    for w in range(3):
        a(f"s_waitcnt lgkmcnt({8-4*w})")
        for r in range(0, 16, 2): a(f"v_pk_add_f32 {vr(ACC+r,2)}, {vr(ACC+r,2)}, {vr(128+16*w+r,2)}")
    a(f"s_bitcmp1_b32 s{sCB}, 0\ns_cbranch_scc1 {vf2}")
    for r in range(0, 16, 2): a(f"v_pk_mul_f32 {vr(ACC+r,2)}, {vr(ACC+r,2)}, v[22:23]")
    for i in range(8): a(f"v_cvt_pk_bf16_f32 v{120+i}, v{ACC+2*i}, v{ACC+2*i+1}")
    a(f"""
    s_mov_b64 exec, {sr(sHI,2)}
    v_mov_b32 v126, 0x3f803f80
    v_mov_b32 v127, 0x00003f80
    s_branch {kvst}
    {vf2}:
    s_mov_b32 exec_lo, 0x0fffffff
    s_mov_b32 exec_hi, 0x0fffffff
    """)
    for r in range(0, 16, 2): a(f"v_pk_mul_f32 {vr(ACC+r,2)}, {vr(ACC+r,2)}, {vr(XF+r,2)}")
    for i in range(8): a(f"v_cvt_pk_bf16_f32 v{120+i}, v{ACC+2*i}, v{ACC+2*i+1}")
    a(f"""
    {kvst}:
    s_mov_b64 exec, -1
    buffer_store_dwordx4 {vr(120,4)}, v{vL16}, {sr(R_WS,4)}, s{sT1} offen sc1
    buffer_store_dwordx4 {vr(124,4)}, v{vL16}, {sr(R_WS,4)}, s{sT1} offen offset:1024 sc1
    """)
    stamp(a, 5)
    if OPT.kvflag < 0:
        set_flag(a, sT4)
        a(f"s_mov_b32 s{sT4}, 0\ns_setprio 0")
        stamp(a, 6)
    if not OPT.fl_late or OPT.kvflag < 0: lds_arrive(a, C_FL, nowait=True)
    a(f"s_branch {qgo}")
    a(f"{other}:")
    a(f"""
    s_lshr_b32 s{sT3}, s{sJ}, 3
    s_lshl_b32 s{sT3}, s{sT3}, 2
    s_add_u32 s{sT3}, s{sT3}, s{sCB}
    s_sub_u32 s{sT3}, s{sT3}, 4
    s_lshl_b32 s{sT0}, s{sT3}, 2
    s_add_u32 s{sT0}, s{sT0}, s{sW}
    s_cmp_eq_u32 s{sT3}, 1
    s_cselect_b32 s{R_WKV}, s{P_WV}, s{P_WK}
    s_cselect_b32 s{R_WKV+1}, s{P_WV+1}, s{P_WK+1}
    s_mov_b32 s{R_WKV+2}, {448*896}
    s_sub_u32 s{sT1}, s{sT0}, 8
    s_cmp_lt_u32 s{sT3}, 2
    s_cselect_b32 s{R_WKV}, s{R_WKV}, s{P_WQ}
    s_cselect_b32 s{R_WKV+1}, s{R_WKV+1}, s{P_WQ+1}
    s_cselect_b32 s{R_WKV+2}, {448*56}, s{R_WKV+2}
    s_cselect_b32 s{sT1}, s{sW}, s{sT1}
    s_mov_b32 s{R_WKV+3}, 0x20000
    s_lshl_b32 s{sT1}, s{sT1}, 13
    buffer_load_dword v250, v21, {sr(R_WKV,4)}, s{sT1} offen
    """)
    pf1_addr(a)
    frag_addr()
    a(f"s_mov_b32 s{sT2}, s{sW}\ns_barrier\ns_waitcnt vmcnt(1)")
    stamp(a, 2)
    lds_arrive(a, C_X1, nowait=True)
    def early():
        ne = a.label("noearly"); nw = a.label("nowait")
        a(f"s_cmp_lt_u32 s{sCB}, 6\ns_cbranch_scc1 {nw if OPT.pdefer else ne}\ns_cmp_eq_u32 s{sJ}, 6\ns_cbranch_scc1 {nw if OPT.pdefer else ne}")
        for i in range(OPT.npf0):
            if i == OPT.npfa: lds_wait(a, C_FL, 4)
            a(f"buffer_load_dword v{251+i%3}, v{vPF1}, {sr(R_W1,4)}, s{sPFW} offen\ns_add_u32 s{sPFW}, s{sPFW}, {56*3584}")
        a(f"{nw}:")
        lds_wait(a, C_FL, 4)
        a(f"{ne}:")
        x_half(1)
    rest_dma(a, early)
    lds_arrive(a, C_ISS, nowait=True)
    get_tag(a)
    stamp(a, 3)
    a(f"{dostats}:")
    stats_code(a, 20, 21, sT2)
    a(f"s_cmp_lt_u32 s{sCB}, 4\ns_cbranch_scc1 {qgo}\ns_waitcnt vmcnt(0)")
    lds_arrive(a, C_X, nowait=True)
    QACC, B0 = 128, 32
    a(f"""
    {qgo}:
    s_and_b32 s{sT0}, s{sW}, 1
    s_mul_i32 s{sT0}, s{sT0}, 56
    v_add_u32 v{vWQr}, s{sT0}, v9
    v_lshlrev_b32 v21, 5, v8
    v_and_b32 v21, 64, v21
    v_xor_b32 v{vWQr}, v{vWQr}, v21
    v_lshl_add_u32 v{vWQr}, v20, 7, v{vWQr}
    v_add_u32 v{vWQr}, {L_WQ}, v{vWQr}
    s_lshr_b32 s{sT1}, s{sW}, 1
    s_lshl_b32 s{sT0}, s{sT1}, 12
    v_mov_b32 v23, 0
    v_mov_b32 v113, 0
    v_mov_b32 v114, 0
    v_mov_b32 v115, 0
    v_mov_b32 v118, 0
    v_mov_b32 v119, 0
    """)
    for q in range(4): a(f"v_add_u32 v{vXF+q}, s{sT0}, v{vXF+q}")
    a(f"""
    s_lshl_b32 s{sT1}, s{sT1}, 8
    s_add_u32 s{sT1}, s{sT1}, {L_ST}
    v_lshl_add_u32 v24, v{vJ}, 3, s{sT1}
    """)
    lds_wait(a, C_X1, 4)
    lds_wait(a, C_X, 4)
    stamp(a, 7)
    D = 4; NB = 8
    WR = list(range(64, 112, 4)) + list(range(144, 176, 4)) + list(range(224, 248, 4)) + [120, 124]
    def wreg(ks): return WR[ks]
    def reads(ks):
        b = wreg(ks)
        a(f"ds_read_b64_tr_b16 {vr(b,2)}, v{vWQr} offset:{ks*2048}")
        a(f"ds_read_b64_tr_b16 {vr(b+2,2)}, v{vWQr} offset:{ks*2048+512}")
        a(f"ds_read_b128 {vr(B0+4*(ks%NB),4)}, v{vXF+(ks&3)} offset:{L_XT + (ks>>2)*8192}")
    for ks in range(D): reads(ks)
    for ks in range(28):
        if ks + D < 28: reads(ks + D)
        a(f"s_waitcnt lgkmcnt({3*min(D, 27-ks)})")
        a(f"{MF} {vr(QACC,16)}, {vr(wreg(ks),4)}, {vr(B0+4*(ks%NB),4)}, {'0' if ks == 0 else vr(QACC,16)}")
        if ks == OPT.kvflag:
            nf = a.label("nofl")
            a(f"s_cmp_eq_u32 s{sT4}, 0\ns_cbranch_scc1 {nf}")
            set_flag(a, sT4)
            if OPT.fl_late: lds_arrive(a, C_FL, nowait=True)
            a("s_setprio 0")
            stamp(a, 6)
            a(f"{nf}:")
    stamp(a, 19)
    if OPT.prio_ld: a(f"s_setprio {OPT.prio_ld}")
    att_setup(a)
    if OPT.early: a(f"buffer_load_dwordx2 v[30:31], v25, {sr(R_WS,4)}, s{sKF} offen sc1")
    for ks in range(28):
        for i in range(4): a(f"v_dot2c_f32_bf16 v23, s{sONES}, v{wreg(ks)+i}")
    if OPT.early:
        nk = a.label("nokvyet")
        a(f"""
        s_waitcnt vmcnt(0)
        v_cmp_ne_u64 vcc, {sr(sTAG,2)}, v[30:31]
        s_cbranch_vccnz {nk}
        """)
        first_kv(a)
        a(f"s_mov_b32 s{sKF}, 0\n{nk}:")
    stamp(a, 8)
    lds_wait(a, C_ST, 8)
    a(f"ds_read_b64 v[116:117], v24")
    split_hi_lo(a, 112, 23, 21)
    a(f"""
    s_waitcnt lgkmcnt(0)
    v_mov_b32 v22, v117
    v_mov_b32 v23, v117
    v_mov_b32 v117, 0
    s_nop 1
    {MF} {vr(QACC,16)}, {vr(112,4)}, {vr(116,4)}, {vr(QACC,16)}
    s_lshl_b32 s{sT1}, s{sW}, 11
    s_add_u32 s{sT1}, s{sT1}, {L_QS}
    v_add_u32 v21, s{sT1}, v{vL16}
    """)
    for r in range(64, 76): a(f"v_mov_b32 v{r}, 0")
    for r in range(0, 16, 2): a(f"v_pk_mul_f32 {vr(QACC+r,2)}, {vr(QACC+r,2)}, v[22:23]")
    for i in range(8): a(f"v_cvt_pk_bf16_f32 v{32+i}, v{QACC+2*i}, v{QACC+2*i+1}")
    a(f"""
    s_mov_b64 exec, {sr(sHI,2)}
    v_mov_b32 v38, 0
    v_mov_b32 v39, 0
    s_mov_b64 exec, -1
    ds_write_b128 v21, {vr(32,4)}
    ds_write_b128 v21, {vr(36,4)} offset:1024
    """)
    lds_arrive(a, C_Q, nowait=True)

vDW1, vDW2, vDWO, vOUT, vT1, vT2, vT3, vLN, vLM, vPF, vPF2 = 48, 49, 50, 51, 52, 54, 56, 58, 60, 62, 63
vTH, vSW = 240, 247
sHasG1 = 98
sLb0, sLbE, sDb0, sDbE = 34, 35, 36, 37
sFH, sPH, sB1o, sFU, sUS, sFUc, sPU, sFOc, sSH1 = 16, 17, 28, 29, 30, 31, 32, 33, 81
def g_setup1(a, mid=None):
    srd(a, R_B1, P_B1, 1792 * 2)
    a(f"""
    s_lshr_b32 s{sGM}, s{sG}, 1
    s_and_b32 s{sGN}, s{sG}, 1
    s_lshl_b32 s{sRing}, s{sG}, 11
    s_add_u32 s{sRing}, s{sRing}, {L_RING}
    v_lshlrev_b32 v{vDWO}, 2, v10
    v_xor_b32 v{vDWO}, v{vDWO}, v6
    v_lshlrev_b32 v{vDWO}, 4, v{vDWO}
    v_lshl_add_u32 v{vT3}, v8, 7, v9
    v_lshlrev_b32 v24, 5, v8
    v_and_b32 v24, 64, v24
    v_add_u32 v{vT3}, v{vT3}, v24
    v_add_u32 v{vT3}, s{sRing}, v{vT3}
    s_lshr_b32 s{sT0}, s{sJ}, 3
    s_mul_i32 s{sT0}, s{sT0}, 6
    s_add_u32 s{sT0}, s{sT0}, s{sCB}
    s_cmp_lt_u32 s{sCB}, 6
    s_cselect_b32 s{sHasG1}, 1, 0
    s_and_b32 s{sT1}, s2, 0xf9
    s_cmp_eq_u32 s{sT1}, 48
    s_cselect_b32 s{sT0}, 24, s{sT0}
    s_cselect_b32 s{sHasG1}, 1, s{sHasG1}
    s_and_b32 s{sT1}, s{sXCD}, 1
    s_mul_i32 s{sT1}, s{sT1}, 25
    s_add_u32 s{sT0}, s{sT0}, s{sT1}
    s_mul_i32 s{sA}, s{sT0}, 37
    s_lshr_b32 s{sA}, s{sA}, 8
    s_mul_i32 s{sT1}, s{sA}, 7
    s_sub_u32 s{sPH}, s{sT0}, s{sT1}
    s_lshr_b32 s{sFB}, s{sXCD}, 1
    s_mul_i32 s{sFB}, s{sFB}, 7
    s_add_u32 s{sFB}, s{sFB}, s{sPH}
    """)
    if mid: mid()
    a(f"""
    v_mul_u32_u24 v{vDW1}, 3584, v5
    v_add_u32 v{vDW1}, v{vDW1}, v{vDWO}
    v_lshl_add_u32 v{vDW2}, v5, 12, v{vDWO}
    v_mul_u32_u24 v24, 896, v5
    v_add_u32 v{vDWO}, v24, v{vDWO}
    s_mul_i32 s{sD}, s{sG}, {512*3584}
    s_lshl_b32 s{sT0}, s{sFB}, 7
    s_add_u32 s{sD}, s{sD}, s{sT0}
    s_lshl_b32 s{sT1}, s{sGM}, 6
    s_add_u32 s{sB1o}, s{sT0}, s{sT1}
    v_lshl_add_u32 v24, v{vHH}, 10, v{vT3}
    v_xor_b32 v{vT1}, s{sT1}, v24
    v_xor_b32 v{vT1+1}, 64, v{vT1}
    v_add_u32 v{vTH}, 0x10000, v{vT1}
    v_add_u32 v{vTH+1}, 0x10000, v{vT1+1}
    s_lshl_b32 s{sT0}, s{sGN}, 10
    v_add_u32 v{vLN}, s{sT0}, v{vL16}
    v_xor_b32 v{vLN+1}, 0x400, v{vLN}
    s_lshl_b32 s{sL}, s{sA}, 18
    s_lshl_b32 s{sT0}, s{sG}, 16
    s_add_u32 s{sL}, s{sL}, s{sT0}
    s_add_u32 s{sSH1}, s{sPH}, 1
    s_lshl_b32 s{sPH}, s{sSH1}, 13
    s_add_u32 s{sPH}, s{sPH}, s{sL}
    v_lshlrev_b32 v{vPF}, 7, v{vLANE}
    v_add_u32 v{vSW}, s{sRing}, v{vL16}
    v_add_u32 v{vSW+1}, 0x10000, v{vSW}
    s_lshr_b32 s{sFH}, s{sA}, 1
    s_lshl_b32 s{sFH}, s{sFH}, 10
    s_lshl_b32 s{sT0}, s{sG}, 8
    s_add_u32 s{sFH}, s{sFH}, s{sT0}
    s_lshl_b32 s{sFH}, s{sFH}, {FS}
    s_add_u32 s{sFH}, s{sFH}, {FL_H}
    v_bfe_u32 v32, v{vJ}, 1, 3
    v_lshlrev_b32 v32, 4, v32
    v_xor_b32 v32, s{sT1}, v32
    v_lshl_add_u32 v32, v{vJ}, 7, v32
    v_lshl_add_u32 v32, v{vHH}, 3, v32
    s_lshl_b32 s{sT0}, s{sCB}, 13
    s_lshl_b32 s{sT1}, s{sGN}, 12
    s_add_u32 s{sT0}, s{sT0}, s{sT1}
    v_add_u32 v32, s{sT0}, v32
    v_xor_b32 v33, 16, v32
    v_xor_b32 v34, 32, v32
    v_xor_b32 v35, 48, v32
    """)
    assert WS_HT == 0
def g_xread(a):
    lds_wait(a, C_X1, 4)
    lds_wait(a, C_XA, 4)
    for g, v in enumerate((32, 33, 34, 35)): a(f"ds_read_b64 {vr(6+2*g,2)}, v{v} offset:{L_XT}")
    lds_arrive(a, C_ST, nowait=True)

def g_setup2(a):
    srd(a, R_W2, P_W2, 1792 * 4096)
    srd(a, R_WO, P_WO, 448 * 896)
    srd(a, R_OUT, P_OUT, 2048 * 896)
    srd(a, R_B2, P_B2, 2048 * 2)
    a(f"""
    s_mul_i32 s{sDb}, s{sG}, {448*4096}
    s_lshl_b32 s{sT0}, s{sRB}, 7
    s_add_u32 s{sDb}, s{sDb}, s{sT0}
    s_mul_i32 s{sD2}, s{sG}, {112*896}
    s_lshl_b32 s{sT0}, s{sCB}, 7
    s_add_u32 s{sD2}, s{sD2}, s{sT0}
    s_lshl_b32 s{sT0}, s{sGM}, 6
    s_lshl_b32 s{sT1}, s{sGN}, 6
    v_lshl_add_u32 v24, v{vHH}, 9, v{vT3}
    v_xor_b32 v{vT2}, s{sT1}, v24
    v_xor_b32 v{vT2+1}, 64, v{vT2}
    v_xor_b32 v{vT3}, s{sT0}, v24
    v_xor_b32 v{vT3+1}, 64, v{vT3}
    s_lshl_b32 s{sT0}, s{sGM}, 10
    v_add_u32 v{vLM}, s{sT0}, v{vL16}
    v_xor_b32 v{vLM+1}, 0x400, v{vLM}
    s_mul_i32 s{sLb}, s{sCB}, 112
    s_mul_i32 s{sT0}, s{sG}, 28
    s_add_u32 s{sLb}, s{sLb}, s{sT0}
    s_lshl_b32 s{sLb}, s{sLb}, 11
    s_add_u32 s{sLb}, s{sLb}, {WS_U}
    s_lshr_b32 s{sT0}, s{sJ}, 3
    s_add_u32 s{sT0}, s{sT0}, 3
    s_lshl_b32 s{sT0}, s{sT0}, 13
    s_add_u32 s{sPU}, s{sT0}, s{sLb}
    s_lshl_b32 s{sL2}, s{sRB}, 16
    s_lshl_b32 s{sT0}, s{sG}, 14
    s_add_u32 s{sL2}, s{sL2}, s{sT0}
    s_add_u32 s{sL2}, s{sL2}, {WS_O}
    v_mul_u32_u24 v{vOUT}, 896, v{vJ}
    v_lshl_add_u32 v{vOUT}, v{vHH}, 4, v{vOUT}
    s_lshl_b32 s{sT0}, s{sRB}, 1
    s_add_u32 s{sT0}, s{sT0}, s{sGN}
    s_lshl_b32 s{sB2}, s{sT0}, 6
    s_mul_i32 s{sT0}, s{sT0}, {32*896}
    s_lshl_b32 s{sT1}, s{sCB}, 7
    s_add_u32 s{sT0}, s{sT0}, s{sT1}
    s_lshl_b32 s{sT1}, s{sGM}, 6
    s_add_u32 s{sOUT}, s{sT0}, s{sT1}
    v_lshrrev_b32 v{vPF2}, 2, v{vLANE}
    v_and_b32 v24, 3, v{vLANE}
    v_lshlrev_b32 v{vPF2}, 12, v{vPF2}
    v_lshl_add_u32 v{vPF2}, v24, 7, v{vPF2}
    s_mul_i32 s{sT0}, s{sA}, 112
    s_lshl_b32 s{sT1}, s{sFB}, 2
    s_add_u32 s{sT0}, s{sT0}, s{sT1}
    s_lshl_b32 s{sT2}, s{sGM}, 1
    s_add_u32 s{sT0}, s{sT0}, s{sT2}
    s_lshl_b32 s{sT0}, s{sT0}, 11
    s_add_u32 s{sUS}, s{sT0}, {WS_U}
    s_lshl_b32 s{sT0}, s{sA}, 7
    s_add_u32 s{sT0}, s{sT0}, s{sT1}
    s_add_u32 s{sT0}, s{sT0}, s{sG}
    s_lshl_b32 s{sT0}, s{sT0}, 3
    s_lshl_b32 s{sT0}, s{sT0}, {FS}
    s_add_u32 s{sFU}, s{sT0}, {FL_U}
    s_lshl_b32 s{sT0}, s{sCB}, 10
    s_mul_i32 s{sT1}, s{sG}, 224
    s_add_u32 s{sT0}, s{sT0}, s{sT1}
    s_lshl_b32 s{sT0}, s{sT0}, {FS}
    s_add_u32 s{sFUc}, s{sT0}, {FL_U}
    s_lshl_b32 s{sT0}, s{sRB}, 8
    s_lshl_b32 s{sT1}, s{sG}, 6
    s_add_u32 s{sT0}, s{sT0}, s{sT1}
    s_lshl_b32 s{sT0}, s{sT0}, {FS}
    s_add_u32 s{sFOc}, s{sT0}, {FL_O}
    """)
    for i in range(2, 6): a(f"v_add_u32 v{vTH+i}, 0x10000, v{vT1+i}")
    if OPT.ra or OPT.rb:
        a(f"""
        s_lshr_b32 s{sT0}, s{sJ}, 3
        s_mul_i32 s{sT0}, s{sT0}, {OPT.ra}
        s_mul_i32 s{sT1}, s{sXCD}, {OPT.rb}
        s_add_u32 s{sT0}, s{sT0}, s{sT1}
        s_mul_i32 s{sT1}, s{sT0}, 2341
        s_lshr_b32 s{sT1}, s{sT1}, 16
        s_mul_i32 s{sT1}, s{sT1}, 28
        s_sub_u32 s{sT0}, s{sT0}, s{sT1}
        s_mov_b32 s{sLb0}, s{sLb}
        s_add_u32 s{sLbE}, s{sLb}, {28*2048}
        s_mov_b32 s{sDb0}, s{sDb}
        s_add_u32 s{sDbE}, s{sDb}, {28*16*4096}
        s_lshl_b32 s{sT1}, s{sT0}, 11
        s_add_u32 s{sLb}, s{sLb}, s{sT1}
        s_lshl_b32 s{sT1}, s{sT0}, 16
        s_add_u32 s{sDb}, s{sDb}, s{sT1}
        """)
        assert all((x * 2341) >> 16 == x // 28 for x in range(200))
    if OPT.nou: a(f"v_mov_b32 v{vLM}, {OOB}\nv_mov_b32 v{vLM+1}, {OOB}")
    if OPT.now2: a(f"v_mov_b32 v{vDW2}, {OOB}")

L_HB2 = L_WKV
def p1_g(a):
    X, U = 128, 160
    htype = a.label("gh"); pfw = a.label("gpfw")
    a(f"s_sub_u32 s{sG}, s{sW}, 4")
    common_srds(a)
    pf1_addr(a)
    a(f"s_cmp_ge_u32 s{sCB}, 4\ns_cbranch_scc1 {htype}")
    a("s_barrier")
    rest_dma(a)
    stamp(a, 2)
    get_tag(a)
    g_setup1(a, lambda: (a("s_waitcnt vmcnt(0)"), lds_arrive(a, C_X, nowait=True), stamp(a, 3)))
    lds_wait(a, C_FL, 1)
    a(f"s_branch {pfw}")
    a(f"""
    {htype}:
    s_sub_u32 s{sT1}, s{sCB}, 4
    s_lshl_b32 s{sT0}, s{sRB}, 2
    s_add_u32 s{sT0}, s{sT0}, s{sT1}
    s_lshl_b32 s{sT1}, s{sT1}, 4
    s_lshl_b32 s{sT2}, s{sG}, 2
    s_add_u32 s{sT1}, s{sT1}, s{sT2}
    v_add_u32 v11, s{sT1}, v7
    v_and_b32 v13, 1, v5
    v_lshlrev_b32 v12, 13, v13
    v_lshl_add_u32 v12, v11, 7, v12
    v_lshl_add_u32 v12, v6, 4, v12
    v_bfe_u32 v11, v11, 1, 3
    v_xor_b32 v11, v11, v6
    v_mul_u32_u24 v14, {HB_STRIDE}, v7
    v_lshl_add_u32 v14, v11, 4, v14
    v_lshl_add_u32 v14, v13, 7, v14
    s_mul_i32 s{sT2}, s{sG}, {4*HB_STRIDE}
    s_add_u32 s{sT2}, s{sT2}, {L_HB2}
    v_add_u32 v14, s{sT2}, v14
    v_lshl_add_u32 v15, v{vHH}, 3, v8
    v_mul_u32_u24 v15, {HB_STRIDE}, v15
    v_add_u32 v15, v15, v9
    s_lshl_b32 s{sT2}, s{sG}, 8
    s_add_u32 s{sT2}, s{sT2}, {L_HB2}
    v_add_u32 v15, s{sT2}, v15
    s_lshl_b32 s{sT2}, s{sG}, 19
    s_lshl_b32 s{sT3}, s{sT0}, 11
    s_add_u32 s{sT2}, s{sT2}, s{sT3}
    s_add_u32 s{sT3}, s{sT2}, {128*2048}
    s_lshl_b32 s{sT4}, s{sG}, 7
    s_add_u32 s{sT4}, s{sT4}, s{sT0}
    s_lshl_b32 s{sT4}, s{sT4}, {3+FS}
    s_add_u32 s{sT4}, s{sT4}, {FL_H}
    v_mov_b32 v17, 0xffff0000
    s_mov_b32 vcc_lo, 0x00ff00ff
    s_mov_b32 vcc_hi, 0x00ff00ff
    """)
    for p in range(1):
        for i in range(4): a(f"v_mov_b32 v{X+16*p+12+i}, 0")
    S = [32, 40]
    for p in range(1): a(f"v_mov_b32 v{S[p]}, 0\nv_mov_b32 v{S[p]+1}, 0")
    a("s_barrier\ns_setprio 3")
    lds_wait(a, C_X1, 4)
    stamp(a, 2)
    for p in range(1):
        for i in range(3): a(f"ds_read_b128 {vr(X+16*p+4*i,4)}, v12 offset:{L_XT + 16384*i + 2048*p}")
        a(f"s_mov_b64 exec, vcc\nds_read_b128 {vr(X+16*p+12,4)}, v12 offset:{L_XT + 16384*3 + 2048*p}\ns_mov_b64 exec, -1")
    for p in range(1):
        for i in range(16):
            if i % 4 == 0: a(f"s_waitcnt lgkmcnt({3-i//4})")
            a(f"v_dot2c_f32_bf16 v{S[p]}, s{sONES}, v{X+16*p+i}")
            a(f"v_dot2c_f32_bf16 v{S[p]+1}, v{X+16*p+i}, v{X+16*p+i}")
    un = []
    for i in range(16): un += [f"v_lshlrev_b32 v{U+2*i}, 16, v{X+i}", f"v_and_b32 v{U+2*i+1}, v17, v{X+i}"]
    for x in un[:3]: a(x)
    un = un[3:]
    def both(txt):
        for line in txt.strip().split("\n"):
            p = 0; t_ = line.strip().format(s=S[p], q=S[p]+1, t=S[p]+2, r=S[p]+4, r2=S[p]+5, m=S[p]+6)
            a(t_)
            if t_.startswith(("v_sqrt", "v_rcp")) or (t_.startswith("v_add_f32_dpp") and f"v{S[0]+1}," in t_): a(un.pop(0))
    for mode in (QP1, QP2, RHM, RM):
        both("v_add_f32_dpp v{s}, v{s}, v{s} %s row_mask:0xf bank_mask:0xf\nv_add_f32_dpp v{q}, v{q}, v{q} %s row_mask:0xf bank_mask:0xf" % (mode, mode))
    rstd = """
    v_and_b32 v{t}, v17, v{t}
    v_add_f32 v{t}, %#x, v{t}
    v_cvt_pk_bf16_f32 v{t}, v{t}, v{t}
    v_and_b32 v{t}, v17, v{t}
    v_sqrt_f32 v{t}, v{t}
    v_cvt_pk_bf16_f32 v{t}, v{t}, v{t}
    v_and_b32 v{t}, v17, v{t}
    v_rcp_f32 v{%s}, v{t}
    """
    both("""
    v_mul_f32 v{s}, %s, v{s}
    v_mul_f32 v{q}, %s, v{q}
    v_fma_f32 v{q}, -v{s}, v{s}, v{q}
    v_max_f32 v{q}, 0, v{q}
    v_cvt_pk_bf16_f32 v{t}, v{s}, v{q}
    v_lshlrev_b32 v{m}, 16, v{t}
    """ % (f32(1/448), f32(1/448)))
    both(rstd % (EPS, "r"))
    both("""
    v_sub_f32 v{s}, v{s}, v{m}
    v_mul_f32 v{s}, v{s}, v{r}
    v_mul_f32 v{q}, v{q}, v{r}
    v_mul_f32 v{q}, v{q}, v{r}
    v_cvt_pk_bf16_f32 v{t}, v{s}, v{q}
    v_lshlrev_b32 v{s}, 16, v{t}
    v_fma_f32 v{m}, v{m}, v{r}, v{s}
    """)
    both(rstd % (EPS, "r2"))
    for x in un: a(x)
    both("v_mul_f32 v{m}, v{m}, v{r2}\nv_mul_f32 v{r}, v{r}, v{r2}")
    for p in range(1):
        for i in range(16):
            if i == 12: a("s_mov_b64 exec, vcc")
            u = U + 32 * p + 2 * i
            a(f"""
            v_pk_fma_f32 {vr(u,2)}, {vr(u,2)}, {vr(S[p]+4,2)}, {vr(S[p]+6,2)} op_sel_hi:[1,0,0] neg_lo:[0,0,1] neg_hi:[0,0,1]
            v_cvt_pk_bf16_f32 v{X+16*p+i}, v{u}, v{u+1}
            """)
            if i % 4 == 3: a(f"ds_write_b128 v14, {vr(X+16*p+i-3,4)} offset:{256*(i//4) + 16*HB_STRIDE*p}")
        a("s_mov_b64 exec, -1")
    stamp(a, 3)
    lds_arrive(a, C_H, nowait=True)
    lds_wait(a, C_H, 4)
    n = 0
    for p in range(1):
        for f in range(4):
            for x in range(2):
                if n == 15: a("s_waitcnt lgkmcnt(14)")
                a(f"ds_read_b64_tr_b16 {vr(U+16*p+4*f+2*x,2)}, v15 offset:{x*4*HB_STRIDE + f*64 + 16*HB_STRIDE*p}"); n += 1
    for p in range(1):
        for f in range(4):
            a(f"s_waitcnt lgkmcnt({6-2*f})")
            a(f"buffer_store_dwordx4 {vr(U+16*p+4*f,4)}, v{vL16}, {sr(R_WS,4)}, s{sT2 + (f>>1)} offen offset:{1024*(f&1) + 2048*p} sc1")
    lds_arrive(a, C_FL, nowait=True)
    stamp(a, 4)
    g_setup1(a)
    get_tag(a)
    set_flag(a, sT4)
    a("s_setprio 0")
    stamp(a, 5)
    lds_wait(a, C_FL, 4)
    lds_wait(a, C_ISS, 4)
    a(f"{pfw}:")

sK, sKF, sKP = 94, 95, 96
AQ, AO, AS, AP, AKV = 32, 64, 128, 160, 176
def att_setup(a):
    a(f"""
    s_add_u32 s{R_KV}, s{P_WS}, {WS_KV}
    s_addc_u32 s{R_KV+1}, s{P_WS+1}, 0
    s_add_u32 s{sT0}, s{sW}, 1
    s_lshl_b32 s{R_KV+2}, s{sT0}, 16
    s_mov_b32 s{R_KV+3}, 0x20000
    v_lshlrev_b32 v5, 7, v{vLANE}
    v_lshlrev_b32 v25, {3+FS}, v{vJ}
    s_lshr_b32 s{sKP}, s{sJ}, 1
    s_and_b32 s{sKP}, s{sKP}, 4
    s_add_u32 s{sKP}, s{sKP}, s{sCB}
    s_lshl_b32 s{sKP}, s{sKP}, 13
    s_lshl_b32 s{sT0}, s{sW}, 16
    s_add_u32 s{sKP}, s{sKP}, s{sT0}
    s_and_b32 s{sT0}, s{sJ}, 0x14
    s_cmp_lg_u32 s{sT0}, 0
    s_cselect_b32 s{sKP}, {OOB}, s{sKP}
    s_lshl_b32 s{sKF}, s{sW}, 8
    s_lshl_b32 s{sKF}, s{sKF}, {FS}
    s_add_u32 s{sKF}, s{sKF}, {FL_KV}
    """)
def kvload(a, buf):
    for j in range(4):
        a(f"buffer_load_dwordx4 {vr(AKV+16*buf+4*j,4)}, v{vL16}, {sr(R_KV,4)}, s{sK} offen offset:{1024*j} sc1")
    a(f"s_add_u32 s{sK}, s{sK}, 4096")
def first_kv(a):
    a(f"s_lshl_b32 s{sK}, s{sW}, 16")
    kvload(a, 0)
    a(f"buffer_load_dword v253, v5, {sr(R_KV,4)}, s{sKP} offen sc1")
    kvload(a, 1); kvload(a, 2)

def attention(a, done):
    Q, O, S, P, KV = AQ, AO, AS, AP, AKV
    NM = 20
    sIt, sRetry, sOS, sOF = sT1, sT3, 84, 85
    vMW, vRW, vMR, vRR = 8, 12, 15, 16
    go = a.label("att_go"); mloop = a.label("att_mloop"); loop = a.label("att_loop"); ok = a.label("att_ok"); havekv = a.label("att_havekv")
    a(f"s_mov_b32 s{sRetry}, 0\ns_cmp_eq_u32 s{sKF}, 0\ns_cbranch_scc1 {havekv}")
    lds_wait(a, C_PRE, 4)
    stamp(a, 9)
    poll(a, sKF, 32)
    stamp(a, 10)
    first_kv(a)
    a(f"{havekv}:")
    for i in range(1, 4):
        a(f"""
        s_add_u32 s{sT0}, s{sW}, {i}
        s_and_b32 s{sT0}, s{sT0}, 3
        s_lshl_b32 s{sT0}, s{sT0}, 11
        s_add_u32 s{sT0}, s{sT0}, {L_QS}
        v_add_u32 v{16+i}, s{sT0}, v{vL16}
        """)
    lds_wait(a, C_Q, 4)
    for i in range(1, 4):
        a(f"ds_read_b128 {vr(Q+8*i,4)}, v{16+i}\nds_read_b128 {vr(Q+8*i+4,4)}, v{16+i} offset:1024")
    for r in range(12, 64): a(f"v_mov_b32 v{O+r}, 0")
    for i in range(4):
        a(f"""
        s_add_u32 s{sT0}, s{sW}, {i+1}
        s_and_b32 s{sT0}, s{sT0}, 3
        s_lshl_b32 s{sT2}, s{sT0}, 9
        s_add_u32 s{sT2}, s{sT2}, {L_MX + 128*i}
        v_lshl_add_u32 v{vMW+i}, v{vJ}, 2, s{sT2}
        s_mul_i32 s{sT2}, s{sT0}, 12288
        s_add_u32 s{sT2}, s{sT2}, {L_RED + 4096*(i%3)}
        v_add_u32 v{vRW+i if i < 3 else vRR}, s{sT2}, v{vL16}
        """)
    a(f"""
    v_subrev_u32 v{vMR}, 384, v{vMW+3}
    s_add_u32 s{sT0}, s{sW}, 3
    s_and_b32 s{sT2}, s{sT0}, 1
    s_lshl_b32 s{sOS}, s{sCB}, 1
    s_add_u32 s{sOS}, s{sOS}, s{sT2}
    s_lshl_b32 s{sOS}, s{sOS}, 12
    s_lshl_b32 s{sT2}, s{sRB}, 16
    s_add_u32 s{sOS}, s{sOS}, s{sT2}
    s_and_b32 s{sT2}, s{sT0}, 2
    s_lshl_b32 s{sT2}, s{sT2}, 9
    s_add_u32 s{sOS}, s{sOS}, s{sT2}
    s_add_u32 s{sOS}, s{sOS}, {WS_O}
    s_lshl_b32 s{sOF}, s{sRB}, 3
    s_add_u32 s{sOF}, s{sOF}, s{sCB}
    s_lshl_b32 s{sOF}, s{sOF}, 2
    s_add_u32 s{sOF}, s{sOF}, s{sW}
    s_lshl_b32 s{sOF}, s{sOF}, {3+FS}
    s_add_u32 s{sOF}, s{sOF}, {FL_O}
    s_mov_b32 s{sT4}, 0x71800000
    """)
    TMP = [S, S + 16, KV + 48, P]
    def scan_mf(kreg):
        for i in range(4):
            a(f"{MF} {vr(TMP[i],16)}, {vr(kreg,4)}, {vr(Q+8*i,4)}, 0")
            a(f"{MF} {vr(TMP[i],16)}, {vr(kreg+4,4)}, {vr(Q+8*i+4,4)}, {vr(TMP[i],16)}")
    a("s_waitcnt vmcnt(11) lgkmcnt(0)")
    stamp(a, 11)
    scan_mf(KV)
    a(f"s_nop 4\ns_mov_b64 exec, {sr(sHI,2)}")
    for i in range(4):
        t = TMP[i]
        a(f"v_max3_f32 v{NM+i}, v{t}, v{t+1}, v{t+2}")
        for j in range(3, 15, 2): a(f"v_max3_f32 v{NM+i}, v{t+j}, v{t+j+1}, v{NM+i}")
        a(f"""
        v_max_f32 v{NM+i}, v{t+15}, v{NM+i}
        v_cvt_pk_bf16_f32 v{Q+8*i+6}, -v{NM+i}, 0
        v_lshlrev_b32 v{NM+i}, 16, v{Q+8*i+6}
        """)
    a(f"{go}:")
    for i in range(4): a(f"ds_write_b32 v{vMW+i}, v{NM+i}")
    a("s_mov_b64 exec, -1")
    a(f"{MF} {vr(S,16)}, {vr(KV,4)}, {vr(Q,4)}, 0")
    a(f"{MF} {vr(S,16)}, {vr(KV+4,4)}, {vr(Q+4,4)}, {vr(S,16)}")
    for r in range(8): a(f"v_mov_b32 v{KV+48+8+r}, 0")
    for r in range(8): a(f"v_mov_b32 v{P+8+r}, 0")
    a(f"v_mov_b32 v{S+30}, 0\nv_mov_b32 v{S+31}, 0")
    def smf(q, b, kb):
        d = vr(S + 16 * b, 16)
        return [f"{MF} {d}, {vr(KV+16*kb,4)}, {vr(Q+8*q,4)}, 0", f"{MF} {d}, {vr(KV+16*kb+4,4)}, {vr(Q+8*q+4,4)}, {d}"]
    def pv(q, b, kb):
        d = vr(O + 16 * q, 16)
        return [f"{MF} {d}, {vr(KV+16*kb+8,4)}, {vr(P+8*b,4)}, {d}", f"{MF} {d}, {vr(KV+16*kb+12,4)}, {vr(P+8*b+4,4)}, {d}"]
    def pk(b, i): return f"v_cvt_pk_bf16_f32 v{P+8*b+i}, v{S+16*b+2*i}, v{S+16*b+2*i+1}"
    def owrite(i): return ['s_nop 0'] * 4 if OPT.nocomb else [f"ds_write_b128 v{vRW+i}, {vr(O+16*i+4*g,4)} offset:{1024*g}" for g in range(4)]
    a(f"s_mov_b32 s{sIt}, {OPT.attit-1}\ns_waitcnt vmcnt(8)")
    if OPT.ka: lds_wait(a, C_GO, 4, sleep=2)
    stamp(a, 12)
    if OPT.prio_ld: a(f"s_setprio {OPT.prio_a}")
    def body(lastit):
        for n in range(16):
            T, q, b = n // 4, n % 4, n % 2
            if lastit and n == 14: lds_wait(a, C_R1D, 4)
            va = []
            for i in range(8):
                r = S + 16 * b + 2 * i
                va += [f"v_exp_f32 v{r}, v{r}", f"v_exp_f32 v{r+1}, v{r+1}", pk(b, i - 1) if i else pk(1 - b, 7)]
            s = smf((q + 1) % 4, 1 - b, ((n + 1) // 4) % 4)
            p = pv((q - 1) % 4, 1 - b, ((n - 1) // 4) % 4)
            pos = [[3, 9, 15, 21], [3, 7, 15, 19], [3, 7, 12, 19], [3, 8, 15, 20], [3, 7, 16, 21], [2, 6, 15, 19]][OPT.order]
            ins = {pos[0]: [s[0]], pos[1]: [s[1]], pos[2]: [p[0]], pos[3]: [p[1]]}
            if lastit and n == 15: ins = {pos[0]: [p[0]], pos[1]: [p[1]]}
            if q == 3 and not (lastit and T == 3):
                ins[1] = [f"s_waitcnt vmcnt({7 if not lastit or T == 0 else 4 if T == 1 else 0})"]
            if not lastit or T == 0:
                buf = (T - 1) % 4
                ins[11] = [f"buffer_load_dwordx4 {vr(KV+16*buf+4*q,4)}, v{vL16}, {sr(R_KV,4)}, s{sK} offen offset:{1024*q} sc1"]
                if OPT.prio_ld:
                    ins[10] = [f"s_setprio {OPT.prio_ld}"]
                    ins[13] = [f"s_setprio {OPT.prio_a}"]
                if q == 3: ins[14] = [f"s_add_u32 s{sK}, s{sK}, 4096"]
            if n == 15 and not lastit:
                ins[17] = [f"s_sub_u32 s{sIt}, s{sIt}, 1"]
                ins[22] = [f"s_cmp_lg_u32 s{sIt}, 0"]
            if lastit and n == 14:
                for g, x in enumerate(owrite(0)): ins.setdefault([10, 13, 17, 22][g], []).append(x)
            if lastit and n == 15:
                for g, x in enumerate(owrite(1)): ins.setdefault([8, 10, 13, 16][g], []).append(x)
                for g, x in enumerate(owrite(2)[:2]): ins.setdefault([20, 22][g], []).append(x)
            for i, x in enumerate(va):
                for y in ins.get(i, []): a(y)
                a(x)
    if OPT.attit > 1:
        a(".p2align 6")
        a(f"{loop}:")
        body(False)
        a(f"s_cbranch_scc1 {loop}")
    body(True)
    if OPT.prio_ld: a(f"s_setprio {OPT.prio_ld}")
    a(pk(1, 7))
    for x in owrite(2)[2:]: a(x)
    for x in pv(3, 1, 3): a(x)
    stamp(a, 13)
    a(f"""
    v_add_f32 v17, v{O+12}, v{O+28}
    v_add_f32 v17, v17, v{O+44}
    s_nop 9
    v_add_f32 v17, v17, v{O+60}
    v_cmp_nlt_f32_e64 vcc, v17, s{sT4}
    s_and_b64 vcc, vcc, {sr(sHI,2)}
    s_cbranch_scc0 {ok}
    s_cmp_lg_u32 s{sRetry}, 0
    s_cbranch_scc1 {ok}
    s_mov_b32 s{sRetry}, 1
    s_waitcnt lgkmcnt(0)
    s_mov_b64 exec, {sr(sHI,2)}
    """)
    for i in range(4): a(f"v_mov_b32 v{Q+8*i+6}, 0\nv_mov_b32 v{Q+8*i+7}, 0")
    a(f"s_mov_b64 exec, -1\ns_lshl_b32 s{sK}, s{sW}, 16\ns_mov_b32 s{sIt}, 16")
    for r in range(64): a(f"v_mov_b32 v{O+r}, 0")
    for i in range(4): a(f"v_mov_b32 v{NM+i}, 0xff800000")
    a(f"""
    {mloop}:
    buffer_load_dwordx4 {vr(KV,4)}, v{vL16}, {sr(R_KV,4)}, s{sK} offen sc1
    buffer_load_dwordx4 {vr(KV+4,4)}, v{vL16}, {sr(R_KV,4)}, s{sK} offen offset:1024 sc1
    s_add_u32 s{sK}, s{sK}, 4096
    s_waitcnt vmcnt(0)
    """)
    scan_mf(KV)
    a("s_nop 11")
    for i in range(4):
        for j in range(8): a(f"v_max3_f32 v{NM+i}, v{TMP[i]+2*j}, v{TMP[i]+2*j+1}, v{NM+i}")
    a(f"""
    s_sub_u32 s{sIt}, s{sIt}, 1
    s_cmp_lg_u32 s{sIt}, 0
    s_cbranch_scc1 {mloop}
    """)
    first_kv(a)
    for i in range(4): a(f"v_mov_b32 v{S+i}, v{NM+i}")
    a("s_nop 1")
    for i in range(4): a(f"v_permlane32_swap_b32 v{S+i}, v{NM+i}")
    for i in range(4): a(f"v_max_f32 v{NM+i}, v{S+i}, v{NM+i}")
    a(f"s_mov_b64 exec, {sr(sHI,2)}")
    for i in range(4):
        a(f"""
        v_sub_f32 v{NM+i}, 0, v{NM+i}
        v_cvt_pk_bf16_f32 v17, v{NM+i}, 0
        v_lshlrev_b32 v18, 16, v17
        v_sub_f32 v18, v{NM+i}, v18
        v_cvt_pk_bf16_f32 v19, v18, 0
        v_lshl_or_b32 v{Q+8*i+6}, v19, 16, v17
        v_lshlrev_b32 v19, 16, v19
        v_sub_f32 v18, v18, v19
        v_cvt_pk_bf16_f32 v{Q+8*i+7}, v18, 0
        """)
    a(f"s_waitcnt vmcnt(11)\ns_branch {go}\n{ok}:")
    lds_arrive(a, C_ATT, nowait=True)
    if not OPT.nocomb: lds_wait(a, C_ATT, 4)
    stamp(a, 16)
    OW = O + 48
    if OPT.nocomb: a(f"v_mov_b32 v17, v{OW+12}\nv_mov_b32 v18, v{OW+12}\ns_nop 1\nv_permlane32_swap_b32 v17, v18\nv_rcp_f32 v18, v18\ns_branch nocomb")
    for i in range(4): a(f"ds_read_b32 v{NM+i}, v{vMR} offset:{128*i}")
    for i in range(3):
        for g in range(4):
            if i == 2 and g == 3: a("s_waitcnt lgkmcnt(11)")
            a(f"ds_read_b128 {vr(O+16*i+4*g,4)}, v{vRR} offset:{4096*i+1024*g}")
    a(f"""
    v_min3_f32 v17, v{NM}, v{NM+1}, v{NM+2}
    v_min_f32 v17, v17, v{NM+3}
    """)
    for i in (3, 0, 1, 2): a(f"v_sub_f32 v{NM+i}, v17, v{NM+i}")
    for i in (3, 0, 1, 2): a(f"v_exp_f32 v{NM+i}, v{NM+i}")
    for r in range(16): a(f"v_mul_f32 v{OW+r}, v{NM+3}, v{OW+r}")
    for i in range(3):
        a(f"s_waitcnt lgkmcnt({4*(2-i)})")
        R = [12] + [r for r in range(16) if r != 12] if i == 2 else range(16)
        for n, r in enumerate(R):
            a(f"v_fmac_f32 v{OW+r}, v{NM+i}, v{O+16*i+r}")
            if i == 2 and n == 0: a(f"v_mov_b32 v17, v{OW+12}\nv_mov_b32 v18, v{OW+12}")
            if i == 2 and n == 2: a("v_permlane32_swap_b32 v17, v18")
            if i == 2 and n == 3: a("v_rcp_f32 v18, v18")
    a("nocomb:")
    for h in range(2):
        for r in range(8 * h, 8 * h + 8): a(f"v_mul_f32 v{OW+r}, v18, v{OW+r}")
        for i in range(4 * h, 4 * h + 4): a(f"v_cvt_pk_bf16_f32 v{O+i}, v{OW+2*i}, v{OW+2*i+1}")
        if h: a(f"s_mov_b64 exec, {sr(sHI,2)}\nv_mov_b32 v{O+6}, 0\nv_mov_b32 v{O+7}, 0\ns_mov_b64 exec, -1")
        a(f"buffer_store_dwordx4 {vr(O+4*h,4)}, v{vL16}, {sr(R_WS,4)}, s{sOS} offen offset:{2048*h} sc1")
    stamp(a, 17)
    set_flag(a, sOF)
    a(f"s_branch {done}")

class VM:
    def __init__(self): self.q = []
    def issue(self, tag):
        if OPT.dropw and tag[0] == 'd' and tag[1] >= OPT.dropw: return
        self.q.append(tag)
    def wait(self, tags):
        idx = [i for i, t in enumerate(self.q) if t in tags]
        if not idx: return None
        n = len(self.q) - 1 - max(idx)
        assert n <= 63
        self.q = self.q[max(idx) + 1:]
        return n

ACC, AF, BF, DH, SG = 64, 32, 128, 8, 192
def reduce4(a, cnt, red, st0, st1, h0=None, h1=None, h2=None):
    base, stride, off = red
    stamp(a, st0)
    if h0: h0()
    for i in range(4):
        a(f"""
        s_xor_b32 s{sT0}, s{sG}, {i}
        s_mul_i32 s{sT1}, s{sT0}, {stride}
        s_add_u32 s{sT1}, s{sT1}, {base}
        v_add_u32 v{24+i}, s{sT1}, v{vL16}
        """)
    for i in range(1, 4):
        for g in range(4): a(f"ds_write_b128 v24, {vr(ACC+16*i+4*g,4)} offset:{off(4*(i-1)+g)}")
    lds_arrive(a, cnt, nowait=True)
    if h1: h1()
    lds_wait(a, cnt, 4)
    stamp(a, st1)
    for i in range(1, 4):
        for g in range(4): a(f"ds_read_b128 {vr(ACC+16*i+4*g,4)}, v{24+i} offset:{off(4*(i-1)+g)}")
    if h2: h2()
    for i in range(1, 4):
        a(f"s_waitcnt lgkmcnt({4*(3-i)})")
        for r in range(16): a(f"v_add_f32 v{ACC+r}, v{ACC+r}, v{ACC+16*i+r}")

def gpath(a, done):
    global DH, SG
    DH = OPT.dh; SG = BF + 8 * DH
    assert SG + 8 * max(OPT.nsg, OPT.nsg2) <= 240
    vm = VM()
    N1, N2, N3 = 32, 60, 68
    nsg = OPT.nsg
    staged = {OPT.pre0 + i: i for i in range(nsg)}
    nsg2 = OPT.nsg2
    staged.update({N1 + OPT.pre + i: i for i in range(nsg2)})
    def wsrc(k, h):
        if k < N1: return vDW1, R_W1, sD, 8 * 3584
        if k < N2: return vDW2, R_W2, sDb, 8 * 4096
        return vDWO, R_WO, sD2, (4 if ((k - N2) & 1 and h) else 8) * 896
    rot = OPT.ra or OPT.rb
    def wadv(k, h):
        v, R, sd, inc = wsrc(k, h)
        t = f"s_add_u32 s{sd}, s{sd}, {inc}"
        if rot and N1 <= k < N2 and h and k & 1: t += f"\ns_cmp_eq_u32 s{sd}, s{sDbE}\ns_cselect_b32 s{sd}, s{sDb0}, s{sd}"
        return t
    def dma(k):
        out = []
        for h in range(2):
            v, R, sd, inc = wsrc(k, h)
            out.append((f"s_add_u32 m0, s{sRing}, {slotp(k)*8192 + h*1024}",
                        f"buffer_load_dwordx4 v{v}, {sr(R,4)}, s{sd} offen lds" if not (OPT.dropw and k >= OPT.dropw) else "s_nop 0", wadv(k, h)))
        return out
    state = {'nd': 0}
    def prefill(upto):
        while state['nd'] < upto:
            k = state['nd']; state['nd'] += 1
            if k in staged:
                for h in range(2):
                    v, R, sd, inc = wsrc(k, h)
                    a(f"buffer_load_dwordx4 {vr(SG+8*staged[k]+4*h,4)}, v{v}, {sr(R,4)}, s{sd} offen")
                    a(wadv(k, h)); vm.issue(('s', k))
            else:
                for m, l, adv in dma(k): a(m); a(adv.replace("s_add_u32", "s_nop 0 ;") if False else "s_nop 0"); a(l); a(adv); vm.issue(('d', k))
    def swrite(k):
        off = slotp(k) * 8192; v = vSW
        if off >= 65536: off -= 65536; v += 1
        return [f"ds_write_b128 v{v}, {vr(SG+8*staged[k]+4*h,4)} offset:{off+1024*h}" for h in range(2)]
    def breg(k): return SG + 8 * (k - N2) if (k >= N2 and OPT.odeep) else BF + 8 * (k % DH)
    def ld(k):
        r = breg(k)
        v, sl = (vLN, sL) if k < N1 else (vLM, sLb) if k < N2 else (vLN, sL2)
        off = 2048 * (k & 1)
        o = [f"buffer_load_dwordx4 {vr(r,4)}, v{v}, {sr(R_WS,4)}, s{sl} offen offset:{off} sc1",
             f"buffer_load_dwordx4 {vr(r+4,4)}, v{v+1}, {sr(R_WS,4)}, s{sl} offen offset:{off} sc1"]
        adv = f"s_add_u32 s{sl}, s{sl}, 4096"
        if rot and N1 <= k < N2: adv += f"\ns_cmp_eq_u32 s{sl}, s{sLbE}\ns_cselect_b32 s{sl}, s{sLb0}, s{sl}"
        return o, (adv if k & 1 else None)
    def ld_now(k):
        o, adv = ld(k)
        for x in o: a(x); vm.issue(('l', k))
        if adv: a(adv)
    def tr(k, r=None):
        b0, xo = (vT1, 512) if k < N1 else (vT2, 1024) if k < N2 else (vT3, 1024)
        r = r or AF + 8 * (k % 2); off = slotp(k) * 8192
        if off >= 65536: off -= 65536; b0 += vTH - vT1
        return [f"ds_read_b64_tr_b16 {vr(r,2)}, v{b0} offset:{off}", f"ds_read_b64_tr_b16 {vr(r+2,2)}, v{b0} offset:{off+xo}",
                f"ds_read_b64_tr_b16 {vr(r+4,2)}, v{b0+1} offset:{off}", f"ds_read_b64_tr_b16 {vr(r+6,2)}, v{b0+1} offset:{off+xo}"]
    state['nl'] = 0
    def b2load(): a(f"v_lshlrev_b32 v23, 1, v{vJ}\nbuffer_load_ushort v5, v23, {sr(R_B2,4)}, s{sB2} offen")
    def init2():
        a("v_lshlrev_b32 v5, 16, v5")
        for i in range(8): a(f"v_lshlrev_b32 v{ACC+2*i}, 16, v{6+i}\nv_and_b32 v{ACC+2*i+1}, 0xffff0000, v{6+i}")
        for r in range(16): a(f"v_add_f32 v{ACC+r}, v5, v{ACC+r}")
        a(f"v_min_u32 v26, 27, v{vLANE}\nv_lshlrev_b32 v26, {3+FS}, v26\nv_min_u32 v27, 7, v{vLANE}\nv_lshlrev_b32 v27, {3+FS}, v27")
    def free(kd, k):
        if kd >= OPT.ke and k < OPT.gatek and slotp(kd) < 8: return False
        prev = [j for j in range(kd) if slotp(j) == slotp(kd)]
        return not prev or prev[-1] <= k - 1
    def begin(lo, nld, pfi=None, after=None):
        state['nl'] = lo
        for k in range(lo, lo + nld):
            ld_now(k); state['nl'] += 1
            if pfi and k == lo + 1: a(pfi); vm.issue('pf')
        if after: after()
        n = vm.wait({('d', lo)})
        if n is not None: a(f"s_waitcnt vmcnt({n})")
        for x in tr(lo): a(x)
    def run(lo, hi, last, dlimit, llimit, first=None, hooks={}, tail=None):
        dh = OPT.dh
        for k in range(lo, hi):
            need = {('l', k)}
            if k + 1 < last: need.add(('d', k + 1))
            if tail and k + 1 == hi: need |= {('d', j) for j in tail}
            if k + 3 in staged: need.add(('s', k + 3))
            need |= hooks.get(('need', k), set())
            n = vm.wait(need)
            a(f"s_waitcnt vmcnt({n}) lgkmcnt(0)" if n is not None else "s_waitcnt lgkmcnt(0)")
            if k in hooks: hooks[k]()
            if OPT.fine and k % 4 == 0 and OPT.stamps == 1 and 0 <= k // 4 - OPT.fine0 < 15: stamp(a, 48 + k // 4 - OPT.fine0)
            l = AF + 8 * (k % 2); d = breg(k)
            lds_is_a = not (N1 <= k < N2)
            mf = []
            for i in range(4):
                mi, ni = i >> 1, i & 1
                A, B = (vr(l + 4 * mi, 4), vr(d + 4 * ni, 4)) if lds_is_a else (vr(d + 4 * mi, 4), vr(l + 4 * ni, 4))
                c = "0" if k == first and i else vr(ACC + 16 * i, 16)
                mf.append(f"{MF} {vr(ACC+16*i,16)}, {A}, {B}, {c}" if not OPT.nogm else "s_nop 0")
            t = tr(k + 1) if k + 1 < last else []
            t2 = []
            if tail and k + 1 == hi:
                assert state['nd'] > max(tail)
                tt = sum((tr(j, r) for j, r in tail.items()), []); t, t2 = tt[:8], tt[8:]
            sw = swrite(k + 3) if k + 3 in staged else []
            assert not sw or free(k + 3, k)
            kd = state['nd']; dm = []
            if kd < dlimit and kd <= k + (OPT.lw if k < N1 else OPT.lw2) and free(kd, k) and kd not in staged:
                assert kd >= k + 2
                dm = dma(kd); state['nd'] += 1
            lo_, adv = ([], None)
            kl = state['nl']
            if kl < llimit and (kl <= k + dh - 1 or (kl >= N2 and OPT.odeep)): lo_, adv = ld(kl); state['nl'] += 1
            a(mf[0])
            for x in t: a(x)
            if dm: a(dm[0][0])
            a(mf[1])
            if lo_: a(lo_[0]); vm.issue(('l', kl))
            if lo_: a(lo_[1]); vm.issue(('l', kl))
            if adv: a(adv)
            if dm: a(dm[0][1]); vm.issue(('d', kd)); a(dm[0][2]); a(dm[1][0])
            a(mf[2])
            if dm: a(dm[1][1]); vm.issue(('d', kd)); a(dm[1][2])
            for x in sw: a(x)
            if t2: a('s_waitcnt lgkmcnt(4)')
            for x in t2: a(x)
            a(mf[3])
            kd = state['nd']
            if kd < dlimit and kd <= k + (OPT.lw if k < N1 else OPT.lw2) and free(kd, k) and kd not in staged: prefill(kd + 1)
            kl = state['nl']
            if kl < llimit and (kl <= k + dh - 1 or (kl >= N2 and OPT.odeep)): ld_now(kl); state['nl'] += 1
    def tail_reduce(tail, cnt, red, st0, st1, h0=None, h1=None, h2=None):
        base, stride, off = red
        while state['nl'] <= max(tail): ld_now(state['nl']); state['nl'] += 1
        a(f"s_setprio {OPT.prio_t}")
        for i in range(4):
            a(f"""
            s_xor_b32 s{sT0}, s{sG}, {i}
            s_mul_i32 s{sT1}, s{sT0}, {stride}
            s_add_u32 s{sT1}, s{sT1}, {base}
            v_add_u32 v{24+i}, s{sT1}, v{vL16}
            """)
        def wr(i): return [f"ds_write_b128 v24, {vr(ACC+16*i+4*g,4)} offset:{off(4*(i-1)+g)}" for g in range(4)]
        prev = None
        for i in (1, 2, 3, 0):
            W = wr(prev) if prev else []
            for n, (k, l) in enumerate(tail.items()):
                if i == 1:
                    w = vm.wait({('l', k)})
                    x = (f"vmcnt({w}) " if w is not None else "") + ("lgkmcnt(0)" if n == 0 else "")
                    if x: a("s_waitcnt " + x)
                d = breg(k); mi, ni = i >> 1, i & 1
                A, B = (vr(l + 4 * mi, 4), vr(d + 4 * ni, 4)) if not (N1 <= k < N2) else (vr(d + 4 * mi, 4), vr(l + 4 * ni, 4))
                a(f"{MF} {vr(ACC+16*i,16)}, {A}, {B}, {vr(ACC+16*i,16)}")
                if W and n == 1: a("s_nop 9"); a(W[0]); a(W[1])
                if W and n == 2: a(W[2]); a(W[3])
                if i == 0 and n == 2: lds_arrive(a, cnt, nowait=True)
            if i == 1 and h0: h0()
            prev = i
        a(f"s_setprio {OPT.prio_e}")
        stamp(a, st0)
        if h1: h1()
        lds_wait(a, cnt, 4)
        stamp(a, st1)
        for i in range(1, 4):
            for g in range(4): a(f"ds_read_b128 {vr(ACC+16*i+4*g,4)}, v{24+i} offset:{off(4*(i-1)+g)}")
        if h2: h2()
        for i in range(1, 4):
            a(f"s_waitcnt lgkmcnt({4*(3-i)})")
            for r in range(16): a(f"v_add_f32 v{ACC+r}, v{ACC+r}, v{ACC+16*i+r}")
    def flagload(soff, n):
        vo = {32: 28, 28: 26, 8: 27}[n]
        if n == 32: a(f"v_min_u32 v28, {n-1}, v{vLANE}\nv_lshlrev_b32 v28, {3+FS}, v28")
        a(f"buffer_load_dwordx2 v[30:31], v{vo}, {sr(R_WS,4)}, s{soff} offen sc1"); vm.issue('fl')
    def flagcheck(okl, pr=0):
        a(f"s_setprio 3\nv_cmp_ne_u64 vcc, {sr(sTAG,2)}, v[30:31]\ns_setprio {pr}\ns_cbranch_vccz {okl}")
    def fill_poll(upA, upB, soff, n, mid=None):
        prefill(upA)
        flagload(soff, n)
        prefill(upB)
        if mid: mid()
        w = vm.wait({'fl'})
        a(f"s_waitcnt vmcnt({w})")
        okl = a.label("flok")
        flagcheck(okl)
        poll(a, soff, n)
        a(f"{okl}:")
    nog1 = a.label("nog1"); join = a.label("gjoin")
    g_xread(a)
    a(f"s_cmp_eq_u32 s{sHasG1}, 0\ns_cbranch_scc1 {nog1}")
    a(f"s_setprio {OPT.prio_g}")
    stamp(a, 8)
    if OPT.nodma: a(f"s_mov_b32 s{R_W1+2}, 0")
    a(f"v_lshlrev_b32 v23, 3, v{vHH}")
    for g in range(4): a(f"buffer_load_dwordx2 {vr(14+2*g,2)}, v23, {sr(R_B1,4)}, s{sB1o} offen offset:{16*g}")
    for g in range(4): vm.issue('b')
    prefill(OPT.a1)
    lds_arrive(a, C_PRE, nowait=True)
    stamp(a, 9)
    fill_poll(OPT.a1, OPT.b1, sFH, 32, lambda: (g_setup2(a), b2load(), vm.issue('b2')))
    stamp(a, 10)
    def init1():
        for i in range(8): a(f"v_lshlrev_b32 v{ACC+2*i}, 16, v{14+i}\nv_and_b32 v{ACC+2*i+1}, 0xffff0000, v{14+i}")
    def cpf(sid, val, saddr):
        sk = a.label("cpf")
        a(f"s_cmp_lg_u32 s{sid}, {val}\ns_cbranch_scc1 {sk}\nbuffer_load_dword v253, v{vPF}, {sr(R_WS,4)}, s{saddr} offen sc1\n{sk}:")
    def mkhooks(hl):
        d = {}
        for k, f in hl: d.setdefault(k, []).append(f)
        return {k: (lambda fs=fs: [f() for f in fs]) for k, fs in d.items()}
    a('s_setprio 3')
    begin(0, OPT.nl0, None, init1)
    a(f's_setprio {OPT.prio_g}')
    hl = [(0, lambda: stamp(a, 11)), (16, lambda: stamp(a, 12)), (OPT.gatek, lambda: (a('s_setprio 3'), lds_wait(a, C_Q, 4), a(f's_setprio {OPT.prio_g}')))]
    if OPT.ka: hl.append((OPT.ka, lambda: lds_arrive(a, C_GO, nowait=True)))
    if OPT.kp: hl.append((OPT.kp, lambda: a(f's_setprio {OPT.prio_g1b}')))
    for b in range(2, 8): hl.append((max(0, 4 * b - OPT.pfd), lambda b=b: cpf(sSH1, b, sPH)))
    for i, k in enumerate(range(OPT.b1, OPT.pre0 + nsg)): hl.append((i, lambda k=k: prefill(k + 1)))
    T1 = {N1 - 4 + i: SG + 8 * i for i in range(4)}
    assert OPT.e2 <= OPT.pre
    run(0, N1 - 4, N1, N1, N1, first=0, hooks=mkhooks(hl), tail=T1)
    tail_reduce(T1, C_R1, (L_RED, 12288, lambda i: 1024 * i), 13, 16,
            lambda: prefill(N1 + OPT.e0), lambda: prefill(N1 + OPT.e1), lambda: prefill(N1 + OPT.e2))
    lds_arrive(a, C_R1D, nowait=True)
    k = 2 * math.sqrt(2 / math.pi) * math.log2(math.e)
    a(f"s_mov_b32 s{sT0}, {f32(-k*0.044715)}\nv_mov_b32 v18, {f32(-k)}")
    T = ACC + 16
    for h in range(2):
        R = range(8 * h, 8 * h + 8)
        for r in R: a(f"v_mul_f32 v{T+r}, v{ACC+r}, v{ACC+r}")
        for r in R: a(f"v_fma_f32 v{T+r}, v{T+r}, s{sT0}, v18")
        for r in R: a(f"v_mul_f32 v{T+r}, v{T+r}, v{ACC+r}")
        for r in R: a(f"v_exp_f32 v{T+r}, v{T+r}")
        for r in R: a(f"v_add_f32 v{T+r}, 1.0, v{T+r}")
        for r in R: a(f"v_rcp_f32 v{T+r}, v{T+r}")
        for r in R: a(f"v_mul_f32 v{T+r}, v{T+r}, v{ACC+r}")
        for i in range(4 * h, 4 * h + 4): a(f"v_cvt_pk_bf16_f32 v{T+16+i}, v{T+2*i}, v{T+2*i+1}")
        a(f"buffer_store_dwordx4 {vr(T+16+4*h,4)}, v{vLN}, {sr(R_WS,4)}, s{sUS} offen offset:{2048*h} sc1")
    stamp(a, 17)
    init2()
    set_flag(a, sFU)
    stamp(a, 27)
    a(f"s_branch {join}\n{nog1}:")
    lds_arrive(a, C_R1D, nowait=True)
    lds_arrive(a, C_GO, nowait=True)
    lds_arrive(a, C_PRE, nowait=True)
    g_setup2(a)
    b2load()
    a("s_waitcnt vmcnt(0) lgkmcnt(0)")
    init2()
    a(f"""
    s_lshr_b32 s{sT0}, s{sJ}, 3
    s_lshl_b32 s{sT0}, s{sT0}, 1
    s_and_b32 s{sT1}, s{sCB}, 1
    s_add_u32 s{sT0}, s{sT0}, s{sT1}
    s_sub_u32 s{sT0}, s{sT0}, 1
    s_cmp_eq_u32 s{sJ}, 6
    s_cbranch_scc1 engdone
    s_mul_i32 s{sT1}, s{sG}, 28
    s_add_u32 s{sT1}, s{sT1}, s{sT0}
    s_lshl_b32 s{sT1}, s{sT1}, 16
    s_lshl_b32 s{sT2}, s{sXCD}, 9
    s_add_u32 s{sT1}, s{sT1}, s{sT2}
    s_lshl_b32 s{sT2}, s{sT0}, 2
    s_add_u32 s{sT2}, s{sT2}, s{sG}
    s_lshl_b32 s{sT2}, s{sT2}, 13
    s_add_u32 s{sPFW}, s{sPFW}, {OPT.npf0*56*3584}
    """)
    if OPT.engw: lds_wait(a, C_X, 4, sleep=1)
    for i in range(10 - OPT.npf0 if OPT.eng & 1 else 0):
        a(f"s_waitcnt vmcnt({OPT.engd})\nbuffer_load_dword v{249+i%2}, v{vPF1}, {sr(R_W1,4)}, s{sPFW} offen\ns_add_u32 s{sPFW}, s{sPFW}, {56*3584}")
    stamp(a, 28)
    for i in range(4 if OPT.eng & 2 else 0):
        a(f"s_waitcnt vmcnt({OPT.engd})\nbuffer_load_dword v{249+i%2}, v{vPF2}, {sr(R_W2,4)}, s{sT1} offen\ns_add_u32 s{sT1}, s{sT1}, {7*16*4096}")
    stamp(a, 29)
    a(f"""
    s_cmp_lg_u32 s{sCB}, 7
    s_cbranch_scc1 engdone
    s_lshr_b32 s{sT2}, s{sJ}, 3
    s_lshl_b32 s{sT2}, s{sT2}, 2
    s_add_u32 s{sT2}, s{sT2}, s{sG}
    s_lshl_b32 s{sT2}, s{sT2}, 13
    """)
    for i in range(4 if OPT.eng & 4 else 0):
        a(f"s_waitcnt vmcnt({OPT.engd})\nbuffer_load_dword v{249+i%2}, v{vPF}, {sr(R_WO,4)}, s{sT2} offen\ns_add_u32 s{sT2}, s{sT2}, {16*8192}")
    stamp(a, 30)
    a(f"s_branch epw\nengdone:\ns_waitcnt vmcnt(0)")
    lds_wait(a, C_Q, 4)
    state['nd'] = N1
    prefill(N1 + OPT.e2)
    a(f"{join}:")
    a(f"s_setprio {OPT.prio_b}")
    vm.q = [('d', k) for k in range(N1, N1 + OPT.e2) for h in range(2)]
    prefill(N1 + OPT.a2)
    stamp(a, 18)
    fill_poll(N1 + OPT.a2, N1 + OPT.b2, sFUc, 28)
    stamp(a, 19)
    begin(N1, OPT.nl0)
    a(f"s_setprio {OPT.prio_g2}\ns_lshr_b32 s{sSH1}, s{sJ}, 3")
    assert not OPT.odeep or (SG + 64 <= 240 and N1 + OPT.pre + nsg2 - 3 <= N2 - OPT.ock)
    KC = N2 - OPT.ock
    hl = [(N1, lambda: stamp(a, 20)), (N1 + 14, lambda: stamp(a, 21)), (KC - 3, lambda: flagload(sFOc, 8))]
    for b in range(3, 7): hl.append((N1 + max(0, 4 * b - OPT.pfd), lambda b=b: cpf(sSH1, b - 3, sPU)))
    for i, k in enumerate(range(N1 + OPT.b2, N1 + OPT.pre + nsg2)): hl.append((N1 + i, lambda k=k: prefill(k + 1)))
    run(N1, KC, N2, N3, N2, first=N1, hooks=mkhooks(hl))
    w = vm.wait({'fl'})
    if w is not None: a(f"s_waitcnt vmcnt({w})")
    ordy = a.label("ordy"); red2 = a.label("red2")
    flagcheck(ordy)
    sv = (list(vm.q), dict(state))
    run(KC, N2, N2, N3, N2)
    prefill(N3)
    stamp(a, 22)
    poll(a, sFOc, 8); vm.q = []
    stamp(a, 23)
    a(f"s_setprio {OPT.prio_e}")
    begin(N2, 8 if OPT.odeep else min(8, DH))
    assert OPT.odeep
    T3 = {N3 - 4 + i: BF + 8 * i for i in range(4)}
    run(N2, N3 - 4, N3, N3, N3, hooks={N2: lambda: stamp(a, 24)}, tail=T3)
    qn = list(vm.q)
    a(f"s_branch {red2}\n{ordy}:")
    vm.q = sv[0]; state.update(sv[1])
    run(KC, N3 - 4, N3, N3, N3, hooks={N2: lambda: stamp(a, 24)}, tail=T3)
    assert state['nl'] == N3
    assert all(t[0] == 'l' for t in qn + vm.q), (qn, vm.q)
    if len(qn) > len(vm.q): vm.q = qn
    a(f"{red2}:")
    tail_reduce(T3, C_R2, (L_RING, 2048, lambda i: (i >> 1) * 8192 + (i & 1) * 1024), 25, 26)
    for i in range(8): a(f"v_cvt_pk_bf16_f32 v{ACC+16+i}, v{ACC+2*i}, v{ACC+2*i+1}")
    a(f"""
    s_nop 1
    v_permlane32_swap_b32 v{ACC+16}, v{ACC+18}
    v_permlane32_swap_b32 v{ACC+17}, v{ACC+19}
    v_permlane32_swap_b32 v{ACC+20}, v{ACC+22}
    v_permlane32_swap_b32 v{ACC+21}, v{ACC+23}
    buffer_store_dwordx4 {vr(ACC+16,4)}, v{vOUT}, {sr(R_OUT,4)}, s{sOUT} offen
    buffer_store_dwordx4 {vr(ACC+20,4)}, v{vOUT}, {sr(R_OUT,4)}, s{sOUT} offen offset:32
    s_branch {done}
    epw:
    s_lshl_b32 s{sT0}, s{sG}, 8
    s_add_u32 s{sT0}, s{sT0}, s2
    s_cmp_lg_u32 s{sT0}, 56
    s_cbranch_scc1 {done}
    """)
    lds_wait(a, C_ATT, 4, sleep=8)
    for i in range(4):
        a(f"s_mov_b32 s{sT0}, {FL_O + (2048*i << FS)}")
        poll(a, sT0, 64, sh=5)
    a(f"s_mov_b32 s{sT0}, {WS_EPOCH}")
    set_flag(a, sT0)

def kend(a, e):
    a(f"{e}:")
    if OPT.stamps:
        stamp(a, 14); a("s_waitcnt vmcnt(0)"); stamp(a, 15)
        a(f"""
        s_lshl_b32 s100, s2, 3
        s_add_u32 s100, s100, s{sW}
        s_lshl_b32 s100, s100, 8
        s_add_u32 s100, s100, {WS_STAMP}
        v_lshlrev_b32 v254, 2, v{vLANE}
        buffer_store_dword v255, v254, {sr(R_WS,4)}, s100 offen
        """)
    if OPT.amp >= 0:
        if OPT.amp == 14: stamp(a, 14)
        a(f"""
        s_cmp_ge_u32 s{sW}, 4
        s_cbranch_scc{0 if OPT.ampg else 1} {e}x
        s_nop 4
        v_readlane_b32 s16, v255, 0
        v_readlane_b32 s17, v255, 1
        s_nop 4
        s_cmp_eq_u32 s17, 0
        s_cbranch_scc1 {e}x
        s_sub_u32 s18, s17, s16
        s_min_u32 s18, s18, 4000
        s_mul_i32 s18, s18, 5
        s_add_u32 s18, s18, 4000
        ampl:
        s_memrealtime s[20:21]
        s_waitcnt lgkmcnt(0)
        s_sub_u32 s20, s20, s16
        s_cmp_lt_u32 s20, s18
        s_cbranch_scc1 ampl
        """)
    if OPT.double:
        a(f"""
        s_waitcnt vmcnt(0)
        s_memrealtime s[16:17]
        s_waitcnt lgkmcnt(0)
        s_sub_u32 s18, s16, s100
        s_min_u32 s18, s18, 20000
        dbl:
        s_memrealtime s[20:21]
        s_waitcnt lgkmcnt(0)
        s_sub_u32 s20, s20, s16
        s_cmp_lt_u32 s20, s18
        s_cbranch_scc1 dbl
        """)
    a(f"{e}x:\ns_endpgm\ncode_end:")

def build():
    a = Asm()
    n = NAME + "_kernel"
    a('.amdgcn_target "amdgcn-amd-amdhsa--gfx950"\n.text')
    a(f".globl {n}\n.p2align 8\n.type {n},@function\n{n}:")
    e = "fin"
    prologue(a, e)
    p1_a(a); attention(a, e)
    a("p1g:"); p1_g(a); gpath(a, e)
    kend(a, e)
    if OPT.nogv:
        i0 = a.L.index("p1g:")
        i1 = [i for i, l in enumerate(a.L) if l.startswith("gpfw")][0]
        a.L = [("s_nop 0" if (i > i1 and l.startswith("buffer_load_dwordx4")) else l) for i, l in enumerate(a.L)]
    check(a.L)
    head = open(f"refhead.txt").read().split("; Override")[0]
    ll = f"; @launch grid=(256,1,1) block=(512,1,1) lds={LDS_TOTAL}\n"
    desc = f""".section .rodata,"a"
.p2align 6
.amdhsa_kernel {n}
  .amdhsa_next_free_vgpr 256
  .amdhsa_next_free_sgpr 102
  .amdhsa_accum_offset 256
  .amdhsa_group_segment_fixed_size 0
  .amdhsa_kernarg_size 104
  .amdhsa_user_sgpr_count 2
  .amdhsa_user_sgpr_kernarg_segment_ptr 1
  .amdhsa_system_sgpr_workgroup_id_x 1
  .amdhsa_float_denorm_mode_32 3
.end_amdhsa_kernel
"""
    return head + ll + a.text() + desc

if __name__ == "__main__":
    args = []
    for x in sys.argv[1:]:
        if x.startswith("--"):
            k, _, v = x[2:].partition("=")
            if k == "FS": FS = int(v)
            else: setattr(OPT, k, int(v) if v else True)
        else: args.append(x)
    assert all((t * 37) >> 8 == t // 7 for t in range(56))
    open(args[0] if args else f"cdna_kernels/{NAME}.s", "w").write(build())
```

```python
import sys, math, struct
sys.path.insert(0, "dev")
from asmlib import Asm, vr, sr, check

NAME = "parallel_sum__grouped_kv_mqa__mixer_token_mlp__prompt"
WS_HT = 0
WS_KV = 2 << 20
WS_U  = 5 << 20
WS_O  = 7 << 20
WS_FLG = 10 << 20
FL_H  = WS_FLG
FS = 4
FL_KV = WS_FLG + (8192 << 4)
FL_U  = WS_FLG + (12288 << 4)
FL_O  = WS_FLG + (20480 << 4)
WS_EPOCH = WS_FLG + (32768 << 4)
WS_STAMP = 12 << 20
WS_SIZE = 16 << 20
DBLK = 64
class O: pass
OPT = O(); OPT.stamps = False; OPT.double = False; OPT.prio_g = 0; OPT.prio_e = 3; OPT.prio_a = 0; OPT.pf2step = 6; OPT.pre = 12; OPT.lw = 6; OPT.lw2 = 11; OPT.odeep = 1; OPT.fine = 0; OPT.prio_b = 0; OPT.kp = 0; OPT.hot = 0; OPT.pdefer = 0; OPT.lsleep = 1; OPT.psleep = 0; OPT.npfa = 9; OPT.prio_t = 3; OPT.ka = 0; OPT.amp = -1; OPT.ampg = 0; OPT.prio_g1b = 0; OPT.fine0 = 2; OPT.dh = 5; OPT.pre0 = 4; OPT.nsg = 6; OPT.nsg2 = 9; OPT.e0 = 4; OPT.e1 = 8; OPT.e2 = 11; OPT.pf1pos = 3; OPT.order = 1; OPT.nogm = 0; OPT.nogv = 0; OPT.a1 = 4; OPT.b1 = 10; OPT.nl0 = 4; OPT.pfd = -100; OPT.kvpf = 1; OPT.a2 = 17; OPT.b2 = 21; OPT.ock = 5; OPT.early = 0; OPT.npf0 = 2; OPT.prio_g2 = 0; OPT.twice = 0; OPT.codepf = 1; OPT.prio_ld = 0; OPT.gatek = 8; OPT.ke = 12; OPT.fl_late = 0; OPT.rdin = 2; OPT.pre1 = 0; OPT.engd = 0; OPT.eng = 7; OPT.engw = 1; OPT.ra = 0; OPT.rb = 0; OPT.nou = 0; OPT.now2 = 0; OPT.dropw = 0; OPT.nocomb = 0; OPT.kvflag = 8; OPT.attit = 4; OPT.nold = 0; OPT.nodma = 0; OPT.nokv = 0
L_XT = 0; L_WQ = 57344; L_WKV = 114688
HB_STRIDE = 912
L_HB = 141056; L_QS = 147456; L_KC = 155648; L_KS = L_KC + 1024; L_MX = L_KC
L_ST = 158720; L_RT = 159232; L_CNT = 159360; LDS_TOTAL = 159744
RING = 12; L_RING = 49152; L_RED = 0
def slotp(k): return 8 + k % 4 if k < OPT.ke else (k - OPT.ke) % RING
C_X, C_KV, C_H, C_ST, C_Q, C_ISS, C_R1, C_R1D, C_ATT, C_R2, C_X1, C_XA, C_FL, C_PRE, C_KS, C_GO = range(16)
sXCD, sJ, sRB, sCB, sW = 3, 4, 5, 6, 7
sT0, sT1, sT2, sT3, sT4, sT5 = 8, 9, 10, 11, 12, 13
sHI = 14
P_X, P_WQ, P_WK, P_WV, P_WO, P_BX, P_W1, P_B1, P_W2, P_B2, P_OUT, P_DBG, P_WS = 16, 18, 20, 22, 24, 26, 28, 30, 32, 34, 36, 38, 40
sTAG = 42
R_X, R_WQ, R_WKV, R_WS, R_W1, R_W2, R_WO, R_OUT, R_KV = 44, 48, 52, 56, 60, 64, 68, 72, 76
R_B1, R_B2 = R_WKV, 20
sONES, sSPIN, sPFW = 82, 83, 99
sG, sGM, sGN, sRing, sA, sD, sL, sFB, sDb, sD2, sLb, sL2, sOUT, sB2 = range(84, 98)
sU0, sU1, sU2, sU3, sU4, sU5 = range(84, 90)
OOB = 0x40000000
EPS = 0x3727c5ac
QSCALE = (28 ** -0.5) * math.log2(math.e)
def f32(x): return "0x%08x" % struct.unpack("<I", struct.pack("<f", x))[0]
vLANE, vJ, vHH, vL16 = 1, 2, 3, 4
MF = "v_mfma_f32_32x32x16_bf16"

def stamp(a, idx):
    if OPT.amp >= 0:
        if idx == 0: a("v_mov_b32 v255, 0\ns_memrealtime s[100:101]\ns_waitcnt lgkmcnt(0)\nv_writelane_b32 v255, s100, 0")
        elif idx == OPT.amp: a("s_memrealtime s[100:101]\ns_waitcnt lgkmcnt(0)\nv_writelane_b32 v255, s100, 1")
        return
    if not OPT.stamps: return
    if OPT.stamps == 2 and idx not in (0, 15): return
    a(f"s_memrealtime s[100:101]\ns_waitcnt lgkmcnt(0)\nv_writelane_b32 v255, s100, {idx}")
    if idx in (0, 15): a(f"s_memtime s[100:101]\ns_waitcnt lgkmcnt(0)\nv_writelane_b32 v255, s100, {idx+32}")

def srd(a, r, p, size):
    a(f"s_mov_b32 s{r}, s{p}\ns_mov_b32 s{r+1}, s{p+1}\ns_mov_b32 s{r+2}, {size}\ns_mov_b32 s{r+3}, 0x20000")

def get_tag(a):
    a(f"""
    s_waitcnt lgkmcnt(0)
    s_mul_i32 s{sTAG}, s{sTAG}, 0x9e3779b5
    s_mul_i32 s{sTAG+1}, s{sTAG+1}, 0x85ebca6d
    s_add_u32 s{sTAG}, s{sTAG}, 0x7f4a7c15
    s_add_u32 s{sTAG+1}, s{sTAG+1}, 0x165667b1
    """)

def set_flag(a, soff, vt=30):
    a(f"""
    v_mov_b32 v{vt}, s{sTAG}
    v_mov_b32 v{vt+1}, s{sTAG+1}
    s_waitcnt vmcnt(0)
    s_mov_b64 exec, 1
    buffer_store_dwordx2 {vr(vt,2)}, off, {sr(R_WS,4)}, s{soff} sc1
    s_mov_b64 exec, -1
    """)

def poll(a, soff, n, vo=28, vt=30, sh=3):
    lp = a.label("poll"); dn = a.label("polld")
    a(f"""
    s_setprio 3
    v_min_u32 v{vo}, {n-1}, v{vLANE}
    v_lshlrev_b32 v{vo}, {sh+FS}, v{vo}
    s_mov_b32 s{sSPIN}, 20000
    {lp}:
    buffer_load_dwordx2 {vr(vt,2)}, v{vo}, {sr(R_WS,4)}, s{soff} offen sc1
    s_waitcnt vmcnt(0)
    v_cmp_ne_u64 vcc, {sr(sTAG,2)}, {vr(vt,2)}
    s_cbranch_vccz {dn}
    {f's_sleep {OPT.psleep}' if OPT.psleep else ''}
    s_sub_u32 s{sSPIN}, s{sSPIN}, 1
    s_cmp_lg_u32 s{sSPIN}, 0
    s_cbranch_scc1 {lp}
    {dn}:
    s_setprio 0
    """)

def lds_arrive(a, cnt, nowait=False):
    a(f"""
    s_mov_b64 exec, 1
    {'' if nowait else 's_waitcnt lgkmcnt(0)'}
    ds_add_u32 v0, v29 offset:{4*cnt}
    s_mov_b64 exec, -1
    """)
def lds_wait(a, cnt, target, sleep=0):
    spin = a.label("spin"); ent = a.label("spe")
    sleep = sleep or OPT.lsleep
    if sleep: a(f"s_branch {ent}\n{spin}:\ns_sleep {sleep}\n{ent}:")
    else: a(f"{spin}:")
    a(f"""
    ds_read_b32 v28, v0 offset:{4*cnt}
    s_waitcnt lgkmcnt(0)
    v_readfirstlane_b32 s{sT5}, v28
    s_cmp_lt_u32 s{sT5}, {target}
    s_cbranch_scc1 {spin}
    """)

def bf16_stats(a, vs, vq, vm, vr_, t):
    a(f"""
    v_mul_f32 v{vs}, {f32(1/448)}, v{vs}
    v_mul_f32 v{vq}, {f32(1/448)}, v{vq}
    v_fma_f32 v{vq}, -v{vs}, v{vs}, v{vq}
    v_max_f32 v{vq}, 0, v{vq}
    v_cvt_pk_bf16_f32 v{t}, v{vs}, v{vq}
    v_lshlrev_b32 v{vm}, 16, v{t}
    v_and_b32 v{t}, 0xffff0000, v{t}
    v_add_f32 v{t}, {EPS:#x}, v{t}
    v_cvt_pk_bf16_f32 v{t}, v{t}, v{t}
    v_and_b32 v{t}, 0xffff0000, v{t}
    v_sqrt_f32 v{t}, v{t}
    s_nop 0
    v_cvt_pk_bf16_f32 v{t}, v{t}, v{t}
    v_and_b32 v{t}, 0xffff0000, v{t}
    v_rcp_f32 v{vr_}, v{t}
    s_nop 0
    """)

def dpp_reduce(a, vs, vq, modes):
    a("s_nop 2")
    for mode in modes:
        a(f"v_add_f32_dpp v{vs}, v{vs}, v{vs} {mode} row_mask:0xf bank_mask:0xf")
        a(f"v_add_f32_dpp v{vq}, v{vq}, v{vq} {mode} row_mask:0xf bank_mask:0xf")
        a("s_nop 0")
QP1, QP2, RHM, RM = "quad_perm:[1,0,3,2]", "quad_perm:[2,3,0,1]", "row_half_mirror", "row_mirror"

def split_hi_lo(a, dst, src, t):
    a(f"""
    v_cvt_pk_bf16_f32 v{t}, v{src}, v{src}
    v_and_b32 v{t}, 0xffff0000, v{t}
    v_sub_f32 v{t}, v{src}, v{t}
    v_cvt_pk_bf16_f32 v{dst}, v{src}, v{t}
    """)

def prologue(a, end):
    a(f"s_cmp_ge_u32 s2, 256\ns_cbranch_scc1 {end}x")
    if OPT.double: a("s_memrealtime s[100:101]")
    if OPT.stamps: a("v_mov_b32 v255, 0")
    stamp(a, 0)
    a(f"""
    s_load_dwordx16 s[16:31], s[0:1], 0
    s_load_dwordx8 s[32:39], s[0:1], 64
    s_load_dwordx2 s[40:41], s[0:1], 96
    v_lshrrev_b32 v5, 6, v0
    v_and_b32 v{vLANE}, 63, v0
    v_readfirstlane_b32 s{sW}, v5
    v_and_b32 v{vJ}, 31, v0
    v_lshrrev_b32 v{vHH}, 5, v{vLANE}
    v_lshlrev_b32 v{vL16}, 4, v{vLANE}
    s_and_b32 s{sXCD}, s2, 7
    s_lshr_b32 s{sJ}, s2, 3
    """)
    if OPT.codepf:
        a(f"""
        s_cmp_lg_u32 s{sW}, 7
        s_cbranch_scc1 nocpf
        s_getpc_b64 s[{R_OUT}:{R_OUT+1}]
        cpf_here:
        s_sub_u32 s{R_OUT}, s{R_OUT}, cpf_here-{NAME}_kernel
        s_subb_u32 s{R_OUT+1}, s{R_OUT+1}, 0
        s_mov_b32 s{R_OUT+2}, code_end-{NAME}_kernel
        s_mov_b32 s{R_OUT+3}, 0x20000
        s_lshl_b32 s{sT0}, s{sJ}, 7
        v_lshlrev_b32 v6, 12, v{vLANE}
        buffer_load_dword v250, v6, {sr(R_OUT,4)}, s{sT0} offen
        nocpf:
        """)
    a(f"""
    s_lshr_b32 s{sT0}, s{sJ}, 3
    s_lshl_b32 s{sRB}, s{sXCD}, 2
    s_add_u32 s{sRB}, s{sRB}, s{sT0}
    s_and_b32 s{sCB}, s{sJ}, 7
    s_mov_b32 s{sHI}, 0
    s_mov_b32 s{sHI+1}, -1
    s_mov_b32 s{sONES}, 0x3f803f80
    v_lshlrev_b32 v5, 2, v{vLANE}
    v_add_u32 v5, {L_CNT}, v5
    v_mov_b32 v6, 0
    ds_write_b32 v5, v6
    v_mov_b32 v0, {L_CNT}
    v_mov_b32 v29, 1
    v_lshrrev_b32 v5, 3, v{vLANE}
    v_and_b32 v6, 7, v{vLANE}
    v_lshrrev_b32 v7, 4, v{vLANE}
    v_bfe_u32 v8, v{vLANE}, 2, 2
    v_and_b32 v9, 3, v{vLANE}
    v_and_b32 v10, 1, v7
    v_lshlrev_b32 v9, 3, v9
    v_lshl_add_u32 v9, v10, 5, v9
    """)
    p1_addr(a)
    a(f"s_cmp_ge_u32 s{sW}, 4\ns_cbranch_scc1 p1g")

def common_srds(a):
    a(f"s_mov_b32 s{sT5}, {WS_EPOCH}\ns_waitcnt lgkmcnt(0)")
    stamp(a, 1)
    a(f"s_load_dwordx2 {sr(sTAG,2)}, {sr(P_WS,2)}, s{sT5}")
    srd(a, R_X, P_X, 2048 * 896)
    srd(a, R_WS, P_WS, WS_SIZE)

def epoch_load(a): pass

vXe, vXo, vWQd = 11, 12, 13
sNL, sXs, sXm, sNT, sW3 = 76, 77, 78, 79, 80
sXs2, sXm2, sQs, sQm = 26, 27, 38, 39
def p1_addr(a):
    a(f"""
    v_mul_u32_u24 v20, 896, v5
    v_xor_b32 v21, v6, v7
    v_lshl_add_u32 v{vXe}, v21, 4, v20
    v_xor_b32 v21, 4, v21
    v_lshl_add_u32 v{vXo}, v21, 4, v20
    v_lshlrev_b32 v21, 2, v10
    v_xor_b32 v21, v21, v6
    v_lshl_add_u32 v{vWQd}, v21, 4, v20
    s_and_b32 s{sW3}, s{sW}, 3
    s_cmp_eq_u32 s{sW3}, 3
    s_cselect_b32 s{sNL}, 1, 2
    s_bfe_u32 s{sNT}, s{sCB}, 0x10001
    s_lshl_b32 s{sT0}, s{sRB}, 1
    s_add_u32 s{sT0}, s{sT0}, s{sNT}
    s_mul_i32 s{sXs}, s{sT0}, {32*896}
    s_lshl_b32 s{sT0}, s{sW3}, 8
    s_add_u32 s{sXs}, s{sXs}, s{sT0}
    s_lshl_b32 s{sXm}, s{sW3}, 14
    s_lshl_b32 s{sT0}, s{sNT}, 12
    s_add_u32 s{sXm}, s{sXm}, s{sT0}
    """)
def rest_dma(a, after_x=None):
    srd(a, R_WQ, P_WQ, 448 * 896)
    a(f"""
    s_xor_b32 s{sXm2}, s{sXm}, 4096
    s_mul_i32 s{sT0}, s{sNT}, {2*32*896}
    s_add_u32 s{sXs2}, s{sXs}, {32*896}
    s_sub_u32 s{sXs2}, s{sXs2}, s{sT0}
    s_mul_i32 s{sQs}, s{sW3}, {128*896}
    s_mul_i32 s{sT0}, s{sCB}, 112
    s_add_u32 s{sQs}, s{sQs}, s{sT0}
    s_lshl_b32 s{sQm}, s{sW3}, 14
    """)
    if after_x: after_x()
    PF1 = f"buffer_load_dword v249, v{vPF1}, {sr(R_W1,4)}, s{sPFW} offen"
    if OPT.pf1pos == 0: a(PF1)
    l1 = a.label("rd1"); l2 = a.label("rd2")
    for line in range(2):
        if line: a(f"s_cmp_eq_u32 s{sNL}, 1\ns_cbranch_scc1 {l1}")
        for b in range(4):
            a(f"""
            s_add_u32 m0, s{sXm2}, {L_XT + line*8192 + b*1024}
            s_add_u32 s{sT0}, s{sXs2}, {b*8*896 + line*128}
            buffer_load_dwordx4 v{vXo if b & 1 else vXe}, {sr(R_X,4)}, s{sT0} offen lds
            """)
    a(f"{l1}:")
    if OPT.pf1pos == 1: a(PF1)
    for line in range(2):
        if line:
            a(f"s_waitcnt vmcnt({9 if OPT.pf1pos == 1 else 8})")
            lds_arrive(a, C_XA, nowait=True)
            a(f"s_cmp_eq_u32 s{sNL}, 1\ns_cbranch_scc1 {l2}")
        for b in range(8):
            a(f"""
            s_add_u32 m0, s{sQm}, {L_WQ + line*8192 + b*1024}
            s_add_u32 s{sT0}, s{sQs}, {(line*64 + b*8)*896}
            buffer_load_dwordx4 v{vWQd}, {sr(R_WQ,4)}, s{sT0} offen lds
            """)
    a(f"{l2}:")

vPF1 = 246
def pf1_addr(a):
    a(f"""
    v_min_u32 v14, 6, v6
    v_mul_u32_u24 v{vPF1}, 3584, v5
    v_lshl_add_u32 v{vPF1}, v14, 7, v{vPF1}
    s_lshl_b32 s{sT1}, s{sW3}, 6
    s_lshr_b32 s{sT2}, s{sJ}, 3
    s_lshl_b32 s{sT2}, s{sT2}, 1
    s_add_u32 s{sT1}, s{sT1}, s{sT2}
    s_and_b32 s{sT2}, s{sCB}, 1
    s_add_u32 s{sT1}, s{sT1}, s{sT2}
    s_sub_u32 s{sT1}, s{sT1}, 1
    s_mul_i32 s{sPFW}, s{sT1}, {8*3584}
    s_lshr_b32 s{sT2}, s{sXCD}, 1
    s_mul_i32 s{sT2}, s{sT2}, 896
    s_add_u32 s{sPFW}, s{sPFW}, s{sT2}
    """)
    srd(a, R_W1, P_W1, 2048 * 3584)

def stats_code(a, st0, st1, sRBk, SX=128, T=40):
    a(f"""
    v_lshrrev_b32 v{T}, 2, v{vLANE}
    v_and_b32 v{T+1}, 3, v{vLANE}
    v_lshlrev_b32 v{T+1}, 5, v{T+1}
    v_lshl_add_u32 v{T+1}, v{T}, 7, v{T+1}
    v_lshlrev_b32 v{T+2}, 1, v{vLANE}
    v_and_b32 v{T+2}, 16, v{T+2}
    v_add_u32 v{T+1}, v{T+1}, v{T+2}
    s_lshl_b32 s{sT0}, s{sRBk}, 11
    v_add_u32 v{T+1}, s{sT0}, v{T+1}
    v_xor_b32 v{T+3}, 16, v{T+1}
    s_lshl_b32 s{sT0}, s{sRBk}, 7
    s_add_u32 s{sT0}, s{sT0}, {L_ST}
    v_lshl_add_u32 v{T}, v{T}, 3, s{sT0}
    v_mov_b32 v{T+4}, 0
    v_mov_b32 v{T+5}, 0
    """)
    lds_wait(a, C_X1, 4)
    lds_wait(a, C_XA, 4)
    stamp(a, st0)
    for c in range(7):
        a(f"ds_read_b128 {vr(SX+8*c,4)}, v{T+1} offset:{L_XT + c*8192}")
        a(f"ds_read_b128 {vr(SX+8*c+4,4)}, v{T+3} offset:{L_XT + c*8192}")
    for c in range(7):
        a(f"s_waitcnt lgkmcnt({2*(6-c)})")
        for i in range(8):
            a(f"v_dot2c_f32_bf16 v{T+4}, s{sONES}, v{SX+8*c+i}")
            a(f"v_dot2c_f32_bf16 v{T+5}, v{SX+8*c+i}, v{SX+8*c+i}")
    dpp_reduce(a, T + 4, T + 5, [QP1, QP2])
    bf16_stats(a, T + 4, T + 5, T + 3, T + 7, T + 2)
    a(f"""
    v_cvt_pk_bf16_f32 v{T+6}, -v{T+3}, -v{T+3}
    v_mul_f32 v{T+7}, {f32(QSCALE)}, v{T+7}
    ds_write_b64 v{T}, {vr(T+6,2)}
    """)
    lds_arrive(a, C_ST, nowait=True)
    stamp(a, st1)

def p1_a(a):
    vXF, vWK, vWQr = 14, 18, 19
    sB, sM = 94, 96
    a(f"""
    s_and_b32 s{sT1}, s{sCB}, 1
    s_lshl_b32 s{sT2}, s{sT1}, 11
    s_xor_b32 s{sM}, s{sXm}, s{sT2}
    s_lshr_b32 s{sT3}, s{sJ}, 3
    s_lshl_b32 s{sT3}, s{sT3}, 1
    s_add_u32 s{sT3}, s{sT3}, s{sT1}
    s_mul_i32 s{sT1}, s{sT1}, {16*896}
    s_add_u32 s{sB}, s{sXs}, s{sT1}
    s_add_u32 s{sT2}, s{sXs}, {16*896}
    s_sub_u32 s{sB+1}, s{sT2}, s{sT1}
    v_lshlrev_b32 v21, 7, v{vLANE}
    s_mov_b32 s{sT4}, 0
    """)
    common_srds(a)
    def x_half(h):
        sk = a.label("xh")
        for line in range(2):
            if line: a(f"s_cmp_eq_u32 s{sNL}, 1\ns_cbranch_scc1 {sk}")
            for b in range(2):
                a(f"""
                s_xor_b32 m0, s{sM}, {line*8192 + h*2048 + b*1024}
                s_add_u32 s{sT0}, s{sB+h}, {b*8*896 + line*128}
                buffer_load_dwordx4 v{vXo if b else vXe}, {sr(R_X,4)}, s{sT0} offen lds
                """)
        a(f"{sk}:")
    def frag_addr():
        a(f"""
        v_lshrrev_b32 v20, 1, v{vJ}
        v_and_b32 v20, 7, v20
        v_xor_b32 v20, v20, v{vHH}
        v_lshlrev_b32 v20, 4, v20
        v_lshl_add_u32 v{vXF}, v{vJ}, 7, v20
        v_xor_b32 v{vXF+1}, 32, v{vXF}
        v_xor_b32 v{vXF+2}, 64, v{vXF}
        v_xor_b32 v{vXF+3}, 96, v{vXF}
        v_lshl_add_u32 v20, v{vHH}, 3, v8
        """)
    nop_ = a.label("notp"); other = a.label("notkv"); htype = a.label("htype"); qgo = a.label("qgo"); dostats = a.label("dostats"); poststats = a.label("poststats")
    x_half(0)
    a(f"s_cmp_ge_u32 s{sCB}, 4\ns_cbranch_scc1 {other}")
    x_half(1)
    a(f"""
    s_bitcmp1_b32 s{sCB}, 0
    s_cselect_b32 s{R_WKV}, s{P_WV}, s{P_WK}
    s_cselect_b32 s{R_WKV+1}, s{P_WV+1}, s{P_WK+1}
    s_mov_b32 s{R_WKV+2}, {448*56}
    s_mov_b32 s{R_WKV+3}, 0x20000
    s_mul_i32 s{sT1}, s{sW}, 7168
    s_add_u32 m0, s{sT1}, {L_WKV}
    s_cmp_eq_u32 s{sNL}, 1
    """)
    w3 = a.label("wk3")
    for i in range(4): a(f"buffer_load_dwordx4 v{vL16}, {sr(R_WKV,4)}, s{sT1} offen offset:{1024*i} lds")
    a(f"""
    s_cbranch_scc1 {w3}
    s_add_u32 m0, m0, 4096
    s_add_u32 s{sT1}, s{sT1}, 4096
    """)
    for i in range(3): a(f"buffer_load_dwordx4 v{vL16}, {sr(R_WKV,4)}, s{sT1} offen offset:{1024*i} lds")
    a(f"{w3}:")
    epoch_load(a)
    a("s_barrier")
    frag_addr()
    ACC, XF, WF = 96, 32, 64
    vQ, vS, vC = 22, 23, 21
    a(f"""
    v_mul_u32_u24 v{vWK}, 56, v20
    v_add_u32 v{vWK}, v{vWK}, v9
    s_mul_i32 s{sT1}, s{sW}, 7168
    s_add_u32 s{sT1}, s{sT1}, {L_WKV}
    v_add_u32 v{vWK}, s{sT1}, v{vWK}
    v_add_u32 v24, s{sXm}, v{vXF}
    v_xor_b32 v25, 32, v24
    v_xor_b32 v30, 64, v24
    v_xor_b32 v31, 96, v24
    v_mov_b32 v{vS}, 0
    v_mov_b32 v{vQ}, 0
    v_mov_b32 v{vC}, 0
    s_lshl_b32 s{sT0}, s{sW}, 4
    s_add_u32 s{sT0}, s{sT0}, {L_KS}
    v_lshlrev_b32 v120, 6, v{vJ}
    v_lshl_add_u32 v121, v{vHH}, 3, v120
    v_add_u32 v121, s{sT0}, v121
    s_lshl_b32 s{sT0}, s{sW}, 2
    s_add_u32 s{sT0}, s{sT0}, {L_KC}
    v_add_u32 v122, s{sT0}, v{vL16}
    v_add_u32 v123, s{sT1}, v{vL16}
    """)
    xa = [24, 25, 30, 31]
    l0 = a.label("kv0"); l1 = a.label("kv1a"); l2 = a.label("kv1b"); l3 = a.label("kv1c"); vlab = a.label("kvv"); fin = a.label("kvfin")
    def skip1(lab): a(f"s_cmp_eq_u32 s{sNL}, 1\ns_cbranch_scc1 {lab}")
    a(f"s_waitcnt vmcnt(7)\ns_cmp_eq_u32 s{sNL}, 1\ns_cbranch_scc0 {l0}\ns_waitcnt vmcnt(4)\n{l0}:")
    stamp(a, 2)
    for line in range(2):
        for q in range(4): a(f"ds_read_b128 {vr(XF+16*line+4*q,4)}, v{xa[q]} offset:{L_XT + line*8192}")
    lds_arrive(a, C_X1, nowait=True)
    for line in range(2):
        if line: skip1(l1)
        for q in range(4):
            a(f"s_waitcnt lgkmcnt({8-4*line-q})")
            for i in range(4):
                r = XF + 16 * line + 4 * q + i
                a(f"v_dot2c_f32_bf16 v{vS}, s{sONES}, v{r}\nv_dot2c_f32_bf16 v{vQ}, v{r}, v{r}")
    a(f"{l1}:\ns_waitcnt vmcnt(0) lgkmcnt(0)\ns_nop 1\nds_write_b64 v121, v[22:23]")
    stamp(a, 18)
    for k in range(8):
        if k == 7: a("s_waitcnt lgkmcnt(13)")
        a(f"ds_read_b64_tr_b16 {vr(WF+4*k,2)}, v{vWK} offset:{k*896}")
        a(f"ds_read_b64_tr_b16 {vr(WF+4*k+2,2)}, v{vWK} offset:{k*896+224}")
    for k in range(8):
        if k == 4: skip1(l3)
        a(f"s_waitcnt lgkmcnt({14-2*k})")
        for i in range(4): a(f"v_dot2c_f32_bf16 v{vC}, s{sONES}, v{WF+4*k+i}")
    a(f"{l3}:\ns_bitcmp1_b32 s{sCB}, 0\ns_cbranch_scc1 {vlab}")
    for isv in (0, 1):
        if isv: a(f"{vlab}:")
        for k in range(8):
            if k == 4: skip1(fin)
            A, B = (vr(XF+4*k,4), vr(WF+4*k,4)) if isv else (vr(WF+4*k,4), vr(XF+4*k,4))
            a(f"{MF} {vr(ACC,16)}, {A}, {B}, {vr(ACC,16) if k else 0}")
            if k == 0:
                split_hi_lo(a, 24, vC, 31)
                a("ds_write_b32 v122, v24")
                lds_arrive(a, C_KS, nowait=True)
        if not isv: a(f"s_branch {l2}")
    a(f"""
    {l2}:
    s_lshl_b32 s{sT2}, s{sNT}, 1
    s_xor_b32 s{sT2}, s{sT2}, 2
    s_add_u32 s{sT2}, s{sT2}, s{sW}
    """)
    get_tag(a)
    a("s_nop 3")
    for g in range(4): a(f"ds_write_b128 v123, {vr(ACC+4*g,4)} offset:{1024*g}")
    lds_arrive(a, C_KV, nowait=True)
    stamp(a, 3)
    a(f"s_cmp_lt_u32 s{sW}, 2\ns_cbranch_scc1 {dostats}")
    lds_arrive(a, C_ST, nowait=True)
    a(f"s_branch {qgo}")
    vfin = a.label("vfin"); kvst = a.label("kvst"); vf2 = a.label("vf2"); cm = a.label("kvcm")
    a(f"""
    {fin}:
    s_setprio 3
    v_add_u32 v24, {L_KS}, v120
    v_add_u32 v25, {L_WKV}, v{vL16}
    v_add_u32 v21, {L_KC}, v{vL16}
    s_lshl_b32 s{sT1}, s{sRB}, 1
    s_add_u32 s{sT1}, s{sT1}, s{sNT}
    s_lshl_b32 s{sT1}, s{sT1}, 12
    s_add_u32 s{sT1}, s{sT1}, {WS_KV}
    s_lshl_b32 s{sT4}, s{sRB}, 2
    s_add_u32 s{sT4}, s{sT4}, s{sCB}
    s_lshl_b32 s{sT4}, s{sT4}, {3+FS}
    s_add_u32 s{sT4}, s{sT4}, {FL_KV}
    s_lshl_b32 s{sT0}, s{sNT}, 8
    s_add_u32 s{sT0}, s{sT0}, {L_ST}
    v_lshl_add_u32 v30, v{vJ}, 3, s{sT0}
    s_waitcnt vmcnt(0)
    """)
    get_tag(a)
    lds_wait(a, C_KS, 4)
    for g in range(4): a(f"ds_read_b128 {vr(XF+4*g,4)}, v24 offset:{16*g}")
    a(f"ds_read_b128 {vr(112,4)}, v21\ns_waitcnt lgkmcnt(1)")
    for i in range(4): a(f"v_pk_add_f32 {vr(XF+4*i,2)}, {vr(XF+4*i,2)}, {vr(XF+4*i+2,2)}")
    a(f"""
    v_pk_add_f32 {vr(XF,2)}, {vr(XF,2)}, {vr(XF+4,2)}
    v_pk_add_f32 {vr(XF+8,2)}, {vr(XF+8,2)}, {vr(XF+12,2)}
    v_pk_add_f32 {vr(XF,2)}, {vr(XF,2)}, {vr(XF+8,2)}
    """)
    bf16_stats(a, XF + 1, XF, 22, 23, 21)
    a(f"""
    v_cvt_pk_bf16_f32 v116, -v22, -v22
    v_lshlrev_b32 v21, 2, v{vJ}
    v_add_u32 v21, {L_RT}, v21
    ds_write_b32 v21, v23
    v_mul_f32 v117, {f32(QSCALE)}, v23
    v_lshlrev_b32 v21, 4, v{vHH}
    v_add_u32 v21, {L_RT}, v21
    ds_write_b64 v30, v[116:117]
    v_mov_b32 v118, v116
    v_mov_b32 v119, v116
    v_mov_b32 v22, v23
    """)
    lds_arrive(a, C_ST, nowait=True)
    a(f"""
    s_waitcnt lgkmcnt(0)
    v_mov_b32 v117, v116
    s_bitcmp1_b32 s{sCB}, 0
    s_cbranch_scc1 {vfin}
    {MF} {vr(ACC,16)}, {vr(112,4)}, {vr(116,4)}, {vr(ACC,16)}
    s_branch {cm}
    {vfin}:
    {MF} {vr(ACC,16)}, {vr(116,4)}, {vr(112,4)}, {vr(ACC,16)}
    """)
    for g in range(4): a(f"ds_read_b128 {vr(XF+4*g,4)}, v21 offset:{32*g}")
    a(f"""
    s_add_u32 s{sT1}, s{sT1}, 2048
    v_cmp_eq_u32 vcc, 28, v{vJ}
    v_mov_b32 v24, 0x3f803f80
    s_nop 1
    v_cndmask_b32 v24, 0, v24, vcc
    """)
    for i in range(8): a(f"v_mov_b32 v{120+i}, v24")
    a(f"{cm}:")
    lds_wait(a, C_KV, 3)
    stamp(a, 4)
    for w in range(3):
        for g in range(4): a(f"ds_read_b128 {vr(128+16*w+4*g,4)}, v25 offset:{7168*w+1024*g}")
    for w in range(3):
        a(f"s_waitcnt lgkmcnt({8-4*w})")
        for r in range(0, 16, 2): a(f"v_pk_add_f32 {vr(ACC+r,2)}, {vr(ACC+r,2)}, {vr(128+16*w+r,2)}")
    a(f"s_bitcmp1_b32 s{sCB}, 0\ns_cbranch_scc1 {vf2}")
    for r in range(0, 16, 2): a(f"v_pk_mul_f32 {vr(ACC+r,2)}, {vr(ACC+r,2)}, v[22:23]")
    for i in range(8): a(f"v_cvt_pk_bf16_f32 v{120+i}, v{ACC+2*i}, v{ACC+2*i+1}")
    a(f"""
    s_mov_b64 exec, {sr(sHI,2)}
    v_mov_b32 v126, 0x3f803f80
    v_mov_b32 v127, 0x00003f80
    s_branch {kvst}
    {vf2}:
    s_mov_b32 exec_lo, 0x0fffffff
    s_mov_b32 exec_hi, 0x0fffffff
    """)
    for r in range(0, 16, 2): a(f"v_pk_mul_f32 {vr(ACC+r,2)}, {vr(ACC+r,2)}, {vr(XF+r,2)}")
    for i in range(8): a(f"v_cvt_pk_bf16_f32 v{120+i}, v{ACC+2*i}, v{ACC+2*i+1}")
    a(f"""
    {kvst}:
    s_mov_b64 exec, -1
    buffer_store_dwordx4 {vr(120,4)}, v{vL16}, {sr(R_WS,4)}, s{sT1} offen sc1
    buffer_store_dwordx4 {vr(124,4)}, v{vL16}, {sr(R_WS,4)}, s{sT1} offen offset:1024 sc1
    """)
    stamp(a, 5)
    if OPT.kvflag < 0:
        set_flag(a, sT4)
        a(f"s_mov_b32 s{sT4}, 0\ns_setprio 0")
        stamp(a, 6)
    if not OPT.fl_late or OPT.kvflag < 0: lds_arrive(a, C_FL, nowait=True)
    a(f"s_branch {qgo}")
    a(f"{other}:")
    a(f"""
    s_lshr_b32 s{sT3}, s{sJ}, 3
    s_lshl_b32 s{sT3}, s{sT3}, 2
    s_add_u32 s{sT3}, s{sT3}, s{sCB}
    s_sub_u32 s{sT3}, s{sT3}, 4
    s_lshl_b32 s{sT0}, s{sT3}, 2
    s_add_u32 s{sT0}, s{sT0}, s{sW}
    s_cmp_eq_u32 s{sT3}, 1
    s_cselect_b32 s{R_WKV}, s{P_WV}, s{P_WK}
    s_cselect_b32 s{R_WKV+1}, s{P_WV+1}, s{P_WK+1}
    s_mov_b32 s{R_WKV+2}, {448*896}
    s_sub_u32 s{sT1}, s{sT0}, 8
    s_cmp_lt_u32 s{sT3}, 2
    s_cselect_b32 s{R_WKV}, s{R_WKV}, s{P_WQ}
    s_cselect_b32 s{R_WKV+1}, s{R_WKV+1}, s{P_WQ+1}
    s_cselect_b32 s{R_WKV+2}, {448*56}, s{R_WKV+2}
    s_cselect_b32 s{sT1}, s{sW}, s{sT1}
    s_mov_b32 s{R_WKV+3}, 0x20000
    s_lshl_b32 s{sT1}, s{sT1}, 13
    buffer_load_dword v250, v21, {sr(R_WKV,4)}, s{sT1} offen
    """)
    pf1_addr(a)
    frag_addr()
    a(f"s_mov_b32 s{sT2}, s{sW}\ns_barrier\ns_waitcnt vmcnt(1)")
    stamp(a, 2)
    lds_arrive(a, C_X1, nowait=True)
    def early():
        ne = a.label("noearly"); nw = a.label("nowait")
        a(f"s_cmp_lt_u32 s{sCB}, 6\ns_cbranch_scc1 {nw if OPT.pdefer else ne}\ns_cmp_eq_u32 s{sJ}, 6\ns_cbranch_scc1 {nw if OPT.pdefer else ne}")
        for i in range(OPT.npf0):
            if i == OPT.npfa: lds_wait(a, C_FL, 4)
            a(f"buffer_load_dword v{251+i%3}, v{vPF1}, {sr(R_W1,4)}, s{sPFW} offen\ns_add_u32 s{sPFW}, s{sPFW}, {56*3584}")
        a(f"{nw}:")
        lds_wait(a, C_FL, 4)
        a(f"{ne}:")
        x_half(1)
    rest_dma(a, early)
    lds_arrive(a, C_ISS, nowait=True)
    get_tag(a)
    stamp(a, 3)
    a(f"{dostats}:")
    stats_code(a, 20, 21, sT2)
    a(f"s_cmp_lt_u32 s{sCB}, 4\ns_cbranch_scc1 {qgo}\ns_waitcnt vmcnt(0)")
    lds_arrive(a, C_X, nowait=True)
    QACC, B0 = 128, 32
    a(f"""
    {qgo}:
    s_and_b32 s{sT0}, s{sW}, 1
    s_mul_i32 s{sT0}, s{sT0}, 56
    v_add_u32 v{vWQr}, s{sT0}, v9
    v_lshlrev_b32 v21, 5, v8
    v_and_b32 v21, 64, v21
    v_xor_b32 v{vWQr}, v{vWQr}, v21
    v_lshl_add_u32 v{vWQr}, v20, 7, v{vWQr}
    v_add_u32 v{vWQr}, {L_WQ}, v{vWQr}
    s_lshr_b32 s{sT1}, s{sW}, 1
    s_lshl_b32 s{sT0}, s{sT1}, 12
    v_mov_b32 v23, 0
    v_mov_b32 v113, 0
    v_mov_b32 v114, 0
    v_mov_b32 v115, 0
    v_mov_b32 v118, 0
    v_mov_b32 v119, 0
    """)
    for q in range(4): a(f"v_add_u32 v{vXF+q}, s{sT0}, v{vXF+q}")
    a(f"""
    s_lshl_b32 s{sT1}, s{sT1}, 8
    s_add_u32 s{sT1}, s{sT1}, {L_ST}
    v_lshl_add_u32 v24, v{vJ}, 3, s{sT1}
    """)
    lds_wait(a, C_X1, 4)
    lds_wait(a, C_X, 4)
    stamp(a, 7)
    D = 4; NB = 8
    WR = list(range(64, 112, 4)) + list(range(144, 176, 4)) + list(range(224, 248, 4)) + [120, 124]
    def wreg(ks): return WR[ks]
    def reads(ks):
        b = wreg(ks)
        a(f"ds_read_b64_tr_b16 {vr(b,2)}, v{vWQr} offset:{ks*2048}")
        a(f"ds_read_b64_tr_b16 {vr(b+2,2)}, v{vWQr} offset:{ks*2048+512}")
        a(f"ds_read_b128 {vr(B0+4*(ks%NB),4)}, v{vXF+(ks&3)} offset:{L_XT + (ks>>2)*8192}")
    for ks in range(D): reads(ks)
    for ks in range(28):
        if ks + D < 28: reads(ks + D)
        a(f"s_waitcnt lgkmcnt({3*min(D, 27-ks)})")
        a(f"{MF} {vr(QACC,16)}, {vr(wreg(ks),4)}, {vr(B0+4*(ks%NB),4)}, {'0' if ks == 0 else vr(QACC,16)}")
        if ks == OPT.kvflag:
            nf = a.label("nofl")
            a(f"s_cmp_eq_u32 s{sT4}, 0\ns_cbranch_scc1 {nf}")
            set_flag(a, sT4)
            if OPT.fl_late: lds_arrive(a, C_FL, nowait=True)
            a("s_setprio 0")
            stamp(a, 6)
            a(f"{nf}:")
    stamp(a, 19)
    if OPT.prio_ld: a(f"s_setprio {OPT.prio_ld}")
    att_setup(a)
    if OPT.early: a(f"buffer_load_dwordx2 v[30:31], v25, {sr(R_WS,4)}, s{sKF} offen sc1")
    for ks in range(28):
        for i in range(4): a(f"v_dot2c_f32_bf16 v23, s{sONES}, v{wreg(ks)+i}")
    if OPT.early:
        nk = a.label("nokvyet")
        a(f"""
        s_waitcnt vmcnt(0)
        v_cmp_ne_u64 vcc, {sr(sTAG,2)}, v[30:31]
        s_cbranch_vccnz {nk}
        """)
        first_kv(a)
        a(f"s_mov_b32 s{sKF}, 0\n{nk}:")
    stamp(a, 8)
    lds_wait(a, C_ST, 8)
    a(f"ds_read_b64 v[116:117], v24")
    split_hi_lo(a, 112, 23, 21)
    a(f"""
    s_waitcnt lgkmcnt(0)
    v_mov_b32 v22, v117
    v_mov_b32 v23, v117
    v_mov_b32 v117, 0
    s_nop 1
    {MF} {vr(QACC,16)}, {vr(112,4)}, {vr(116,4)}, {vr(QACC,16)}
    s_lshl_b32 s{sT1}, s{sW}, 11
    s_add_u32 s{sT1}, s{sT1}, {L_QS}
    v_add_u32 v21, s{sT1}, v{vL16}
    """)
    for r in range(64, 76): a(f"v_mov_b32 v{r}, 0")
    for r in range(0, 16, 2): a(f"v_pk_mul_f32 {vr(QACC+r,2)}, {vr(QACC+r,2)}, v[22:23]")
    for i in range(8): a(f"v_cvt_pk_bf16_f32 v{32+i}, v{QACC+2*i}, v{QACC+2*i+1}")
    a(f"""
    s_mov_b64 exec, {sr(sHI,2)}
    v_mov_b32 v38, 0
    v_mov_b32 v39, 0
    s_mov_b64 exec, -1
    ds_write_b128 v21, {vr(32,4)}
    ds_write_b128 v21, {vr(36,4)} offset:1024
    """)
    lds_arrive(a, C_Q, nowait=True)

vDW1, vDW2, vDWO, vOUT, vT1, vT2, vT3, vLN, vLM, vPF, vPF2 = 48, 49, 50, 51, 52, 54, 56, 58, 60, 62, 63
vTH, vSW = 240, 247
sHasG1 = 98
sLb0, sLbE, sDb0, sDbE = 34, 35, 36, 37
sFH, sPH, sB1o, sFU, sUS, sFUc, sPU, sFOc, sSH1 = 16, 17, 28, 29, 30, 31, 32, 33, 81
def g_setup1(a, mid=None):
    srd(a, R_B1, P_B1, 1792 * 2)
    a(f"""
    s_lshr_b32 s{sGM}, s{sG}, 1
    s_and_b32 s{sGN}, s{sG}, 1
    s_lshl_b32 s{sRing}, s{sG}, 11
    s_add_u32 s{sRing}, s{sRing}, {L_RING}
    v_lshlrev_b32 v{vDWO}, 2, v10
    v_xor_b32 v{vDWO}, v{vDWO}, v6
    v_lshlrev_b32 v{vDWO}, 4, v{vDWO}
    v_lshl_add_u32 v{vT3}, v8, 7, v9
    v_lshlrev_b32 v24, 5, v8
    v_and_b32 v24, 64, v24
    v_add_u32 v{vT3}, v{vT3}, v24
    v_add_u32 v{vT3}, s{sRing}, v{vT3}
    s_lshr_b32 s{sT0}, s{sJ}, 3
    s_mul_i32 s{sT0}, s{sT0}, 6
    s_add_u32 s{sT0}, s{sT0}, s{sCB}
    s_cmp_lt_u32 s{sCB}, 6
    s_cselect_b32 s{sHasG1}, 1, 0
    s_and_b32 s{sT1}, s2, 0xf9
    s_cmp_eq_u32 s{sT1}, 48
    s_cselect_b32 s{sT0}, 24, s{sT0}
    s_cselect_b32 s{sHasG1}, 1, s{sHasG1}
    s_and_b32 s{sT1}, s{sXCD}, 1
    s_mul_i32 s{sT1}, s{sT1}, 25
    s_add_u32 s{sT0}, s{sT0}, s{sT1}
    s_mul_i32 s{sA}, s{sT0}, 37
    s_lshr_b32 s{sA}, s{sA}, 8
    s_mul_i32 s{sT1}, s{sA}, 7
    s_sub_u32 s{sPH}, s{sT0}, s{sT1}
    s_lshr_b32 s{sFB}, s{sXCD}, 1
    s_mul_i32 s{sFB}, s{sFB}, 7
    s_add_u32 s{sFB}, s{sFB}, s{sPH}
    """)
    if mid: mid()
    a(f"""
    v_mul_u32_u24 v{vDW1}, 3584, v5
    v_add_u32 v{vDW1}, v{vDW1}, v{vDWO}
    v_lshl_add_u32 v{vDW2}, v5, 12, v{vDWO}
    v_mul_u32_u24 v24, 896, v5
    v_add_u32 v{vDWO}, v24, v{vDWO}
    s_mul_i32 s{sD}, s{sG}, {512*3584}
    s_lshl_b32 s{sT0}, s{sFB}, 7
    s_add_u32 s{sD}, s{sD}, s{sT0}
    s_lshl_b32 s{sT1}, s{sGM}, 6
    s_add_u32 s{sB1o}, s{sT0}, s{sT1}
    v_lshl_add_u32 v24, v{vHH}, 10, v{vT3}
    v_xor_b32 v{vT1}, s{sT1}, v24
    v_xor_b32 v{vT1+1}, 64, v{vT1}
    v_add_u32 v{vTH}, 0x10000, v{vT1}
    v_add_u32 v{vTH+1}, 0x10000, v{vT1+1}
    s_lshl_b32 s{sT0}, s{sGN}, 10
    v_add_u32 v{vLN}, s{sT0}, v{vL16}
    v_xor_b32 v{vLN+1}, 0x400, v{vLN}
    s_lshl_b32 s{sL}, s{sA}, 18
    s_lshl_b32 s{sT0}, s{sG}, 16
    s_add_u32 s{sL}, s{sL}, s{sT0}
    s_add_u32 s{sSH1}, s{sPH}, 1
    s_lshl_b32 s{sPH}, s{sSH1}, 13
    s_add_u32 s{sPH}, s{sPH}, s{sL}
    v_lshlrev_b32 v{vPF}, 7, v{vLANE}
    v_add_u32 v{vSW}, s{sRing}, v{vL16}
    v_add_u32 v{vSW+1}, 0x10000, v{vSW}
    s_lshr_b32 s{sFH}, s{sA}, 1
    s_lshl_b32 s{sFH}, s{sFH}, 10
    s_lshl_b32 s{sT0}, s{sG}, 8
    s_add_u32 s{sFH}, s{sFH}, s{sT0}
    s_lshl_b32 s{sFH}, s{sFH}, {FS}
    s_add_u32 s{sFH}, s{sFH}, {FL_H}
    v_bfe_u32 v32, v{vJ}, 1, 3
    v_lshlrev_b32 v32, 4, v32
    v_xor_b32 v32, s{sT1}, v32
    v_lshl_add_u32 v32, v{vJ}, 7, v32
    v_lshl_add_u32 v32, v{vHH}, 3, v32
    s_lshl_b32 s{sT0}, s{sCB}, 13
    s_lshl_b32 s{sT1}, s{sGN}, 12
    s_add_u32 s{sT0}, s{sT0}, s{sT1}
    v_add_u32 v32, s{sT0}, v32
    v_xor_b32 v33, 16, v32
    v_xor_b32 v34, 32, v32
    v_xor_b32 v35, 48, v32
    """)
    assert WS_HT == 0
def g_xread(a):
    lds_wait(a, C_X1, 4)
    lds_wait(a, C_XA, 4)
    for g, v in enumerate((32, 33, 34, 35)): a(f"ds_read_b64 {vr(6+2*g,2)}, v{v} offset:{L_XT}")
    lds_arrive(a, C_ST, nowait=True)

def g_setup2(a):
    srd(a, R_W2, P_W2, 1792 * 4096)
    srd(a, R_WO, P_WO, 448 * 896)
    srd(a, R_OUT, P_OUT, 2048 * 896)
    srd(a, R_B2, P_B2, 2048 * 2)
    a(f"""
    s_mul_i32 s{sDb}, s{sG}, {448*4096}
    s_lshl_b32 s{sT0}, s{sRB}, 7
    s_add_u32 s{sDb}, s{sDb}, s{sT0}
    s_mul_i32 s{sD2}, s{sG}, {112*896}
    s_lshl_b32 s{sT0}, s{sCB}, 7
    s_add_u32 s{sD2}, s{sD2}, s{sT0}
    s_lshl_b32 s{sT0}, s{sGM}, 6
    s_lshl_b32 s{sT1}, s{sGN}, 6
    v_lshl_add_u32 v24, v{vHH}, 9, v{vT3}
    v_xor_b32 v{vT2}, s{sT1}, v24
    v_xor_b32 v{vT2+1}, 64, v{vT2}
    v_xor_b32 v{vT3}, s{sT0}, v24
    v_xor_b32 v{vT3+1}, 64, v{vT3}
    s_lshl_b32 s{sT0}, s{sGM}, 10
    v_add_u32 v{vLM}, s{sT0}, v{vL16}
    v_xor_b32 v{vLM+1}, 0x400, v{vLM}
    s_mul_i32 s{sLb}, s{sCB}, 112
    s_mul_i32 s{sT0}, s{sG}, 28
    s_add_u32 s{sLb}, s{sLb}, s{sT0}
    s_lshl_b32 s{sLb}, s{sLb}, 11
    s_add_u32 s{sLb}, s{sLb}, {WS_U}
    s_lshr_b32 s{sT0}, s{sJ}, 3
    s_add_u32 s{sT0}, s{sT0}, 3
    s_lshl_b32 s{sT0}, s{sT0}, 13
    s_add_u32 s{sPU}, s{sT0}, s{sLb}
    s_lshl_b32 s{sL2}, s{sRB}, 16
    s_lshl_b32 s{sT0}, s{sG}, 14
    s_add_u32 s{sL2}, s{sL2}, s{sT0}
    s_add_u32 s{sL2}, s{sL2}, {WS_O}
    v_mul_u32_u24 v{vOUT}, 896, v{vJ}
    v_lshl_add_u32 v{vOUT}, v{vHH}, 4, v{vOUT}
    s_lshl_b32 s{sT0}, s{sRB}, 1
    s_add_u32 s{sT0}, s{sT0}, s{sGN}
    s_lshl_b32 s{sB2}, s{sT0}, 6
    s_mul_i32 s{sT0}, s{sT0}, {32*896}
    s_lshl_b32 s{sT1}, s{sCB}, 7
    s_add_u32 s{sT0}, s{sT0}, s{sT1}
    s_lshl_b32 s{sT1}, s{sGM}, 6
    s_add_u32 s{sOUT}, s{sT0}, s{sT1}
    v_lshrrev_b32 v{vPF2}, 2, v{vLANE}
    v_and_b32 v24, 3, v{vLANE}
    v_lshlrev_b32 v{vPF2}, 12, v{vPF2}
    v_lshl_add_u32 v{vPF2}, v24, 7, v{vPF2}
    s_mul_i32 s{sT0}, s{sA}, 112
    s_lshl_b32 s{sT1}, s{sFB}, 2
    s_add_u32 s{sT0}, s{sT0}, s{sT1}
    s_lshl_b32 s{sT2}, s{sGM}, 1
    s_add_u32 s{sT0}, s{sT0}, s{sT2}
    s_lshl_b32 s{sT0}, s{sT0}, 11
    s_add_u32 s{sUS}, s{sT0}, {WS_U}
    s_lshl_b32 s{sT0}, s{sA}, 7
    s_add_u32 s{sT0}, s{sT0}, s{sT1}
    s_add_u32 s{sT0}, s{sT0}, s{sG}
    s_lshl_b32 s{sT0}, s{sT0}, 3
    s_lshl_b32 s{sT0}, s{sT0}, {FS}
    s_add_u32 s{sFU}, s{sT0}, {FL_U}
    s_lshl_b32 s{sT0}, s{sCB}, 10
    s_mul_i32 s{sT1}, s{sG}, 224
    s_add_u32 s{sT0}, s{sT0}, s{sT1}
    s_lshl_b32 s{sT0}, s{sT0}, {FS}
    s_add_u32 s{sFUc}, s{sT0}, {FL_U}
    s_lshl_b32 s{sT0}, s{sRB}, 8
    s_lshl_b32 s{sT1}, s{sG}, 6
    s_add_u32 s{sT0}, s{sT0}, s{sT1}
    s_lshl_b32 s{sT0}, s{sT0}, {FS}
    s_add_u32 s{sFOc}, s{sT0}, {FL_O}
    """)
    for i in range(2, 6): a(f"v_add_u32 v{vTH+i}, 0x10000, v{vT1+i}")
    if OPT.ra or OPT.rb:
        a(f"""
        s_lshr_b32 s{sT0}, s{sJ}, 3
        s_mul_i32 s{sT0}, s{sT0}, {OPT.ra}
        s_mul_i32 s{sT1}, s{sXCD}, {OPT.rb}
        s_add_u32 s{sT0}, s{sT0}, s{sT1}
        s_mul_i32 s{sT1}, s{sT0}, 2341
        s_lshr_b32 s{sT1}, s{sT1}, 16
        s_mul_i32 s{sT1}, s{sT1}, 28
        s_sub_u32 s{sT0}, s{sT0}, s{sT1}
        s_mov_b32 s{sLb0}, s{sLb}
        s_add_u32 s{sLbE}, s{sLb}, {28*2048}
        s_mov_b32 s{sDb0}, s{sDb}
        s_add_u32 s{sDbE}, s{sDb}, {28*16*4096}
        s_lshl_b32 s{sT1}, s{sT0}, 11
        s_add_u32 s{sLb}, s{sLb}, s{sT1}
        s_lshl_b32 s{sT1}, s{sT0}, 16
        s_add_u32 s{sDb}, s{sDb}, s{sT1}
        """)
        assert all((x * 2341) >> 16 == x // 28 for x in range(200))
    if OPT.nou: a(f"v_mov_b32 v{vLM}, {OOB}\nv_mov_b32 v{vLM+1}, {OOB}")
    if OPT.now2: a(f"v_mov_b32 v{vDW2}, {OOB}")

L_HB2 = L_WKV
def p1_g(a):
    X, U = 128, 160
    htype = a.label("gh"); pfw = a.label("gpfw")
    a(f"s_sub_u32 s{sG}, s{sW}, 4")
    common_srds(a)
    pf1_addr(a)
    a(f"s_cmp_ge_u32 s{sCB}, 4\ns_cbranch_scc1 {htype}")
    a("s_barrier")
    rest_dma(a)
    stamp(a, 2)
    get_tag(a)
    g_setup1(a, lambda: (a("s_waitcnt vmcnt(0)"), lds_arrive(a, C_X, nowait=True), stamp(a, 3)))
    lds_wait(a, C_FL, 1)
    a(f"s_branch {pfw}")
    a(f"""
    {htype}:
    s_sub_u32 s{sT1}, s{sCB}, 4
    s_lshl_b32 s{sT0}, s{sRB}, 2
    s_add_u32 s{sT0}, s{sT0}, s{sT1}
    s_lshl_b32 s{sT1}, s{sT1}, 4
    s_lshl_b32 s{sT2}, s{sG}, 2
    s_add_u32 s{sT1}, s{sT1}, s{sT2}
    v_add_u32 v11, s{sT1}, v7
    v_and_b32 v13, 1, v5
    v_lshlrev_b32 v12, 13, v13
    v_lshl_add_u32 v12, v11, 7, v12
    v_lshl_add_u32 v12, v6, 4, v12
    v_bfe_u32 v11, v11, 1, 3
    v_xor_b32 v11, v11, v6
    v_mul_u32_u24 v14, {HB_STRIDE}, v7
    v_lshl_add_u32 v14, v11, 4, v14
    v_lshl_add_u32 v14, v13, 7, v14
    s_mul_i32 s{sT2}, s{sG}, {4*HB_STRIDE}
    s_add_u32 s{sT2}, s{sT2}, {L_HB2}
    v_add_u32 v14, s{sT2}, v14
    v_lshl_add_u32 v15, v{vHH}, 3, v8
    v_mul_u32_u24 v15, {HB_STRIDE}, v15
    v_add_u32 v15, v15, v9
    s_lshl_b32 s{sT2}, s{sG}, 8
    s_add_u32 s{sT2}, s{sT2}, {L_HB2}
    v_add_u32 v15, s{sT2}, v15
    s_lshl_b32 s{sT2}, s{sG}, 19
    s_lshl_b32 s{sT3}, s{sT0}, 11
    s_add_u32 s{sT2}, s{sT2}, s{sT3}
    s_add_u32 s{sT3}, s{sT2}, {128*2048}
    s_lshl_b32 s{sT4}, s{sG}, 7
    s_add_u32 s{sT4}, s{sT4}, s{sT0}
    s_lshl_b32 s{sT4}, s{sT4}, {3+FS}
    s_add_u32 s{sT4}, s{sT4}, {FL_H}
    v_mov_b32 v17, 0xffff0000
    s_mov_b32 vcc_lo, 0x00ff00ff
    s_mov_b32 vcc_hi, 0x00ff00ff
    """)
    for p in range(1):
        for i in range(4): a(f"v_mov_b32 v{X+16*p+12+i}, 0")
    S = [32, 40]
    for p in range(1): a(f"v_mov_b32 v{S[p]}, 0\nv_mov_b32 v{S[p]+1}, 0")
    a("s_barrier\ns_setprio 3")
    lds_wait(a, C_X1, 4)
    stamp(a, 2)
    for p in range(1):
        for i in range(3): a(f"ds_read_b128 {vr(X+16*p+4*i,4)}, v12 offset:{L_XT + 16384*i + 2048*p}")
        a(f"s_mov_b64 exec, vcc\nds_read_b128 {vr(X+16*p+12,4)}, v12 offset:{L_XT + 16384*3 + 2048*p}\ns_mov_b64 exec, -1")
    for p in range(1):
        for i in range(16):
            if i % 4 == 0: a(f"s_waitcnt lgkmcnt({3-i//4})")
            a(f"v_dot2c_f32_bf16 v{S[p]}, s{sONES}, v{X+16*p+i}")
            a(f"v_dot2c_f32_bf16 v{S[p]+1}, v{X+16*p+i}, v{X+16*p+i}")
    un = []
    for i in range(16): un += [f"v_lshlrev_b32 v{U+2*i}, 16, v{X+i}", f"v_and_b32 v{U+2*i+1}, v17, v{X+i}"]
    for x in un[:3]: a(x)
    un = un[3:]
    def both(txt):
        for line in txt.strip().split("\n"):
            p = 0; t_ = line.strip().format(s=S[p], q=S[p]+1, t=S[p]+2, r=S[p]+4, r2=S[p]+5, m=S[p]+6)
            a(t_)
            if t_.startswith(("v_sqrt", "v_rcp")) or (t_.startswith("v_add_f32_dpp") and f"v{S[0]+1}," in t_): a(un.pop(0))
    for mode in (QP1, QP2, RHM, RM):
        both("v_add_f32_dpp v{s}, v{s}, v{s} %s row_mask:0xf bank_mask:0xf\nv_add_f32_dpp v{q}, v{q}, v{q} %s row_mask:0xf bank_mask:0xf" % (mode, mode))
    rstd = """
    v_and_b32 v{t}, v17, v{t}
    v_add_f32 v{t}, %#x, v{t}
    v_cvt_pk_bf16_f32 v{t}, v{t}, v{t}
    v_and_b32 v{t}, v17, v{t}
    v_sqrt_f32 v{t}, v{t}
    v_cvt_pk_bf16_f32 v{t}, v{t}, v{t}
    v_and_b32 v{t}, v17, v{t}
    v_rcp_f32 v{%s}, v{t}
    """
    both("""
    v_mul_f32 v{s}, %s, v{s}
    v_mul_f32 v{q}, %s, v{q}
    v_fma_f32 v{q}, -v{s}, v{s}, v{q}
    v_max_f32 v{q}, 0, v{q}
    v_cvt_pk_bf16_f32 v{t}, v{s}, v{q}
    v_lshlrev_b32 v{m}, 16, v{t}
    """ % (f32(1/448), f32(1/448)))
    both(rstd % (EPS, "r"))
    both("""
    v_sub_f32 v{s}, v{s}, v{m}
    v_mul_f32 v{s}, v{s}, v{r}
    v_mul_f32 v{q}, v{q}, v{r}
    v_mul_f32 v{q}, v{q}, v{r}
    v_cvt_pk_bf16_f32 v{t}, v{s}, v{q}
    v_lshlrev_b32 v{s}, 16, v{t}
    v_fma_f32 v{m}, v{m}, v{r}, v{s}
    """)
    both(rstd % (EPS, "r2"))
    for x in un: a(x)
    both("v_mul_f32 v{m}, v{m}, v{r2}\nv_mul_f32 v{r}, v{r}, v{r2}")
    for p in range(1):
        for i in range(16):
            if i == 12: a("s_mov_b64 exec, vcc")
            u = U + 32 * p + 2 * i
            a(f"""
            v_pk_fma_f32 {vr(u,2)}, {vr(u,2)}, {vr(S[p]+4,2)}, {vr(S[p]+6,2)} op_sel_hi:[1,0,0] neg_lo:[0,0,1] neg_hi:[0,0,1]
            v_cvt_pk_bf16_f32 v{X+16*p+i}, v{u}, v{u+1}
            """)
            if i % 4 == 3: a(f"ds_write_b128 v14, {vr(X+16*p+i-3,4)} offset:{256*(i//4) + 16*HB_STRIDE*p}")
        a("s_mov_b64 exec, -1")
    stamp(a, 3)
    lds_arrive(a, C_H, nowait=True)
    lds_wait(a, C_H, 4)
    n = 0
    for p in range(1):
        for f in range(4):
            for x in range(2):
                if n == 15: a("s_waitcnt lgkmcnt(14)")
                a(f"ds_read_b64_tr_b16 {vr(U+16*p+4*f+2*x,2)}, v15 offset:{x*4*HB_STRIDE + f*64 + 16*HB_STRIDE*p}"); n += 1
    for p in range(1):
        for f in range(4):
            a(f"s_waitcnt lgkmcnt({6-2*f})")
            a(f"buffer_store_dwordx4 {vr(U+16*p+4*f,4)}, v{vL16}, {sr(R_WS,4)}, s{sT2 + (f>>1)} offen offset:{1024*(f&1) + 2048*p} sc1")
    lds_arrive(a, C_FL, nowait=True)
    stamp(a, 4)
    g_setup1(a)
    get_tag(a)
    set_flag(a, sT4)
    a("s_setprio 0")
    stamp(a, 5)
    lds_wait(a, C_FL, 4)
    lds_wait(a, C_ISS, 4)
    a(f"{pfw}:")

sK, sKF, sKP = 94, 95, 96
AQ, AO, AS, AP, AKV = 32, 64, 128, 160, 176
def att_setup(a):
    a(f"""
    s_add_u32 s{R_KV}, s{P_WS}, {WS_KV}
    s_addc_u32 s{R_KV+1}, s{P_WS+1}, 0
    s_add_u32 s{sT0}, s{sW}, 1
    s_lshl_b32 s{R_KV+2}, s{sT0}, 16
    s_mov_b32 s{R_KV+3}, 0x20000
    v_lshlrev_b32 v5, 7, v{vLANE}
    v_lshlrev_b32 v25, {3+FS}, v{vJ}
    s_lshr_b32 s{sKP}, s{sJ}, 1
    s_and_b32 s{sKP}, s{sKP}, 4
    s_add_u32 s{sKP}, s{sKP}, s{sCB}
    s_lshl_b32 s{sKP}, s{sKP}, 13
    s_lshl_b32 s{sT0}, s{sW}, 16
    s_add_u32 s{sKP}, s{sKP}, s{sT0}
    s_and_b32 s{sT0}, s{sJ}, 0x14
    s_cmp_lg_u32 s{sT0}, 0
    s_cselect_b32 s{sKP}, {OOB}, s{sKP}
    s_lshl_b32 s{sKF}, s{sW}, 8
    s_lshl_b32 s{sKF}, s{sKF}, {FS}
    s_add_u32 s{sKF}, s{sKF}, {FL_KV}
    """)
def kvload(a, buf):
    for j in range(4):
        a(f"buffer_load_dwordx4 {vr(AKV+16*buf+4*j,4)}, v{vL16}, {sr(R_KV,4)}, s{sK} offen offset:{1024*j} sc1")
    a(f"s_add_u32 s{sK}, s{sK}, 4096")
def first_kv(a):
    a(f"s_lshl_b32 s{sK}, s{sW}, 16")
    kvload(a, 0)
    a(f"buffer_load_dword v253, v5, {sr(R_KV,4)}, s{sKP} offen sc1")
    kvload(a, 1); kvload(a, 2)

def attention(a, done):
    Q, O, S, P, KV = AQ, AO, AS, AP, AKV
    NM = 20
    sIt, sRetry, sOS, sOF = sT1, sT3, 84, 85
    vMW, vRW, vMR, vRR = 8, 12, 15, 16
    go = a.label("att_go"); mloop = a.label("att_mloop"); loop = a.label("att_loop"); ok = a.label("att_ok"); havekv = a.label("att_havekv")
    a(f"s_mov_b32 s{sRetry}, 0\ns_cmp_eq_u32 s{sKF}, 0\ns_cbranch_scc1 {havekv}")
    lds_wait(a, C_PRE, 4)
    stamp(a, 9)
    poll(a, sKF, 32)
    stamp(a, 10)
    first_kv(a)
    a(f"{havekv}:")
    for i in range(1, 4):
        a(f"""
        s_add_u32 s{sT0}, s{sW}, {i}
        s_and_b32 s{sT0}, s{sT0}, 3
        s_lshl_b32 s{sT0}, s{sT0}, 11
        s_add_u32 s{sT0}, s{sT0}, {L_QS}
        v_add_u32 v{16+i}, s{sT0}, v{vL16}
        """)
    lds_wait(a, C_Q, 4)
    for i in range(1, 4):
        a(f"ds_read_b128 {vr(Q+8*i,4)}, v{16+i}\nds_read_b128 {vr(Q+8*i+4,4)}, v{16+i} offset:1024")
    for r in range(12, 64): a(f"v_mov_b32 v{O+r}, 0")
    for i in range(4):
        a(f"""
        s_add_u32 s{sT0}, s{sW}, {i+1}
        s_and_b32 s{sT0}, s{sT0}, 3
        s_lshl_b32 s{sT2}, s{sT0}, 9
        s_add_u32 s{sT2}, s{sT2}, {L_MX + 128*i}
        v_lshl_add_u32 v{vMW+i}, v{vJ}, 2, s{sT2}
        s_mul_i32 s{sT2}, s{sT0}, 12288
        s_add_u32 s{sT2}, s{sT2}, {L_RED + 4096*(i%3)}
        v_add_u32 v{vRW+i if i < 3 else vRR}, s{sT2}, v{vL16}
        """)
    a(f"""
    v_subrev_u32 v{vMR}, 384, v{vMW+3}
    s_add_u32 s{sT0}, s{sW}, 3
    s_and_b32 s{sT2}, s{sT0}, 1
    s_lshl_b32 s{sOS}, s{sCB}, 1
    s_add_u32 s{sOS}, s{sOS}, s{sT2}
    s_lshl_b32 s{sOS}, s{sOS}, 12
    s_lshl_b32 s{sT2}, s{sRB}, 16
    s_add_u32 s{sOS}, s{sOS}, s{sT2}
    s_and_b32 s{sT2}, s{sT0}, 2
    s_lshl_b32 s{sT2}, s{sT2}, 9
    s_add_u32 s{sOS}, s{sOS}, s{sT2}
    s_add_u32 s{sOS}, s{sOS}, {WS_O}
    s_lshl_b32 s{sOF}, s{sRB}, 3
    s_add_u32 s{sOF}, s{sOF}, s{sCB}
    s_lshl_b32 s{sOF}, s{sOF}, 2
    s_add_u32 s{sOF}, s{sOF}, s{sW}
    s_lshl_b32 s{sOF}, s{sOF}, {3+FS}
    s_add_u32 s{sOF}, s{sOF}, {FL_O}
    s_mov_b32 s{sT4}, 0x71800000
    """)
    TMP = [S, S + 16, KV + 48, P]
    def scan_mf(kreg):
        for i in range(4):
            a(f"{MF} {vr(TMP[i],16)}, {vr(kreg,4)}, {vr(Q+8*i,4)}, 0")
            a(f"{MF} {vr(TMP[i],16)}, {vr(kreg+4,4)}, {vr(Q+8*i+4,4)}, {vr(TMP[i],16)}")
    a("s_waitcnt vmcnt(11) lgkmcnt(0)")
    stamp(a, 11)
    scan_mf(KV)
    a(f"s_nop 4\ns_mov_b64 exec, {sr(sHI,2)}")
    for i in range(4):
        t = TMP[i]
        a(f"v_max3_f32 v{NM+i}, v{t}, v{t+1}, v{t+2}")
        for j in range(3, 15, 2): a(f"v_max3_f32 v{NM+i}, v{t+j}, v{t+j+1}, v{NM+i}")
        a(f"""
        v_max_f32 v{NM+i}, v{t+15}, v{NM+i}
        v_cvt_pk_bf16_f32 v{Q+8*i+6}, -v{NM+i}, 0
        v_lshlrev_b32 v{NM+i}, 16, v{Q+8*i+6}
        """)
    a(f"{go}:")
    for i in range(4): a(f"ds_write_b32 v{vMW+i}, v{NM+i}")
    a("s_mov_b64 exec, -1")
    a(f"{MF} {vr(S,16)}, {vr(KV,4)}, {vr(Q,4)}, 0")
    a(f"{MF} {vr(S,16)}, {vr(KV+4,4)}, {vr(Q+4,4)}, {vr(S,16)}")
    for r in range(8): a(f"v_mov_b32 v{KV+48+8+r}, 0")
    for r in range(8): a(f"v_mov_b32 v{P+8+r}, 0")
    a(f"v_mov_b32 v{S+30}, 0\nv_mov_b32 v{S+31}, 0")
    def smf(q, b, kb):
        d = vr(S + 16 * b, 16)
        return [f"{MF} {d}, {vr(KV+16*kb,4)}, {vr(Q+8*q,4)}, 0", f"{MF} {d}, {vr(KV+16*kb+4,4)}, {vr(Q+8*q+4,4)}, {d}"]
    def pv(q, b, kb):
        d = vr(O + 16 * q, 16)
        return [f"{MF} {d}, {vr(KV+16*kb+8,4)}, {vr(P+8*b,4)}, {d}", f"{MF} {d}, {vr(KV+16*kb+12,4)}, {vr(P+8*b+4,4)}, {d}"]
    def pk(b, i): return f"v_cvt_pk_bf16_f32 v{P+8*b+i}, v{S+16*b+2*i}, v{S+16*b+2*i+1}"
    def owrite(i): return ['s_nop 0'] * 4 if OPT.nocomb else [f"ds_write_b128 v{vRW+i}, {vr(O+16*i+4*g,4)} offset:{1024*g}" for g in range(4)]
    a(f"s_mov_b32 s{sIt}, {OPT.attit-1}\ns_waitcnt vmcnt(8)")
    if OPT.ka: lds_wait(a, C_GO, 4, sleep=2)
    stamp(a, 12)
    if OPT.prio_ld: a(f"s_setprio {OPT.prio_a}")
    def body(lastit):
        for n in range(16):
            T, q, b = n // 4, n % 4, n % 2
            if lastit and n == 14: lds_wait(a, C_R1D, 4)
            va = []
            for i in range(8):
                r = S + 16 * b + 2 * i
                va += [f"v_exp_f32 v{r}, v{r}", f"v_exp_f32 v{r+1}, v{r+1}", pk(b, i - 1) if i else pk(1 - b, 7)]
            s = smf((q + 1) % 4, 1 - b, ((n + 1) // 4) % 4)
            p = pv((q - 1) % 4, 1 - b, ((n - 1) // 4) % 4)
            pos = [[3, 9, 15, 21], [3, 7, 15, 19], [3, 7, 12, 19], [3, 8, 15, 20], [3, 7, 16, 21], [2, 6, 15, 19]][OPT.order]
            ins = {pos[0]: [s[0]], pos[1]: [s[1]], pos[2]: [p[0]], pos[3]: [p[1]]}
            if lastit and n == 15: ins = {pos[0]: [p[0]], pos[1]: [p[1]]}
            if q == 3 and not (lastit and T == 3):
                ins[1] = [f"s_waitcnt vmcnt({7 if not lastit or T == 0 else 4 if T == 1 else 0})"]
            if not lastit or T == 0:
                buf = (T - 1) % 4
                ins[11] = [f"buffer_load_dwordx4 {vr(KV+16*buf+4*q,4)}, v{vL16}, {sr(R_KV,4)}, s{sK} offen offset:{1024*q} sc1"]
                if OPT.prio_ld:
                    ins[10] = [f"s_setprio {OPT.prio_ld}"]
                    ins[13] = [f"s_setprio {OPT.prio_a}"]
                if q == 3 and not OPT.hot & 16: ins[14] = [f"s_add_u32 s{sK}, s{sK}, 4096"]
            if n == 15 and not lastit:
                ins[17] = [f"s_sub_u32 s{sIt}, s{sIt}, 1"]
                ins[22] = [f"s_cmp_lg_u32 s{sIt}, 0"]
            if lastit and n == 14:
                for g, x in enumerate(owrite(0)): ins.setdefault([10, 13, 17, 22][g], []).append(x)
            if lastit and n == 15:
                for g, x in enumerate(owrite(1)): ins.setdefault([8, 10, 13, 16][g], []).append(x)
                for g, x in enumerate(owrite(2)[:2]): ins.setdefault([20, 22][g], []).append(x)
            for i, x in enumerate(va):
                for y in ins.get(i, []): a(y)
                a(x)
    if OPT.attit > 1:
        a(".p2align 6")
        a(f"{loop}:")
        body(False)
        a(f"s_cbranch_scc1 {loop}")
    body(True)
    if OPT.prio_ld: a(f"s_setprio {OPT.prio_ld}")
    a(pk(1, 7))
    for x in owrite(2)[2:]: a(x)
    for x in pv(3, 1, 3): a(x)
    stamp(a, 13)
    a(f"""
    v_add_f32 v17, v{O+12}, v{O+28}
    v_add_f32 v17, v17, v{O+44}
    s_nop 9
    v_add_f32 v17, v17, v{O+60}
    v_cmp_nlt_f32_e64 vcc, v17, s{sT4}
    s_and_b64 vcc, vcc, {sr(sHI,2)}
    s_cbranch_scc0 {ok}
    s_cmp_lg_u32 s{sRetry}, 0
    s_cbranch_scc1 {ok}
    s_mov_b32 s{sRetry}, 1
    s_waitcnt lgkmcnt(0)
    s_mov_b64 exec, {sr(sHI,2)}
    """)
    for i in range(4): a(f"v_mov_b32 v{Q+8*i+6}, 0\nv_mov_b32 v{Q+8*i+7}, 0")
    a(f"s_mov_b64 exec, -1\ns_lshl_b32 s{sK}, s{sW}, 16\ns_mov_b32 s{sIt}, 16")
    for r in range(64): a(f"v_mov_b32 v{O+r}, 0")
    for i in range(4): a(f"v_mov_b32 v{NM+i}, 0xff800000")
    a(f"""
    {mloop}:
    buffer_load_dwordx4 {vr(KV,4)}, v{vL16}, {sr(R_KV,4)}, s{sK} offen sc1
    buffer_load_dwordx4 {vr(KV+4,4)}, v{vL16}, {sr(R_KV,4)}, s{sK} offen offset:1024 sc1
    s_add_u32 s{sK}, s{sK}, 4096
    s_waitcnt vmcnt(0)
    """)
    scan_mf(KV)
    a("s_nop 11")
    for i in range(4):
        for j in range(8): a(f"v_max3_f32 v{NM+i}, v{TMP[i]+2*j}, v{TMP[i]+2*j+1}, v{NM+i}")
    a(f"""
    s_sub_u32 s{sIt}, s{sIt}, 1
    s_cmp_lg_u32 s{sIt}, 0
    s_cbranch_scc1 {mloop}
    """)
    first_kv(a)
    for i in range(4): a(f"v_mov_b32 v{S+i}, v{NM+i}")
    a("s_nop 1")
    for i in range(4): a(f"v_permlane32_swap_b32 v{S+i}, v{NM+i}")
    for i in range(4): a(f"v_max_f32 v{NM+i}, v{S+i}, v{NM+i}")
    a(f"s_mov_b64 exec, {sr(sHI,2)}")
    for i in range(4):
        a(f"""
        v_sub_f32 v{NM+i}, 0, v{NM+i}
        v_cvt_pk_bf16_f32 v17, v{NM+i}, 0
        v_lshlrev_b32 v18, 16, v17
        v_sub_f32 v18, v{NM+i}, v18
        v_cvt_pk_bf16_f32 v19, v18, 0
        v_lshl_or_b32 v{Q+8*i+6}, v19, 16, v17
        v_lshlrev_b32 v19, 16, v19
        v_sub_f32 v18, v18, v19
        v_cvt_pk_bf16_f32 v{Q+8*i+7}, v18, 0
        """)
    a(f"s_waitcnt vmcnt(11)\ns_branch {go}\n{ok}:")
    lds_arrive(a, C_ATT, nowait=True)
    if not OPT.nocomb: lds_wait(a, C_ATT, 4)
    stamp(a, 16)
    OW = O + 48
    if OPT.nocomb: a(f"v_mov_b32 v17, v{OW+12}\nv_mov_b32 v18, v{OW+12}\ns_nop 1\nv_permlane32_swap_b32 v17, v18\nv_rcp_f32 v18, v18\ns_branch nocomb")
    for i in range(4): a(f"ds_read_b32 v{NM+i}, v{vMR} offset:{128*i}")
    for i in range(3):
        for g in range(4):
            if i == 2 and g == 3: a("s_waitcnt lgkmcnt(11)")
            a(f"ds_read_b128 {vr(O+16*i+4*g,4)}, v{vRR} offset:{4096*i+1024*g}")
    a(f"""
    v_min3_f32 v17, v{NM}, v{NM+1}, v{NM+2}
    v_min_f32 v17, v17, v{NM+3}
    """)
    for i in (3, 0, 1, 2): a(f"v_sub_f32 v{NM+i}, v17, v{NM+i}")
    for i in (3, 0, 1, 2): a(f"v_exp_f32 v{NM+i}, v{NM+i}")
    for r in range(16): a(f"v_mul_f32 v{OW+r}, v{NM+3}, v{OW+r}")
    for i in range(3):
        a(f"s_waitcnt lgkmcnt({4*(2-i)})")
        R = [12] + [r for r in range(16) if r != 12] if i == 2 else range(16)
        for n, r in enumerate(R):
            a(f"v_fmac_f32 v{OW+r}, v{NM+i}, v{O+16*i+r}")
            if i == 2 and n == 0: a(f"v_mov_b32 v17, v{OW+12}\nv_mov_b32 v18, v{OW+12}")
            if i == 2 and n == 2: a("v_permlane32_swap_b32 v17, v18")
            if i == 2 and n == 3: a("v_rcp_f32 v18, v18")
    a("nocomb:")
    for h in range(2):
        for r in range(8 * h, 8 * h + 8): a(f"v_mul_f32 v{OW+r}, v18, v{OW+r}")
        for i in range(4 * h, 4 * h + 4): a(f"v_cvt_pk_bf16_f32 v{O+i}, v{OW+2*i}, v{OW+2*i+1}")
        if h: a(f"s_mov_b64 exec, {sr(sHI,2)}\nv_mov_b32 v{O+6}, 0\nv_mov_b32 v{O+7}, 0\ns_mov_b64 exec, -1")
        a(f"buffer_store_dwordx4 {vr(O+4*h,4)}, v{vL16}, {sr(R_WS,4)}, s{sOS} offen offset:{2048*h} sc1")
    stamp(a, 17)
    set_flag(a, sOF)
    a(f"s_branch {done}")

class VM:
    def __init__(self): self.q = []
    def issue(self, tag):
        if OPT.dropw and tag[0] == 'd' and tag[1] >= OPT.dropw: return
        self.q.append(tag)
    def wait(self, tags):
        idx = [i for i, t in enumerate(self.q) if t in tags]
        if not idx: return None
        n = len(self.q) - 1 - max(idx)
        assert n <= 63
        self.q = self.q[max(idx) + 1:]
        return n

ACC, AF, BF, DH, SG = 64, 32, 128, 8, 192
def reduce4(a, cnt, red, st0, st1, h0=None, h1=None, h2=None):
    base, stride, off = red
    stamp(a, st0)
    if h0: h0()
    for i in range(4):
        a(f"""
        s_xor_b32 s{sT0}, s{sG}, {i}
        s_mul_i32 s{sT1}, s{sT0}, {stride}
        s_add_u32 s{sT1}, s{sT1}, {base}
        v_add_u32 v{24+i}, s{sT1}, v{vL16}
        """)
    for i in range(1, 4):
        for g in range(4): a(f"ds_write_b128 v24, {vr(ACC+16*i+4*g,4)} offset:{off(4*(i-1)+g)}")
    lds_arrive(a, cnt, nowait=True)
    if h1: h1()
    lds_wait(a, cnt, 4)
    stamp(a, st1)
    for i in range(1, 4):
        for g in range(4): a(f"ds_read_b128 {vr(ACC+16*i+4*g,4)}, v{24+i} offset:{off(4*(i-1)+g)}")
    if h2: h2()
    for i in range(1, 4):
        a(f"s_waitcnt lgkmcnt({4*(3-i)})")
        for r in range(16): a(f"v_add_f32 v{ACC+r}, v{ACC+r}, v{ACC+16*i+r}")

def gpath(a, done):
    global DH, SG
    DH = OPT.dh; SG = BF + 8 * DH
    assert SG + 8 * max(OPT.nsg, OPT.nsg2) <= 240
    vm = VM()
    N1, N2, N3 = 32, 60, 68
    nsg = OPT.nsg
    staged = {OPT.pre0 + i: i for i in range(nsg)}
    nsg2 = OPT.nsg2
    staged.update({N1 + OPT.pre + i: i for i in range(nsg2)})
    def wsrc(k, h):
        if k < N1: return vDW1, R_W1, sD, 8 * 3584
        if k < N2: return vDW2, R_W2, sDb, 8 * 4096
        return vDWO, R_WO, sD2, (4 if ((k - N2) & 1 and h) else 8) * 896
    rot = OPT.ra or OPT.rb
    def wadv(k, h):
        v, R, sd, inc = wsrc(k, h)
        t = f"s_add_u32 s{sd}, s{sd}, {inc}"
        if (OPT.hot & 1 and k < N1) or (OPT.hot & 2 and k >= N1): t = "s_nop 0"
        if rot and N1 <= k < N2 and h and k & 1: t += f"\ns_cmp_eq_u32 s{sd}, s{sDbE}\ns_cselect_b32 s{sd}, s{sDb0}, s{sd}"
        return t
    def dma(k):
        out = []
        for h in range(2):
            v, R, sd, inc = wsrc(k, h)
            out.append((f"s_add_u32 m0, s{sRing}, {slotp(k)*8192 + h*1024}",
                        f"buffer_load_dwordx4 v{v}, {sr(R,4)}, s{sd} offen lds" if not (OPT.dropw and k >= OPT.dropw) else "s_nop 0", wadv(k, h)))
        return out
    state = {'nd': 0}
    def prefill(upto):
        while state['nd'] < upto:
            k = state['nd']; state['nd'] += 1
            if k in staged:
                for h in range(2):
                    v, R, sd, inc = wsrc(k, h)
                    a(f"buffer_load_dwordx4 {vr(SG+8*staged[k]+4*h,4)}, v{v}, {sr(R,4)}, s{sd} offen")
                    a(wadv(k, h)); vm.issue(('s', k))
            else:
                for m, l, adv in dma(k): a(m); a(adv.replace("s_add_u32", "s_nop 0 ;") if False else "s_nop 0"); a(l); a(adv); vm.issue(('d', k))
    def swrite(k):
        off = slotp(k) * 8192; v = vSW
        if off >= 65536: off -= 65536; v += 1
        return [f"ds_write_b128 v{v}, {vr(SG+8*staged[k]+4*h,4)} offset:{off+1024*h}" for h in range(2)]
    def breg(k): return SG + 8 * (k - N2) if (k >= N2 and OPT.odeep) else BF + 8 * (k % DH)
    def ld(k):
        r = breg(k)
        v, sl = (vLN, sL) if k < N1 else (vLM, sLb) if k < N2 else (vLN, sL2)
        off = 2048 * (k & 1)
        o = [f"buffer_load_dwordx4 {vr(r,4)}, v{v}, {sr(R_WS,4)}, s{sl} offen offset:{off} sc1",
             f"buffer_load_dwordx4 {vr(r+4,4)}, v{v+1}, {sr(R_WS,4)}, s{sl} offen offset:{off} sc1"]
        adv = f"s_add_u32 s{sl}, s{sl}, 4096"
        if (OPT.hot & 4 and k < N1) or (OPT.hot & 8 and k >= N1): adv = "s_nop 0"
        if rot and N1 <= k < N2: adv += f"\ns_cmp_eq_u32 s{sl}, s{sLbE}\ns_cselect_b32 s{sl}, s{sLb0}, s{sl}"
        return o, (adv if k & 1 else None)
    def ld_now(k):
        o, adv = ld(k)
        for x in o: a(x); vm.issue(('l', k))
        if adv: a(adv)
    def tr(k, r=None):
        b0, xo = (vT1, 512) if k < N1 else (vT2, 1024) if k < N2 else (vT3, 1024)
        r = r or AF + 8 * (k % 2); off = slotp(k) * 8192
        if off >= 65536: off -= 65536; b0 += vTH - vT1
        return [f"ds_read_b64_tr_b16 {vr(r,2)}, v{b0} offset:{off}", f"ds_read_b64_tr_b16 {vr(r+2,2)}, v{b0} offset:{off+xo}",
                f"ds_read_b64_tr_b16 {vr(r+4,2)}, v{b0+1} offset:{off}", f"ds_read_b64_tr_b16 {vr(r+6,2)}, v{b0+1} offset:{off+xo}"]
    state['nl'] = 0
    def b2load(): a(f"v_lshlrev_b32 v23, 1, v{vJ}\nbuffer_load_ushort v5, v23, {sr(R_B2,4)}, s{sB2} offen")
    def init2():
        a("v_lshlrev_b32 v5, 16, v5")
        for i in range(8): a(f"v_lshlrev_b32 v{ACC+2*i}, 16, v{6+i}\nv_and_b32 v{ACC+2*i+1}, 0xffff0000, v{6+i}")
        for r in range(16): a(f"v_add_f32 v{ACC+r}, v5, v{ACC+r}")
        a(f"v_min_u32 v26, 27, v{vLANE}\nv_lshlrev_b32 v26, {3+FS}, v26\nv_min_u32 v27, 7, v{vLANE}\nv_lshlrev_b32 v27, {3+FS}, v27")
    def free(kd, k):
        if kd >= OPT.ke and k < OPT.gatek and slotp(kd) < 8: return False
        prev = [j for j in range(kd) if slotp(j) == slotp(kd)]
        return not prev or prev[-1] <= k - 1
    def begin(lo, nld, pfi=None, after=None):
        state['nl'] = lo
        for k in range(lo, lo + nld):
            ld_now(k); state['nl'] += 1
            if pfi and k == lo + 1: a(pfi); vm.issue('pf')
        if after: after()
        n = vm.wait({('d', lo)})
        if n is not None: a(f"s_waitcnt vmcnt({n})")
        for x in tr(lo): a(x)
    def run(lo, hi, last, dlimit, llimit, first=None, hooks={}, tail=None):
        dh = OPT.dh
        for k in range(lo, hi):
            need = {('l', k)}
            if k + 1 < last: need.add(('d', k + 1))
            if tail and k + 1 == hi: need |= {('d', j) for j in tail}
            if k + 3 in staged: need.add(('s', k + 3))
            need |= hooks.get(('need', k), set())
            n = vm.wait(need)
            a(f"s_waitcnt vmcnt({n}) lgkmcnt(0)" if n is not None else "s_waitcnt lgkmcnt(0)")
            if k in hooks: hooks[k]()
            if OPT.fine and k % 4 == 0 and OPT.stamps == 1 and 0 <= k // 4 - OPT.fine0 < 15: stamp(a, 48 + k // 4 - OPT.fine0)
            l = AF + 8 * (k % 2); d = breg(k)
            lds_is_a = not (N1 <= k < N2)
            mf = []
            for i in range(4):
                mi, ni = i >> 1, i & 1
                A, B = (vr(l + 4 * mi, 4), vr(d + 4 * ni, 4)) if lds_is_a else (vr(d + 4 * mi, 4), vr(l + 4 * ni, 4))
                c = "0" if k == first and i else vr(ACC + 16 * i, 16)
                mf.append(f"{MF} {vr(ACC+16*i,16)}, {A}, {B}, {c}" if not OPT.nogm else "s_nop 0")
            t = tr(k + 1) if k + 1 < last else []
            t2 = []
            if tail and k + 1 == hi:
                assert state['nd'] > max(tail)
                tt = sum((tr(j, r) for j, r in tail.items()), []); t, t2 = tt[:8], tt[8:]
            sw = swrite(k + 3) if k + 3 in staged else []
            assert not sw or free(k + 3, k)
            kd = state['nd']; dm = []
            if kd < dlimit and kd <= k + (OPT.lw if k < N1 else OPT.lw2) and free(kd, k) and kd not in staged:
                assert kd >= k + 2
                dm = dma(kd); state['nd'] += 1
            lo_, adv = ([], None)
            kl = state['nl']
            if kl < llimit and (kl <= k + dh - 1 or (kl >= N2 and OPT.odeep)): lo_, adv = ld(kl); state['nl'] += 1
            a(mf[0])
            for x in t: a(x)
            if dm: a(dm[0][0])
            a(mf[1])
            if lo_: a(lo_[0]); vm.issue(('l', kl))
            if lo_: a(lo_[1]); vm.issue(('l', kl))
            if adv: a(adv)
            if dm: a(dm[0][1]); vm.issue(('d', kd)); a(dm[0][2]); a(dm[1][0])
            a(mf[2])
            if dm: a(dm[1][1]); vm.issue(('d', kd)); a(dm[1][2])
            for x in sw: a(x)
            if t2: a('s_waitcnt lgkmcnt(4)')
            for x in t2: a(x)
            a(mf[3])
            kd = state['nd']
            if kd < dlimit and kd <= k + (OPT.lw if k < N1 else OPT.lw2) and free(kd, k) and kd not in staged: prefill(kd + 1)
            kl = state['nl']
            if kl < llimit and (kl <= k + dh - 1 or (kl >= N2 and OPT.odeep)): ld_now(kl); state['nl'] += 1
    def tail_reduce(tail, cnt, red, st0, st1, h0=None, h1=None, h2=None):
        base, stride, off = red
        while state['nl'] <= max(tail): ld_now(state['nl']); state['nl'] += 1
        a(f"s_setprio {OPT.prio_t}")
        for i in range(4):
            a(f"""
            s_xor_b32 s{sT0}, s{sG}, {i}
            s_mul_i32 s{sT1}, s{sT0}, {stride}
            s_add_u32 s{sT1}, s{sT1}, {base}
            v_add_u32 v{24+i}, s{sT1}, v{vL16}
            """)
        def wr(i): return [f"ds_write_b128 v24, {vr(ACC+16*i+4*g,4)} offset:{off(4*(i-1)+g)}" for g in range(4)]
        prev = None
        for i in (1, 2, 3, 0):
            W = wr(prev) if prev else []
            for n, (k, l) in enumerate(tail.items()):
                if i == 1:
                    w = vm.wait({('l', k)})
                    x = (f"vmcnt({w}) " if w is not None else "") + ("lgkmcnt(0)" if n == 0 else "")
                    if x: a("s_waitcnt " + x)
                d = breg(k); mi, ni = i >> 1, i & 1
                A, B = (vr(l + 4 * mi, 4), vr(d + 4 * ni, 4)) if not (N1 <= k < N2) else (vr(d + 4 * mi, 4), vr(l + 4 * ni, 4))
                a(f"{MF} {vr(ACC+16*i,16)}, {A}, {B}, {vr(ACC+16*i,16)}")
                if W and n == 1: a("s_nop 9"); a(W[0]); a(W[1])
                if W and n == 2: a(W[2]); a(W[3])
                if i == 0 and n == 2: lds_arrive(a, cnt, nowait=True)
            if i == 1 and h0: h0()
            prev = i
        a(f"s_setprio {OPT.prio_e}")
        stamp(a, st0)
        if h1: h1()
        lds_wait(a, cnt, 4)
        stamp(a, st1)
        for i in range(1, 4):
            for g in range(4): a(f"ds_read_b128 {vr(ACC+16*i+4*g,4)}, v{24+i} offset:{off(4*(i-1)+g)}")
        if h2: h2()
        for i in range(1, 4):
            a(f"s_waitcnt lgkmcnt({4*(3-i)})")
            for r in range(16): a(f"v_add_f32 v{ACC+r}, v{ACC+r}, v{ACC+16*i+r}")
    def flagload(soff, n):
        vo = {32: 28, 28: 26, 8: 27}[n]
        if n == 32: a(f"v_min_u32 v28, {n-1}, v{vLANE}\nv_lshlrev_b32 v28, {3+FS}, v28")
        a(f"buffer_load_dwordx2 v[30:31], v{vo}, {sr(R_WS,4)}, s{soff} offen sc1"); vm.issue('fl')
    def flagcheck(okl, pr=0):
        a(f"s_setprio 3\nv_cmp_ne_u64 vcc, {sr(sTAG,2)}, v[30:31]\ns_setprio {pr}\ns_cbranch_vccz {okl}")
    def fill_poll(upA, upB, soff, n, mid=None):
        prefill(upA)
        flagload(soff, n)
        prefill(upB)
        if mid: mid()
        w = vm.wait({'fl'})
        a(f"s_waitcnt vmcnt({w})")
        okl = a.label("flok")
        flagcheck(okl)
        poll(a, soff, n)
        a(f"{okl}:")
    nog1 = a.label("nog1"); join = a.label("gjoin")
    g_xread(a)
    a(f"s_cmp_eq_u32 s{sHasG1}, 0\ns_cbranch_scc1 {nog1}")
    a(f"s_setprio {OPT.prio_g}")
    stamp(a, 8)
    if OPT.nodma: a(f"s_mov_b32 s{R_W1+2}, 0")
    a(f"v_lshlrev_b32 v23, 3, v{vHH}")
    for g in range(4): a(f"buffer_load_dwordx2 {vr(14+2*g,2)}, v23, {sr(R_B1,4)}, s{sB1o} offen offset:{16*g}")
    for g in range(4): vm.issue('b')
    prefill(OPT.a1)
    lds_arrive(a, C_PRE, nowait=True)
    stamp(a, 9)
    fill_poll(OPT.a1, OPT.b1, sFH, 32, lambda: (g_setup2(a), b2load(), vm.issue('b2')))
    stamp(a, 10)
    def init1():
        for i in range(8): a(f"v_lshlrev_b32 v{ACC+2*i}, 16, v{14+i}\nv_and_b32 v{ACC+2*i+1}, 0xffff0000, v{14+i}")
    def cpf(sid, val, saddr):
        sk = a.label("cpf")
        a(f"s_cmp_lg_u32 s{sid}, {val}\ns_cbranch_scc1 {sk}\nbuffer_load_dword v253, v{vPF}, {sr(R_WS,4)}, s{saddr} offen sc1\n{sk}:")
    def mkhooks(hl):
        d = {}
        for k, f in hl: d.setdefault(k, []).append(f)
        return {k: (lambda fs=fs: [f() for f in fs]) for k, fs in d.items()}
    a('s_setprio 3')
    begin(0, OPT.nl0, None, init1)
    a(f's_setprio {OPT.prio_g}')
    hl = [(0, lambda: stamp(a, 11)), (16, lambda: stamp(a, 12)), (OPT.gatek, lambda: (a('s_setprio 3'), lds_wait(a, C_Q, 4), a(f's_setprio {OPT.prio_g}')))]
    if OPT.ka: hl.append((OPT.ka, lambda: lds_arrive(a, C_GO, nowait=True)))
    if OPT.kp: hl.append((OPT.kp, lambda: a(f's_setprio {OPT.prio_g1b}')))
    for b in range(2, 8): hl.append((max(0, 4 * b - OPT.pfd), lambda b=b: cpf(sSH1, b, sPH)))
    for i, k in enumerate(range(OPT.b1, OPT.pre0 + nsg)): hl.append((i, lambda k=k: prefill(k + 1)))
    T1 = {N1 - 4 + i: SG + 8 * i for i in range(4)}
    assert OPT.e2 <= OPT.pre
    run(0, N1 - 4, N1, N1, N1, first=0, hooks=mkhooks(hl), tail=T1)
    tail_reduce(T1, C_R1, (L_RED, 12288, lambda i: 1024 * i), 13, 16,
            lambda: prefill(N1 + OPT.e0), lambda: prefill(N1 + OPT.e1), lambda: prefill(N1 + OPT.e2))
    lds_arrive(a, C_R1D, nowait=True)
    k = 2 * math.sqrt(2 / math.pi) * math.log2(math.e)
    a(f"s_mov_b32 s{sT0}, {f32(-k*0.044715)}\nv_mov_b32 v18, {f32(-k)}")
    T = ACC + 16
    for h in range(2):
        R = range(8 * h, 8 * h + 8)
        for r in R: a(f"v_mul_f32 v{T+r}, v{ACC+r}, v{ACC+r}")
        for r in R: a(f"v_fma_f32 v{T+r}, v{T+r}, s{sT0}, v18")
        for r in R: a(f"v_mul_f32 v{T+r}, v{T+r}, v{ACC+r}")
        for r in R: a(f"v_exp_f32 v{T+r}, v{T+r}")
        for r in R: a(f"v_add_f32 v{T+r}, 1.0, v{T+r}")
        for r in R: a(f"v_rcp_f32 v{T+r}, v{T+r}")
        for r in R: a(f"v_mul_f32 v{T+r}, v{T+r}, v{ACC+r}")
        for i in range(4 * h, 4 * h + 4): a(f"v_cvt_pk_bf16_f32 v{T+16+i}, v{T+2*i}, v{T+2*i+1}")
        a(f"buffer_store_dwordx4 {vr(T+16+4*h,4)}, v{vLN}, {sr(R_WS,4)}, s{sUS} offen offset:{2048*h} sc1")
    stamp(a, 17)
    init2()
    set_flag(a, sFU)
    stamp(a, 27)
    a(f"s_branch {join}\n{nog1}:")
    lds_arrive(a, C_R1D, nowait=True)
    lds_arrive(a, C_GO, nowait=True)
    lds_arrive(a, C_PRE, nowait=True)
    g_setup2(a)
    b2load()
    a("s_waitcnt vmcnt(0) lgkmcnt(0)")
    init2()
    a(f"""
    s_lshr_b32 s{sT0}, s{sJ}, 3
    s_lshl_b32 s{sT0}, s{sT0}, 1
    s_and_b32 s{sT1}, s{sCB}, 1
    s_add_u32 s{sT0}, s{sT0}, s{sT1}
    s_sub_u32 s{sT0}, s{sT0}, 1
    s_cmp_eq_u32 s{sJ}, 6
    s_cbranch_scc1 engdone
    s_mul_i32 s{sT1}, s{sG}, 28
    s_add_u32 s{sT1}, s{sT1}, s{sT0}
    s_lshl_b32 s{sT1}, s{sT1}, 16
    s_lshl_b32 s{sT2}, s{sXCD}, 9
    s_add_u32 s{sT1}, s{sT1}, s{sT2}
    s_lshl_b32 s{sT2}, s{sT0}, 2
    s_add_u32 s{sT2}, s{sT2}, s{sG}
    s_lshl_b32 s{sT2}, s{sT2}, 13
    s_add_u32 s{sPFW}, s{sPFW}, {OPT.npf0*56*3584}
    """)
    if OPT.engw: lds_wait(a, C_X, 4, sleep=1)
    for i in range(10 - OPT.npf0 if OPT.eng & 1 else 0):
        a(f"s_waitcnt vmcnt({OPT.engd})\nbuffer_load_dword v{249+i%2}, v{vPF1}, {sr(R_W1,4)}, s{sPFW} offen\ns_add_u32 s{sPFW}, s{sPFW}, {56*3584}")
    stamp(a, 28)
    for i in range(4 if OPT.eng & 2 else 0):
        a(f"s_waitcnt vmcnt({OPT.engd})\nbuffer_load_dword v{249+i%2}, v{vPF2}, {sr(R_W2,4)}, s{sT1} offen\ns_add_u32 s{sT1}, s{sT1}, {7*16*4096}")
    stamp(a, 29)
    a(f"""
    s_cmp_lg_u32 s{sCB}, 7
    s_cbranch_scc1 engdone
    s_lshr_b32 s{sT2}, s{sJ}, 3
    s_lshl_b32 s{sT2}, s{sT2}, 2
    s_add_u32 s{sT2}, s{sT2}, s{sG}
    s_lshl_b32 s{sT2}, s{sT2}, 13
    """)
    for i in range(4 if OPT.eng & 4 else 0):
        a(f"s_waitcnt vmcnt({OPT.engd})\nbuffer_load_dword v{249+i%2}, v{vPF}, {sr(R_WO,4)}, s{sT2} offen\ns_add_u32 s{sT2}, s{sT2}, {16*8192}")
    stamp(a, 30)
    a(f"s_branch epw\nengdone:\ns_waitcnt vmcnt(0)")
    lds_wait(a, C_Q, 4)
    state['nd'] = N1
    prefill(N1 + OPT.e2)
    a(f"{join}:")
    a(f"s_setprio {OPT.prio_b}")
    vm.q = [('d', k) for k in range(N1, N1 + OPT.e2) for h in range(2)]
    prefill(N1 + OPT.a2)
    stamp(a, 18)
    fill_poll(N1 + OPT.a2, N1 + OPT.b2, sFUc, 28)
    stamp(a, 19)
    begin(N1, OPT.nl0)
    a(f"s_setprio {OPT.prio_g2}\ns_lshr_b32 s{sSH1}, s{sJ}, 3")
    assert not OPT.odeep or (SG + 64 <= 240 and N1 + OPT.pre + nsg2 - 3 <= N2 - OPT.ock)
    KC = N2 - OPT.ock
    hl = [(N1, lambda: stamp(a, 20)), (N1 + 14, lambda: stamp(a, 21)), (KC - 3, lambda: flagload(sFOc, 8))]
    for b in range(3, 7): hl.append((N1 + max(0, 4 * b - OPT.pfd), lambda b=b: cpf(sSH1, b - 3, sPU)))
    for i, k in enumerate(range(N1 + OPT.b2, N1 + OPT.pre + nsg2)): hl.append((N1 + i, lambda k=k: prefill(k + 1)))
    run(N1, KC, N2, N3, N2, first=N1, hooks=mkhooks(hl))
    w = vm.wait({'fl'})
    if w is not None: a(f"s_waitcnt vmcnt({w})")
    ordy = a.label("ordy"); red2 = a.label("red2")
    flagcheck(ordy)
    sv = (list(vm.q), dict(state))
    run(KC, N2, N2, N3, N2)
    prefill(N3)
    stamp(a, 22)
    poll(a, sFOc, 8); vm.q = []
    stamp(a, 23)
    a(f"s_setprio {OPT.prio_e}")
    begin(N2, 8 if OPT.odeep else min(8, DH))
    assert OPT.odeep
    T3 = {N3 - 4 + i: BF + 8 * i for i in range(4)}
    run(N2, N3 - 4, N3, N3, N3, hooks={N2: lambda: stamp(a, 24)}, tail=T3)
    qn = list(vm.q)
    a(f"s_branch {red2}\n{ordy}:")
    vm.q = sv[0]; state.update(sv[1])
    run(KC, N3 - 4, N3, N3, N3, hooks={N2: lambda: stamp(a, 24)}, tail=T3)
    assert state['nl'] == N3
    assert all(t[0] == 'l' for t in qn + vm.q), (qn, vm.q)
    if len(qn) > len(vm.q): vm.q = qn
    a(f"{red2}:")
    tail_reduce(T3, C_R2, (L_RING, 2048, lambda i: (i >> 1) * 8192 + (i & 1) * 1024), 25, 26)
    for i in range(8): a(f"v_cvt_pk_bf16_f32 v{ACC+16+i}, v{ACC+2*i}, v{ACC+2*i+1}")
    a(f"""
    s_nop 1
    v_permlane32_swap_b32 v{ACC+16}, v{ACC+18}
    v_permlane32_swap_b32 v{ACC+17}, v{ACC+19}
    v_permlane32_swap_b32 v{ACC+20}, v{ACC+22}
    v_permlane32_swap_b32 v{ACC+21}, v{ACC+23}
    buffer_store_dwordx4 {vr(ACC+16,4)}, v{vOUT}, {sr(R_OUT,4)}, s{sOUT} offen
    buffer_store_dwordx4 {vr(ACC+20,4)}, v{vOUT}, {sr(R_OUT,4)}, s{sOUT} offen offset:32
    s_branch {done}
    epw:
    s_lshl_b32 s{sT0}, s{sG}, 8
    s_add_u32 s{sT0}, s{sT0}, s2
    s_cmp_lg_u32 s{sT0}, 56
    s_cbranch_scc1 {done}
    """)
    lds_wait(a, C_ATT, 4, sleep=8)
    for i in range(4):
        a(f"s_mov_b32 s{sT0}, {FL_O + (2048*i << FS)}")
        poll(a, sT0, 64, sh=5)
    a(f"s_mov_b32 s{sT0}, {WS_EPOCH}")
    set_flag(a, sT0)

def kend(a, e):
    a(f"{e}:")
    if OPT.stamps:
        stamp(a, 14); a("s_waitcnt vmcnt(0)"); stamp(a, 15)
        a(f"""
        s_lshl_b32 s100, s2, 3
        s_add_u32 s100, s100, s{sW}
        s_lshl_b32 s100, s100, 8
        s_add_u32 s100, s100, {WS_STAMP}
        v_lshlrev_b32 v254, 2, v{vLANE}
        buffer_store_dword v255, v254, {sr(R_WS,4)}, s100 offen
        """)
    if OPT.amp >= 0:
        if OPT.amp == 14: stamp(a, 14)
        a(f"""
        s_cmp_ge_u32 s{sW}, 4
        s_cbranch_scc{0 if OPT.ampg else 1} {e}x
        s_nop 4
        v_readlane_b32 s16, v255, 0
        v_readlane_b32 s17, v255, 1
        s_nop 4
        s_cmp_eq_u32 s17, 0
        s_cbranch_scc1 {e}x
        s_sub_u32 s18, s17, s16
        s_min_u32 s18, s18, 4000
        s_mul_i32 s18, s18, 5
        s_add_u32 s18, s18, 4000
        ampl:
        s_memrealtime s[20:21]
        s_waitcnt lgkmcnt(0)
        s_sub_u32 s20, s20, s16
        s_cmp_lt_u32 s20, s18
        s_cbranch_scc1 ampl
        """)
    if OPT.double:
        a(f"""
        s_waitcnt vmcnt(0)
        s_memrealtime s[16:17]
        s_waitcnt lgkmcnt(0)
        s_sub_u32 s18, s16, s100
        s_min_u32 s18, s18, 20000
        dbl:
        s_memrealtime s[20:21]
        s_waitcnt lgkmcnt(0)
        s_sub_u32 s20, s20, s16
        s_cmp_lt_u32 s20, s18
        s_cbranch_scc1 dbl
        """)
    a(f"{e}x:\ns_endpgm\ncode_end:")

DOC = '''; ---------------------------------------------------------------------------------------------
; Hand-offs between workgroups (h, K/V, u, o) go through d_ws with sc1 stores, a drained per-wave flag
; and sc1 loads.  Flags carry a 64-bit tag derived from an epoch word in d_ws that every launch advances.
; Softmax: each wave shifts by a score maximum of its first key tile; the row sums are range-checked and
; ---------------------------------------------------------------------------------------------
'''
def build():
    a = Asm()
    n = NAME + "_kernel"
    a('.amdgcn_target "amdgcn-amd-amdhsa--gfx950"\n.text')
    a(f".globl {n}\n.p2align 8\n.type {n},@function\n{n}:")
    e = "fin"
    prologue(a, e)
    p1_a(a); attention(a, e)
    a("p1g:"); p1_g(a); gpath(a, e)
    kend(a, e)
    if OPT.nogv:
        i0 = a.L.index("p1g:")
        i1 = [i for i, l in enumerate(a.L) if l.startswith("gpfw")][0]
        a.L = [("s_nop 0" if (i > i1 and l.startswith("buffer_load_dwordx4")) else l) for i, l in enumerate(a.L)]
    check(a.L)
    head = open(f"refhead.txt").read().split("; Override")[0]
    ll = f"; @launch grid=(256,1,1) block=(512,1,1) lds={LDS_TOTAL}\n"
    desc = f""".section .rodata,"a"
.p2align 6
.amdhsa_kernel {n}
  .amdhsa_next_free_vgpr 256
  .amdhsa_next_free_sgpr 102
  .amdhsa_accum_offset 256
  .amdhsa_group_segment_fixed_size 0
  .amdhsa_kernarg_size 104
  .amdhsa_user_sgpr_count 2
  .amdhsa_user_sgpr_kernarg_segment_ptr 1
  .amdhsa_system_sgpr_workgroup_id_x 1
  .amdhsa_float_denorm_mode_32 3
.end_amdhsa_kernel
"""
    return head + DOC + ll + a.text() + desc

if __name__ == "__main__":
    args = []
    for x in sys.argv[1:]:
        if x.startswith("--"):
            k, _, v = x[2:].partition("=")
            if k == "FS": FS = int(v)
            else: setattr(OPT, k, int(v) if v else True)
        else: args.append(x)
    assert all((t * 37) >> 8 == t // 7 for t in range(56))
    open(args[0] if args else f"cdna_kernels/{NAME}.s", "w").write(build())
```

```python
import sys, math, struct
sys.path.insert(0, "dev")
from asmlib import Asm, vr, sr, check

NAME = "parallel_sum__grouped_kv_mqa__mixer_token_mlp__prompt"
WS_HT = 0
WS_KV = 2 << 20
WS_U  = 5 << 20
WS_O  = 7 << 20
WS_FLG = 10 << 20
FL_H  = WS_FLG
FS = 3
FL_KV = WS_FLG + (8192 << 4)
FL_U  = WS_FLG + (12288 << 4)
FL_O  = WS_FLG + (20480 << 4)
WS_EPOCH = WS_FLG + (32768 << 4)
WS_STAMP = 12 << 20
WS_SIZE = 16 << 20
DBLK = 64
class O: pass
OPT = O(); OPT.stamps = False; OPT.double = False; OPT.prio_g = 0; OPT.prio_e = 3; OPT.prio_a = 0; OPT.pf2step = 6; OPT.pre = 13; OPT.lw = 6; OPT.lw2 = 11; OPT.odeep = 1; OPT.fine = 0; OPT.prio_b = 0; OPT.kp = 0; OPT.adel = 0; OPT.gdel = 0; OPT.odel = 0; OPT.tdeep = 1; OPT.kt = 0; OPT.hot = 0; OPT.pdefer = 0; OPT.lsleep = 1; OPT.psleep = 0; OPT.npfa = 9; OPT.prio_t = 3; OPT.ka = 0; OPT.amp = -1; OPT.ampg = 0; OPT.prio_g1b = 0; OPT.fine0 = 2; OPT.dh = 5; OPT.pre0 = 4; OPT.nsg = 6; OPT.nsg2 = 11; OPT.e0 = 4; OPT.e1 = 8; OPT.e2 = 11; OPT.pf1pos = 3; OPT.order = 1; OPT.nogm = 0; OPT.nogv = 0; OPT.a1 = 10; OPT.b1 = 10; OPT.nl0 = 4; OPT.pfd = -100; OPT.kvpf = 1; OPT.a2 = 24; OPT.b2 = 24; OPT.ock = 2; OPT.early = 0; OPT.npf0 = 2; OPT.prio_g2 = 0; OPT.twice = 0; OPT.codepf = 1; OPT.prio_ld = 0; OPT.gatek = 8; OPT.ke = 12; OPT.fl_late = 0; OPT.rdin = 2; OPT.pre1 = 0; OPT.engd = 0; OPT.eng = 7; OPT.engw = 1; OPT.ra = 0; OPT.rb = 4; OPT.nou = 0; OPT.now2 = 0; OPT.dropw = 0; OPT.nocomb = 0; OPT.kvflag = 8; OPT.attit = 4; OPT.nold = 0; OPT.nodma = 0; OPT.nokv = 0
L_XT = 0; L_WQ = 57344; L_WKV = 114688
HB_STRIDE = 912
L_HB = 141056; L_QS = 147456; L_KC = 155648; L_KS = L_KC + 1024; L_MX = L_KC
L_ST = 158720; L_RT = 159232; L_CNT = 159360; LDS_TOTAL = 159744
RING = 12; L_RING = 49152; L_RED = 0
def slotp(k): return 8 + k % 4 if k < OPT.ke else (k - OPT.ke) % RING if k < 32 else (k - 32) % OPT.pre
C_X, C_KV, C_H, C_ST, C_Q, C_ISS, C_R1, C_R1D, C_ATT, C_R2, C_X1, C_XA, C_FL, C_PRE, C_KS, C_GO, C_QR = range(17)
sXCD, sJ, sRB, sCB, sW = 3, 4, 5, 6, 7
sT0, sT1, sT2, sT3, sT4, sT5 = 8, 9, 10, 11, 12, 13
sHI = 14
P_X, P_WQ, P_WK, P_WV, P_WO, P_BX, P_W1, P_B1, P_W2, P_B2, P_OUT, P_DBG, P_WS = 16, 18, 20, 22, 24, 26, 28, 30, 32, 34, 36, 38, 40
sTAG = 42
R_X, R_WQ, R_WKV, R_WS, R_W1, R_W2, R_WO, R_OUT, R_KV = 44, 48, 52, 56, 60, 64, 68, 72, 76
R_B1, R_B2 = R_WKV, 20
sONES, sSPIN, sPFW = 82, 83, 99
sG, sGM, sGN, sRing, sA, sD, sL, sFB, sDb, sD2, sLb, sL2, sOUT, sB2 = range(84, 98)
sU0, sU1, sU2, sU3, sU4, sU5 = range(84, 90)
OOB = 0x40000000
EPS = 0x3727c5ac
QSCALE = (28 ** -0.5) * math.log2(math.e)
def f32(x): return "0x%08x" % struct.unpack("<I", struct.pack("<f", x))[0]
vLANE, vJ, vHH, vL16 = 1, 2, 3, 4
MF = "v_mfma_f32_32x32x16_bf16"

def stamp(a, idx):
    if OPT.amp >= 0:
        if idx == 0: a("v_mov_b32 v255, 0\ns_memrealtime s[100:101]\ns_waitcnt lgkmcnt(0)\nv_writelane_b32 v255, s100, 0")
        elif idx == OPT.amp: a("s_memrealtime s[100:101]\ns_waitcnt lgkmcnt(0)\nv_writelane_b32 v255, s100, 1")
        return
    if not OPT.stamps: return
    if OPT.stamps == 2 and idx not in (0, 15): return
    a(f"s_memrealtime s[100:101]\ns_waitcnt lgkmcnt(0)\nv_writelane_b32 v255, s100, {idx}")
    if idx in (0, 15): a(f"s_memtime s[100:101]\ns_waitcnt lgkmcnt(0)\nv_writelane_b32 v255, s100, {idx+32}")

def srd(a, r, p, size):
    a(f"s_mov_b32 s{r}, s{p}\ns_mov_b32 s{r+1}, s{p+1}\ns_mov_b32 s{r+2}, {size}\ns_mov_b32 s{r+3}, 0x20000")

def get_tag(a):
    a(f"""
    s_waitcnt lgkmcnt(0)
    s_mul_i32 s{sTAG}, s{sTAG}, 0x9e3779b5
    s_mul_i32 s{sTAG+1}, s{sTAG+1}, 0x85ebca6d
    s_add_u32 s{sTAG}, s{sTAG}, 0x7f4a7c15
    s_add_u32 s{sTAG+1}, s{sTAG+1}, 0x165667b1
    """)

def set_flag(a, soff, vt=30):
    a(f"""
    v_mov_b32 v{vt}, s{sTAG}
    v_mov_b32 v{vt+1}, s{sTAG+1}
    s_waitcnt vmcnt(0)
    s_mov_b64 exec, 1
    buffer_store_dwordx2 {vr(vt,2)}, off, {sr(R_WS,4)}, s{soff} sc1
    s_mov_b64 exec, -1
    """)

def poll(a, soff, n, vo=28, vt=30, sh=3):
    lp = a.label("poll"); dn = a.label("polld")
    a(f"""
    s_setprio 3
    v_min_u32 v{vo}, {n-1}, v{vLANE}
    v_lshlrev_b32 v{vo}, {sh+FS}, v{vo}
    s_mov_b32 s{sSPIN}, 20000
    {lp}:
    buffer_load_dwordx2 {vr(vt,2)}, v{vo}, {sr(R_WS,4)}, s{soff} offen sc1
    s_waitcnt vmcnt(0)
    v_cmp_ne_u64 vcc, {sr(sTAG,2)}, {vr(vt,2)}
    s_cbranch_vccz {dn}
    {f's_sleep {OPT.psleep}' if OPT.psleep else ''}
    s_sub_u32 s{sSPIN}, s{sSPIN}, 1
    s_cmp_lg_u32 s{sSPIN}, 0
    s_cbranch_scc1 {lp}
    {dn}:
    s_setprio 0
    """)

def lds_arrive(a, cnt, nowait=False):
    a(f"""
    s_mov_b64 exec, 1
    {'' if nowait else 's_waitcnt lgkmcnt(0)'}
    ds_add_u32 v0, v29 offset:{4*cnt}
    s_mov_b64 exec, -1
    """)
def lds_wait(a, cnt, target, sleep=0):
    spin = a.label("spin"); ent = a.label("spe")
    sleep = sleep or OPT.lsleep
    if sleep: a(f"s_branch {ent}\n{spin}:\ns_sleep {sleep}\n{ent}:")
    else: a(f"{spin}:")
    a(f"""
    ds_read_b32 v28, v0 offset:{4*cnt}
    s_waitcnt lgkmcnt(0)
    v_readfirstlane_b32 s{sT5}, v28
    s_cmp_lt_u32 s{sT5}, {target}
    s_cbranch_scc1 {spin}
    """)

def bf16_stats(a, vs, vq, vm, vr_, t):
    a(f"""
    v_mul_f32 v{vs}, {f32(1/448)}, v{vs}
    v_mul_f32 v{vq}, {f32(1/448)}, v{vq}
    v_fma_f32 v{vq}, -v{vs}, v{vs}, v{vq}
    v_max_f32 v{vq}, 0, v{vq}
    v_cvt_pk_bf16_f32 v{t}, v{vs}, v{vq}
    v_lshlrev_b32 v{vm}, 16, v{t}
    v_and_b32 v{t}, 0xffff0000, v{t}
    v_add_f32 v{t}, {EPS:#x}, v{t}
    v_cvt_pk_bf16_f32 v{t}, v{t}, v{t}
    v_and_b32 v{t}, 0xffff0000, v{t}
    v_sqrt_f32 v{t}, v{t}
    s_nop 0
    v_cvt_pk_bf16_f32 v{t}, v{t}, v{t}
    v_and_b32 v{t}, 0xffff0000, v{t}
    v_rcp_f32 v{vr_}, v{t}
    s_nop 0
    """)

def dpp_reduce(a, vs, vq, modes):
    a("s_nop 2")
    for mode in modes:
        a(f"v_add_f32_dpp v{vs}, v{vs}, v{vs} {mode} row_mask:0xf bank_mask:0xf")
        a(f"v_add_f32_dpp v{vq}, v{vq}, v{vq} {mode} row_mask:0xf bank_mask:0xf")
        a("s_nop 0")
QP1, QP2, RHM, RM = "quad_perm:[1,0,3,2]", "quad_perm:[2,3,0,1]", "row_half_mirror", "row_mirror"

def split_hi_lo(a, dst, src, t):
    a(f"""
    v_cvt_pk_bf16_f32 v{t}, v{src}, v{src}
    v_and_b32 v{t}, 0xffff0000, v{t}
    v_sub_f32 v{t}, v{src}, v{t}
    v_cvt_pk_bf16_f32 v{dst}, v{src}, v{t}
    """)

def prologue(a, end):
    a(f"s_cmp_ge_u32 s2, 256\ns_cbranch_scc1 {end}x")
    if OPT.double: a("s_memrealtime s[100:101]")
    if OPT.stamps: a("v_mov_b32 v255, 0")
    stamp(a, 0)
    a(f"""
    s_load_dwordx16 s[16:31], s[0:1], 0
    s_load_dwordx8 s[32:39], s[0:1], 64
    s_load_dwordx2 s[40:41], s[0:1], 96
    v_lshrrev_b32 v5, 6, v0
    v_and_b32 v{vLANE}, 63, v0
    v_readfirstlane_b32 s{sW}, v5
    v_and_b32 v{vJ}, 31, v0
    v_lshrrev_b32 v{vHH}, 5, v{vLANE}
    v_lshlrev_b32 v{vL16}, 4, v{vLANE}
    s_and_b32 s{sXCD}, s2, 7
    s_lshr_b32 s{sJ}, s2, 3
    """)
    if OPT.codepf:
        a(f"""
        s_cmp_lg_u32 s{sW}, 7
        s_cbranch_scc1 nocpf
        s_getpc_b64 s[{R_OUT}:{R_OUT+1}]
        cpf_here:
        s_sub_u32 s{R_OUT}, s{R_OUT}, cpf_here-{NAME}_kernel
        s_subb_u32 s{R_OUT+1}, s{R_OUT+1}, 0
        s_mov_b32 s{R_OUT+2}, code_end-{NAME}_kernel
        s_mov_b32 s{R_OUT+3}, 0x20000
        s_lshl_b32 s{sT0}, s{sJ}, 7
        v_lshlrev_b32 v6, 12, v{vLANE}
        buffer_load_dword v250, v6, {sr(R_OUT,4)}, s{sT0} offen
        nocpf:
        """)
    a(f"""
    s_lshr_b32 s{sT0}, s{sJ}, 3
    s_lshl_b32 s{sRB}, s{sXCD}, 2
    s_add_u32 s{sRB}, s{sRB}, s{sT0}
    s_and_b32 s{sCB}, s{sJ}, 7
    s_mov_b32 s{sHI}, 0
    s_mov_b32 s{sHI+1}, -1
    s_mov_b32 s{sONES}, 0x3f803f80
    v_lshlrev_b32 v5, 2, v{vLANE}
    v_add_u32 v5, {L_CNT}, v5
    v_mov_b32 v6, 0
    ds_write_b32 v5, v6
    v_mov_b32 v0, {L_CNT}
    v_mov_b32 v29, 1
    v_lshrrev_b32 v5, 3, v{vLANE}
    v_and_b32 v6, 7, v{vLANE}
    v_lshrrev_b32 v7, 4, v{vLANE}
    v_bfe_u32 v8, v{vLANE}, 2, 2
    v_and_b32 v9, 3, v{vLANE}
    v_and_b32 v10, 1, v7
    v_lshlrev_b32 v9, 3, v9
    v_lshl_add_u32 v9, v10, 5, v9
    """)
    p1_addr(a)
    a(f"s_cmp_ge_u32 s{sW}, 4\ns_cbranch_scc1 p1g")

def common_srds(a):
    a(f"s_mov_b32 s{sT5}, {WS_EPOCH}\ns_waitcnt lgkmcnt(0)")
    stamp(a, 1)
    a(f"s_load_dwordx2 {sr(sTAG,2)}, {sr(P_WS,2)}, s{sT5}")
    srd(a, R_X, P_X, 2048 * 896)
    srd(a, R_WS, P_WS, WS_SIZE)

def epoch_load(a): pass

vXe, vXo, vWQd = 11, 12, 13
sNL, sXs, sXm, sNT, sW3 = 76, 77, 78, 79, 80
sXs2, sXm2, sQs, sQm = 26, 27, 38, 39
def p1_addr(a):
    a(f"""
    v_mul_u32_u24 v20, 896, v5
    v_xor_b32 v21, v6, v7
    v_lshl_add_u32 v{vXe}, v21, 4, v20
    v_xor_b32 v21, 4, v21
    v_lshl_add_u32 v{vXo}, v21, 4, v20
    v_lshlrev_b32 v21, 2, v10
    v_xor_b32 v21, v21, v6
    v_lshl_add_u32 v{vWQd}, v21, 4, v20
    s_and_b32 s{sW3}, s{sW}, 3
    s_cmp_eq_u32 s{sW3}, 3
    s_cselect_b32 s{sNL}, 1, 2
    s_bfe_u32 s{sNT}, s{sCB}, 0x10001
    s_lshl_b32 s{sT0}, s{sRB}, 1
    s_add_u32 s{sT0}, s{sT0}, s{sNT}
    s_mul_i32 s{sXs}, s{sT0}, {32*896}
    s_lshl_b32 s{sT0}, s{sW3}, 8
    s_add_u32 s{sXs}, s{sXs}, s{sT0}
    s_lshl_b32 s{sXm}, s{sW3}, 14
    s_lshl_b32 s{sT0}, s{sNT}, 12
    s_add_u32 s{sXm}, s{sXm}, s{sT0}
    """)
def rest_dma(a, after_x=None):
    srd(a, R_WQ, P_WQ, 448 * 896)
    a(f"""
    s_xor_b32 s{sXm2}, s{sXm}, 4096
    s_mul_i32 s{sT0}, s{sNT}, {2*32*896}
    s_add_u32 s{sXs2}, s{sXs}, {32*896}
    s_sub_u32 s{sXs2}, s{sXs2}, s{sT0}
    s_mul_i32 s{sQs}, s{sW3}, {128*896}
    s_mul_i32 s{sT0}, s{sCB}, 112
    s_add_u32 s{sQs}, s{sQs}, s{sT0}
    s_lshl_b32 s{sQm}, s{sW3}, 14
    """)
    if after_x: after_x()
    PF1 = f"buffer_load_dword v249, v{vPF1}, {sr(R_W1,4)}, s{sPFW} offen"
    if OPT.pf1pos == 0: a(PF1)
    l1 = a.label("rd1"); l2 = a.label("rd2")
    for line in range(2):
        if line: a(f"s_cmp_eq_u32 s{sNL}, 1\ns_cbranch_scc1 {l1}")
        for b in range(4):
            a(f"""
            s_add_u32 m0, s{sXm2}, {L_XT + line*8192 + b*1024}
            s_add_u32 s{sT0}, s{sXs2}, {b*8*896 + line*128}
            buffer_load_dwordx4 v{vXo if b & 1 else vXe}, {sr(R_X,4)}, s{sT0} offen lds
            """)
    a(f"{l1}:")
    if OPT.pf1pos == 1: a(PF1)
    for line in range(2):
        if line:
            a(f"s_waitcnt vmcnt({9 if OPT.pf1pos == 1 else 8})")
            lds_arrive(a, C_XA, nowait=True)
            a(f"s_cmp_eq_u32 s{sNL}, 1\ns_cbranch_scc1 {l2}")
        for b in range(8):
            a(f"""
            s_add_u32 m0, s{sQm}, {L_WQ + line*8192 + b*1024}
            s_add_u32 s{sT0}, s{sQs}, {(line*64 + b*8)*896}
            buffer_load_dwordx4 v{vWQd}, {sr(R_WQ,4)}, s{sT0} offen lds
            """)
    a(f"{l2}:")

vPF1 = 246
def pf1_addr(a):
    a(f"""
    v_min_u32 v14, 6, v6
    v_mul_u32_u24 v{vPF1}, 3584, v5
    v_lshl_add_u32 v{vPF1}, v14, 7, v{vPF1}
    s_lshl_b32 s{sT1}, s{sW3}, 6
    s_lshr_b32 s{sT2}, s{sJ}, 3
    s_lshl_b32 s{sT2}, s{sT2}, 1
    s_add_u32 s{sT1}, s{sT1}, s{sT2}
    s_and_b32 s{sT2}, s{sCB}, 1
    s_add_u32 s{sT1}, s{sT1}, s{sT2}
    s_sub_u32 s{sT1}, s{sT1}, 1
    s_mul_i32 s{sPFW}, s{sT1}, {8*3584}
    s_lshr_b32 s{sT2}, s{sXCD}, 1
    s_mul_i32 s{sT2}, s{sT2}, 896
    s_add_u32 s{sPFW}, s{sPFW}, s{sT2}
    """)
    srd(a, R_W1, P_W1, 2048 * 3584)

def stats_code(a, st0, st1, sRBk, SX=128, T=40):
    a(f"""
    v_lshrrev_b32 v{T}, 2, v{vLANE}
    v_and_b32 v{T+1}, 3, v{vLANE}
    v_lshlrev_b32 v{T+1}, 5, v{T+1}
    v_lshl_add_u32 v{T+1}, v{T}, 7, v{T+1}
    v_lshlrev_b32 v{T+2}, 1, v{vLANE}
    v_and_b32 v{T+2}, 16, v{T+2}
    v_add_u32 v{T+1}, v{T+1}, v{T+2}
    s_lshl_b32 s{sT0}, s{sRBk}, 11
    v_add_u32 v{T+1}, s{sT0}, v{T+1}
    v_xor_b32 v{T+3}, 16, v{T+1}
    s_lshl_b32 s{sT0}, s{sRBk}, 7
    s_add_u32 s{sT0}, s{sT0}, {L_ST}
    v_lshl_add_u32 v{T}, v{T}, 3, s{sT0}
    v_mov_b32 v{T+4}, 0
    v_mov_b32 v{T+5}, 0
    """)
    lds_wait(a, C_X1, 4)
    lds_wait(a, C_XA, 4)
    stamp(a, st0)
    for c in range(7):
        a(f"ds_read_b128 {vr(SX+8*c,4)}, v{T+1} offset:{L_XT + c*8192}")
        a(f"ds_read_b128 {vr(SX+8*c+4,4)}, v{T+3} offset:{L_XT + c*8192}")
    for c in range(7):
        a(f"s_waitcnt lgkmcnt({2*(6-c)})")
        for i in range(8):
            a(f"v_dot2c_f32_bf16 v{T+4}, s{sONES}, v{SX+8*c+i}")
            a(f"v_dot2c_f32_bf16 v{T+5}, v{SX+8*c+i}, v{SX+8*c+i}")
    dpp_reduce(a, T + 4, T + 5, [QP1, QP2])
    bf16_stats(a, T + 4, T + 5, T + 3, T + 7, T + 2)
    a(f"""
    v_cvt_pk_bf16_f32 v{T+6}, -v{T+3}, -v{T+3}
    v_mul_f32 v{T+7}, {f32(QSCALE)}, v{T+7}
    ds_write_b64 v{T}, {vr(T+6,2)}
    """)
    lds_arrive(a, C_ST, nowait=True)
    stamp(a, st1)

def p1_a(a):
    vXF, vWK, vWQr = 14, 18, 19
    sB, sM = 94, 96
    a(f"""
    s_and_b32 s{sT1}, s{sCB}, 1
    s_lshl_b32 s{sT2}, s{sT1}, 11
    s_xor_b32 s{sM}, s{sXm}, s{sT2}
    s_lshr_b32 s{sT3}, s{sJ}, 3
    s_lshl_b32 s{sT3}, s{sT3}, 1
    s_add_u32 s{sT3}, s{sT3}, s{sT1}
    s_mul_i32 s{sT1}, s{sT1}, {16*896}
    s_add_u32 s{sB}, s{sXs}, s{sT1}
    s_add_u32 s{sT2}, s{sXs}, {16*896}
    s_sub_u32 s{sB+1}, s{sT2}, s{sT1}
    v_lshlrev_b32 v21, 7, v{vLANE}
    s_mov_b32 s{sT4}, 0
    """)
    common_srds(a)
    def x_half(h):
        sk = a.label("xh")
        for line in range(2):
            if line: a(f"s_cmp_eq_u32 s{sNL}, 1\ns_cbranch_scc1 {sk}")
            for b in range(2):
                a(f"""
                s_xor_b32 m0, s{sM}, {line*8192 + h*2048 + b*1024}
                s_add_u32 s{sT0}, s{sB+h}, {b*8*896 + line*128}
                buffer_load_dwordx4 v{vXo if b else vXe}, {sr(R_X,4)}, s{sT0} offen lds
                """)
        a(f"{sk}:")
    def frag_addr():
        a(f"""
        v_lshrrev_b32 v20, 1, v{vJ}
        v_and_b32 v20, 7, v20
        v_xor_b32 v20, v20, v{vHH}
        v_lshlrev_b32 v20, 4, v20
        v_lshl_add_u32 v{vXF}, v{vJ}, 7, v20
        v_xor_b32 v{vXF+1}, 32, v{vXF}
        v_xor_b32 v{vXF+2}, 64, v{vXF}
        v_xor_b32 v{vXF+3}, 96, v{vXF}
        v_lshl_add_u32 v20, v{vHH}, 3, v8
        """)
    nop_ = a.label("notp"); other = a.label("notkv"); htype = a.label("htype"); qgo = a.label("qgo"); dostats = a.label("dostats"); poststats = a.label("poststats")
    x_half(0)
    a(f"s_cmp_ge_u32 s{sCB}, 4\ns_cbranch_scc1 {other}")
    x_half(1)
    a(f"""
    s_bitcmp1_b32 s{sCB}, 0
    s_cselect_b32 s{R_WKV}, s{P_WV}, s{P_WK}
    s_cselect_b32 s{R_WKV+1}, s{P_WV+1}, s{P_WK+1}
    s_mov_b32 s{R_WKV+2}, {448*56}
    s_mov_b32 s{R_WKV+3}, 0x20000
    s_mul_i32 s{sT1}, s{sW}, 7168
    s_add_u32 m0, s{sT1}, {L_WKV}
    s_cmp_eq_u32 s{sNL}, 1
    """)
    w3 = a.label("wk3")
    for i in range(4): a(f"buffer_load_dwordx4 v{vL16}, {sr(R_WKV,4)}, s{sT1} offen offset:{1024*i} lds")
    a(f"""
    s_cbranch_scc1 {w3}
    s_add_u32 m0, m0, 4096
    s_add_u32 s{sT1}, s{sT1}, 4096
    """)
    for i in range(3): a(f"buffer_load_dwordx4 v{vL16}, {sr(R_WKV,4)}, s{sT1} offen offset:{1024*i} lds")
    a(f"{w3}:")
    epoch_load(a)
    a("s_barrier")
    frag_addr()
    ACC, XF, WF = 96, 32, 64
    vQ, vS, vC = 22, 23, 21
    a(f"""
    v_mul_u32_u24 v{vWK}, 56, v20
    v_add_u32 v{vWK}, v{vWK}, v9
    s_mul_i32 s{sT1}, s{sW}, 7168
    s_add_u32 s{sT1}, s{sT1}, {L_WKV}
    v_add_u32 v{vWK}, s{sT1}, v{vWK}
    v_add_u32 v24, s{sXm}, v{vXF}
    v_xor_b32 v25, 32, v24
    v_xor_b32 v30, 64, v24
    v_xor_b32 v31, 96, v24
    v_mov_b32 v{vS}, 0
    v_mov_b32 v{vQ}, 0
    v_mov_b32 v{vC}, 0
    s_lshl_b32 s{sT0}, s{sW}, 4
    s_add_u32 s{sT0}, s{sT0}, {L_KS}
    v_lshlrev_b32 v120, 6, v{vJ}
    v_lshl_add_u32 v121, v{vHH}, 3, v120
    v_add_u32 v121, s{sT0}, v121
    s_lshl_b32 s{sT0}, s{sW}, 2
    s_add_u32 s{sT0}, s{sT0}, {L_KC}
    v_add_u32 v122, s{sT0}, v{vL16}
    v_add_u32 v123, s{sT1}, v{vL16}
    """)
    xa = [24, 25, 30, 31]
    l0 = a.label("kv0"); l1 = a.label("kv1a"); l2 = a.label("kv1b"); l3 = a.label("kv1c"); vlab = a.label("kvv"); fin = a.label("kvfin")
    def skip1(lab): a(f"s_cmp_eq_u32 s{sNL}, 1\ns_cbranch_scc1 {lab}")
    a(f"s_waitcnt vmcnt(7)\ns_cmp_eq_u32 s{sNL}, 1\ns_cbranch_scc0 {l0}\ns_waitcnt vmcnt(4)\n{l0}:")
    stamp(a, 2)
    for line in range(2):
        for q in range(4): a(f"ds_read_b128 {vr(XF+16*line+4*q,4)}, v{xa[q]} offset:{L_XT + line*8192}")
    lds_arrive(a, C_X1, nowait=True)
    for line in range(2):
        if line: skip1(l1)
        for q in range(4):
            a(f"s_waitcnt lgkmcnt({8-4*line-q})")
            for i in range(4):
                r = XF + 16 * line + 4 * q + i
                a(f"v_dot2c_f32_bf16 v{vS}, s{sONES}, v{r}\nv_dot2c_f32_bf16 v{vQ}, v{r}, v{r}")
    a(f"{l1}:\ns_waitcnt vmcnt(0) lgkmcnt(0)\ns_nop 1\nds_write_b64 v121, v[22:23]")
    stamp(a, 18)
    for k in range(8):
        if k == 7: a("s_waitcnt lgkmcnt(13)")
        a(f"ds_read_b64_tr_b16 {vr(WF+4*k,2)}, v{vWK} offset:{k*896}")
        a(f"ds_read_b64_tr_b16 {vr(WF+4*k+2,2)}, v{vWK} offset:{k*896+224}")
    for k in range(8):
        if k == 4: skip1(l3)
        a(f"s_waitcnt lgkmcnt({14-2*k})")
        for i in range(4): a(f"v_dot2c_f32_bf16 v{vC}, s{sONES}, v{WF+4*k+i}")
    a(f"{l3}:\ns_bitcmp1_b32 s{sCB}, 0\ns_cbranch_scc1 {vlab}")
    for isv in (0, 1):
        if isv: a(f"{vlab}:")
        for k in range(8):
            if k == 4: skip1(fin)
            A, B = (vr(XF+4*k,4), vr(WF+4*k,4)) if isv else (vr(WF+4*k,4), vr(XF+4*k,4))
            a(f"{MF} {vr(ACC,16)}, {A}, {B}, {vr(ACC,16) if k else 0}")
            if k == 0:
                split_hi_lo(a, 24, vC, 31)
                a("ds_write_b32 v122, v24")
                lds_arrive(a, C_KS, nowait=True)
        if not isv: a(f"s_branch {l2}")
    a(f"""
    {l2}:
    s_lshl_b32 s{sT2}, s{sNT}, 1
    s_xor_b32 s{sT2}, s{sT2}, 2
    s_add_u32 s{sT2}, s{sT2}, s{sW}
    """)
    get_tag(a)
    a("s_nop 3")
    for g in range(4): a(f"ds_write_b128 v123, {vr(ACC+4*g,4)} offset:{1024*g}")
    lds_arrive(a, C_KV, nowait=True)
    stamp(a, 3)
    a(f"s_cmp_lt_u32 s{sW}, 2\ns_cbranch_scc1 {dostats}")
    lds_arrive(a, C_ST, nowait=True)
    a(f"s_branch {qgo}")
    vfin = a.label("vfin"); kvst = a.label("kvst"); vf2 = a.label("vf2"); cm = a.label("kvcm")
    a(f"""
    {fin}:
    s_setprio 3
    v_add_u32 v24, {L_KS}, v120
    v_add_u32 v25, {L_WKV}, v{vL16}
    v_add_u32 v21, {L_KC}, v{vL16}
    s_lshl_b32 s{sT1}, s{sRB}, 1
    s_add_u32 s{sT1}, s{sT1}, s{sNT}
    s_lshl_b32 s{sT1}, s{sT1}, 12
    s_add_u32 s{sT1}, s{sT1}, {WS_KV}
    s_lshl_b32 s{sT4}, s{sRB}, 2
    s_add_u32 s{sT4}, s{sT4}, s{sCB}
    s_lshl_b32 s{sT4}, s{sT4}, {3+FS}
    s_add_u32 s{sT4}, s{sT4}, {FL_KV}
    s_lshl_b32 s{sT0}, s{sNT}, 8
    s_add_u32 s{sT0}, s{sT0}, {L_ST}
    v_lshl_add_u32 v30, v{vJ}, 3, s{sT0}
    s_waitcnt vmcnt(0)
    """)
    get_tag(a)
    lds_wait(a, C_KS, 4)
    for g in range(4): a(f"ds_read_b128 {vr(XF+4*g,4)}, v24 offset:{16*g}")
    a(f"ds_read_b128 {vr(112,4)}, v21\ns_waitcnt lgkmcnt(1)")
    for i in range(4): a(f"v_pk_add_f32 {vr(XF+4*i,2)}, {vr(XF+4*i,2)}, {vr(XF+4*i+2,2)}")
    a(f"""
    v_pk_add_f32 {vr(XF,2)}, {vr(XF,2)}, {vr(XF+4,2)}
    v_pk_add_f32 {vr(XF+8,2)}, {vr(XF+8,2)}, {vr(XF+12,2)}
    v_pk_add_f32 {vr(XF,2)}, {vr(XF,2)}, {vr(XF+8,2)}
    """)
    bf16_stats(a, XF + 1, XF, 22, 23, 21)
    a(f"""
    v_cvt_pk_bf16_f32 v116, -v22, -v22
    v_lshlrev_b32 v21, 2, v{vJ}
    v_add_u32 v21, {L_RT}, v21
    ds_write_b32 v21, v23
    v_mul_f32 v117, {f32(QSCALE)}, v23
    v_lshlrev_b32 v21, 4, v{vHH}
    v_add_u32 v21, {L_RT}, v21
    ds_write_b64 v30, v[116:117]
    v_mov_b32 v118, v116
    v_mov_b32 v119, v116
    v_mov_b32 v22, v23
    """)
    lds_arrive(a, C_ST, nowait=True)
    a(f"""
    s_waitcnt lgkmcnt(0)
    v_mov_b32 v117, v116
    s_bitcmp1_b32 s{sCB}, 0
    s_cbranch_scc1 {vfin}
    {MF} {vr(ACC,16)}, {vr(112,4)}, {vr(116,4)}, {vr(ACC,16)}
    s_branch {cm}
    {vfin}:
    {MF} {vr(ACC,16)}, {vr(116,4)}, {vr(112,4)}, {vr(ACC,16)}
    """)
    for g in range(4): a(f"ds_read_b128 {vr(XF+4*g,4)}, v21 offset:{32*g}")
    a(f"""
    s_add_u32 s{sT1}, s{sT1}, 2048
    v_cmp_eq_u32 vcc, 28, v{vJ}
    v_mov_b32 v24, 0x3f803f80
    s_nop 1
    v_cndmask_b32 v24, 0, v24, vcc
    """)
    for i in range(8): a(f"v_mov_b32 v{120+i}, v24")
    a(f"{cm}:")
    lds_wait(a, C_KV, 3)
    stamp(a, 4)
    for w in range(3):
        for g in range(4): a(f"ds_read_b128 {vr(128+16*w+4*g,4)}, v25 offset:{7168*w+1024*g}")
    for w in range(3):
        a(f"s_waitcnt lgkmcnt({8-4*w})")
        for r in range(0, 16, 2): a(f"v_pk_add_f32 {vr(ACC+r,2)}, {vr(ACC+r,2)}, {vr(128+16*w+r,2)}")
    a(f"s_bitcmp1_b32 s{sCB}, 0\ns_cbranch_scc1 {vf2}")
    for r in range(0, 16, 2): a(f"v_pk_mul_f32 {vr(ACC+r,2)}, {vr(ACC+r,2)}, v[22:23]")
    for i in range(8): a(f"v_cvt_pk_bf16_f32 v{120+i}, v{ACC+2*i}, v{ACC+2*i+1}")
    a(f"""
    s_mov_b64 exec, {sr(sHI,2)}
    v_mov_b32 v126, 0x3f803f80
    v_mov_b32 v127, 0x00003f80
    s_branch {kvst}
    {vf2}:
    s_mov_b32 exec_lo, 0x0fffffff
    s_mov_b32 exec_hi, 0x0fffffff
    """)
    for r in range(0, 16, 2): a(f"v_pk_mul_f32 {vr(ACC+r,2)}, {vr(ACC+r,2)}, {vr(XF+r,2)}")
    for i in range(8): a(f"v_cvt_pk_bf16_f32 v{120+i}, v{ACC+2*i}, v{ACC+2*i+1}")
    a(f"""
    {kvst}:
    s_mov_b64 exec, -1
    buffer_store_dwordx4 {vr(120,4)}, v{vL16}, {sr(R_WS,4)}, s{sT1} offen sc1
    buffer_store_dwordx4 {vr(124,4)}, v{vL16}, {sr(R_WS,4)}, s{sT1} offen offset:1024 sc1
    """)
    stamp(a, 5)
    if OPT.kvflag < 0:
        set_flag(a, sT4)
        a(f"s_mov_b32 s{sT4}, 0\ns_setprio 0")
        stamp(a, 6)
    if not OPT.fl_late or OPT.kvflag < 0: lds_arrive(a, C_FL, nowait=True)
    a(f"s_branch {qgo}")
    a(f"{other}:")
    a(f"""
    s_lshr_b32 s{sT3}, s{sJ}, 3
    s_lshl_b32 s{sT3}, s{sT3}, 2
    s_add_u32 s{sT3}, s{sT3}, s{sCB}
    s_sub_u32 s{sT3}, s{sT3}, 4
    s_lshl_b32 s{sT0}, s{sT3}, 2
    s_add_u32 s{sT0}, s{sT0}, s{sW}
    s_cmp_eq_u32 s{sT3}, 1
    s_cselect_b32 s{R_WKV}, s{P_WV}, s{P_WK}
    s_cselect_b32 s{R_WKV+1}, s{P_WV+1}, s{P_WK+1}
    s_mov_b32 s{R_WKV+2}, {448*896}
    s_sub_u32 s{sT1}, s{sT0}, 8
    s_cmp_lt_u32 s{sT3}, 2
    s_cselect_b32 s{R_WKV}, s{R_WKV}, s{P_WQ}
    s_cselect_b32 s{R_WKV+1}, s{R_WKV+1}, s{P_WQ+1}
    s_cselect_b32 s{R_WKV+2}, {448*56}, s{R_WKV+2}
    s_cselect_b32 s{sT1}, s{sW}, s{sT1}
    s_mov_b32 s{R_WKV+3}, 0x20000
    s_lshl_b32 s{sT1}, s{sT1}, 13
    buffer_load_dword v250, v21, {sr(R_WKV,4)}, s{sT1} offen
    """)
    pf1_addr(a)
    frag_addr()
    a(f"s_mov_b32 s{sT2}, s{sW}\ns_barrier\ns_waitcnt vmcnt(1)")
    stamp(a, 2)
    lds_arrive(a, C_X1, nowait=True)
    def early():
        ne = a.label("noearly"); nw = a.label("nowait")
        a(f"s_cmp_lt_u32 s{sCB}, 6\ns_cbranch_scc1 {nw if OPT.pdefer else ne}\ns_cmp_eq_u32 s{sJ}, 6\ns_cbranch_scc1 {nw if OPT.pdefer else ne}")
        for i in range(OPT.npf0):
            if i == OPT.npfa: lds_wait(a, C_FL, 4)
            a(f"buffer_load_dword v{251+i%3}, v{vPF1}, {sr(R_W1,4)}, s{sPFW} offen\ns_add_u32 s{sPFW}, s{sPFW}, {56*3584}")
        a(f"{nw}:")
        lds_wait(a, C_FL, 4)
        a(f"{ne}:")
        x_half(1)
    rest_dma(a, early)
    lds_arrive(a, C_ISS, nowait=True)
    get_tag(a)
    stamp(a, 3)
    a(f"{dostats}:")
    stats_code(a, 20, 21, sT2)
    a(f"s_cmp_lt_u32 s{sCB}, 4\ns_cbranch_scc1 {qgo}\ns_waitcnt vmcnt(0)")
    lds_arrive(a, C_X, nowait=True)
    QACC, B0 = 128, 32
    a(f"""
    {qgo}:
    s_and_b32 s{sT0}, s{sW}, 1
    s_mul_i32 s{sT0}, s{sT0}, 56
    v_add_u32 v{vWQr}, s{sT0}, v9
    v_lshlrev_b32 v21, 5, v8
    v_and_b32 v21, 64, v21
    v_xor_b32 v{vWQr}, v{vWQr}, v21
    v_lshl_add_u32 v{vWQr}, v20, 7, v{vWQr}
    v_add_u32 v{vWQr}, {L_WQ}, v{vWQr}
    s_lshr_b32 s{sT1}, s{sW}, 1
    s_lshl_b32 s{sT0}, s{sT1}, 12
    v_mov_b32 v23, 0
    v_mov_b32 v113, 0
    v_mov_b32 v114, 0
    v_mov_b32 v115, 0
    v_mov_b32 v118, 0
    v_mov_b32 v119, 0
    """)
    for q in range(4): a(f"v_add_u32 v{vXF+q}, s{sT0}, v{vXF+q}")
    a(f"""
    s_lshl_b32 s{sT1}, s{sT1}, 8
    s_add_u32 s{sT1}, s{sT1}, {L_ST}
    v_lshl_add_u32 v24, v{vJ}, 3, s{sT1}
    """)
    lds_wait(a, C_X1, 4)
    lds_wait(a, C_X, 4)
    stamp(a, 7)
    D = 4; NB = 8
    WR = list(range(64, 112, 4)) + list(range(144, 176, 4)) + list(range(224, 248, 4)) + [120, 124]
    def wreg(ks): return WR[ks]
    def reads(ks):
        b = wreg(ks)
        a(f"ds_read_b64_tr_b16 {vr(b,2)}, v{vWQr} offset:{ks*2048}")
        a(f"ds_read_b64_tr_b16 {vr(b+2,2)}, v{vWQr} offset:{ks*2048+512}")
        a(f"ds_read_b128 {vr(B0+4*(ks%NB),4)}, v{vXF+(ks&3)} offset:{L_XT + (ks>>2)*8192}")
    for ks in range(D): reads(ks)
    for ks in range(28):
        if ks + D < 28: reads(ks + D)
        a(f"s_waitcnt lgkmcnt({3*min(D, 27-ks)})")
        a(f"{MF} {vr(QACC,16)}, {vr(wreg(ks),4)}, {vr(B0+4*(ks%NB),4)}, {'0' if ks == 0 else vr(QACC,16)}")
        if ks == OPT.kvflag:
            nf = a.label("nofl")
            a(f"s_cmp_eq_u32 s{sT4}, 0\ns_cbranch_scc1 {nf}")
            set_flag(a, sT4)
            if OPT.fl_late: lds_arrive(a, C_FL, nowait=True)
            a("s_setprio 0")
            stamp(a, 6)
            a(f"{nf}:")
    stamp(a, 19)
    if OPT.prio_ld: a(f"s_setprio {OPT.prio_ld}")
    att_setup(a)
    if OPT.early: a(f"buffer_load_dwordx2 v[30:31], v25, {sr(R_WS,4)}, s{sKF} offen sc1")
    for ks in range(28):
        for i in range(4): a(f"v_dot2c_f32_bf16 v23, s{sONES}, v{wreg(ks)+i}")
    if OPT.early:
        nk = a.label("nokvyet")
        a(f"""
        s_waitcnt vmcnt(0)
        v_cmp_ne_u64 vcc, {sr(sTAG,2)}, v[30:31]
        s_cbranch_vccnz {nk}
        """)
        first_kv(a)
        a(f"s_mov_b32 s{sKF}, 0\n{nk}:")
    stamp(a, 8)
    lds_wait(a, C_ST, 8)
    a(f"ds_read_b64 v[116:117], v24")
    split_hi_lo(a, 112, 23, 21)
    a(f"""
    s_waitcnt lgkmcnt(0)
    v_mov_b32 v22, v117
    v_mov_b32 v23, v117
    v_mov_b32 v117, 0
    s_nop 1
    {MF} {vr(QACC,16)}, {vr(112,4)}, {vr(116,4)}, {vr(QACC,16)}
    s_lshl_b32 s{sT1}, s{sW}, 11
    s_add_u32 s{sT1}, s{sT1}, {L_QS}
    v_add_u32 v21, s{sT1}, v{vL16}
    """)
    for r in range(64, 76): a(f"v_mov_b32 v{r}, 0")
    for r in range(0, 16, 2): a(f"v_pk_mul_f32 {vr(QACC+r,2)}, {vr(QACC+r,2)}, v[22:23]")
    for i in range(8): a(f"v_cvt_pk_bf16_f32 v{32+i}, v{QACC+2*i}, v{QACC+2*i+1}")
    a(f"""
    s_mov_b64 exec, {sr(sHI,2)}
    v_mov_b32 v38, 0
    v_mov_b32 v39, 0
    s_mov_b64 exec, -1
    ds_write_b128 v21, {vr(32,4)}
    ds_write_b128 v21, {vr(36,4)} offset:1024
    """)
    lds_arrive(a, C_Q, nowait=True)

vDW1, vDW2, vDWO, vOUT, vT1, vT2, vT3, vLN, vLM, vPF, vPF2 = 48, 49, 50, 51, 52, 54, 56, 58, 60, 62, 63
vTH, vSW = 240, 247
sHasG1 = 98
sLb0, sLbE, sDb0, sDbE = 34, 35, 36, 37
sFH, sPH, sB1o, sFU, sUS, sFUc, sPU, sFOc, sSH1 = 16, 17, 28, 29, 30, 31, 32, 33, 81
def g_setup1(a, mid=None):
    srd(a, R_B1, P_B1, 1792 * 2)
    a(f"""
    s_lshr_b32 s{sGM}, s{sG}, 1
    s_and_b32 s{sGN}, s{sG}, 1
    s_lshl_b32 s{sRing}, s{sG}, 11
    s_add_u32 s{sRing}, s{sRing}, {L_RING}
    v_lshlrev_b32 v{vDWO}, 2, v10
    v_xor_b32 v{vDWO}, v{vDWO}, v6
    v_lshlrev_b32 v{vDWO}, 4, v{vDWO}
    v_lshl_add_u32 v{vT3}, v8, 7, v9
    v_lshlrev_b32 v24, 5, v8
    v_and_b32 v24, 64, v24
    v_add_u32 v{vT3}, v{vT3}, v24
    v_add_u32 v{vT3}, s{sRing}, v{vT3}
    s_lshr_b32 s{sT0}, s{sJ}, 3
    s_mul_i32 s{sT0}, s{sT0}, 6
    s_add_u32 s{sT0}, s{sT0}, s{sCB}
    s_cmp_lt_u32 s{sCB}, 6
    s_cselect_b32 s{sHasG1}, 1, 0
    s_and_b32 s{sT1}, s2, 0xf9
    s_cmp_eq_u32 s{sT1}, 48
    s_cselect_b32 s{sT0}, 24, s{sT0}
    s_cselect_b32 s{sHasG1}, 1, s{sHasG1}
    s_and_b32 s{sT1}, s{sXCD}, 1
    s_mul_i32 s{sT1}, s{sT1}, 25
    s_add_u32 s{sT0}, s{sT0}, s{sT1}
    s_mul_i32 s{sA}, s{sT0}, 37
    s_lshr_b32 s{sA}, s{sA}, 8
    s_mul_i32 s{sT1}, s{sA}, 7
    s_sub_u32 s{sPH}, s{sT0}, s{sT1}
    s_lshr_b32 s{sFB}, s{sXCD}, 1
    s_mul_i32 s{sFB}, s{sFB}, 7
    s_add_u32 s{sFB}, s{sFB}, s{sPH}
    """)
    if mid: mid()
    a(f"""
    v_mul_u32_u24 v{vDW1}, 3584, v5
    v_add_u32 v{vDW1}, v{vDW1}, v{vDWO}
    v_lshl_add_u32 v{vDW2}, v5, 12, v{vDWO}
    v_mul_u32_u24 v24, 896, v5
    v_add_u32 v{vDWO}, v24, v{vDWO}
    s_mul_i32 s{sD}, s{sG}, {512*3584}
    s_lshl_b32 s{sT0}, s{sFB}, 7
    s_add_u32 s{sD}, s{sD}, s{sT0}
    s_lshl_b32 s{sT1}, s{sGM}, 6
    s_add_u32 s{sB1o}, s{sT0}, s{sT1}
    v_lshl_add_u32 v24, v{vHH}, 10, v{vT3}
    v_xor_b32 v{vT1}, s{sT1}, v24
    v_xor_b32 v{vT1+1}, 64, v{vT1}
    v_add_u32 v{vTH}, 0x10000, v{vT1}
    v_add_u32 v{vTH+1}, 0x10000, v{vT1+1}
    s_lshl_b32 s{sT0}, s{sGN}, 10
    v_add_u32 v{vLN}, s{sT0}, v{vL16}
    v_xor_b32 v{vLN+1}, 0x400, v{vLN}
    s_lshl_b32 s{sL}, s{sA}, 18
    s_lshl_b32 s{sT0}, s{sG}, 16
    s_add_u32 s{sL}, s{sL}, s{sT0}
    s_add_u32 s{sSH1}, s{sPH}, 1
    s_lshl_b32 s{sPH}, s{sSH1}, 13
    s_add_u32 s{sPH}, s{sPH}, s{sL}
    v_lshlrev_b32 v{vPF}, 7, v{vLANE}
    v_add_u32 v{vSW}, s{sRing}, v{vL16}
    v_add_u32 v{vSW+1}, 0x10000, v{vSW}
    s_lshr_b32 s{sFH}, s{sA}, 1
    s_lshl_b32 s{sFH}, s{sFH}, 10
    s_lshl_b32 s{sT0}, s{sG}, 8
    s_add_u32 s{sFH}, s{sFH}, s{sT0}
    s_lshl_b32 s{sFH}, s{sFH}, {FS}
    s_add_u32 s{sFH}, s{sFH}, {FL_H}
    v_bfe_u32 v32, v{vJ}, 1, 3
    v_lshlrev_b32 v32, 4, v32
    v_xor_b32 v32, s{sT1}, v32
    v_lshl_add_u32 v32, v{vJ}, 7, v32
    v_lshl_add_u32 v32, v{vHH}, 3, v32
    s_lshl_b32 s{sT0}, s{sCB}, 13
    s_lshl_b32 s{sT1}, s{sGN}, 12
    s_add_u32 s{sT0}, s{sT0}, s{sT1}
    v_add_u32 v32, s{sT0}, v32
    v_xor_b32 v33, 16, v32
    v_xor_b32 v34, 32, v32
    v_xor_b32 v35, 48, v32
    """)
    assert WS_HT == 0
def g_xread(a):
    lds_wait(a, C_X1, 4)
    lds_wait(a, C_XA, 4)
    for g, v in enumerate((32, 33, 34, 35)): a(f"ds_read_b64 {vr(6+2*g,2)}, v{v} offset:{L_XT}")
    lds_arrive(a, C_ST, nowait=True)

def g_setup2(a):
    srd(a, R_W2, P_W2, 1792 * 4096)
    srd(a, R_WO, P_WO, 448 * 896)
    srd(a, R_OUT, P_OUT, 2048 * 896)
    srd(a, R_B2, P_B2, 2048 * 2)
    a(f"""
    s_mul_i32 s{sDb}, s{sG}, {448*4096}
    s_lshl_b32 s{sT0}, s{sRB}, 7
    s_add_u32 s{sDb}, s{sDb}, s{sT0}
    s_mul_i32 s{sD2}, s{sG}, {112*896}
    s_lshl_b32 s{sT0}, s{sCB}, 7
    s_add_u32 s{sD2}, s{sD2}, s{sT0}
    s_lshl_b32 s{sT0}, s{sGM}, 6
    s_lshl_b32 s{sT1}, s{sGN}, 6
    v_lshl_add_u32 v24, v{vHH}, 9, v{vT3}
    v_xor_b32 v{vT2}, s{sT1}, v24
    v_xor_b32 v{vT2+1}, 64, v{vT2}
    v_xor_b32 v{vT3}, s{sT0}, v24
    v_xor_b32 v{vT3+1}, 64, v{vT3}
    s_lshl_b32 s{sT0}, s{sGM}, 10
    v_add_u32 v{vLM}, s{sT0}, v{vL16}
    v_xor_b32 v{vLM+1}, 0x400, v{vLM}
    s_mul_i32 s{sLb}, s{sCB}, 112
    s_mul_i32 s{sT0}, s{sG}, 28
    s_add_u32 s{sLb}, s{sLb}, s{sT0}
    s_lshl_b32 s{sLb}, s{sLb}, 11
    s_add_u32 s{sLb}, s{sLb}, {WS_U}
    s_lshr_b32 s{sT0}, s{sJ}, 3
    s_add_u32 s{sT0}, s{sT0}, 3
    s_lshl_b32 s{sT0}, s{sT0}, 13
    s_add_u32 s{sPU}, s{sT0}, s{sLb}
    s_lshl_b32 s{sL2}, s{sRB}, 16
    s_lshl_b32 s{sT0}, s{sG}, 14
    s_add_u32 s{sL2}, s{sL2}, s{sT0}
    s_add_u32 s{sL2}, s{sL2}, {WS_O}
    v_mul_u32_u24 v{vOUT}, 896, v{vJ}
    v_lshl_add_u32 v{vOUT}, v{vHH}, 4, v{vOUT}
    s_lshl_b32 s{sT0}, s{sRB}, 1
    s_add_u32 s{sT0}, s{sT0}, s{sGN}
    s_lshl_b32 s{sB2}, s{sT0}, 6
    s_mul_i32 s{sT0}, s{sT0}, {32*896}
    s_lshl_b32 s{sT1}, s{sCB}, 7
    s_add_u32 s{sT0}, s{sT0}, s{sT1}
    s_lshl_b32 s{sT1}, s{sGM}, 6
    s_add_u32 s{sOUT}, s{sT0}, s{sT1}
    v_lshrrev_b32 v{vPF2}, 2, v{vLANE}
    v_and_b32 v24, 3, v{vLANE}
    v_lshlrev_b32 v{vPF2}, 12, v{vPF2}
    v_lshl_add_u32 v{vPF2}, v24, 7, v{vPF2}
    s_mul_i32 s{sT0}, s{sA}, 112
    s_lshl_b32 s{sT1}, s{sFB}, 2
    s_add_u32 s{sT0}, s{sT0}, s{sT1}
    s_lshl_b32 s{sT2}, s{sGM}, 1
    s_add_u32 s{sT0}, s{sT0}, s{sT2}
    s_lshl_b32 s{sT0}, s{sT0}, 11
    s_add_u32 s{sUS}, s{sT0}, {WS_U}
    s_lshl_b32 s{sT0}, s{sA}, 7
    s_add_u32 s{sT0}, s{sT0}, s{sT1}
    s_add_u32 s{sT0}, s{sT0}, s{sG}
    s_lshl_b32 s{sT0}, s{sT0}, 3
    s_lshl_b32 s{sT0}, s{sT0}, {FS}
    s_add_u32 s{sFU}, s{sT0}, {FL_U}
    s_lshl_b32 s{sT0}, s{sCB}, 10
    s_mul_i32 s{sT1}, s{sG}, 224
    s_add_u32 s{sT0}, s{sT0}, s{sT1}
    s_lshl_b32 s{sT0}, s{sT0}, {FS}
    s_add_u32 s{sFUc}, s{sT0}, {FL_U}
    s_lshl_b32 s{sT0}, s{sRB}, 8
    s_lshl_b32 s{sT1}, s{sG}, 6
    s_add_u32 s{sT0}, s{sT0}, s{sT1}
    s_lshl_b32 s{sT0}, s{sT0}, {FS}
    s_add_u32 s{sFOc}, s{sT0}, {FL_O}
    """)
    for i in range(2, 6): a(f"v_add_u32 v{vTH+i}, 0x10000, v{vT1+i}")
    if OPT.ra or OPT.rb:
        a(f"""
        s_lshr_b32 s{sT0}, s{sJ}, 3
        s_mul_i32 s{sT0}, s{sT0}, {OPT.ra}
        s_mul_i32 s{sT1}, s{sXCD}, {OPT.rb}
        s_add_u32 s{sT0}, s{sT0}, s{sT1}
        s_mul_i32 s{sT1}, s{sT0}, 2341
        s_lshr_b32 s{sT1}, s{sT1}, 16
        s_mul_i32 s{sT1}, s{sT1}, 28
        s_sub_u32 s{sT0}, s{sT0}, s{sT1}
        s_mov_b32 s{sLb0}, s{sLb}
        s_add_u32 s{sLbE}, s{sLb}, {28*2048}
        s_mov_b32 s{sDb0}, s{sDb}
        s_add_u32 s{sDbE}, s{sDb}, {28*16*4096}
        s_lshl_b32 s{sT1}, s{sT0}, 11
        s_add_u32 s{sLb}, s{sLb}, s{sT1}
        s_lshl_b32 s{sT1}, s{sT0}, 16
        s_add_u32 s{sDb}, s{sDb}, s{sT1}
        """)
        assert all((x * 2341) >> 16 == x // 28 for x in range(200))
    if OPT.nou: a(f"v_mov_b32 v{vLM}, {OOB}\nv_mov_b32 v{vLM+1}, {OOB}")
    if OPT.now2: a(f"v_mov_b32 v{vDW2}, {OOB}")

L_HB2 = L_WKV
def p1_g(a):
    X, U = 128, 160
    htype = a.label("gh"); pfw = a.label("gpfw")
    a(f"s_sub_u32 s{sG}, s{sW}, 4")
    common_srds(a)
    pf1_addr(a)
    a(f"s_cmp_ge_u32 s{sCB}, 4\ns_cbranch_scc1 {htype}")
    a("s_barrier")
    rest_dma(a)
    stamp(a, 2)
    get_tag(a)
    g_setup1(a, lambda: (a("s_waitcnt vmcnt(0)"), lds_arrive(a, C_X, nowait=True), stamp(a, 3)))
    lds_wait(a, C_FL, 1)
    a(f"s_branch {pfw}")
    a(f"""
    {htype}:
    s_sub_u32 s{sT1}, s{sCB}, 4
    s_lshl_b32 s{sT0}, s{sRB}, 2
    s_add_u32 s{sT0}, s{sT0}, s{sT1}
    s_lshl_b32 s{sT1}, s{sT1}, 4
    s_lshl_b32 s{sT2}, s{sG}, 2
    s_add_u32 s{sT1}, s{sT1}, s{sT2}
    v_add_u32 v11, s{sT1}, v7
    v_and_b32 v13, 1, v5
    v_lshlrev_b32 v12, 13, v13
    v_lshl_add_u32 v12, v11, 7, v12
    v_lshl_add_u32 v12, v6, 4, v12
    v_bfe_u32 v11, v11, 1, 3
    v_xor_b32 v11, v11, v6
    v_mul_u32_u24 v14, {HB_STRIDE}, v7
    v_lshl_add_u32 v14, v11, 4, v14
    v_lshl_add_u32 v14, v13, 7, v14
    s_mul_i32 s{sT2}, s{sG}, {4*HB_STRIDE}
    s_add_u32 s{sT2}, s{sT2}, {L_HB2}
    v_add_u32 v14, s{sT2}, v14
    v_lshl_add_u32 v15, v{vHH}, 3, v8
    v_mul_u32_u24 v15, {HB_STRIDE}, v15
    v_add_u32 v15, v15, v9
    s_lshl_b32 s{sT2}, s{sG}, 8
    s_add_u32 s{sT2}, s{sT2}, {L_HB2}
    v_add_u32 v15, s{sT2}, v15
    s_lshl_b32 s{sT2}, s{sG}, 19
    s_lshl_b32 s{sT3}, s{sT0}, 11
    s_add_u32 s{sT2}, s{sT2}, s{sT3}
    s_add_u32 s{sT3}, s{sT2}, {128*2048}
    s_lshl_b32 s{sT4}, s{sG}, 7
    s_add_u32 s{sT4}, s{sT4}, s{sT0}
    s_lshl_b32 s{sT4}, s{sT4}, {3+FS}
    s_add_u32 s{sT4}, s{sT4}, {FL_H}
    v_mov_b32 v17, 0xffff0000
    s_mov_b32 vcc_lo, 0x00ff00ff
    s_mov_b32 vcc_hi, 0x00ff00ff
    """)
    for p in range(1):
        for i in range(4): a(f"v_mov_b32 v{X+16*p+12+i}, 0")
    S = [32, 40]
    for p in range(1): a(f"v_mov_b32 v{S[p]}, 0\nv_mov_b32 v{S[p]+1}, 0")
    a("s_barrier\ns_setprio 3")
    lds_wait(a, C_X1, 4)
    stamp(a, 2)
    for p in range(1):
        for i in range(3): a(f"ds_read_b128 {vr(X+16*p+4*i,4)}, v12 offset:{L_XT + 16384*i + 2048*p}")
        a(f"s_mov_b64 exec, vcc\nds_read_b128 {vr(X+16*p+12,4)}, v12 offset:{L_XT + 16384*3 + 2048*p}\ns_mov_b64 exec, -1")
    for p in range(1):
        for i in range(16):
            if i % 4 == 0: a(f"s_waitcnt lgkmcnt({3-i//4})")
            a(f"v_dot2c_f32_bf16 v{S[p]}, s{sONES}, v{X+16*p+i}")
            a(f"v_dot2c_f32_bf16 v{S[p]+1}, v{X+16*p+i}, v{X+16*p+i}")
    un = []
    for i in range(16): un += [f"v_lshlrev_b32 v{U+2*i}, 16, v{X+i}", f"v_and_b32 v{U+2*i+1}, v17, v{X+i}"]
    for x in un[:3]: a(x)
    un = un[3:]
    def both(txt):
        for line in txt.strip().split("\n"):
            p = 0; t_ = line.strip().format(s=S[p], q=S[p]+1, t=S[p]+2, r=S[p]+4, r2=S[p]+5, m=S[p]+6)
            a(t_)
            if t_.startswith(("v_sqrt", "v_rcp")) or (t_.startswith("v_add_f32_dpp") and f"v{S[0]+1}," in t_): a(un.pop(0))
    for mode in (QP1, QP2, RHM, RM):
        both("v_add_f32_dpp v{s}, v{s}, v{s} %s row_mask:0xf bank_mask:0xf\nv_add_f32_dpp v{q}, v{q}, v{q} %s row_mask:0xf bank_mask:0xf" % (mode, mode))
    rstd = """
    v_and_b32 v{t}, v17, v{t}
    v_add_f32 v{t}, %#x, v{t}
    v_cvt_pk_bf16_f32 v{t}, v{t}, v{t}
    v_and_b32 v{t}, v17, v{t}
    v_sqrt_f32 v{t}, v{t}
    v_cvt_pk_bf16_f32 v{t}, v{t}, v{t}
    v_and_b32 v{t}, v17, v{t}
    v_rcp_f32 v{%s}, v{t}
    """
    both("""
    v_mul_f32 v{s}, %s, v{s}
    v_mul_f32 v{q}, %s, v{q}
    v_fma_f32 v{q}, -v{s}, v{s}, v{q}
    v_max_f32 v{q}, 0, v{q}
    v_cvt_pk_bf16_f32 v{t}, v{s}, v{q}
    v_lshlrev_b32 v{m}, 16, v{t}
    """ % (f32(1/448), f32(1/448)))
    both(rstd % (EPS, "r"))
    both("""
    v_sub_f32 v{s}, v{s}, v{m}
    v_mul_f32 v{s}, v{s}, v{r}
    v_mul_f32 v{q}, v{q}, v{r}
    v_mul_f32 v{q}, v{q}, v{r}
    v_cvt_pk_bf16_f32 v{t}, v{s}, v{q}
    v_lshlrev_b32 v{s}, 16, v{t}
    v_fma_f32 v{m}, v{m}, v{r}, v{s}
    """)
    both(rstd % (EPS, "r2"))
    for x in un: a(x)
    both("v_mul_f32 v{m}, v{m}, v{r2}\nv_mul_f32 v{r}, v{r}, v{r2}")
    for p in range(1):
        for i in range(16):
            if i == 12: a("s_mov_b64 exec, vcc")
            u = U + 32 * p + 2 * i
            a(f"""
            v_pk_fma_f32 {vr(u,2)}, {vr(u,2)}, {vr(S[p]+4,2)}, {vr(S[p]+6,2)} op_sel_hi:[1,0,0] neg_lo:[0,0,1] neg_hi:[0,0,1]
            v_cvt_pk_bf16_f32 v{X+16*p+i}, v{u}, v{u+1}
            """)
            if i % 4 == 3: a(f"ds_write_b128 v14, {vr(X+16*p+i-3,4)} offset:{256*(i//4) + 16*HB_STRIDE*p}")
        a("s_mov_b64 exec, -1")
    stamp(a, 3)
    lds_arrive(a, C_H, nowait=True)
    lds_wait(a, C_H, 4)
    n = 0
    for p in range(1):
        for f in range(4):
            for x in range(2):
                if n == 15: a("s_waitcnt lgkmcnt(14)")
                a(f"ds_read_b64_tr_b16 {vr(U+16*p+4*f+2*x,2)}, v15 offset:{x*4*HB_STRIDE + f*64 + 16*HB_STRIDE*p}"); n += 1
    for p in range(1):
        for f in range(4):
            a(f"s_waitcnt lgkmcnt({6-2*f})")
            a(f"buffer_store_dwordx4 {vr(U+16*p+4*f,4)}, v{vL16}, {sr(R_WS,4)}, s{sT2 + (f>>1)} offen offset:{1024*(f&1) + 2048*p} sc1")
    lds_arrive(a, C_FL, nowait=True)
    stamp(a, 4)
    g_setup1(a)
    get_tag(a)
    set_flag(a, sT4)
    a("s_setprio 0")
    stamp(a, 5)
    lds_wait(a, C_FL, 4)
    lds_wait(a, C_ISS, 4)
    a(f"{pfw}:")

sK, sKF, sKP = 94, 95, 96
AQ, AO, AS, AP, AKV = 32, 64, 128, 160, 176
def att_setup(a):
    a(f"""
    s_add_u32 s{R_KV}, s{P_WS}, {WS_KV}
    s_addc_u32 s{R_KV+1}, s{P_WS+1}, 0
    s_add_u32 s{sT0}, s{sW}, 1
    s_lshl_b32 s{R_KV+2}, s{sT0}, 16
    s_mov_b32 s{R_KV+3}, 0x20000
    v_lshlrev_b32 v5, 7, v{vLANE}
    v_lshlrev_b32 v25, {3+FS}, v{vJ}
    s_lshr_b32 s{sKP}, s{sJ}, 1
    s_and_b32 s{sKP}, s{sKP}, 4
    s_add_u32 s{sKP}, s{sKP}, s{sCB}
    s_lshl_b32 s{sKP}, s{sKP}, 13
    s_lshl_b32 s{sT0}, s{sW}, 16
    s_add_u32 s{sKP}, s{sKP}, s{sT0}
    s_and_b32 s{sT0}, s{sJ}, 0x14
    s_cmp_lg_u32 s{sT0}, 0
    s_cselect_b32 s{sKP}, {OOB}, s{sKP}
    s_lshl_b32 s{sKF}, s{sW}, 8
    s_lshl_b32 s{sKF}, s{sKF}, {FS}
    s_add_u32 s{sKF}, s{sKF}, {FL_KV}
    """)
def kvload(a, buf):
    for j in range(4):
        a(f"buffer_load_dwordx4 {vr(AKV+16*buf+4*j,4)}, v{vL16}, {sr(R_KV,4)}, s{sK} offen offset:{1024*j} sc1")
    a(f"s_add_u32 s{sK}, s{sK}, 4096")
def first_kv(a):
    a(f"s_lshl_b32 s{sK}, s{sW}, 16")
    kvload(a, 0)
    a(f"buffer_load_dword v253, v5, {sr(R_KV,4)}, s{sKP} offen sc1")
    kvload(a, 1); kvload(a, 2)

def attention(a, done):
    Q, O, S, P, KV = AQ, AO, AS, AP, AKV
    NM = 20
    sIt, sRetry, sOS, sOF = sT1, sT3, 84, 85
    vMW, vRW, vMR, vRR = 8, 12, 15, 16
    go = a.label("att_go"); mloop = a.label("att_mloop"); loop = a.label("att_loop"); ok = a.label("att_ok"); havekv = a.label("att_havekv")
    a(f"s_mov_b32 s{sRetry}, 0\ns_cmp_eq_u32 s{sKF}, 0\ns_cbranch_scc1 {havekv}")
    lds_wait(a, C_PRE, 4)
    stamp(a, 9)
    poll(a, sKF, 32)
    stamp(a, 10)
    first_kv(a)
    a(f"{havekv}:")
    for i in range(1, 4):
        a(f"""
        s_add_u32 s{sT0}, s{sW}, {i}
        s_and_b32 s{sT0}, s{sT0}, 3
        s_lshl_b32 s{sT0}, s{sT0}, 11
        s_add_u32 s{sT0}, s{sT0}, {L_QS}
        v_add_u32 v{16+i}, s{sT0}, v{vL16}
        """)
    lds_wait(a, C_Q, 4)
    for i in range(1, 4):
        a(f"ds_read_b128 {vr(Q+8*i,4)}, v{16+i}\nds_read_b128 {vr(Q+8*i+4,4)}, v{16+i} offset:1024")
    for r in range(12, 64): a(f"v_mov_b32 v{O+r}, 0")
    for i in range(4):
        a(f"""
        s_add_u32 s{sT0}, s{sW}, {i+1}
        s_and_b32 s{sT0}, s{sT0}, 3
        s_lshl_b32 s{sT2}, s{sT0}, 9
        s_add_u32 s{sT2}, s{sT2}, {L_MX + 128*i}
        v_lshl_add_u32 v{vMW+i}, v{vJ}, 2, s{sT2}
        s_mul_i32 s{sT2}, s{sT0}, 12288
        s_add_u32 s{sT2}, s{sT2}, {L_RED + 4096*(i%3)}
        v_add_u32 v{vRW+i if i < 3 else vRR}, s{sT2}, v{vL16}
        """)
    a(f"""
    v_subrev_u32 v{vMR}, 384, v{vMW+3}
    s_add_u32 s{sT0}, s{sW}, 3
    s_and_b32 s{sT2}, s{sT0}, 1
    s_lshl_b32 s{sOS}, s{sCB}, 1
    s_add_u32 s{sOS}, s{sOS}, s{sT2}
    s_lshl_b32 s{sOS}, s{sOS}, 12
    s_lshl_b32 s{sT2}, s{sRB}, 16
    s_add_u32 s{sOS}, s{sOS}, s{sT2}
    s_and_b32 s{sT2}, s{sT0}, 2
    s_lshl_b32 s{sT2}, s{sT2}, 9
    s_add_u32 s{sOS}, s{sOS}, s{sT2}
    s_add_u32 s{sOS}, s{sOS}, {WS_O}
    s_lshl_b32 s{sOF}, s{sRB}, 3
    s_add_u32 s{sOF}, s{sOF}, s{sCB}
    s_lshl_b32 s{sOF}, s{sOF}, 2
    s_add_u32 s{sOF}, s{sOF}, s{sW}
    s_lshl_b32 s{sOF}, s{sOF}, {3+FS}
    s_add_u32 s{sOF}, s{sOF}, {FL_O}
    s_mov_b32 s{sT4}, 0x71800000
    """)
    TMP = [S, S + 16, KV + 48, P]
    def scan_mf(kreg):
        for i in range(4):
            a(f"{MF} {vr(TMP[i],16)}, {vr(kreg,4)}, {vr(Q+8*i,4)}, 0")
            a(f"{MF} {vr(TMP[i],16)}, {vr(kreg+4,4)}, {vr(Q+8*i+4,4)}, {vr(TMP[i],16)}")
    lds_arrive(a, C_QR, nowait=True)
    a("s_waitcnt vmcnt(11) lgkmcnt(0)")
    stamp(a, 11)
    scan_mf(KV)
    a(f"s_nop 4\ns_mov_b64 exec, {sr(sHI,2)}")
    for i in range(4):
        t = TMP[i]
        a(f"v_max3_f32 v{NM+i}, v{t}, v{t+1}, v{t+2}")
        for j in range(3, 15, 2): a(f"v_max3_f32 v{NM+i}, v{t+j}, v{t+j+1}, v{NM+i}")
        a(f"""
        v_max_f32 v{NM+i}, v{t+15}, v{NM+i}
        v_cvt_pk_bf16_f32 v{Q+8*i+6}, -v{NM+i}, 0
        v_lshlrev_b32 v{NM+i}, 16, v{Q+8*i+6}
        """)
    a(f"{go}:")
    for i in range(4): a(f"ds_write_b32 v{vMW+i}, v{NM+i}")
    a("s_mov_b64 exec, -1")
    a(f"{MF} {vr(S,16)}, {vr(KV,4)}, {vr(Q,4)}, 0")
    a(f"{MF} {vr(S,16)}, {vr(KV+4,4)}, {vr(Q+4,4)}, {vr(S,16)}")
    for r in range(8): a(f"v_mov_b32 v{KV+48+8+r}, 0")
    for r in range(8): a(f"v_mov_b32 v{P+8+r}, 0")
    a(f"v_mov_b32 v{S+30}, 0\nv_mov_b32 v{S+31}, 0")
    def smf(q, b, kb):
        d = vr(S + 16 * b, 16)
        return [f"{MF} {d}, {vr(KV+16*kb,4)}, {vr(Q+8*q,4)}, 0", f"{MF} {d}, {vr(KV+16*kb+4,4)}, {vr(Q+8*q+4,4)}, {d}"]
    def pv(q, b, kb):
        d = vr(O + 16 * q, 16)
        return [f"{MF} {d}, {vr(KV+16*kb+8,4)}, {vr(P+8*b,4)}, {d}", f"{MF} {d}, {vr(KV+16*kb+12,4)}, {vr(P+8*b+4,4)}, {d}"]
    def pk(b, i): return f"v_cvt_pk_bf16_f32 v{P+8*b+i}, v{S+16*b+2*i}, v{S+16*b+2*i+1}"
    def owrite(i): return ['s_nop 0'] * 4 if OPT.nocomb else [f"ds_write_b128 v{vRW+i}, {vr(O+16*i+4*g,4)} offset:{1024*g}" for g in range(4)]
    a(f"s_mov_b32 s{sIt}, {OPT.attit-1}\ns_waitcnt vmcnt(8)")
    if OPT.ka: lds_wait(a, C_GO, 4, sleep=2)
    if OPT.adel: a(f's_sleep {OPT.adel}')
    stamp(a, 12)
    if OPT.prio_ld: a(f"s_setprio {OPT.prio_a}")
    def body(lastit):
        for n in range(16):
            T, q, b = n // 4, n % 4, n % 2
            if lastit and n == 14: lds_wait(a, C_R1D, 4)
            va = []
            for i in range(8):
                r = S + 16 * b + 2 * i
                va += [f"v_exp_f32 v{r}, v{r}", f"v_exp_f32 v{r+1}, v{r+1}", pk(b, i - 1) if i else pk(1 - b, 7)]
            s = smf((q + 1) % 4, 1 - b, ((n + 1) // 4) % 4)
            p = pv((q - 1) % 4, 1 - b, ((n - 1) // 4) % 4)
            pos = [[3, 9, 15, 21], [3, 7, 15, 19], [3, 7, 12, 19], [3, 8, 15, 20], [3, 7, 16, 21], [2, 6, 15, 19]][OPT.order]
            ins = {pos[0]: [s[0]], pos[1]: [s[1]], pos[2]: [p[0]], pos[3]: [p[1]]}
            if lastit and n == 15: ins = {pos[0]: [p[0]], pos[1]: [p[1]]}
            if q == 3 and not (lastit and T == 3):
                ins[1] = [f"s_waitcnt vmcnt({7 if not lastit or T == 0 else 4 if T == 1 else 0})"]
            if not lastit or T == 0:
                buf = (T - 1) % 4
                ins[11] = [f"buffer_load_dwordx4 {vr(KV+16*buf+4*q,4)}, v{vL16}, {sr(R_KV,4)}, s{sK} offen offset:{1024*q} sc1"]
                if OPT.prio_ld:
                    ins[10] = [f"s_setprio {OPT.prio_ld}"]
                    ins[13] = [f"s_setprio {OPT.prio_a}"]
                if q == 3 and not OPT.hot & 16: ins[14] = [f"s_add_u32 s{sK}, s{sK}, 4096"]
            if n == 15 and not lastit:
                ins[17] = [f"s_sub_u32 s{sIt}, s{sIt}, 1"]
                ins[22] = [f"s_cmp_lg_u32 s{sIt}, 0"]
            if lastit and n == 14:
                for g, x in enumerate(owrite(0)): ins.setdefault([10, 13, 17, 22][g], []).append(x)
            if lastit and n == 15:
                for g, x in enumerate(owrite(1)): ins.setdefault([8, 10, 13, 16][g], []).append(x)
                for g, x in enumerate(owrite(2)[:2]): ins.setdefault([20, 22][g], []).append(x)
            for i, x in enumerate(va):
                for y in ins.get(i, []): a(y)
                a(x)
    if OPT.attit > 1:
        a(".p2align 6")
        a(f"{loop}:")
        body(False)
        a(f"s_cbranch_scc1 {loop}")
    body(True)
    if OPT.prio_ld: a(f"s_setprio {OPT.prio_ld}")
    a(pk(1, 7))
    for x in owrite(2)[2:]: a(x)
    for x in pv(3, 1, 3): a(x)
    stamp(a, 13)
    a(f"""
    v_add_f32 v17, v{O+12}, v{O+28}
    v_add_f32 v17, v17, v{O+44}
    s_nop 9
    v_add_f32 v17, v17, v{O+60}
    v_cmp_nlt_f32_e64 vcc, v17, s{sT4}
    s_and_b64 vcc, vcc, {sr(sHI,2)}
    s_cbranch_scc0 {ok}
    s_cmp_lg_u32 s{sRetry}, 0
    s_cbranch_scc1 {ok}
    s_mov_b32 s{sRetry}, 1
    s_waitcnt lgkmcnt(0)
    s_mov_b64 exec, {sr(sHI,2)}
    """)
    for i in range(4): a(f"v_mov_b32 v{Q+8*i+6}, 0\nv_mov_b32 v{Q+8*i+7}, 0")
    a(f"s_mov_b64 exec, -1\ns_lshl_b32 s{sK}, s{sW}, 16\ns_mov_b32 s{sIt}, 16")
    for r in range(64): a(f"v_mov_b32 v{O+r}, 0")
    for i in range(4): a(f"v_mov_b32 v{NM+i}, 0xff800000")
    a(f"""
    {mloop}:
    buffer_load_dwordx4 {vr(KV,4)}, v{vL16}, {sr(R_KV,4)}, s{sK} offen sc1
    buffer_load_dwordx4 {vr(KV+4,4)}, v{vL16}, {sr(R_KV,4)}, s{sK} offen offset:1024 sc1
    s_add_u32 s{sK}, s{sK}, 4096
    s_waitcnt vmcnt(0)
    """)
    scan_mf(KV)
    a("s_nop 11")
    for i in range(4):
        for j in range(8): a(f"v_max3_f32 v{NM+i}, v{TMP[i]+2*j}, v{TMP[i]+2*j+1}, v{NM+i}")
    a(f"""
    s_sub_u32 s{sIt}, s{sIt}, 1
    s_cmp_lg_u32 s{sIt}, 0
    s_cbranch_scc1 {mloop}
    """)
    first_kv(a)
    for i in range(4): a(f"v_mov_b32 v{S+i}, v{NM+i}")
    a("s_nop 1")
    for i in range(4): a(f"v_permlane32_swap_b32 v{S+i}, v{NM+i}")
    for i in range(4): a(f"v_max_f32 v{NM+i}, v{S+i}, v{NM+i}")
    a(f"s_mov_b64 exec, {sr(sHI,2)}")
    for i in range(4):
        a(f"""
        v_sub_f32 v{NM+i}, 0, v{NM+i}
        v_cvt_pk_bf16_f32 v17, v{NM+i}, 0
        v_lshlrev_b32 v18, 16, v17
        v_sub_f32 v18, v{NM+i}, v18
        v_cvt_pk_bf16_f32 v19, v18, 0
        v_lshl_or_b32 v{Q+8*i+6}, v19, 16, v17
        v_lshlrev_b32 v19, 16, v19
        v_sub_f32 v18, v18, v19
        v_cvt_pk_bf16_f32 v{Q+8*i+7}, v18, 0
        """)
    a(f"s_waitcnt vmcnt(11)\ns_branch {go}\n{ok}:")
    lds_arrive(a, C_ATT, nowait=True)
    if not OPT.nocomb: lds_wait(a, C_ATT, 4)
    stamp(a, 16)
    OW = O + 48
    if OPT.nocomb: a(f"v_mov_b32 v17, v{OW+12}\nv_mov_b32 v18, v{OW+12}\ns_nop 1\nv_permlane32_swap_b32 v17, v18\nv_rcp_f32 v18, v18\ns_branch nocomb")
    for i in range(4): a(f"ds_read_b32 v{NM+i}, v{vMR} offset:{128*i}")
    for i in range(3):
        for g in range(4):
            if i == 2 and g == 3: a("s_waitcnt lgkmcnt(11)")
            a(f"ds_read_b128 {vr(O+16*i+4*g,4)}, v{vRR} offset:{4096*i+1024*g}")
    a(f"""
    v_min3_f32 v17, v{NM}, v{NM+1}, v{NM+2}
    v_min_f32 v17, v17, v{NM+3}
    """)
    for i in (3, 0, 1, 2): a(f"v_sub_f32 v{NM+i}, v17, v{NM+i}")
    for i in (3, 0, 1, 2): a(f"v_exp_f32 v{NM+i}, v{NM+i}")
    for r in range(16): a(f"v_mul_f32 v{OW+r}, v{NM+3}, v{OW+r}")
    for i in range(3):
        a(f"s_waitcnt lgkmcnt({4*(2-i)})")
        R = [12] + [r for r in range(16) if r != 12] if i == 2 else range(16)
        for n, r in enumerate(R):
            a(f"v_fmac_f32 v{OW+r}, v{NM+i}, v{O+16*i+r}")
            if i == 2 and n == 0: a(f"v_mov_b32 v17, v{OW+12}\nv_mov_b32 v18, v{OW+12}")
            if i == 2 and n == 2: a("v_permlane32_swap_b32 v17, v18")
            if i == 2 and n == 3: a("v_rcp_f32 v18, v18")
    a("nocomb:")
    for h in range(2):
        for r in range(8 * h, 8 * h + 8): a(f"v_mul_f32 v{OW+r}, v18, v{OW+r}")
        for i in range(4 * h, 4 * h + 4): a(f"v_cvt_pk_bf16_f32 v{O+i}, v{OW+2*i}, v{OW+2*i+1}")
        if h: a(f"s_mov_b64 exec, {sr(sHI,2)}\nv_mov_b32 v{O+6}, 0\nv_mov_b32 v{O+7}, 0\ns_mov_b64 exec, -1")
        a(f"buffer_store_dwordx4 {vr(O+4*h,4)}, v{vL16}, {sr(R_WS,4)}, s{sOS} offen offset:{2048*h} sc1")
    stamp(a, 17)
    if OPT.odel: a(f's_sleep {OPT.odel}')
    set_flag(a, sOF)
    a(f"s_branch {done}")

class VM:
    def __init__(self): self.q = []
    def issue(self, tag):
        if OPT.dropw and tag[0] == 'd' and tag[1] >= OPT.dropw: return
        self.q.append(tag)
    def wait(self, tags):
        idx = [i for i, t in enumerate(self.q) if t in tags]
        if not idx: return None
        n = len(self.q) - 1 - max(idx)
        assert n <= 63
        self.q = self.q[max(idx) + 1:]
        return n

ACC, AF, BF, DH, SG = 64, 32, 128, 8, 192
def reduce4(a, cnt, red, st0, st1, h0=None, h1=None, h2=None):
    base, stride, off = red
    stamp(a, st0)
    if h0: h0()
    for i in range(4):
        a(f"""
        s_xor_b32 s{sT0}, s{sG}, {i}
        s_mul_i32 s{sT1}, s{sT0}, {stride}
        s_add_u32 s{sT1}, s{sT1}, {base}
        v_add_u32 v{24+i}, s{sT1}, v{vL16}
        """)
    for i in range(1, 4):
        for g in range(4): a(f"ds_write_b128 v24, {vr(ACC+16*i+4*g,4)} offset:{off(4*(i-1)+g)}")
    lds_arrive(a, cnt, nowait=True)
    if h1: h1()
    lds_wait(a, cnt, 4)
    stamp(a, st1)
    for i in range(1, 4):
        for g in range(4): a(f"ds_read_b128 {vr(ACC+16*i+4*g,4)}, v{24+i} offset:{off(4*(i-1)+g)}")
    if h2: h2()
    for i in range(1, 4):
        a(f"s_waitcnt lgkmcnt({4*(3-i)})")
        for r in range(16): a(f"v_add_f32 v{ACC+r}, v{ACC+r}, v{ACC+16*i+r}")

def gpath(a, done):
    global DH, SG
    DH = OPT.dh; SG = BF + 8 * DH
    SGR = list(range(SG, 233, 8)) + [6, 14]
    assert OPT.nsg <= len(SGR) - 2 and OPT.nsg2 <= len(SGR)
    vm = VM()
    N1, N2, N3 = 32, 60, 68
    nsg = OPT.nsg
    staged = {OPT.pre0 + i: i for i in range(nsg)}
    nsg2 = OPT.nsg2
    staged.update({N1 + OPT.pre + i: i for i in range(nsg2)})
    def wsrc(k, h):
        if k < N1: return vDW1, R_W1, sD, 8 * 3584
        if k < N2: return vDW2, R_W2, sDb, 8 * 4096
        return vDWO, R_WO, sD2, (4 if ((k - N2) & 1 and h) else 8) * 896
    rot = OPT.ra or OPT.rb
    def wadv(k, h):
        v, R, sd, inc = wsrc(k, h)
        t = f"s_add_u32 s{sd}, s{sd}, {inc}"
        if (OPT.hot & 1 and k < N1) or (OPT.hot & 2 and k >= N1): t = "s_nop 0"
        if rot and N1 <= k < N2 and h and k & 1: t += f"\ns_cmp_eq_u32 s{sd}, s{sDbE}\ns_cselect_b32 s{sd}, s{sDb0}, s{sd}"
        return t
    def dma(k):
        out = []
        for h in range(2):
            v, R, sd, inc = wsrc(k, h)
            out.append((f"s_add_u32 m0, s{sRing}, {slotp(k)*8192 + h*1024}",
                        f"buffer_load_dwordx4 v{v}, {sr(R,4)}, s{sd} offen lds" if not (OPT.dropw and k >= OPT.dropw) else "s_nop 0", wadv(k, h)))
        return out
    state = {'nd': 0}
    def prefill(upto):
        while state['nd'] < upto:
            k = state['nd']; state['nd'] += 1
            if k in staged:
                for h in range(2):
                    v, R, sd, inc = wsrc(k, h)
                    a(f"buffer_load_dwordx4 {vr(SGR[staged[k]]+4*h,4)}, v{v}, {sr(R,4)}, s{sd} offen")
                    a(wadv(k, h)); vm.issue(('s', k))
            else:
                for m, l, adv in dma(k): a(m); a(adv.replace("s_add_u32", "s_nop 0 ;") if False else "s_nop 0"); a(l); a(adv); vm.issue(('d', k))
    def swrite(k):
        off = slotp(k) * 8192; v = vSW
        if off >= 65536: off -= 65536; v += 1
        return [f"ds_write_b128 v{v}, {vr(SGR[staged[k]]+4*h,4)} offset:{off+1024*h}" for h in range(2)]
    def deep(k): return OPT.tdeep and N1 - 4 <= k < N1
    def breg(k): return SG + 32 + 8 * (k - N1 + 4) if deep(k) else SG + 8 * (k - N2) if (k >= N2 and OPT.odeep) else BF + 8 * (k % DH)
    def ld(k):
        r = breg(k)
        v, sl = (vLN, sL) if k < N1 else (vLM, sLb) if k < N2 else (vLN, sL2)
        off = 2048 * (k & 1)
        o = [f"buffer_load_dwordx4 {vr(r,4)}, v{v}, {sr(R_WS,4)}, s{sl} offen offset:{off} sc1",
             f"buffer_load_dwordx4 {vr(r+4,4)}, v{v+1}, {sr(R_WS,4)}, s{sl} offen offset:{off} sc1"]
        adv = f"s_add_u32 s{sl}, s{sl}, 4096"
        if (OPT.hot & 4 and k < N1) or (OPT.hot & 8 and k >= N1): adv = "s_nop 0"
        if rot and N1 <= k < N2: adv += f"\ns_cmp_eq_u32 s{sl}, s{sLbE}\ns_cselect_b32 s{sl}, s{sLb0}, s{sl}"
        return o, (adv if k & 1 else None)
    def ld_now(k):
        o, adv = ld(k)
        for x in o: a(x); vm.issue(('l', k))
        if adv: a(adv)
    def tr(k, r=None):
        b0, xo = (vT1, 512) if k < N1 else (vT2, 1024) if k < N2 else (vT3, 1024)
        r = r or AF + 8 * (k % 2); off = slotp(k) * 8192
        if off >= 65536: off -= 65536; b0 += vTH - vT1
        return [f"ds_read_b64_tr_b16 {vr(r,2)}, v{b0} offset:{off}", f"ds_read_b64_tr_b16 {vr(r+2,2)}, v{b0} offset:{off+xo}",
                f"ds_read_b64_tr_b16 {vr(r+4,2)}, v{b0+1} offset:{off}", f"ds_read_b64_tr_b16 {vr(r+6,2)}, v{b0+1} offset:{off+xo}"]
    state['nl'] = 0
    def b2load(): a(f"v_lshlrev_b32 v23, 1, v{vJ}\nbuffer_load_ushort v5, v23, {sr(R_B2,4)}, s{sB2} offen")
    def init2():
        a("v_lshlrev_b32 v5, 16, v5")
        for i in range(8): a(f"v_lshlrev_b32 v{ACC+2*i}, 16, v{6+i}\nv_and_b32 v{ACC+2*i+1}, 0xffff0000, v{6+i}")
        for r in range(16): a(f"v_add_f32 v{ACC+r}, v5, v{ACC+r}")
        a(f"v_min_u32 v26, 27, v{vLANE}\nv_lshlrev_b32 v26, {3+FS}, v26\nv_min_u32 v27, 7, v{vLANE}\nv_lshlrev_b32 v27, {3+FS}, v27")
    def free(kd, k):
        if kd >= OPT.ke and k < OPT.gatek and slotp(kd) < 8: return False
        prev = [j for j in range(kd) if slotp(j) == slotp(kd)]
        return not prev or prev[-1] <= k - 1
    def begin(lo, nld, pfi=None, after=None):
        state['nl'] = lo
        for k in range(lo, lo + nld):
            ld_now(k); state['nl'] += 1
            if pfi and k == lo + 1: a(pfi); vm.issue('pf')
        if after: after()
        n = vm.wait({('d', lo)})
        if n is not None: a(f"s_waitcnt vmcnt({n})")
        for x in tr(lo): a(x)
    def run(lo, hi, last, dlimit, llimit, first=None, hooks={}, tail=None):
        dh = OPT.dh
        for k in range(lo, hi):
            need = {('l', k)}
            if k + 1 < last: need.add(('d', k + 1))
            if tail and k + 1 == hi: need |= {('d', j) for j in tail}
            if k + 3 in staged: need.add(('s', k + 3))
            need |= hooks.get(('need', k), set())
            n = vm.wait(need)
            a(f"s_waitcnt vmcnt({n}) lgkmcnt(0)" if n is not None else "s_waitcnt lgkmcnt(0)")
            if k in hooks: hooks[k]()
            if OPT.fine and k % 4 == 0 and OPT.stamps == 1 and 0 <= k // 4 - OPT.fine0 < 15: stamp(a, 48 + k // 4 - OPT.fine0)
            l = AF + 8 * (k % 2); d = breg(k)
            lds_is_a = not (N1 <= k < N2)
            mf = []
            for i in range(4):
                mi, ni = i >> 1, i & 1
                A, B = (vr(l + 4 * mi, 4), vr(d + 4 * ni, 4)) if lds_is_a else (vr(d + 4 * mi, 4), vr(l + 4 * ni, 4))
                c = "0" if k == first and i else vr(ACC + 16 * i, 16)
                mf.append(f"{MF} {vr(ACC+16*i,16)}, {A}, {B}, {c}" if not OPT.nogm else "s_nop 0")
            t = tr(k + 1) if k + 1 < last else []
            t2 = []
            if tail and k + 1 == hi:
                assert state['nd'] > max(tail)
                tt = sum((tr(j, r) for j, r in tail.items()), []); t, t2 = tt[:8], tt[8:]
            sw = swrite(k + 3) if k + 3 in staged else []
            assert not sw or free(k + 3, k)
            kd = state['nd']; dm = []
            if kd < dlimit and kd <= k + (OPT.lw if k < N1 else OPT.lw2) and free(kd, k) and kd not in staged:
                assert kd >= k + 2
                dm = dma(kd); state['nd'] += 1
            lo_, adv = ([], None)
            kl = state['nl']
            if kl < llimit and (kl <= k + dh - 1 or deep(kl) or (kl >= N2 and OPT.odeep)): lo_, adv = ld(kl); state['nl'] += 1
            a(mf[0])
            for x in t: a(x)
            if dm: a(dm[0][0])
            a(mf[1])
            if lo_: a(lo_[0]); vm.issue(('l', kl))
            if lo_: a(lo_[1]); vm.issue(('l', kl))
            if adv: a(adv)
            if dm: a(dm[0][1]); vm.issue(('d', kd)); a(dm[0][2]); a(dm[1][0])
            a(mf[2])
            if dm: a(dm[1][1]); vm.issue(('d', kd)); a(dm[1][2])
            for x in sw: a(x)
            if t2: a('s_waitcnt lgkmcnt(4)')
            for x in t2: a(x)
            a(mf[3])
            kd = state['nd']
            if kd < dlimit and kd <= k + (OPT.lw if k < N1 else OPT.lw2) and free(kd, k) and kd not in staged: prefill(kd + 1)
            kl = state['nl']
            if kl < llimit and (kl <= k + dh - 1 or deep(kl) or (kl >= N2 and OPT.odeep)): ld_now(kl); state['nl'] += 1
    def tail_reduce(tail, cnt, red, st0, st1, h0=None, h1=None, h2=None):
        base, stride, off = red
        while state['nl'] <= max(tail): ld_now(state['nl']); state['nl'] += 1
        a(f"s_setprio {OPT.prio_t}")
        for i in range(4):
            a(f"""
            s_xor_b32 s{sT0}, s{sG}, {i}
            s_mul_i32 s{sT1}, s{sT0}, {stride}
            s_add_u32 s{sT1}, s{sT1}, {base}
            v_add_u32 v{24+i}, s{sT1}, v{vL16}
            """)
        def wr(i): return [f"ds_write_b128 v24, {vr(ACC+16*i+4*g,4)} offset:{off(4*(i-1)+g)}" for g in range(4)]
        prev = None
        for i in (1, 2, 3, 0):
            W = wr(prev) if prev else []
            for n, (k, l) in enumerate(tail.items()):
                if i == 1:
                    w = vm.wait({('l', k)})
                    x = (f"vmcnt({w}) " if w is not None else "") + ("lgkmcnt(0)" if n == 0 else "")
                    if x: a("s_waitcnt " + x)
                d = breg(k); mi, ni = i >> 1, i & 1
                A, B = (vr(l + 4 * mi, 4), vr(d + 4 * ni, 4)) if not (N1 <= k < N2) else (vr(d + 4 * mi, 4), vr(l + 4 * ni, 4))
                a(f"{MF} {vr(ACC+16*i,16)}, {A}, {B}, {vr(ACC+16*i,16)}")
                if W and n == 1: a("s_nop 9"); a(W[0]); a(W[1])
                if W and n == 2: a(W[2]); a(W[3])
                if i == 0 and n == 2: lds_arrive(a, cnt, nowait=True)
            if i == 1 and h0: h0()
            prev = i
        a(f"s_setprio {OPT.prio_e}")
        stamp(a, st0)
        if h1: h1()
        lds_wait(a, cnt, 4)
        stamp(a, st1)
        for i in range(1, 4):
            for g in range(4): a(f"ds_read_b128 {vr(ACC+16*i+4*g,4)}, v{24+i} offset:{off(4*(i-1)+g)}")
        if h2: h2()
        for i in range(1, 4):
            a(f"s_waitcnt lgkmcnt({4*(3-i)})")
            for r in range(16): a(f"v_add_f32 v{ACC+r}, v{ACC+r}, v{ACC+16*i+r}")
    def flagload(soff, n):
        vo = {32: 28, 28: 26, 8: 27}[n]
        if n == 32: a(f"v_min_u32 v28, {n-1}, v{vLANE}\nv_lshlrev_b32 v28, {3+FS}, v28")
        a(f"buffer_load_dwordx2 v[30:31], v{vo}, {sr(R_WS,4)}, s{soff} offen sc1"); vm.issue('fl')
    def flagcheck(okl, pr=0):
        a(f"s_setprio 3\nv_cmp_ne_u64 vcc, {sr(sTAG,2)}, v[30:31]\ns_setprio {pr}\ns_cbranch_vccz {okl}")
    def fill_poll(upA, upB, soff, n, mid=None):
        prefill(upA)
        flagload(soff, n)
        prefill(upB)
        if mid: mid()
        w = vm.wait({'fl'})
        a(f"s_waitcnt vmcnt({w})")
        okl = a.label("flok")
        flagcheck(okl)
        poll(a, soff, n)
        a(f"{okl}:")
    nog1 = a.label("nog1"); join = a.label("gjoin")
    g_xread(a)
    a(f"s_cmp_eq_u32 s{sHasG1}, 0\ns_cbranch_scc1 {nog1}")
    a(f"s_setprio {OPT.prio_g}")
    stamp(a, 8)
    if OPT.nodma: a(f"s_mov_b32 s{R_W1+2}, 0")
    a(f"v_lshlrev_b32 v23, 3, v{vHH}")
    for g in range(4): a(f"buffer_load_dwordx2 {vr(14+2*g,2)}, v23, {sr(R_B1,4)}, s{sB1o} offen offset:{16*g}")
    for g in range(4): vm.issue('b')
    prefill(OPT.a1)
    lds_arrive(a, C_PRE, nowait=True)
    stamp(a, 9)
    fill_poll(OPT.a1, OPT.b1, sFH, 32, lambda: (g_setup2(a), b2load(), vm.issue('b2')))
    stamp(a, 10)
    def init1():
        for i in range(8): a(f"v_lshlrev_b32 v{ACC+2*i}, 16, v{14+i}\nv_and_b32 v{ACC+2*i+1}, 0xffff0000, v{14+i}")
    def cpf(sid, val, saddr):
        sk = a.label("cpf")
        a(f"s_cmp_lg_u32 s{sid}, {val}\ns_cbranch_scc1 {sk}\nbuffer_load_dword v253, v{vPF}, {sr(R_WS,4)}, s{saddr} offen sc1\n{sk}:")
    def mkhooks(hl):
        d = {}
        for k, f in hl: d.setdefault(k, []).append(f)
        return {k: (lambda fs=fs: [f() for f in fs]) for k, fs in d.items()}
    a('s_setprio 3')
    begin(0, OPT.nl0, None, init1)
    a(f's_setprio {OPT.prio_g}')
    hl = [(0, lambda: stamp(a, 11)), (16, lambda: stamp(a, 12)), (OPT.gatek, lambda: (a('s_setprio 3'), lds_wait(a, C_Q, 4), a(f's_setprio {OPT.prio_g}')))]
    if OPT.kt: hl.append((N1 - 4 - OPT.kt, lambda: a(f's_setprio {OPT.prio_t}')))
    if OPT.ka: hl.append((OPT.ka, lambda: lds_arrive(a, C_GO, nowait=True)))
    if OPT.kp: hl.append((OPT.kp, lambda: a(f's_setprio {OPT.prio_g1b}')))
    for b in range(2, 8): hl.append((max(0, 4 * b - OPT.pfd), lambda b=b: cpf(sSH1, b, sPH)))
    for i, k in enumerate(range(OPT.b1, OPT.pre0 + nsg)): hl.append((i, lambda k=k: prefill(k + 1)))
    T1 = {N1 - 4 + i: SG + 8 * i for i in range(4)}
    assert OPT.e2 <= OPT.pre
    run(0, N1 - 4, N1, N1, N1, first=0, hooks=mkhooks(hl), tail=T1)
    tail_reduce(T1, C_R1, (L_RED, 12288, lambda i: 1024 * i), 13, 16,
            lambda: prefill(N1 + OPT.e0), lambda: prefill(N1 + OPT.e1), lambda: prefill(N1 + OPT.e2))
    lds_arrive(a, C_R1D, nowait=True)
    k = 2 * math.sqrt(2 / math.pi) * math.log2(math.e)
    a(f"s_mov_b32 s{sT0}, {f32(-k*0.044715)}\nv_mov_b32 v18, {f32(-k)}")
    T = ACC + 16
    for h in range(2):
        R = range(8 * h, 8 * h + 8)
        for r in R: a(f"v_mul_f32 v{T+r}, v{ACC+r}, v{ACC+r}")
        for r in R: a(f"v_fma_f32 v{T+r}, v{T+r}, s{sT0}, v18")
        for r in R: a(f"v_mul_f32 v{T+r}, v{T+r}, v{ACC+r}")
        for r in R: a(f"v_exp_f32 v{T+r}, v{T+r}")
        for r in R: a(f"v_add_f32 v{T+r}, 1.0, v{T+r}")
        for r in R: a(f"v_rcp_f32 v{T+r}, v{T+r}")
        for r in R: a(f"v_mul_f32 v{T+r}, v{T+r}, v{ACC+r}")
        for i in range(4 * h, 4 * h + 4): a(f"v_cvt_pk_bf16_f32 v{T+16+i}, v{T+2*i}, v{T+2*i+1}")
        a(f"buffer_store_dwordx4 {vr(T+16+4*h,4)}, v{vLN}, {sr(R_WS,4)}, s{sUS} offen offset:{2048*h} sc1")
    stamp(a, 17)
    if OPT.gdel: a(f's_sleep {OPT.gdel}')
    init2()
    set_flag(a, sFU)
    stamp(a, 27)
    a(f"s_branch {join}\n{nog1}:")
    lds_arrive(a, C_R1D, nowait=True)
    lds_arrive(a, C_GO, nowait=True)
    lds_arrive(a, C_PRE, nowait=True)
    g_setup2(a)
    b2load()
    a("s_waitcnt vmcnt(0) lgkmcnt(0)")
    init2()
    a(f"""
    s_lshr_b32 s{sT0}, s{sJ}, 3
    s_lshl_b32 s{sT0}, s{sT0}, 1
    s_and_b32 s{sT1}, s{sCB}, 1
    s_add_u32 s{sT0}, s{sT0}, s{sT1}
    s_sub_u32 s{sT0}, s{sT0}, 1
    s_cmp_eq_u32 s{sJ}, 6
    s_cbranch_scc1 engdone
    s_mul_i32 s{sT1}, s{sG}, 28
    s_add_u32 s{sT1}, s{sT1}, s{sT0}
    s_lshl_b32 s{sT1}, s{sT1}, 16
    s_lshl_b32 s{sT2}, s{sXCD}, 9
    s_add_u32 s{sT1}, s{sT1}, s{sT2}
    s_lshl_b32 s{sT2}, s{sT0}, 2
    s_add_u32 s{sT2}, s{sT2}, s{sG}
    s_lshl_b32 s{sT2}, s{sT2}, 13
    s_add_u32 s{sPFW}, s{sPFW}, {OPT.npf0*56*3584}
    """)
    if OPT.engw: lds_wait(a, C_X, 4, sleep=1)
    for i in range(10 - OPT.npf0 if OPT.eng & 1 else 0):
        a(f"s_waitcnt vmcnt({OPT.engd})\nbuffer_load_dword v{249+i%2}, v{vPF1}, {sr(R_W1,4)}, s{sPFW} offen\ns_add_u32 s{sPFW}, s{sPFW}, {56*3584}")
    stamp(a, 28)
    for i in range(4 if OPT.eng & 2 else 0):
        a(f"s_waitcnt vmcnt({OPT.engd})\nbuffer_load_dword v{249+i%2}, v{vPF2}, {sr(R_W2,4)}, s{sT1} offen\ns_add_u32 s{sT1}, s{sT1}, {7*16*4096}")
    stamp(a, 29)
    a(f"""
    s_cmp_lg_u32 s{sCB}, 7
    s_cbranch_scc1 engdone
    s_lshr_b32 s{sT2}, s{sJ}, 3
    s_lshl_b32 s{sT2}, s{sT2}, 2
    s_add_u32 s{sT2}, s{sT2}, s{sG}
    s_lshl_b32 s{sT2}, s{sT2}, 13
    """)
    for i in range(4 if OPT.eng & 4 else 0):
        a(f"s_waitcnt vmcnt({OPT.engd})\nbuffer_load_dword v{249+i%2}, v{vPF}, {sr(R_WO,4)}, s{sT2} offen\ns_add_u32 s{sT2}, s{sT2}, {16*8192}")
    stamp(a, 30)
    a(f"s_branch epw\nengdone:\ns_waitcnt vmcnt(0)")
    lds_wait(a, C_Q, 4)
    state['nd'] = N1
    prefill(N1 + OPT.e2)
    a(f"{join}:")
    assert OPT.e2 <= 12
    if OPT.pre > 12: lds_wait(a, C_QR, 4)
    a(f"s_setprio {OPT.prio_b}")
    vm.q = [('d', k) for k in range(N1, N1 + OPT.e2) for h in range(2)]
    prefill(N1 + OPT.a2)
    stamp(a, 18)
    fill_poll(N1 + OPT.a2, N1 + OPT.b2, sFUc, 28)
    stamp(a, 19)
    begin(N1, OPT.nl0)
    a(f"s_setprio {OPT.prio_g2}\ns_lshr_b32 s{sSH1}, s{sJ}, 3")
    assert not OPT.odeep or (SG + 64 <= 240 and N1 + OPT.pre + nsg2 - 3 <= N2 - OPT.ock)
    KC = N2 - OPT.ock
    hl = [(N1, lambda: stamp(a, 20)), (N1 + 14, lambda: stamp(a, 21)), (KC - 3, lambda: flagload(sFOc, 8))]
    for b in range(3, 7): hl.append((N1 + max(0, 4 * b - OPT.pfd), lambda b=b: cpf(sSH1, b - 3, sPU)))
    for i, k in enumerate(range(N1 + OPT.b2, N1 + OPT.pre + nsg2)): hl.append((N1 + i, lambda k=k: prefill(k + 1)))
    run(N1, KC, N2, N3, N2, first=N1, hooks=mkhooks(hl))
    w = vm.wait({'fl'})
    if w is not None: a(f"s_waitcnt vmcnt({w})")
    ordy = a.label("ordy"); red2 = a.label("red2")
    flagcheck(ordy)
    sv = (list(vm.q), dict(state))
    run(KC, N2, N2, N3, N2)
    prefill(N3)
    stamp(a, 22)
    poll(a, sFOc, 8); vm.q = []
    stamp(a, 23)
    a(f"s_setprio {OPT.prio_e}")
    begin(N2, 8 if OPT.odeep else min(8, DH))
    assert OPT.odeep
    T3 = {N3 - 4 + i: BF + 8 * i for i in range(4)}
    run(N2, N3 - 4, N3, N3, N3, hooks={N2: lambda: stamp(a, 24)}, tail=T3)
    qn = list(vm.q)
    a(f"s_branch {red2}\n{ordy}:")
    vm.q = sv[0]; state.update(sv[1])
    run(KC, N3 - 4, N3, N3, N3, hooks={N2: lambda: stamp(a, 24)}, tail=T3)
    assert state['nl'] == N3
    assert all(t[0] == 'l' for t in qn + vm.q), (qn, vm.q)
    if len(qn) > len(vm.q): vm.q = qn
    a(f"{red2}:")
    tail_reduce(T3, C_R2, (L_RING, 2048, lambda i: (i >> 1) * 8192 + (i & 1) * 1024), 25, 26)
    for i in range(8): a(f"v_cvt_pk_bf16_f32 v{ACC+16+i}, v{ACC+2*i}, v{ACC+2*i+1}")
    a(f"""
    s_nop 1
    v_permlane32_swap_b32 v{ACC+16}, v{ACC+18}
    v_permlane32_swap_b32 v{ACC+17}, v{ACC+19}
    v_permlane32_swap_b32 v{ACC+20}, v{ACC+22}
    v_permlane32_swap_b32 v{ACC+21}, v{ACC+23}
    buffer_store_dwordx4 {vr(ACC+16,4)}, v{vOUT}, {sr(R_OUT,4)}, s{sOUT} offen
    buffer_store_dwordx4 {vr(ACC+20,4)}, v{vOUT}, {sr(R_OUT,4)}, s{sOUT} offen offset:32
    s_branch {done}
    epw:
    s_lshl_b32 s{sT0}, s{sG}, 8
    s_add_u32 s{sT0}, s{sT0}, s2
    s_cmp_lg_u32 s{sT0}, 56
    s_cbranch_scc1 {done}
    """)
    lds_wait(a, C_ATT, 4, sleep=8)
    for i in range(4):
        a(f"s_mov_b32 s{sT0}, {FL_O + (2048*i << FS)}")
        poll(a, sT0, 64, sh=5)
    a(f"s_mov_b32 s{sT0}, {WS_EPOCH}")
    set_flag(a, sT0)

def kend(a, e):
    a(f"{e}:")
    if OPT.stamps:
        stamp(a, 14); a("s_waitcnt vmcnt(0)"); stamp(a, 15)
        a(f"""
        s_lshl_b32 s100, s2, 3
        s_add_u32 s100, s100, s{sW}
        s_lshl_b32 s100, s100, 8
        s_add_u32 s100, s100, {WS_STAMP}
        v_lshlrev_b32 v254, 2, v{vLANE}
        buffer_store_dword v255, v254, {sr(R_WS,4)}, s100 offen
        """)
    if OPT.amp >= 0:
        if OPT.amp == 14: stamp(a, 14)
        a(f"""
        s_cmp_ge_u32 s{sW}, 4
        s_cbranch_scc{0 if OPT.ampg else 1} {e}x
        s_nop 4
        v_readlane_b32 s16, v255, 0
        v_readlane_b32 s17, v255, 1
        s_nop 4
        s_cmp_eq_u32 s17, 0
        s_cbranch_scc1 {e}x
        s_sub_u32 s18, s17, s16
        s_min_u32 s18, s18, 4000
        s_mul_i32 s18, s18, 5
        s_add_u32 s18, s18, 4000
        ampl:
        s_memrealtime s[20:21]
        s_waitcnt lgkmcnt(0)
        s_sub_u32 s20, s20, s16
        s_cmp_lt_u32 s20, s18
        s_cbranch_scc1 ampl
        """)
    if OPT.double:
        a(f"""
        s_waitcnt vmcnt(0)
        s_memrealtime s[16:17]
        s_waitcnt lgkmcnt(0)
        s_sub_u32 s18, s16, s100
        s_min_u32 s18, s18, 20000
        dbl:
        s_memrealtime s[20:21]
        s_waitcnt lgkmcnt(0)
        s_sub_u32 s20, s20, s16
        s_cmp_lt_u32 s20, s18
        s_cbranch_scc1 dbl
        """)
    a(f"{e}x:\ns_endpgm\ncode_end:")

DOC = '''; ---------------------------------------------------------------------------------------------
; Hand-offs between workgroups (h, K/V, u, o) go through d_ws with sc1 stores, a drained per-wave flag
; and sc1 loads.  Flags carry a 64-bit tag derived from an epoch word in d_ws that every launch advances.
; Softmax: each wave shifts by a score maximum of its first key tile; the row sums are range-checked and
; ---------------------------------------------------------------------------------------------
'''
def build():
    a = Asm()
    n = NAME + "_kernel"
    a('.amdgcn_target "amdgcn-amd-amdhsa--gfx950"\n.text')
    a(f".globl {n}\n.p2align 8\n.type {n},@function\n{n}:")
    e = "fin"
    prologue(a, e)
    p1_a(a); attention(a, e)
    a("p1g:"); p1_g(a); gpath(a, e)
    kend(a, e)
    if OPT.nogv:
        i0 = a.L.index("p1g:")
        i1 = [i for i, l in enumerate(a.L) if l.startswith("gpfw")][0]
        a.L = [("s_nop 0" if (i > i1 and l.startswith("buffer_load_dwordx4")) else l) for i, l in enumerate(a.L)]
    check(a.L)
    head = open(f"refhead.txt").read().split("; Override")[0]
    ll = f"; @launch grid=(256,1,1) block=(512,1,1) lds={LDS_TOTAL}\n"
    desc = f""".section .rodata,"a"
.p2align 6
.amdhsa_kernel {n}
  .amdhsa_next_free_vgpr 256
  .amdhsa_next_free_sgpr 102
  .amdhsa_accum_offset 256
  .amdhsa_group_segment_fixed_size 0
  .amdhsa_kernarg_size 104
  .amdhsa_user_sgpr_count 2
  .amdhsa_user_sgpr_kernarg_segment_ptr 1
  .amdhsa_system_sgpr_workgroup_id_x 1
  .amdhsa_float_denorm_mode_32 3
.end_amdhsa_kernel
"""
    return head + DOC + ll + a.text() + desc

if __name__ == "__main__":
    args = []
    for x in sys.argv[1:]:
        if x.startswith("--"):
            k, _, v = x[2:].partition("=")
            if k == "FS": FS = int(v)
            else: setattr(OPT, k, int(v) if v else True)
        else: args.append(x)
    assert all((t * 37) >> 8 == t // 7 for t in range(56))
    open(args[0] if args else f"cdna_kernels/{NAME}.s", "w").write(build())
```

```python
import sys, math, struct
sys.path.insert(0, "dev")
from asmlib import Asm, vr, sr, check

NAME = "parallel_sum__grouped_kv_mqa__mixer_token_mlp__prompt"
WS_HT = 0
WS_KV = 2 << 20
WS_U  = 5 << 20
WS_O  = 7 << 20
WS_FLG = 10 << 20
FL_H  = WS_FLG
FS = 3
FL_KV = WS_FLG + (8192 << 4)
FL_U  = WS_FLG + (12288 << 4)
FL_O  = WS_FLG + (20480 << 4)
WS_EPOCH = WS_FLG + (32768 << 4)
WS_STAMP = 12 << 20
WS_SIZE = 16 << 20
DBLK = 64
class O: pass
OPT = O(); OPT.stamps = False; OPT.double = False; OPT.prio_g = 0; OPT.prio_e = 3; OPT.prio_a = 0; OPT.pf2step = 6; OPT.pre = 12; OPT.lw = 6; OPT.lw2 = 11; OPT.odeep = 1; OPT.fine = 0; OPT.prio_b = 0; OPT.kp = 0; OPT.unroll = 0; OPT.ldpos = 11; OPT.nmax = 16; OPT.adel = 0; OPT.gdel = 0; OPT.odel = 0; OPT.tdeep = 1; OPT.kt = 0; OPT.hot = 0; OPT.pdefer = 0; OPT.lsleep = 1; OPT.psleep = 0; OPT.npfa = 9; OPT.prio_t = 3; OPT.ka = 0; OPT.amp = -1; OPT.ampg = 0; OPT.prio_g1b = 0; OPT.fine0 = 2; OPT.dh = 5; OPT.pre0 = 4; OPT.nsg = 6; OPT.nsg2 = 9; OPT.e0 = 4; OPT.e1 = 8; OPT.e2 = 11; OPT.pf1pos = 3; OPT.order = 1; OPT.nogm = 0; OPT.nogv = 0; OPT.a1 = 10; OPT.b1 = 10; OPT.nl0 = 4; OPT.pfd = -100; OPT.kvpf = 1; OPT.a2 = 21; OPT.b2 = 21; OPT.ock = 2; OPT.early = 0; OPT.npf0 = 2; OPT.prio_g2 = 0; OPT.twice = 0; OPT.codepf = 1; OPT.prio_ld = 0; OPT.gatek = 8; OPT.ke = 12; OPT.fl_late = 0; OPT.rdin = 2; OPT.pre1 = 0; OPT.engd = 0; OPT.eng = 7; OPT.engw = 1; OPT.ra = 0; OPT.rb = 4; OPT.nou = 0; OPT.now2 = 0; OPT.dropw = 0; OPT.nocomb = 0; OPT.kvflag = 8; OPT.attit = 4; OPT.nold = 0; OPT.nodma = 0; OPT.nokv = 0
L_XT = 0; L_WQ = 57344; L_WKV = 114688
HB_STRIDE = 912
L_HB = 141056; L_QS = 147456; L_KC = 155648; L_KS = L_KC + 1024; L_MX = L_KC
L_ST = 158720; L_RT = 159232; L_CNT = 159360; LDS_TOTAL = 159744
RING = 12; L_RING = 49152; L_RED = 0
def slotp(k): return 8 + k % 4 if k < OPT.ke else (k - OPT.ke) % RING
C_X, C_KV, C_H, C_ST, C_Q, C_ISS, C_R1, C_R1D, C_ATT, C_R2, C_X1, C_XA, C_FL, C_PRE, C_KS, C_GO = range(16)
sXCD, sJ, sRB, sCB, sW = 3, 4, 5, 6, 7
sT0, sT1, sT2, sT3, sT4, sT5 = 8, 9, 10, 11, 12, 13
sHI = 14
P_X, P_WQ, P_WK, P_WV, P_WO, P_BX, P_W1, P_B1, P_W2, P_B2, P_OUT, P_DBG, P_WS = 16, 18, 20, 22, 24, 26, 28, 30, 32, 34, 36, 38, 40
sTAG = 42
R_X, R_WQ, R_WKV, R_WS, R_W1, R_W2, R_WO, R_OUT, R_KV = 44, 48, 52, 56, 60, 64, 68, 72, 76
R_B1, R_B2 = R_WKV, 20
sONES, sSPIN, sPFW = 82, 83, 99
sG, sGM, sGN, sRing, sA, sD, sL, sFB, sDb, sD2, sLb, sL2, sOUT, sB2 = range(84, 98)
sU0, sU1, sU2, sU3, sU4, sU5 = range(84, 90)
OOB = 0x40000000
EPS = 0x3727c5ac
QSCALE = (28 ** -0.5) * math.log2(math.e)
def f32(x): return "0x%08x" % struct.unpack("<I", struct.pack("<f", x))[0]
vLANE, vJ, vHH, vL16 = 1, 2, 3, 4
MF = "v_mfma_f32_32x32x16_bf16"

def stamp(a, idx):
    if OPT.amp >= 0:
        if idx == 0: a("v_mov_b32 v255, 0\ns_memrealtime s[100:101]\ns_waitcnt lgkmcnt(0)\nv_writelane_b32 v255, s100, 0")
        elif idx == OPT.amp: a("s_memrealtime s[100:101]\ns_waitcnt lgkmcnt(0)\nv_writelane_b32 v255, s100, 1")
        return
    if not OPT.stamps: return
    if OPT.stamps == 2 and idx not in (0, 15): return
    a(f"s_memrealtime s[100:101]\ns_waitcnt lgkmcnt(0)\nv_writelane_b32 v255, s100, {idx}")
    if idx in (0, 15): a(f"s_memtime s[100:101]\ns_waitcnt lgkmcnt(0)\nv_writelane_b32 v255, s100, {idx+32}")

def srd(a, r, p, size):
    a(f"s_mov_b32 s{r}, s{p}\ns_mov_b32 s{r+1}, s{p+1}\ns_mov_b32 s{r+2}, {size}\ns_mov_b32 s{r+3}, 0x20000")

def get_tag(a):
    a(f"""
    s_waitcnt lgkmcnt(0)
    s_mul_i32 s{sTAG}, s{sTAG}, 0x9e3779b5
    s_mul_i32 s{sTAG+1}, s{sTAG+1}, 0x85ebca6d
    s_add_u32 s{sTAG}, s{sTAG}, 0x7f4a7c15
    s_add_u32 s{sTAG+1}, s{sTAG+1}, 0x165667b1
    """)

def set_flag(a, soff, vt=30):
    a(f"""
    v_mov_b32 v{vt}, s{sTAG}
    v_mov_b32 v{vt+1}, s{sTAG+1}
    s_waitcnt vmcnt(0)
    s_mov_b64 exec, 1
    buffer_store_dwordx2 {vr(vt,2)}, off, {sr(R_WS,4)}, s{soff} sc1
    s_mov_b64 exec, -1
    """)

def poll(a, soff, n, vo=28, vt=30, sh=3):
    lp = a.label("poll"); dn = a.label("polld")
    a(f"""
    s_setprio 3
    v_min_u32 v{vo}, {n-1}, v{vLANE}
    v_lshlrev_b32 v{vo}, {sh+FS}, v{vo}
    s_mov_b32 s{sSPIN}, 20000
    {lp}:
    buffer_load_dwordx2 {vr(vt,2)}, v{vo}, {sr(R_WS,4)}, s{soff} offen sc1
    s_waitcnt vmcnt(0)
    v_cmp_ne_u64 vcc, {sr(sTAG,2)}, {vr(vt,2)}
    s_cbranch_vccz {dn}
    {f's_sleep {OPT.psleep}' if OPT.psleep else ''}
    s_sub_u32 s{sSPIN}, s{sSPIN}, 1
    s_cmp_lg_u32 s{sSPIN}, 0
    s_cbranch_scc1 {lp}
    {dn}:
    s_setprio 0
    """)

def lds_arrive(a, cnt, nowait=False):
    a(f"""
    s_mov_b64 exec, 1
    {'' if nowait else 's_waitcnt lgkmcnt(0)'}
    ds_add_u32 v0, v29 offset:{4*cnt}
    s_mov_b64 exec, -1
    """)
def lds_wait(a, cnt, target, sleep=0):
    spin = a.label("spin"); ent = a.label("spe")
    sleep = sleep or OPT.lsleep
    if sleep: a(f"s_branch {ent}\n{spin}:\ns_sleep {sleep}\n{ent}:")
    else: a(f"{spin}:")
    a(f"""
    ds_read_b32 v28, v0 offset:{4*cnt}
    s_waitcnt lgkmcnt(0)
    v_readfirstlane_b32 s{sT5}, v28
    s_cmp_lt_u32 s{sT5}, {target}
    s_cbranch_scc1 {spin}
    """)

def bf16_stats(a, vs, vq, vm, vr_, t):
    a(f"""
    v_mul_f32 v{vs}, {f32(1/448)}, v{vs}
    v_mul_f32 v{vq}, {f32(1/448)}, v{vq}
    v_fma_f32 v{vq}, -v{vs}, v{vs}, v{vq}
    v_max_f32 v{vq}, 0, v{vq}
    v_cvt_pk_bf16_f32 v{t}, v{vs}, v{vq}
    v_lshlrev_b32 v{vm}, 16, v{t}
    v_and_b32 v{t}, 0xffff0000, v{t}
    v_add_f32 v{t}, {EPS:#x}, v{t}
    v_cvt_pk_bf16_f32 v{t}, v{t}, v{t}
    v_and_b32 v{t}, 0xffff0000, v{t}
    v_sqrt_f32 v{t}, v{t}
    s_nop 0
    v_cvt_pk_bf16_f32 v{t}, v{t}, v{t}
    v_and_b32 v{t}, 0xffff0000, v{t}
    v_rcp_f32 v{vr_}, v{t}
    s_nop 0
    """)

def dpp_reduce(a, vs, vq, modes):
    a("s_nop 2")
    for mode in modes:
        a(f"v_add_f32_dpp v{vs}, v{vs}, v{vs} {mode} row_mask:0xf bank_mask:0xf")
        a(f"v_add_f32_dpp v{vq}, v{vq}, v{vq} {mode} row_mask:0xf bank_mask:0xf")
        a("s_nop 0")
QP1, QP2, RHM, RM = "quad_perm:[1,0,3,2]", "quad_perm:[2,3,0,1]", "row_half_mirror", "row_mirror"

def split_hi_lo(a, dst, src, t):
    a(f"""
    v_cvt_pk_bf16_f32 v{t}, v{src}, v{src}
    v_and_b32 v{t}, 0xffff0000, v{t}
    v_sub_f32 v{t}, v{src}, v{t}
    v_cvt_pk_bf16_f32 v{dst}, v{src}, v{t}
    """)

def prologue(a, end):
    a(f"s_cmp_ge_u32 s2, 256\ns_cbranch_scc1 {end}x")
    if OPT.double: a("s_memrealtime s[100:101]")
    if OPT.stamps: a("v_mov_b32 v255, 0")
    stamp(a, 0)
    a(f"""
    s_load_dwordx16 s[16:31], s[0:1], 0
    s_load_dwordx8 s[32:39], s[0:1], 64
    s_load_dwordx2 s[40:41], s[0:1], 96
    v_lshrrev_b32 v5, 6, v0
    v_and_b32 v{vLANE}, 63, v0
    v_readfirstlane_b32 s{sW}, v5
    v_and_b32 v{vJ}, 31, v0
    v_lshrrev_b32 v{vHH}, 5, v{vLANE}
    v_lshlrev_b32 v{vL16}, 4, v{vLANE}
    s_and_b32 s{sXCD}, s2, 7
    s_lshr_b32 s{sJ}, s2, 3
    """)
    if OPT.codepf:
        a(f"""
        s_cmp_lg_u32 s{sW}, 7
        s_cbranch_scc1 nocpf
        s_getpc_b64 s[{R_OUT}:{R_OUT+1}]
        cpf_here:
        s_sub_u32 s{R_OUT}, s{R_OUT}, cpf_here-{NAME}_kernel
        s_subb_u32 s{R_OUT+1}, s{R_OUT+1}, 0
        s_mov_b32 s{R_OUT+2}, code_end-{NAME}_kernel
        s_mov_b32 s{R_OUT+3}, 0x20000
        s_lshl_b32 s{sT0}, s{sJ}, 7
        v_lshlrev_b32 v6, 12, v{vLANE}
        buffer_load_dword v250, v6, {sr(R_OUT,4)}, s{sT0} offen
        nocpf:
        """)
    a(f"""
    s_lshr_b32 s{sT0}, s{sJ}, 3
    s_lshl_b32 s{sRB}, s{sXCD}, 2
    s_add_u32 s{sRB}, s{sRB}, s{sT0}
    s_and_b32 s{sCB}, s{sJ}, 7
    s_mov_b32 s{sHI}, 0
    s_mov_b32 s{sHI+1}, -1
    s_mov_b32 s{sONES}, 0x3f803f80
    v_lshlrev_b32 v5, 2, v{vLANE}
    v_add_u32 v5, {L_CNT}, v5
    v_mov_b32 v6, 0
    ds_write_b32 v5, v6
    v_mov_b32 v0, {L_CNT}
    v_mov_b32 v29, 1
    v_lshrrev_b32 v5, 3, v{vLANE}
    v_and_b32 v6, 7, v{vLANE}
    v_lshrrev_b32 v7, 4, v{vLANE}
    v_bfe_u32 v8, v{vLANE}, 2, 2
    v_and_b32 v9, 3, v{vLANE}
    v_and_b32 v10, 1, v7
    v_lshlrev_b32 v9, 3, v9
    v_lshl_add_u32 v9, v10, 5, v9
    """)
    p1_addr(a)
    a(f"s_cmp_ge_u32 s{sW}, 4\ns_cbranch_scc1 p1g")

def common_srds(a):
    a(f"s_mov_b32 s{sT5}, {WS_EPOCH}\ns_waitcnt lgkmcnt(0)")
    stamp(a, 1)
    a(f"s_load_dwordx2 {sr(sTAG,2)}, {sr(P_WS,2)}, s{sT5}")
    srd(a, R_X, P_X, 2048 * 896)
    srd(a, R_WS, P_WS, WS_SIZE)

def epoch_load(a): pass

vXe, vXo, vWQd = 11, 12, 13
sNL, sXs, sXm, sNT, sW3 = 76, 77, 78, 79, 80
sXs2, sXm2, sQs, sQm = 26, 27, 38, 39
def p1_addr(a):
    a(f"""
    v_mul_u32_u24 v20, 896, v5
    v_xor_b32 v21, v6, v7
    v_lshl_add_u32 v{vXe}, v21, 4, v20
    v_xor_b32 v21, 4, v21
    v_lshl_add_u32 v{vXo}, v21, 4, v20
    v_lshlrev_b32 v21, 2, v10
    v_xor_b32 v21, v21, v6
    v_lshl_add_u32 v{vWQd}, v21, 4, v20
    s_and_b32 s{sW3}, s{sW}, 3
    s_cmp_eq_u32 s{sW3}, 3
    s_cselect_b32 s{sNL}, 1, 2
    s_bfe_u32 s{sNT}, s{sCB}, 0x10001
    s_lshl_b32 s{sT0}, s{sRB}, 1
    s_add_u32 s{sT0}, s{sT0}, s{sNT}
    s_mul_i32 s{sXs}, s{sT0}, {32*896}
    s_lshl_b32 s{sT0}, s{sW3}, 8
    s_add_u32 s{sXs}, s{sXs}, s{sT0}
    s_lshl_b32 s{sXm}, s{sW3}, 14
    s_lshl_b32 s{sT0}, s{sNT}, 12
    s_add_u32 s{sXm}, s{sXm}, s{sT0}
    """)
def rest_dma(a, after_x=None):
    srd(a, R_WQ, P_WQ, 448 * 896)
    a(f"""
    s_xor_b32 s{sXm2}, s{sXm}, 4096
    s_mul_i32 s{sT0}, s{sNT}, {2*32*896}
    s_add_u32 s{sXs2}, s{sXs}, {32*896}
    s_sub_u32 s{sXs2}, s{sXs2}, s{sT0}
    s_mul_i32 s{sQs}, s{sW3}, {128*896}
    s_mul_i32 s{sT0}, s{sCB}, 112
    s_add_u32 s{sQs}, s{sQs}, s{sT0}
    s_lshl_b32 s{sQm}, s{sW3}, 14
    """)
    if after_x: after_x()
    PF1 = f"buffer_load_dword v249, v{vPF1}, {sr(R_W1,4)}, s{sPFW} offen"
    if OPT.pf1pos == 0: a(PF1)
    l1 = a.label("rd1"); l2 = a.label("rd2")
    for line in range(2):
        if line: a(f"s_cmp_eq_u32 s{sNL}, 1\ns_cbranch_scc1 {l1}")
        for b in range(4):
            a(f"""
            s_add_u32 m0, s{sXm2}, {L_XT + line*8192 + b*1024}
            s_add_u32 s{sT0}, s{sXs2}, {b*8*896 + line*128}
            buffer_load_dwordx4 v{vXo if b & 1 else vXe}, {sr(R_X,4)}, s{sT0} offen lds
            """)
    a(f"{l1}:")
    if OPT.pf1pos == 1: a(PF1)
    for line in range(2):
        if line:
            a(f"s_waitcnt vmcnt({9 if OPT.pf1pos == 1 else 8})")
            lds_arrive(a, C_XA, nowait=True)
            a(f"s_cmp_eq_u32 s{sNL}, 1\ns_cbranch_scc1 {l2}")
        for b in range(8):
            a(f"""
            s_add_u32 m0, s{sQm}, {L_WQ + line*8192 + b*1024}
            s_add_u32 s{sT0}, s{sQs}, {(line*64 + b*8)*896}
            buffer_load_dwordx4 v{vWQd}, {sr(R_WQ,4)}, s{sT0} offen lds
            """)
    a(f"{l2}:")

vPF1 = 246
def pf1_addr(a):
    a(f"""
    v_min_u32 v14, 6, v6
    v_mul_u32_u24 v{vPF1}, 3584, v5
    v_lshl_add_u32 v{vPF1}, v14, 7, v{vPF1}
    s_lshl_b32 s{sT1}, s{sW3}, 6
    s_lshr_b32 s{sT2}, s{sJ}, 3
    s_lshl_b32 s{sT2}, s{sT2}, 1
    s_add_u32 s{sT1}, s{sT1}, s{sT2}
    s_and_b32 s{sT2}, s{sCB}, 1
    s_add_u32 s{sT1}, s{sT1}, s{sT2}
    s_sub_u32 s{sT1}, s{sT1}, 1
    s_mul_i32 s{sPFW}, s{sT1}, {8*3584}
    s_lshr_b32 s{sT2}, s{sXCD}, 1
    s_mul_i32 s{sT2}, s{sT2}, 896
    s_add_u32 s{sPFW}, s{sPFW}, s{sT2}
    """)
    srd(a, R_W1, P_W1, 2048 * 3584)

def stats_code(a, st0, st1, sRBk, SX=128, T=40):
    a(f"""
    v_lshrrev_b32 v{T}, 2, v{vLANE}
    v_and_b32 v{T+1}, 3, v{vLANE}
    v_lshlrev_b32 v{T+1}, 5, v{T+1}
    v_lshl_add_u32 v{T+1}, v{T}, 7, v{T+1}
    v_lshlrev_b32 v{T+2}, 1, v{vLANE}
    v_and_b32 v{T+2}, 16, v{T+2}
    v_add_u32 v{T+1}, v{T+1}, v{T+2}
    s_lshl_b32 s{sT0}, s{sRBk}, 11
    v_add_u32 v{T+1}, s{sT0}, v{T+1}
    v_xor_b32 v{T+3}, 16, v{T+1}
    s_lshl_b32 s{sT0}, s{sRBk}, 7
    s_add_u32 s{sT0}, s{sT0}, {L_ST}
    v_lshl_add_u32 v{T}, v{T}, 3, s{sT0}
    v_mov_b32 v{T+4}, 0
    v_mov_b32 v{T+5}, 0
    """)
    lds_wait(a, C_X1, 4)
    lds_wait(a, C_XA, 4)
    stamp(a, st0)
    for c in range(7):
        a(f"ds_read_b128 {vr(SX+8*c,4)}, v{T+1} offset:{L_XT + c*8192}")
        a(f"ds_read_b128 {vr(SX+8*c+4,4)}, v{T+3} offset:{L_XT + c*8192}")
    for c in range(7):
        a(f"s_waitcnt lgkmcnt({2*(6-c)})")
        for i in range(8):
            a(f"v_dot2c_f32_bf16 v{T+4}, s{sONES}, v{SX+8*c+i}")
            a(f"v_dot2c_f32_bf16 v{T+5}, v{SX+8*c+i}, v{SX+8*c+i}")
    dpp_reduce(a, T + 4, T + 5, [QP1, QP2])
    bf16_stats(a, T + 4, T + 5, T + 3, T + 7, T + 2)
    a(f"""
    v_cvt_pk_bf16_f32 v{T+6}, -v{T+3}, -v{T+3}
    v_mul_f32 v{T+7}, {f32(QSCALE)}, v{T+7}
    ds_write_b64 v{T}, {vr(T+6,2)}
    """)
    lds_arrive(a, C_ST, nowait=True)
    stamp(a, st1)

def p1_a(a):
    vXF, vWK, vWQr = 14, 18, 19
    sB, sM = 94, 96
    a(f"""
    s_and_b32 s{sT1}, s{sCB}, 1
    s_lshl_b32 s{sT2}, s{sT1}, 11
    s_xor_b32 s{sM}, s{sXm}, s{sT2}
    s_lshr_b32 s{sT3}, s{sJ}, 3
    s_lshl_b32 s{sT3}, s{sT3}, 1
    s_add_u32 s{sT3}, s{sT3}, s{sT1}
    s_mul_i32 s{sT1}, s{sT1}, {16*896}
    s_add_u32 s{sB}, s{sXs}, s{sT1}
    s_add_u32 s{sT2}, s{sXs}, {16*896}
    s_sub_u32 s{sB+1}, s{sT2}, s{sT1}
    v_lshlrev_b32 v21, 7, v{vLANE}
    s_mov_b32 s{sT4}, 0
    """)
    common_srds(a)
    def x_half(h):
        sk = a.label("xh")
        for line in range(2):
            if line: a(f"s_cmp_eq_u32 s{sNL}, 1\ns_cbranch_scc1 {sk}")
            for b in range(2):
                a(f"""
                s_xor_b32 m0, s{sM}, {line*8192 + h*2048 + b*1024}
                s_add_u32 s{sT0}, s{sB+h}, {b*8*896 + line*128}
                buffer_load_dwordx4 v{vXo if b else vXe}, {sr(R_X,4)}, s{sT0} offen lds
                """)
        a(f"{sk}:")
    def frag_addr():
        a(f"""
        v_lshrrev_b32 v20, 1, v{vJ}
        v_and_b32 v20, 7, v20
        v_xor_b32 v20, v20, v{vHH}
        v_lshlrev_b32 v20, 4, v20
        v_lshl_add_u32 v{vXF}, v{vJ}, 7, v20
        v_xor_b32 v{vXF+1}, 32, v{vXF}
        v_xor_b32 v{vXF+2}, 64, v{vXF}
        v_xor_b32 v{vXF+3}, 96, v{vXF}
        v_lshl_add_u32 v20, v{vHH}, 3, v8
        """)
    nop_ = a.label("notp"); other = a.label("notkv"); htype = a.label("htype"); qgo = a.label("qgo"); dostats = a.label("dostats"); poststats = a.label("poststats")
    x_half(0)
    a(f"s_cmp_ge_u32 s{sCB}, 4\ns_cbranch_scc1 {other}")
    x_half(1)
    a(f"""
    s_bitcmp1_b32 s{sCB}, 0
    s_cselect_b32 s{R_WKV}, s{P_WV}, s{P_WK}
    s_cselect_b32 s{R_WKV+1}, s{P_WV+1}, s{P_WK+1}
    s_mov_b32 s{R_WKV+2}, {448*56}
    s_mov_b32 s{R_WKV+3}, 0x20000
    s_mul_i32 s{sT1}, s{sW}, 7168
    s_add_u32 m0, s{sT1}, {L_WKV}
    s_cmp_eq_u32 s{sNL}, 1
    """)
    w3 = a.label("wk3")
    for i in range(4): a(f"buffer_load_dwordx4 v{vL16}, {sr(R_WKV,4)}, s{sT1} offen offset:{1024*i} lds")
    a(f"""
    s_cbranch_scc1 {w3}
    s_add_u32 m0, m0, 4096
    s_add_u32 s{sT1}, s{sT1}, 4096
    """)
    for i in range(3): a(f"buffer_load_dwordx4 v{vL16}, {sr(R_WKV,4)}, s{sT1} offen offset:{1024*i} lds")
    a(f"{w3}:")
    epoch_load(a)
    a("s_barrier")
    frag_addr()
    ACC, XF, WF = 96, 32, 64
    vQ, vS, vC = 22, 23, 21
    a(f"""
    v_mul_u32_u24 v{vWK}, 56, v20
    v_add_u32 v{vWK}, v{vWK}, v9
    s_mul_i32 s{sT1}, s{sW}, 7168
    s_add_u32 s{sT1}, s{sT1}, {L_WKV}
    v_add_u32 v{vWK}, s{sT1}, v{vWK}
    v_add_u32 v24, s{sXm}, v{vXF}
    v_xor_b32 v25, 32, v24
    v_xor_b32 v30, 64, v24
    v_xor_b32 v31, 96, v24
    v_mov_b32 v{vS}, 0
    v_mov_b32 v{vQ}, 0
    v_mov_b32 v{vC}, 0
    s_lshl_b32 s{sT0}, s{sW}, 4
    s_add_u32 s{sT0}, s{sT0}, {L_KS}
    v_lshlrev_b32 v120, 6, v{vJ}
    v_lshl_add_u32 v121, v{vHH}, 3, v120
    v_add_u32 v121, s{sT0}, v121
    s_lshl_b32 s{sT0}, s{sW}, 2
    s_add_u32 s{sT0}, s{sT0}, {L_KC}
    v_add_u32 v122, s{sT0}, v{vL16}
    v_add_u32 v123, s{sT1}, v{vL16}
    """)
    xa = [24, 25, 30, 31]
    l0 = a.label("kv0"); l1 = a.label("kv1a"); l2 = a.label("kv1b"); l3 = a.label("kv1c"); vlab = a.label("kvv"); fin = a.label("kvfin")
    def skip1(lab): a(f"s_cmp_eq_u32 s{sNL}, 1\ns_cbranch_scc1 {lab}")
    a(f"s_waitcnt vmcnt(7)\ns_cmp_eq_u32 s{sNL}, 1\ns_cbranch_scc0 {l0}\ns_waitcnt vmcnt(4)\n{l0}:")
    stamp(a, 2)
    for line in range(2):
        for q in range(4): a(f"ds_read_b128 {vr(XF+16*line+4*q,4)}, v{xa[q]} offset:{L_XT + line*8192}")
    lds_arrive(a, C_X1, nowait=True)
    for line in range(2):
        if line: skip1(l1)
        for q in range(4):
            a(f"s_waitcnt lgkmcnt({8-4*line-q})")
            for i in range(4):
                r = XF + 16 * line + 4 * q + i
                a(f"v_dot2c_f32_bf16 v{vS}, s{sONES}, v{r}\nv_dot2c_f32_bf16 v{vQ}, v{r}, v{r}")
    a(f"{l1}:\ns_waitcnt vmcnt(0) lgkmcnt(0)\ns_nop 1\nds_write_b64 v121, v[22:23]")
    stamp(a, 18)
    for k in range(8):
        if k == 7: a("s_waitcnt lgkmcnt(13)")
        a(f"ds_read_b64_tr_b16 {vr(WF+4*k,2)}, v{vWK} offset:{k*896}")
        a(f"ds_read_b64_tr_b16 {vr(WF+4*k+2,2)}, v{vWK} offset:{k*896+224}")
    for k in range(8):
        if k == 4: skip1(l3)
        a(f"s_waitcnt lgkmcnt({14-2*k})")
        for i in range(4): a(f"v_dot2c_f32_bf16 v{vC}, s{sONES}, v{WF+4*k+i}")
    a(f"{l3}:\ns_bitcmp1_b32 s{sCB}, 0\ns_cbranch_scc1 {vlab}")
    for isv in (0, 1):
        if isv: a(f"{vlab}:")
        for k in range(8):
            if k == 4: skip1(fin)
            A, B = (vr(XF+4*k,4), vr(WF+4*k,4)) if isv else (vr(WF+4*k,4), vr(XF+4*k,4))
            a(f"{MF} {vr(ACC,16)}, {A}, {B}, {vr(ACC,16) if k else 0}")
            if k == 0:
                split_hi_lo(a, 24, vC, 31)
                a("ds_write_b32 v122, v24")
                lds_arrive(a, C_KS, nowait=True)
        if not isv: a(f"s_branch {l2}")
    a(f"""
    {l2}:
    s_lshl_b32 s{sT2}, s{sNT}, 1
    s_xor_b32 s{sT2}, s{sT2}, 2
    s_add_u32 s{sT2}, s{sT2}, s{sW}
    """)
    get_tag(a)
    a("s_nop 3")
    for g in range(4): a(f"ds_write_b128 v123, {vr(ACC+4*g,4)} offset:{1024*g}")
    lds_arrive(a, C_KV, nowait=True)
    stamp(a, 3)
    a(f"s_cmp_lt_u32 s{sW}, 2\ns_cbranch_scc1 {dostats}")
    lds_arrive(a, C_ST, nowait=True)
    a(f"s_branch {qgo}")
    vfin = a.label("vfin"); kvst = a.label("kvst"); vf2 = a.label("vf2"); cm = a.label("kvcm")
    a(f"""
    {fin}:
    s_setprio 3
    v_add_u32 v24, {L_KS}, v120
    v_add_u32 v25, {L_WKV}, v{vL16}
    v_add_u32 v21, {L_KC}, v{vL16}
    s_lshl_b32 s{sT1}, s{sRB}, 1
    s_add_u32 s{sT1}, s{sT1}, s{sNT}
    s_lshl_b32 s{sT1}, s{sT1}, 12
    s_add_u32 s{sT1}, s{sT1}, {WS_KV}
    s_lshl_b32 s{sT4}, s{sRB}, 2
    s_add_u32 s{sT4}, s{sT4}, s{sCB}
    s_lshl_b32 s{sT4}, s{sT4}, {3+FS}
    s_add_u32 s{sT4}, s{sT4}, {FL_KV}
    s_lshl_b32 s{sT0}, s{sNT}, 8
    s_add_u32 s{sT0}, s{sT0}, {L_ST}
    v_lshl_add_u32 v30, v{vJ}, 3, s{sT0}
    s_waitcnt vmcnt(0)
    """)
    get_tag(a)
    lds_wait(a, C_KS, 4)
    for g in range(4): a(f"ds_read_b128 {vr(XF+4*g,4)}, v24 offset:{16*g}")
    a(f"ds_read_b128 {vr(112,4)}, v21\ns_waitcnt lgkmcnt(1)")
    for i in range(4): a(f"v_pk_add_f32 {vr(XF+4*i,2)}, {vr(XF+4*i,2)}, {vr(XF+4*i+2,2)}")
    a(f"""
    v_pk_add_f32 {vr(XF,2)}, {vr(XF,2)}, {vr(XF+4,2)}
    v_pk_add_f32 {vr(XF+8,2)}, {vr(XF+8,2)}, {vr(XF+12,2)}
    v_pk_add_f32 {vr(XF,2)}, {vr(XF,2)}, {vr(XF+8,2)}
    """)
    bf16_stats(a, XF + 1, XF, 22, 23, 21)
    a(f"""
    v_cvt_pk_bf16_f32 v116, -v22, -v22
    v_lshlrev_b32 v21, 2, v{vJ}
    v_add_u32 v21, {L_RT}, v21
    ds_write_b32 v21, v23
    v_mul_f32 v117, {f32(QSCALE)}, v23
    v_lshlrev_b32 v21, 4, v{vHH}
    v_add_u32 v21, {L_RT}, v21
    ds_write_b64 v30, v[116:117]
    v_mov_b32 v118, v116
    v_mov_b32 v119, v116
    v_mov_b32 v22, v23
    """)
    lds_arrive(a, C_ST, nowait=True)
    a(f"""
    s_waitcnt lgkmcnt(0)
    v_mov_b32 v117, v116
    s_bitcmp1_b32 s{sCB}, 0
    s_cbranch_scc1 {vfin}
    {MF} {vr(ACC,16)}, {vr(112,4)}, {vr(116,4)}, {vr(ACC,16)}
    s_branch {cm}
    {vfin}:
    {MF} {vr(ACC,16)}, {vr(116,4)}, {vr(112,4)}, {vr(ACC,16)}
    """)
    for g in range(4): a(f"ds_read_b128 {vr(XF+4*g,4)}, v21 offset:{32*g}")
    a(f"""
    s_add_u32 s{sT1}, s{sT1}, 2048
    v_cmp_eq_u32 vcc, 28, v{vJ}
    v_mov_b32 v24, 0x3f803f80
    s_nop 1
    v_cndmask_b32 v24, 0, v24, vcc
    """)
    for i in range(8): a(f"v_mov_b32 v{120+i}, v24")
    a(f"{cm}:")
    lds_wait(a, C_KV, 3)
    stamp(a, 4)
    for w in range(3):
        for g in range(4): a(f"ds_read_b128 {vr(128+16*w+4*g,4)}, v25 offset:{7168*w+1024*g}")
    for w in range(3):
        a(f"s_waitcnt lgkmcnt({8-4*w})")
        for r in range(0, 16, 2): a(f"v_pk_add_f32 {vr(ACC+r,2)}, {vr(ACC+r,2)}, {vr(128+16*w+r,2)}")
    a(f"s_bitcmp1_b32 s{sCB}, 0\ns_cbranch_scc1 {vf2}")
    for r in range(0, 16, 2): a(f"v_pk_mul_f32 {vr(ACC+r,2)}, {vr(ACC+r,2)}, v[22:23]")
    for i in range(8): a(f"v_cvt_pk_bf16_f32 v{120+i}, v{ACC+2*i}, v{ACC+2*i+1}")
    a(f"""
    s_mov_b64 exec, {sr(sHI,2)}
    v_mov_b32 v126, 0x3f803f80
    v_mov_b32 v127, 0x00003f80
    s_branch {kvst}
    {vf2}:
    s_mov_b32 exec_lo, 0x0fffffff
    s_mov_b32 exec_hi, 0x0fffffff
    """)
    for r in range(0, 16, 2): a(f"v_pk_mul_f32 {vr(ACC+r,2)}, {vr(ACC+r,2)}, {vr(XF+r,2)}")
    for i in range(8): a(f"v_cvt_pk_bf16_f32 v{120+i}, v{ACC+2*i}, v{ACC+2*i+1}")
    a(f"""
    {kvst}:
    s_mov_b64 exec, -1
    buffer_store_dwordx4 {vr(120,4)}, v{vL16}, {sr(R_WS,4)}, s{sT1} offen sc1
    buffer_store_dwordx4 {vr(124,4)}, v{vL16}, {sr(R_WS,4)}, s{sT1} offen offset:1024 sc1
    """)
    stamp(a, 5)
    if OPT.kvflag < 0:
        set_flag(a, sT4)
        a(f"s_mov_b32 s{sT4}, 0\ns_setprio 0")
        stamp(a, 6)
    if not OPT.fl_late or OPT.kvflag < 0: lds_arrive(a, C_FL, nowait=True)
    a(f"s_branch {qgo}")
    a(f"{other}:")
    a(f"""
    s_lshr_b32 s{sT3}, s{sJ}, 3
    s_lshl_b32 s{sT3}, s{sT3}, 2
    s_add_u32 s{sT3}, s{sT3}, s{sCB}
    s_sub_u32 s{sT3}, s{sT3}, 4
    s_lshl_b32 s{sT0}, s{sT3}, 2
    s_add_u32 s{sT0}, s{sT0}, s{sW}
    s_cmp_eq_u32 s{sT3}, 1
    s_cselect_b32 s{R_WKV}, s{P_WV}, s{P_WK}
    s_cselect_b32 s{R_WKV+1}, s{P_WV+1}, s{P_WK+1}
    s_mov_b32 s{R_WKV+2}, {448*896}
    s_sub_u32 s{sT1}, s{sT0}, 8
    s_cmp_lt_u32 s{sT3}, 2
    s_cselect_b32 s{R_WKV}, s{R_WKV}, s{P_WQ}
    s_cselect_b32 s{R_WKV+1}, s{R_WKV+1}, s{P_WQ+1}
    s_cselect_b32 s{R_WKV+2}, {448*56}, s{R_WKV+2}
    s_cselect_b32 s{sT1}, s{sW}, s{sT1}
    s_mov_b32 s{R_WKV+3}, 0x20000
    s_lshl_b32 s{sT1}, s{sT1}, 13
    buffer_load_dword v250, v21, {sr(R_WKV,4)}, s{sT1} offen
    """)
    pf1_addr(a)
    frag_addr()
    a(f"s_mov_b32 s{sT2}, s{sW}\ns_barrier\ns_waitcnt vmcnt(1)")
    stamp(a, 2)
    lds_arrive(a, C_X1, nowait=True)
    def early():
        ne = a.label("noearly"); nw = a.label("nowait")
        a(f"s_cmp_lt_u32 s{sCB}, 6\ns_cbranch_scc1 {nw if OPT.pdefer else ne}\ns_cmp_eq_u32 s{sJ}, 6\ns_cbranch_scc1 {nw if OPT.pdefer else ne}")
        for i in range(OPT.npf0):
            if i == OPT.npfa: lds_wait(a, C_FL, 4)
            a(f"buffer_load_dword v{251+i%3}, v{vPF1}, {sr(R_W1,4)}, s{sPFW} offen\ns_add_u32 s{sPFW}, s{sPFW}, {56*3584}")
        a(f"{nw}:")
        lds_wait(a, C_FL, 4)
        a(f"{ne}:")
        x_half(1)
    rest_dma(a, early)
    lds_arrive(a, C_ISS, nowait=True)
    get_tag(a)
    stamp(a, 3)
    a(f"{dostats}:")
    stats_code(a, 20, 21, sT2)
    a(f"s_cmp_lt_u32 s{sCB}, 4\ns_cbranch_scc1 {qgo}\ns_waitcnt vmcnt(0)")
    lds_arrive(a, C_X, nowait=True)
    QACC, B0 = 128, 32
    a(f"""
    {qgo}:
    s_and_b32 s{sT0}, s{sW}, 1
    s_mul_i32 s{sT0}, s{sT0}, 56
    v_add_u32 v{vWQr}, s{sT0}, v9
    v_lshlrev_b32 v21, 5, v8
    v_and_b32 v21, 64, v21
    v_xor_b32 v{vWQr}, v{vWQr}, v21
    v_lshl_add_u32 v{vWQr}, v20, 7, v{vWQr}
    v_add_u32 v{vWQr}, {L_WQ}, v{vWQr}
    s_lshr_b32 s{sT1}, s{sW}, 1
    s_lshl_b32 s{sT0}, s{sT1}, 12
    v_mov_b32 v23, 0
    v_mov_b32 v113, 0
    v_mov_b32 v114, 0
    v_mov_b32 v115, 0
    v_mov_b32 v118, 0
    v_mov_b32 v119, 0
    """)
    for q in range(4): a(f"v_add_u32 v{vXF+q}, s{sT0}, v{vXF+q}")
    a(f"""
    s_lshl_b32 s{sT1}, s{sT1}, 8
    s_add_u32 s{sT1}, s{sT1}, {L_ST}
    v_lshl_add_u32 v24, v{vJ}, 3, s{sT1}
    """)
    lds_wait(a, C_X1, 4)
    lds_wait(a, C_X, 4)
    stamp(a, 7)
    D = 4; NB = 8
    WR = list(range(64, 112, 4)) + list(range(144, 176, 4)) + list(range(224, 248, 4)) + [120, 124]
    def wreg(ks): return WR[ks]
    def reads(ks):
        b = wreg(ks)
        a(f"ds_read_b64_tr_b16 {vr(b,2)}, v{vWQr} offset:{ks*2048}")
        a(f"ds_read_b64_tr_b16 {vr(b+2,2)}, v{vWQr} offset:{ks*2048+512}")
        a(f"ds_read_b128 {vr(B0+4*(ks%NB),4)}, v{vXF+(ks&3)} offset:{L_XT + (ks>>2)*8192}")
    for ks in range(D): reads(ks)
    for ks in range(28):
        if ks + D < 28: reads(ks + D)
        a(f"s_waitcnt lgkmcnt({3*min(D, 27-ks)})")
        a(f"{MF} {vr(QACC,16)}, {vr(wreg(ks),4)}, {vr(B0+4*(ks%NB),4)}, {'0' if ks == 0 else vr(QACC,16)}")
        if ks == OPT.kvflag:
            nf = a.label("nofl")
            a(f"s_cmp_eq_u32 s{sT4}, 0\ns_cbranch_scc1 {nf}")
            set_flag(a, sT4)
            if OPT.fl_late: lds_arrive(a, C_FL, nowait=True)
            a("s_setprio 0")
            stamp(a, 6)
            a(f"{nf}:")
    stamp(a, 19)
    if OPT.prio_ld: a(f"s_setprio {OPT.prio_ld}")
    att_setup(a)
    if OPT.early: a(f"buffer_load_dwordx2 v[30:31], v25, {sr(R_WS,4)}, s{sKF} offen sc1")
    for ks in range(28):
        for i in range(4): a(f"v_dot2c_f32_bf16 v23, s{sONES}, v{wreg(ks)+i}")
    if OPT.early:
        nk = a.label("nokvyet")
        a(f"""
        s_waitcnt vmcnt(0)
        v_cmp_ne_u64 vcc, {sr(sTAG,2)}, v[30:31]
        s_cbranch_vccnz {nk}
        """)
        first_kv(a)
        a(f"s_mov_b32 s{sKF}, 0\n{nk}:")
    stamp(a, 8)
    lds_wait(a, C_ST, 8)
    a(f"ds_read_b64 v[116:117], v24")
    split_hi_lo(a, 112, 23, 21)
    a(f"""
    s_waitcnt lgkmcnt(0)
    v_mov_b32 v22, v117
    v_mov_b32 v23, v117
    v_mov_b32 v117, 0
    s_nop 1
    {MF} {vr(QACC,16)}, {vr(112,4)}, {vr(116,4)}, {vr(QACC,16)}
    s_lshl_b32 s{sT1}, s{sW}, 11
    s_add_u32 s{sT1}, s{sT1}, {L_QS}
    v_add_u32 v21, s{sT1}, v{vL16}
    """)
    for r in range(64, 76): a(f"v_mov_b32 v{r}, 0")
    for r in range(0, 16, 2): a(f"v_pk_mul_f32 {vr(QACC+r,2)}, {vr(QACC+r,2)}, v[22:23]")
    for i in range(8): a(f"v_cvt_pk_bf16_f32 v{32+i}, v{QACC+2*i}, v{QACC+2*i+1}")
    a(f"""
    s_mov_b64 exec, {sr(sHI,2)}
    v_mov_b32 v38, 0
    v_mov_b32 v39, 0
    s_mov_b64 exec, -1
    ds_write_b128 v21, {vr(32,4)}
    ds_write_b128 v21, {vr(36,4)} offset:1024
    """)
    lds_arrive(a, C_Q, nowait=True)

vDW1, vDW2, vDWO, vOUT, vT1, vT2, vT3, vLN, vLM, vPF, vPF2 = 48, 49, 50, 51, 52, 54, 56, 58, 60, 62, 63
vTH, vSW = 240, 247
sHasG1 = 98
sLb0, sLbE, sDb0, sDbE = 34, 35, 36, 37
sFH, sPH, sB1o, sFU, sUS, sFUc, sPU, sFOc, sSH1 = 16, 17, 28, 29, 30, 31, 32, 33, 81
def g_setup1(a, mid=None):
    srd(a, R_B1, P_B1, 1792 * 2)
    a(f"""
    s_lshr_b32 s{sGM}, s{sG}, 1
    s_and_b32 s{sGN}, s{sG}, 1
    s_lshl_b32 s{sRing}, s{sG}, 11
    s_add_u32 s{sRing}, s{sRing}, {L_RING}
    v_lshlrev_b32 v{vDWO}, 2, v10
    v_xor_b32 v{vDWO}, v{vDWO}, v6
    v_lshlrev_b32 v{vDWO}, 4, v{vDWO}
    v_lshl_add_u32 v{vT3}, v8, 7, v9
    v_lshlrev_b32 v24, 5, v8
    v_and_b32 v24, 64, v24
    v_add_u32 v{vT3}, v{vT3}, v24
    v_add_u32 v{vT3}, s{sRing}, v{vT3}
    s_lshr_b32 s{sT0}, s{sJ}, 3
    s_mul_i32 s{sT0}, s{sT0}, 6
    s_add_u32 s{sT0}, s{sT0}, s{sCB}
    s_cmp_lt_u32 s{sCB}, 6
    s_cselect_b32 s{sHasG1}, 1, 0
    s_and_b32 s{sT1}, s2, 0xf9
    s_cmp_eq_u32 s{sT1}, 48
    s_cselect_b32 s{sT0}, 24, s{sT0}
    s_cselect_b32 s{sHasG1}, 1, s{sHasG1}
    s_and_b32 s{sT1}, s{sXCD}, 1
    s_mul_i32 s{sT1}, s{sT1}, 25
    s_add_u32 s{sT0}, s{sT0}, s{sT1}
    s_mul_i32 s{sA}, s{sT0}, 37
    s_lshr_b32 s{sA}, s{sA}, 8
    s_mul_i32 s{sT1}, s{sA}, 7
    s_sub_u32 s{sPH}, s{sT0}, s{sT1}
    s_lshr_b32 s{sFB}, s{sXCD}, 1
    s_mul_i32 s{sFB}, s{sFB}, 7
    s_add_u32 s{sFB}, s{sFB}, s{sPH}
    """)
    if mid: mid()
    a(f"""
    v_mul_u32_u24 v{vDW1}, 3584, v5
    v_add_u32 v{vDW1}, v{vDW1}, v{vDWO}
    v_lshl_add_u32 v{vDW2}, v5, 12, v{vDWO}
    v_mul_u32_u24 v24, 896, v5
    v_add_u32 v{vDWO}, v24, v{vDWO}
    s_mul_i32 s{sD}, s{sG}, {512*3584}
    s_lshl_b32 s{sT0}, s{sFB}, 7
    s_add_u32 s{sD}, s{sD}, s{sT0}
    s_lshl_b32 s{sT1}, s{sGM}, 6
    s_add_u32 s{sB1o}, s{sT0}, s{sT1}
    v_lshl_add_u32 v24, v{vHH}, 10, v{vT3}
    v_xor_b32 v{vT1}, s{sT1}, v24
    v_xor_b32 v{vT1+1}, 64, v{vT1}
    v_add_u32 v{vTH}, 0x10000, v{vT1}
    v_add_u32 v{vTH+1}, 0x10000, v{vT1+1}
    s_lshl_b32 s{sT0}, s{sGN}, 10
    v_add_u32 v{vLN}, s{sT0}, v{vL16}
    v_xor_b32 v{vLN+1}, 0x400, v{vLN}
    s_lshl_b32 s{sL}, s{sA}, 18
    s_lshl_b32 s{sT0}, s{sG}, 16
    s_add_u32 s{sL}, s{sL}, s{sT0}
    s_add_u32 s{sSH1}, s{sPH}, 1
    s_lshl_b32 s{sPH}, s{sSH1}, 13
    s_add_u32 s{sPH}, s{sPH}, s{sL}
    v_lshlrev_b32 v{vPF}, 7, v{vLANE}
    v_add_u32 v{vSW}, s{sRing}, v{vL16}
    v_add_u32 v{vSW+1}, 0x10000, v{vSW}
    s_lshr_b32 s{sFH}, s{sA}, 1
    s_lshl_b32 s{sFH}, s{sFH}, 10
    s_lshl_b32 s{sT0}, s{sG}, 8
    s_add_u32 s{sFH}, s{sFH}, s{sT0}
    s_lshl_b32 s{sFH}, s{sFH}, {FS}
    s_add_u32 s{sFH}, s{sFH}, {FL_H}
    v_bfe_u32 v32, v{vJ}, 1, 3
    v_lshlrev_b32 v32, 4, v32
    v_xor_b32 v32, s{sT1}, v32
    v_lshl_add_u32 v32, v{vJ}, 7, v32
    v_lshl_add_u32 v32, v{vHH}, 3, v32
    s_lshl_b32 s{sT0}, s{sCB}, 13
    s_lshl_b32 s{sT1}, s{sGN}, 12
    s_add_u32 s{sT0}, s{sT0}, s{sT1}
    v_add_u32 v32, s{sT0}, v32
    v_xor_b32 v33, 16, v32
    v_xor_b32 v34, 32, v32
    v_xor_b32 v35, 48, v32
    """)
    assert WS_HT == 0
def g_xread(a):
    lds_wait(a, C_X1, 4)
    lds_wait(a, C_XA, 4)
    for g, v in enumerate((32, 33, 34, 35)): a(f"ds_read_b64 {vr(6+2*g,2)}, v{v} offset:{L_XT}")
    lds_arrive(a, C_ST, nowait=True)

def g_setup2(a):
    srd(a, R_W2, P_W2, 1792 * 4096)
    srd(a, R_WO, P_WO, 448 * 896)
    srd(a, R_OUT, P_OUT, 2048 * 896)
    srd(a, R_B2, P_B2, 2048 * 2)
    a(f"""
    s_mul_i32 s{sDb}, s{sG}, {448*4096}
    s_lshl_b32 s{sT0}, s{sRB}, 7
    s_add_u32 s{sDb}, s{sDb}, s{sT0}
    s_mul_i32 s{sD2}, s{sG}, {112*896}
    s_lshl_b32 s{sT0}, s{sCB}, 7
    s_add_u32 s{sD2}, s{sD2}, s{sT0}
    s_lshl_b32 s{sT0}, s{sGM}, 6
    s_lshl_b32 s{sT1}, s{sGN}, 6
    v_lshl_add_u32 v24, v{vHH}, 9, v{vT3}
    v_xor_b32 v{vT2}, s{sT1}, v24
    v_xor_b32 v{vT2+1}, 64, v{vT2}
    v_xor_b32 v{vT3}, s{sT0}, v24
    v_xor_b32 v{vT3+1}, 64, v{vT3}
    s_lshl_b32 s{sT0}, s{sGM}, 10
    v_add_u32 v{vLM}, s{sT0}, v{vL16}
    v_xor_b32 v{vLM+1}, 0x400, v{vLM}
    s_mul_i32 s{sLb}, s{sCB}, 112
    s_mul_i32 s{sT0}, s{sG}, 28
    s_add_u32 s{sLb}, s{sLb}, s{sT0}
    s_lshl_b32 s{sLb}, s{sLb}, 11
    s_add_u32 s{sLb}, s{sLb}, {WS_U}
    s_lshr_b32 s{sT0}, s{sJ}, 3
    s_add_u32 s{sT0}, s{sT0}, 3
    s_lshl_b32 s{sT0}, s{sT0}, 13
    s_add_u32 s{sPU}, s{sT0}, s{sLb}
    s_lshl_b32 s{sL2}, s{sRB}, 16
    s_lshl_b32 s{sT0}, s{sG}, 14
    s_add_u32 s{sL2}, s{sL2}, s{sT0}
    s_add_u32 s{sL2}, s{sL2}, {WS_O}
    v_mul_u32_u24 v{vOUT}, 896, v{vJ}
    v_lshl_add_u32 v{vOUT}, v{vHH}, 4, v{vOUT}
    s_lshl_b32 s{sT0}, s{sRB}, 1
    s_add_u32 s{sT0}, s{sT0}, s{sGN}
    s_lshl_b32 s{sB2}, s{sT0}, 6
    s_mul_i32 s{sT0}, s{sT0}, {32*896}
    s_lshl_b32 s{sT1}, s{sCB}, 7
    s_add_u32 s{sT0}, s{sT0}, s{sT1}
    s_lshl_b32 s{sT1}, s{sGM}, 6
    s_add_u32 s{sOUT}, s{sT0}, s{sT1}
    v_lshrrev_b32 v{vPF2}, 2, v{vLANE}
    v_and_b32 v24, 3, v{vLANE}
    v_lshlrev_b32 v{vPF2}, 12, v{vPF2}
    v_lshl_add_u32 v{vPF2}, v24, 7, v{vPF2}
    s_mul_i32 s{sT0}, s{sA}, 112
    s_lshl_b32 s{sT1}, s{sFB}, 2
    s_add_u32 s{sT0}, s{sT0}, s{sT1}
    s_lshl_b32 s{sT2}, s{sGM}, 1
    s_add_u32 s{sT0}, s{sT0}, s{sT2}
    s_lshl_b32 s{sT0}, s{sT0}, 11
    s_add_u32 s{sUS}, s{sT0}, {WS_U}
    s_lshl_b32 s{sT0}, s{sA}, 7
    s_add_u32 s{sT0}, s{sT0}, s{sT1}
    s_add_u32 s{sT0}, s{sT0}, s{sG}
    s_lshl_b32 s{sT0}, s{sT0}, 3
    s_lshl_b32 s{sT0}, s{sT0}, {FS}
    s_add_u32 s{sFU}, s{sT0}, {FL_U}
    s_lshl_b32 s{sT0}, s{sCB}, 10
    s_mul_i32 s{sT1}, s{sG}, 224
    s_add_u32 s{sT0}, s{sT0}, s{sT1}
    s_lshl_b32 s{sT0}, s{sT0}, {FS}
    s_add_u32 s{sFUc}, s{sT0}, {FL_U}
    s_lshl_b32 s{sT0}, s{sRB}, 8
    s_lshl_b32 s{sT1}, s{sG}, 6
    s_add_u32 s{sT0}, s{sT0}, s{sT1}
    s_lshl_b32 s{sT0}, s{sT0}, {FS}
    s_add_u32 s{sFOc}, s{sT0}, {FL_O}
    """)
    for i in range(2, 6): a(f"v_add_u32 v{vTH+i}, 0x10000, v{vT1+i}")
    if OPT.ra or OPT.rb:
        a(f"""
        s_lshr_b32 s{sT0}, s{sJ}, 3
        s_mul_i32 s{sT0}, s{sT0}, {OPT.ra}
        s_mul_i32 s{sT1}, s{sXCD}, {OPT.rb}
        s_add_u32 s{sT0}, s{sT0}, s{sT1}
        s_mul_i32 s{sT1}, s{sT0}, 2341
        s_lshr_b32 s{sT1}, s{sT1}, 16
        s_mul_i32 s{sT1}, s{sT1}, 28
        s_sub_u32 s{sT0}, s{sT0}, s{sT1}
        s_mov_b32 s{sLb0}, s{sLb}
        s_add_u32 s{sLbE}, s{sLb}, {28*2048}
        s_mov_b32 s{sDb0}, s{sDb}
        s_add_u32 s{sDbE}, s{sDb}, {28*16*4096}
        s_lshl_b32 s{sT1}, s{sT0}, 11
        s_add_u32 s{sLb}, s{sLb}, s{sT1}
        s_lshl_b32 s{sT1}, s{sT0}, 16
        s_add_u32 s{sDb}, s{sDb}, s{sT1}
        """)
        assert all((x * 2341) >> 16 == x // 28 for x in range(200))
    if OPT.nou: a(f"v_mov_b32 v{vLM}, {OOB}\nv_mov_b32 v{vLM+1}, {OOB}")
    if OPT.now2: a(f"v_mov_b32 v{vDW2}, {OOB}")

L_HB2 = L_WKV
def p1_g(a):
    X, U = 128, 160
    htype = a.label("gh"); pfw = a.label("gpfw")
    a(f"s_sub_u32 s{sG}, s{sW}, 4")
    common_srds(a)
    pf1_addr(a)
    a(f"s_cmp_ge_u32 s{sCB}, 4\ns_cbranch_scc1 {htype}")
    a("s_barrier")
    rest_dma(a)
    stamp(a, 2)
    get_tag(a)
    g_setup1(a, lambda: (a("s_waitcnt vmcnt(0)"), lds_arrive(a, C_X, nowait=True), stamp(a, 3)))
    lds_wait(a, C_FL, 1)
    a(f"s_branch {pfw}")
    a(f"""
    {htype}:
    s_sub_u32 s{sT1}, s{sCB}, 4
    s_lshl_b32 s{sT0}, s{sRB}, 2
    s_add_u32 s{sT0}, s{sT0}, s{sT1}
    s_lshl_b32 s{sT1}, s{sT1}, 4
    s_lshl_b32 s{sT2}, s{sG}, 2
    s_add_u32 s{sT1}, s{sT1}, s{sT2}
    v_add_u32 v11, s{sT1}, v7
    v_and_b32 v13, 1, v5
    v_lshlrev_b32 v12, 13, v13
    v_lshl_add_u32 v12, v11, 7, v12
    v_lshl_add_u32 v12, v6, 4, v12
    v_bfe_u32 v11, v11, 1, 3
    v_xor_b32 v11, v11, v6
    v_mul_u32_u24 v14, {HB_STRIDE}, v7
    v_lshl_add_u32 v14, v11, 4, v14
    v_lshl_add_u32 v14, v13, 7, v14
    s_mul_i32 s{sT2}, s{sG}, {4*HB_STRIDE}
    s_add_u32 s{sT2}, s{sT2}, {L_HB2}
    v_add_u32 v14, s{sT2}, v14
    v_lshl_add_u32 v15, v{vHH}, 3, v8
    v_mul_u32_u24 v15, {HB_STRIDE}, v15
    v_add_u32 v15, v15, v9
    s_lshl_b32 s{sT2}, s{sG}, 8
    s_add_u32 s{sT2}, s{sT2}, {L_HB2}
    v_add_u32 v15, s{sT2}, v15
    s_lshl_b32 s{sT2}, s{sG}, 19
    s_lshl_b32 s{sT3}, s{sT0}, 11
    s_add_u32 s{sT2}, s{sT2}, s{sT3}
    s_add_u32 s{sT3}, s{sT2}, {128*2048}
    s_lshl_b32 s{sT4}, s{sG}, 7
    s_add_u32 s{sT4}, s{sT4}, s{sT0}
    s_lshl_b32 s{sT4}, s{sT4}, {3+FS}
    s_add_u32 s{sT4}, s{sT4}, {FL_H}
    v_mov_b32 v17, 0xffff0000
    s_mov_b32 vcc_lo, 0x00ff00ff
    s_mov_b32 vcc_hi, 0x00ff00ff
    """)
    for p in range(1):
        for i in range(4): a(f"v_mov_b32 v{X+16*p+12+i}, 0")
    S = [32, 40]
    for p in range(1): a(f"v_mov_b32 v{S[p]}, 0\nv_mov_b32 v{S[p]+1}, 0")
    a("s_barrier\ns_setprio 3")
    lds_wait(a, C_X1, 4)
    stamp(a, 2)
    for p in range(1):
        for i in range(3): a(f"ds_read_b128 {vr(X+16*p+4*i,4)}, v12 offset:{L_XT + 16384*i + 2048*p}")
        a(f"s_mov_b64 exec, vcc\nds_read_b128 {vr(X+16*p+12,4)}, v12 offset:{L_XT + 16384*3 + 2048*p}\ns_mov_b64 exec, -1")
    for p in range(1):
        for i in range(16):
            if i % 4 == 0: a(f"s_waitcnt lgkmcnt({3-i//4})")
            a(f"v_dot2c_f32_bf16 v{S[p]}, s{sONES}, v{X+16*p+i}")
            a(f"v_dot2c_f32_bf16 v{S[p]+1}, v{X+16*p+i}, v{X+16*p+i}")
    un = []
    for i in range(16): un += [f"v_lshlrev_b32 v{U+2*i}, 16, v{X+i}", f"v_and_b32 v{U+2*i+1}, v17, v{X+i}"]
    for x in un[:3]: a(x)
    un = un[3:]
    def both(txt):
        for line in txt.strip().split("\n"):
            p = 0; t_ = line.strip().format(s=S[p], q=S[p]+1, t=S[p]+2, r=S[p]+4, r2=S[p]+5, m=S[p]+6)
            a(t_)
            if t_.startswith(("v_sqrt", "v_rcp")) or (t_.startswith("v_add_f32_dpp") and f"v{S[0]+1}," in t_): a(un.pop(0))
    for mode in (QP1, QP2, RHM, RM):
        both("v_add_f32_dpp v{s}, v{s}, v{s} %s row_mask:0xf bank_mask:0xf\nv_add_f32_dpp v{q}, v{q}, v{q} %s row_mask:0xf bank_mask:0xf" % (mode, mode))
    rstd = """
    v_and_b32 v{t}, v17, v{t}
    v_add_f32 v{t}, %#x, v{t}
    v_cvt_pk_bf16_f32 v{t}, v{t}, v{t}
    v_and_b32 v{t}, v17, v{t}
    v_sqrt_f32 v{t}, v{t}
    v_cvt_pk_bf16_f32 v{t}, v{t}, v{t}
    v_and_b32 v{t}, v17, v{t}
    v_rcp_f32 v{%s}, v{t}
    """
    both("""
    v_mul_f32 v{s}, %s, v{s}
    v_mul_f32 v{q}, %s, v{q}
    v_fma_f32 v{q}, -v{s}, v{s}, v{q}
    v_max_f32 v{q}, 0, v{q}
    v_cvt_pk_bf16_f32 v{t}, v{s}, v{q}
    v_lshlrev_b32 v{m}, 16, v{t}
    """ % (f32(1/448), f32(1/448)))
    both(rstd % (EPS, "r"))
    both("""
    v_sub_f32 v{s}, v{s}, v{m}
    v_mul_f32 v{s}, v{s}, v{r}
    v_mul_f32 v{q}, v{q}, v{r}
    v_mul_f32 v{q}, v{q}, v{r}
    v_cvt_pk_bf16_f32 v{t}, v{s}, v{q}
    v_lshlrev_b32 v{s}, 16, v{t}
    v_fma_f32 v{m}, v{m}, v{r}, v{s}
    """)
    both(rstd % (EPS, "r2"))
    for x in un: a(x)
    both("v_mul_f32 v{m}, v{m}, v{r2}\nv_mul_f32 v{r}, v{r}, v{r2}")
    for p in range(1):
        for i in range(16):
            if i == 12: a("s_mov_b64 exec, vcc")
            u = U + 32 * p + 2 * i
            a(f"""
            v_pk_fma_f32 {vr(u,2)}, {vr(u,2)}, {vr(S[p]+4,2)}, {vr(S[p]+6,2)} op_sel_hi:[1,0,0] neg_lo:[0,0,1] neg_hi:[0,0,1]
            v_cvt_pk_bf16_f32 v{X+16*p+i}, v{u}, v{u+1}
            """)
            if i % 4 == 3: a(f"ds_write_b128 v14, {vr(X+16*p+i-3,4)} offset:{256*(i//4) + 16*HB_STRIDE*p}")
        a("s_mov_b64 exec, -1")
    stamp(a, 3)
    lds_arrive(a, C_H, nowait=True)
    lds_wait(a, C_H, 4)
    n = 0
    for p in range(1):
        for f in range(4):
            for x in range(2):
                if n == 15: a("s_waitcnt lgkmcnt(14)")
                a(f"ds_read_b64_tr_b16 {vr(U+16*p+4*f+2*x,2)}, v15 offset:{x*4*HB_STRIDE + f*64 + 16*HB_STRIDE*p}"); n += 1
    for p in range(1):
        for f in range(4):
            a(f"s_waitcnt lgkmcnt({6-2*f})")
            a(f"buffer_store_dwordx4 {vr(U+16*p+4*f,4)}, v{vL16}, {sr(R_WS,4)}, s{sT2 + (f>>1)} offen offset:{1024*(f&1) + 2048*p} sc1")
    lds_arrive(a, C_FL, nowait=True)
    stamp(a, 4)
    g_setup1(a)
    get_tag(a)
    set_flag(a, sT4)
    a("s_setprio 0")
    stamp(a, 5)
    lds_wait(a, C_FL, 4)
    lds_wait(a, C_ISS, 4)
    a(f"{pfw}:")

sK, sKF, sKP = 94, 95, 96
AQ, AO, AS, AP, AKV = 32, 64, 128, 160, 176
def att_setup(a):
    a(f"""
    s_add_u32 s{R_KV}, s{P_WS}, {WS_KV}
    s_addc_u32 s{R_KV+1}, s{P_WS+1}, 0
    s_add_u32 s{sT0}, s{sW}, 1
    s_lshl_b32 s{R_KV+2}, s{sT0}, 16
    s_mov_b32 s{R_KV+3}, 0x20000
    v_lshlrev_b32 v5, 7, v{vLANE}
    v_lshlrev_b32 v25, {3+FS}, v{vJ}
    s_lshr_b32 s{sKP}, s{sJ}, 1
    s_and_b32 s{sKP}, s{sKP}, 4
    s_add_u32 s{sKP}, s{sKP}, s{sCB}
    s_lshl_b32 s{sKP}, s{sKP}, 13
    s_lshl_b32 s{sT0}, s{sW}, 16
    s_add_u32 s{sKP}, s{sKP}, s{sT0}
    s_and_b32 s{sT0}, s{sJ}, 0x14
    s_cmp_lg_u32 s{sT0}, 0
    s_cselect_b32 s{sKP}, {OOB}, s{sKP}
    s_lshl_b32 s{sKF}, s{sW}, 8
    s_lshl_b32 s{sKF}, s{sKF}, {FS}
    s_add_u32 s{sKF}, s{sKF}, {FL_KV}
    """)
def kvload(a, buf):
    for j in range(4):
        a(f"buffer_load_dwordx4 {vr(AKV+16*buf+4*j,4)}, v{vL16}, {sr(R_KV,4)}, s{sK} offen offset:{1024*j} sc1")
    a(f"s_add_u32 s{sK}, s{sK}, 4096")
def first_kv(a):
    a(f"s_lshl_b32 s{sK}, s{sW}, 16")
    kvload(a, 0)
    a(f"buffer_load_dword v253, v5, {sr(R_KV,4)}, s{sKP} offen sc1")
    kvload(a, 1); kvload(a, 2)

def attention(a, done):
    Q, O, S, P, KV = AQ, AO, AS, AP, AKV
    NM = 20
    sIt, sRetry, sOS, sOF = sT1, sT3, 84, 85
    vMW, vRW, vMR, vRR = 8, 12, 15, 16
    go = a.label("att_go"); mloop = a.label("att_mloop"); loop = a.label("att_loop"); ok = a.label("att_ok"); havekv = a.label("att_havekv")
    a(f"s_mov_b32 s{sRetry}, 0\ns_cmp_eq_u32 s{sKF}, 0\ns_cbranch_scc1 {havekv}")
    lds_wait(a, C_PRE, 4)
    stamp(a, 9)
    poll(a, sKF, 32)
    stamp(a, 10)
    first_kv(a)
    a(f"{havekv}:")
    for i in range(1, 4):
        a(f"""
        s_add_u32 s{sT0}, s{sW}, {i}
        s_and_b32 s{sT0}, s{sT0}, 3
        s_lshl_b32 s{sT0}, s{sT0}, 11
        s_add_u32 s{sT0}, s{sT0}, {L_QS}
        v_add_u32 v{16+i}, s{sT0}, v{vL16}
        """)
    lds_wait(a, C_Q, 4)
    for i in range(1, 4):
        a(f"ds_read_b128 {vr(Q+8*i,4)}, v{16+i}\nds_read_b128 {vr(Q+8*i+4,4)}, v{16+i} offset:1024")
    for r in range(12, 64): a(f"v_mov_b32 v{O+r}, 0")
    for i in range(4):
        a(f"""
        s_add_u32 s{sT0}, s{sW}, {i+1}
        s_and_b32 s{sT0}, s{sT0}, 3
        s_lshl_b32 s{sT2}, s{sT0}, 9
        s_add_u32 s{sT2}, s{sT2}, {L_MX + 128*i}
        v_lshl_add_u32 v{vMW+i}, v{vJ}, 2, s{sT2}
        s_mul_i32 s{sT2}, s{sT0}, 12288
        s_add_u32 s{sT2}, s{sT2}, {L_RED + 4096*(i%3)}
        v_add_u32 v{vRW+i if i < 3 else vRR}, s{sT2}, v{vL16}
        """)
    a(f"""
    v_subrev_u32 v{vMR}, 384, v{vMW+3}
    s_add_u32 s{sT0}, s{sW}, 3
    s_and_b32 s{sT2}, s{sT0}, 1
    s_lshl_b32 s{sOS}, s{sCB}, 1
    s_add_u32 s{sOS}, s{sOS}, s{sT2}
    s_lshl_b32 s{sOS}, s{sOS}, 12
    s_lshl_b32 s{sT2}, s{sRB}, 16
    s_add_u32 s{sOS}, s{sOS}, s{sT2}
    s_and_b32 s{sT2}, s{sT0}, 2
    s_lshl_b32 s{sT2}, s{sT2}, 9
    s_add_u32 s{sOS}, s{sOS}, s{sT2}
    s_add_u32 s{sOS}, s{sOS}, {WS_O}
    s_lshl_b32 s{sOF}, s{sRB}, 3
    s_add_u32 s{sOF}, s{sOF}, s{sCB}
    s_lshl_b32 s{sOF}, s{sOF}, 2
    s_add_u32 s{sOF}, s{sOF}, s{sW}
    s_lshl_b32 s{sOF}, s{sOF}, {3+FS}
    s_add_u32 s{sOF}, s{sOF}, {FL_O}
    s_mov_b32 s{sT4}, 0x71800000
    """)
    TMP = [S, S + 16, KV + 48, P]
    def scan_mf(kreg):
        for i in range(4):
            a(f"{MF} {vr(TMP[i],16)}, {vr(kreg,4)}, {vr(Q+8*i,4)}, 0")
            a(f"{MF} {vr(TMP[i],16)}, {vr(kreg+4,4)}, {vr(Q+8*i+4,4)}, {vr(TMP[i],16)}")
    a("s_waitcnt vmcnt(11) lgkmcnt(0)")
    stamp(a, 11)
    scan_mf(KV)
    a(f"s_nop 4\ns_mov_b64 exec, {sr(sHI,2)}")
    for i in range(4):
        t = TMP[i]
        a(f"v_max3_f32 v{NM+i}, v{t}, v{t+1}, v{t+2}")
        for j in range(3, 15, 2): a(f"v_max3_f32 v{NM+i}, v{t+j}, v{t+j+1}, v{NM+i}")
        a(f"""
        v_max_f32 v{NM+i}, v{t+15}, v{NM+i}
        v_cvt_pk_bf16_f32 v{Q+8*i+6}, -v{NM+i}, 0
        v_lshlrev_b32 v{NM+i}, 16, v{Q+8*i+6}
        """)
    a(f"{go}:")
    for i in range(4): a(f"ds_write_b32 v{vMW+i}, v{NM+i}")
    a("s_mov_b64 exec, -1")
    a(f"{MF} {vr(S,16)}, {vr(KV,4)}, {vr(Q,4)}, 0")
    a(f"{MF} {vr(S,16)}, {vr(KV+4,4)}, {vr(Q+4,4)}, {vr(S,16)}")
    for r in range(8): a(f"v_mov_b32 v{KV+48+8+r}, 0")
    for r in range(8): a(f"v_mov_b32 v{P+8+r}, 0")
    a(f"v_mov_b32 v{S+30}, 0\nv_mov_b32 v{S+31}, 0")
    def smf(q, b, kb):
        d = vr(S + 16 * b, 16)
        return [f"{MF} {d}, {vr(KV+16*kb,4)}, {vr(Q+8*q,4)}, 0", f"{MF} {d}, {vr(KV+16*kb+4,4)}, {vr(Q+8*q+4,4)}, {d}"]
    def pv(q, b, kb):
        d = vr(O + 16 * q, 16)
        return [f"{MF} {d}, {vr(KV+16*kb+8,4)}, {vr(P+8*b,4)}, {d}", f"{MF} {d}, {vr(KV+16*kb+12,4)}, {vr(P+8*b+4,4)}, {d}"]
    def pk(b, i): return f"v_cvt_pk_bf16_f32 v{P+8*b+i}, v{S+16*b+2*i}, v{S+16*b+2*i+1}"
    def owrite(i): return ['s_nop 0'] * 4 if OPT.nocomb else [f"ds_write_b128 v{vRW+i}, {vr(O+16*i+4*g,4)} offset:{1024*g}" for g in range(4)]
    a(f"s_mov_b32 s{sIt}, {OPT.attit-1}\ns_waitcnt vmcnt(8)")
    if OPT.ka: lds_wait(a, C_GO, 4, sleep=2)
    if OPT.adel: a(f's_sleep {OPT.adel}')
    stamp(a, 12)
    if OPT.prio_ld: a(f"s_setprio {OPT.prio_a}")
    def body(lastit):
        for n in range(16):
            T, q, b = n // 4, n % 4, n % 2
            if lastit and n == 14: lds_wait(a, C_R1D, 4)
            va = []
            for i in range(8):
                r = S + 16 * b + 2 * i
                va += [f"v_exp_f32 v{r}, v{r}", f"v_exp_f32 v{r+1}, v{r+1}", pk(b, i - 1) if i else pk(1 - b, 7)]
            s = smf((q + 1) % 4, 1 - b, ((n + 1) // 4) % 4)
            p = pv((q - 1) % 4, 1 - b, ((n - 1) // 4) % 4)
            pos = [[3, 9, 15, 21], [3, 7, 15, 19], [3, 7, 12, 19], [3, 8, 15, 20], [3, 7, 16, 21], [2, 6, 15, 19]][OPT.order]
            ins = {pos[0]: [s[0]], pos[1]: [s[1]], pos[2]: [p[0]], pos[3]: [p[1]]}
            if lastit and n == 15: ins = {pos[0]: [p[0]], pos[1]: [p[1]]}
            if q == 3 and not (lastit and T == 3):
                ins[1] = [f"s_waitcnt vmcnt({7 if not lastit or T == 0 else 4 if T == 1 else 0})"]
            if not lastit or T == 0:
                buf = (T - 1) % 4
                ins[OPT.ldpos] = [f"buffer_load_dwordx4 {vr(KV+16*buf+4*q,4)}, v{vL16}, {sr(R_KV,4)}, s{sK} offen offset:{1024*q} sc1"]
                if OPT.prio_ld:
                    ins[10] = [f"s_setprio {OPT.prio_ld}"]
                    ins[13] = [f"s_setprio {OPT.prio_a}"]
                if q == 3 and not OPT.hot & 16: ins[21 if OPT.ldpos > 13 else 14] = [f"s_add_u32 s{sK}, s{sK}, 4096"]
            if n == 15 and not lastit:
                ins[17] = [f"s_sub_u32 s{sIt}, s{sIt}, 1"]
                ins[22] = [f"s_cmp_lg_u32 s{sIt}, 0"]
            if lastit and n == 14:
                for g, x in enumerate(owrite(0)): ins.setdefault([10, 13, 17, 22][g], []).append(x)
            if lastit and n == 15:
                for g, x in enumerate(owrite(1)): ins.setdefault([8, 10, 13, 16][g], []).append(x)
                for g, x in enumerate(owrite(2)[:2]): ins.setdefault([20, 22][g], []).append(x)
            for i, x in enumerate(va):
                for y in ins.get(i, []): a(y)
                a(x)
    if OPT.unroll:
        for _ in range(3): body(False)
    elif OPT.attit > 1:
        a(".p2align 6")
        a(f"{loop}:")
        body(False)
        a(f"s_cbranch_scc1 {loop}")
    body(True)
    if OPT.prio_ld: a(f"s_setprio {OPT.prio_ld}")
    a(pk(1, 7))
    for x in owrite(2)[2:]: a(x)
    for x in pv(3, 1, 3): a(x)
    stamp(a, 13)
    a(f"""
    v_add_f32 v17, v{O+12}, v{O+28}
    v_add_f32 v17, v17, v{O+44}
    v_min3_f32 v18, v{O+12}, v{O+28}, v{O+44}
    s_mov_b32 s{sT0}, 0x21800000
    s_nop 7
    v_add_f32 v17, v17, v{O+60}
    v_min_f32 v18, v18, v{O+60}
    v_cmp_nlt_f32_e64 vcc, v17, s{sT4}
    v_cmp_ngt_f32_e64 s[86:87], v18, s{sT0}
    s_or_b64 vcc, vcc, s[86:87]
    s_and_b64 vcc, vcc, {sr(sHI,2)}
    s_cbranch_scc0 {ok}
    s_cmp_lg_u32 s{sRetry}, 0
    s_cbranch_scc1 {ok}
    s_mov_b32 s{sRetry}, 1
    s_waitcnt lgkmcnt(0)
    s_mov_b64 exec, {sr(sHI,2)}
    """)
    for i in range(4): a(f"v_mov_b32 v{Q+8*i+6}, 0\nv_mov_b32 v{Q+8*i+7}, 0")
    a(f"s_mov_b64 exec, -1\ns_lshl_b32 s{sK}, s{sW}, 16\ns_mov_b32 s{sIt}, 16")
    for r in range(64): a(f"v_mov_b32 v{O+r}, 0")
    for i in range(4): a(f"v_mov_b32 v{NM+i}, 0xff800000")
    a(f"""
    {mloop}:
    buffer_load_dwordx4 {vr(KV,4)}, v{vL16}, {sr(R_KV,4)}, s{sK} offen sc1
    buffer_load_dwordx4 {vr(KV+4,4)}, v{vL16}, {sr(R_KV,4)}, s{sK} offen offset:1024 sc1
    s_add_u32 s{sK}, s{sK}, 4096
    s_waitcnt vmcnt(0)
    """)
    scan_mf(KV)
    a("s_nop 11")
    for i in range(4):
        for j in range(8): a(f"v_max3_f32 v{NM+i}, v{TMP[i]+2*j}, v{TMP[i]+2*j+1}, v{NM+i}")
    a(f"""
    s_sub_u32 s{sIt}, s{sIt}, 1
    s_cmp_lg_u32 s{sIt}, 0
    s_cbranch_scc1 {mloop}
    """)
    first_kv(a)
    for i in range(4): a(f"v_mov_b32 v{S+i}, v{NM+i}")
    a("s_nop 1")
    for i in range(4): a(f"v_permlane32_swap_b32 v{S+i}, v{NM+i}")
    for i in range(4): a(f"v_max_f32 v{NM+i}, v{S+i}, v{NM+i}")
    a(f"s_mov_b64 exec, {sr(sHI,2)}")
    for i in range(4):
        a(f"""
        v_sub_f32 v{NM+i}, 0, v{NM+i}
        v_cvt_pk_bf16_f32 v17, v{NM+i}, 0
        v_lshlrev_b32 v18, 16, v17
        v_sub_f32 v18, v{NM+i}, v18
        v_cvt_pk_bf16_f32 v19, v18, 0
        v_lshl_or_b32 v{Q+8*i+6}, v19, 16, v17
        v_lshlrev_b32 v19, 16, v19
        v_sub_f32 v18, v18, v19
        v_cvt_pk_bf16_f32 v{Q+8*i+7}, v18, 0
        """)
    a(f"s_waitcnt vmcnt(11)\ns_branch {go}\n{ok}:")
    lds_arrive(a, C_ATT, nowait=True)
    if not OPT.nocomb: lds_wait(a, C_ATT, 4)
    stamp(a, 16)
    OW = O + 48
    if OPT.nocomb: a(f"v_mov_b32 v17, v{OW+12}\nv_mov_b32 v18, v{OW+12}\ns_nop 1\nv_permlane32_swap_b32 v17, v18\nv_rcp_f32 v18, v18\ns_branch nocomb")
    for i in range(4): a(f"ds_read_b32 v{NM+i}, v{vMR} offset:{128*i}")
    for i in range(3):
        for g in range(4):
            if i == 2 and g == 3: a("s_waitcnt lgkmcnt(11)")
            a(f"ds_read_b128 {vr(O+16*i+4*g,4)}, v{vRR} offset:{4096*i+1024*g}")
    a(f"""
    v_min3_f32 v17, v{NM}, v{NM+1}, v{NM+2}
    v_min_f32 v17, v17, v{NM+3}
    """)
    for i in (3, 0, 1, 2): a(f"v_sub_f32 v{NM+i}, v17, v{NM+i}")
    for i in (3, 0, 1, 2): a(f"v_exp_f32 v{NM+i}, v{NM+i}")
    for r in range(16): a(f"v_mul_f32 v{OW+r}, v{NM+3}, v{OW+r}")
    for i in range(3):
        a(f"s_waitcnt lgkmcnt({4*(2-i)})")
        R = [12] + [r for r in range(16) if r != 12] if i == 2 else range(16)
        for n, r in enumerate(R):
            a(f"v_fmac_f32 v{OW+r}, v{NM+i}, v{O+16*i+r}")
            if i == 2 and n == 0: a(f"v_mov_b32 v17, v{OW+12}\nv_mov_b32 v18, v{OW+12}")
            if i == 2 and n == 2: a("v_permlane32_swap_b32 v17, v18")
            if i == 2 and n == 3: a("v_rcp_f32 v18, v18")
    a("nocomb:")
    for h in range(2):
        for r in range(8 * h, 8 * h + 8): a(f"v_mul_f32 v{OW+r}, v18, v{OW+r}")
        for i in range(4 * h, 4 * h + 4): a(f"v_cvt_pk_bf16_f32 v{O+i}, v{OW+2*i}, v{OW+2*i+1}")
        if h: a(f"s_mov_b64 exec, {sr(sHI,2)}\nv_mov_b32 v{O+6}, 0\nv_mov_b32 v{O+7}, 0\ns_mov_b64 exec, -1")
        a(f"buffer_store_dwordx4 {vr(O+4*h,4)}, v{vL16}, {sr(R_WS,4)}, s{sOS} offen offset:{2048*h} sc1")
    stamp(a, 17)
    if OPT.odel: a(f's_sleep {OPT.odel}')
    set_flag(a, sOF)
    a(f"s_branch {done}")

class VM:
    def __init__(self): self.q = []
    def issue(self, tag):
        if OPT.dropw and tag[0] == 'd' and tag[1] >= OPT.dropw: return
        self.q.append(tag)
    def wait(self, tags):
        idx = [i for i, t in enumerate(self.q) if t in tags]
        if not idx: return None
        n = len(self.q) - 1 - max(idx)
        assert n <= 63
        self.q = self.q[max(idx) + 1:]
        return n

ACC, AF, BF, DH, SG = 64, 32, 128, 8, 192
def reduce4(a, cnt, red, st0, st1, h0=None, h1=None, h2=None):
    base, stride, off = red
    stamp(a, st0)
    if h0: h0()
    for i in range(4):
        a(f"""
        s_xor_b32 s{sT0}, s{sG}, {i}
        s_mul_i32 s{sT1}, s{sT0}, {stride}
        s_add_u32 s{sT1}, s{sT1}, {base}
        v_add_u32 v{24+i}, s{sT1}, v{vL16}
        """)
    for i in range(1, 4):
        for g in range(4): a(f"ds_write_b128 v24, {vr(ACC+16*i+4*g,4)} offset:{off(4*(i-1)+g)}")
    lds_arrive(a, cnt, nowait=True)
    if h1: h1()
    lds_wait(a, cnt, 4)
    stamp(a, st1)
    for i in range(1, 4):
        for g in range(4): a(f"ds_read_b128 {vr(ACC+16*i+4*g,4)}, v{24+i} offset:{off(4*(i-1)+g)}")
    if h2: h2()
    for i in range(1, 4):
        a(f"s_waitcnt lgkmcnt({4*(3-i)})")
        for r in range(16): a(f"v_add_f32 v{ACC+r}, v{ACC+r}, v{ACC+16*i+r}")

def gpath(a, done):
    global DH, SG
    DH = OPT.dh; SG = BF + 8 * DH
    assert SG + 8 * max(OPT.nsg, OPT.nsg2) <= 240
    vm = VM()
    N1, N2, N3 = 32, 60, 68
    nsg = OPT.nsg
    staged = {OPT.pre0 + i: i for i in range(nsg)}
    nsg2 = OPT.nsg2
    staged.update({N1 + OPT.pre + i: i for i in range(nsg2)})
    def wsrc(k, h):
        if k < N1: return vDW1, R_W1, sD, 8 * 3584
        if k < N2: return vDW2, R_W2, sDb, 8 * 4096
        return vDWO, R_WO, sD2, (4 if ((k - N2) & 1 and h) else 8) * 896
    rot = OPT.ra or OPT.rb
    def wadv(k, h):
        v, R, sd, inc = wsrc(k, h)
        t = f"s_add_u32 s{sd}, s{sd}, {inc}"
        if (OPT.hot & 1 and k < N1) or (OPT.hot & 2 and k >= N1): t = "s_nop 0"
        if rot and N1 <= k < N2 and h and k & 1: t += f"\ns_cmp_eq_u32 s{sd}, s{sDbE}\ns_cselect_b32 s{sd}, s{sDb0}, s{sd}"
        return t
    def dma(k):
        out = []
        for h in range(2):
            v, R, sd, inc = wsrc(k, h)
            out.append((f"s_add_u32 m0, s{sRing}, {slotp(k)*8192 + h*1024}",
                        f"buffer_load_dwordx4 v{v}, {sr(R,4)}, s{sd} offen lds" if not (OPT.dropw and k >= OPT.dropw) else "s_nop 0", wadv(k, h)))
        return out
    state = {'nd': 0}
    def prefill(upto):
        while state['nd'] < upto:
            k = state['nd']; state['nd'] += 1
            if k in staged:
                for h in range(2):
                    v, R, sd, inc = wsrc(k, h)
                    a(f"buffer_load_dwordx4 {vr(SG+8*staged[k]+4*h,4)}, v{v}, {sr(R,4)}, s{sd} offen")
                    a(wadv(k, h)); vm.issue(('s', k))
            else:
                for m, l, adv in dma(k): a(m); a(adv.replace("s_add_u32", "s_nop 0 ;") if False else "s_nop 0"); a(l); a(adv); vm.issue(('d', k))
    def swrite(k):
        off = slotp(k) * 8192; v = vSW
        if off >= 65536: off -= 65536; v += 1
        return [f"ds_write_b128 v{v}, {vr(SG+8*staged[k]+4*h,4)} offset:{off+1024*h}" for h in range(2)]
    def deep(k): return OPT.tdeep and N1 - 4 <= k < N1
    def breg(k): return SG + 32 + 8 * (k - N1 + 4) if deep(k) else SG + 8 * (k - N2) if (k >= N2 and OPT.odeep) else BF + 8 * (k % DH)
    def ld(k):
        r = breg(k)
        v, sl = (vLN, sL) if k < N1 else (vLM, sLb) if k < N2 else (vLN, sL2)
        off = 2048 * (k & 1)
        o = [f"buffer_load_dwordx4 {vr(r,4)}, v{v}, {sr(R_WS,4)}, s{sl} offen offset:{off} sc1",
             f"buffer_load_dwordx4 {vr(r+4,4)}, v{v+1}, {sr(R_WS,4)}, s{sl} offen offset:{off} sc1"]
        adv = f"s_add_u32 s{sl}, s{sl}, 4096"
        if (OPT.hot & 4 and k < N1) or (OPT.hot & 8 and k >= N1): adv = "s_nop 0"
        if rot and N1 <= k < N2: adv += f"\ns_cmp_eq_u32 s{sl}, s{sLbE}\ns_cselect_b32 s{sl}, s{sLb0}, s{sl}"
        return o, (adv if k & 1 else None)
    def ld_now(k):
        o, adv = ld(k)
        for x in o: a(x); vm.issue(('l', k))
        if adv: a(adv)
    def tr(k, r=None):
        b0, xo = (vT1, 512) if k < N1 else (vT2, 1024) if k < N2 else (vT3, 1024)
        r = r or AF + 8 * (k % 2); off = slotp(k) * 8192
        if off >= 65536: off -= 65536; b0 += vTH - vT1
        return [f"ds_read_b64_tr_b16 {vr(r,2)}, v{b0} offset:{off}", f"ds_read_b64_tr_b16 {vr(r+2,2)}, v{b0} offset:{off+xo}",
                f"ds_read_b64_tr_b16 {vr(r+4,2)}, v{b0+1} offset:{off}", f"ds_read_b64_tr_b16 {vr(r+6,2)}, v{b0+1} offset:{off+xo}"]
    state['nl'] = 0
    def b2load(): a(f"v_lshlrev_b32 v23, 1, v{vJ}\nbuffer_load_ushort v5, v23, {sr(R_B2,4)}, s{sB2} offen")
    def init2():
        a("v_lshlrev_b32 v5, 16, v5")
        for i in range(8): a(f"v_lshlrev_b32 v{ACC+2*i}, 16, v{6+i}\nv_and_b32 v{ACC+2*i+1}, 0xffff0000, v{6+i}")
        for r in range(16): a(f"v_add_f32 v{ACC+r}, v5, v{ACC+r}")
        a(f"v_min_u32 v26, 27, v{vLANE}\nv_lshlrev_b32 v26, {3+FS}, v26\nv_min_u32 v27, 7, v{vLANE}\nv_lshlrev_b32 v27, {3+FS}, v27")
    def free(kd, k):
        if kd >= OPT.ke and k < OPT.gatek and slotp(kd) < 8: return False
        prev = [j for j in range(kd) if slotp(j) == slotp(kd)]
        return not prev or prev[-1] <= k - 1
    def begin(lo, nld, pfi=None, after=None):
        state['nl'] = lo
        for k in range(lo, lo + nld):
            ld_now(k); state['nl'] += 1
            if pfi and k == lo + 1: a(pfi); vm.issue('pf')
        if after: after()
        n = vm.wait({('d', lo)})
        if n is not None: a(f"s_waitcnt vmcnt({n})")
        for x in tr(lo): a(x)
    def run(lo, hi, last, dlimit, llimit, first=None, hooks={}, tail=None):
        dh = OPT.dh
        for k in range(lo, hi):
            need = {('l', k)}
            if k + 1 < last: need.add(('d', k + 1))
            if tail and k + 1 == hi: need |= {('d', j) for j in tail}
            if k + 3 in staged: need.add(('s', k + 3))
            need |= hooks.get(('need', k), set())
            n = vm.wait(need)
            a(f"s_waitcnt vmcnt({n}) lgkmcnt(0)" if n is not None else "s_waitcnt lgkmcnt(0)")
            if k in hooks: hooks[k]()
            if OPT.fine and k % 4 == 0 and OPT.stamps == 1 and 0 <= k // 4 - OPT.fine0 < 15: stamp(a, 48 + k // 4 - OPT.fine0)
            l = AF + 8 * (k % 2); d = breg(k)
            lds_is_a = not (N1 <= k < N2)
            mf = []
            for i in range(4):
                mi, ni = i >> 1, i & 1
                A, B = (vr(l + 4 * mi, 4), vr(d + 4 * ni, 4)) if lds_is_a else (vr(d + 4 * mi, 4), vr(l + 4 * ni, 4))
                c = "0" if k == first and i else vr(ACC + 16 * i, 16)
                mf.append(f"{MF} {vr(ACC+16*i,16)}, {A}, {B}, {c}" if not OPT.nogm else "s_nop 0")
            t = tr(k + 1) if k + 1 < last else []
            t2 = []
            if tail and k + 1 == hi:
                assert state['nd'] > max(tail)
                tt = sum((tr(j, r) for j, r in tail.items()), []); t, t2 = tt[:8], tt[8:]
            sw = swrite(k + 3) if k + 3 in staged else []
            assert not sw or free(k + 3, k)
            kd = state['nd']; dm = []
            if kd < dlimit and kd <= k + (OPT.lw if k < N1 else OPT.lw2) and free(kd, k) and kd not in staged:
                assert kd >= k + 2
                dm = dma(kd); state['nd'] += 1
            lo_, adv = ([], None)
            kl = state['nl']
            if kl < llimit and (kl <= k + dh - 1 or deep(kl) or (kl >= N2 and OPT.odeep)): lo_, adv = ld(kl); state['nl'] += 1
            a(mf[0])
            for x in t: a(x)
            if dm: a(dm[0][0])
            a(mf[1])
            if lo_: a(lo_[0]); vm.issue(('l', kl))
            if lo_: a(lo_[1]); vm.issue(('l', kl))
            if adv: a(adv)
            if dm: a(dm[0][1]); vm.issue(('d', kd)); a(dm[0][2]); a(dm[1][0])
            a(mf[2])
            if dm: a(dm[1][1]); vm.issue(('d', kd)); a(dm[1][2])
            for x in sw: a(x)
            if t2: a('s_waitcnt lgkmcnt(4)')
            for x in t2: a(x)
            a(mf[3])
            kd = state['nd']
            if kd < dlimit and kd <= k + (OPT.lw if k < N1 else OPT.lw2) and free(kd, k) and kd not in staged: prefill(kd + 1)
            kl = state['nl']
            if kl < llimit and (kl <= k + dh - 1 or deep(kl) or (kl >= N2 and OPT.odeep)): ld_now(kl); state['nl'] += 1
    def tail_reduce(tail, cnt, red, st0, st1, h0=None, h1=None, h2=None):
        base, stride, off = red
        while state['nl'] <= max(tail): ld_now(state['nl']); state['nl'] += 1
        a(f"s_setprio {OPT.prio_t}")
        for i in range(4):
            a(f"""
            s_xor_b32 s{sT0}, s{sG}, {i}
            s_mul_i32 s{sT1}, s{sT0}, {stride}
            s_add_u32 s{sT1}, s{sT1}, {base}
            v_add_u32 v{24+i}, s{sT1}, v{vL16}
            """)
        def wr(i): return [f"ds_write_b128 v24, {vr(ACC+16*i+4*g,4)} offset:{off(4*(i-1)+g)}" for g in range(4)]
        prev = None
        for i in (1, 2, 3, 0):
            W = wr(prev) if prev else []
            for n, (k, l) in enumerate(tail.items()):
                if i == 1:
                    w = vm.wait({('l', k)})
                    x = (f"vmcnt({w}) " if w is not None else "") + ("lgkmcnt(0)" if n == 0 else "")
                    if x: a("s_waitcnt " + x)
                d = breg(k); mi, ni = i >> 1, i & 1
                A, B = (vr(l + 4 * mi, 4), vr(d + 4 * ni, 4)) if not (N1 <= k < N2) else (vr(d + 4 * mi, 4), vr(l + 4 * ni, 4))
                a(f"{MF} {vr(ACC+16*i,16)}, {A}, {B}, {vr(ACC+16*i,16)}")
                if W and n == 1: a("s_nop 9"); a(W[0]); a(W[1])
                if W and n == 2: a(W[2]); a(W[3])
                if i == 0 and n == 2: lds_arrive(a, cnt, nowait=True)
            if i == 1 and h0: h0()
            prev = i
        a(f"s_setprio {OPT.prio_e}")
        stamp(a, st0)
        if h1: h1()
        lds_wait(a, cnt, 4)
        stamp(a, st1)
        for i in range(1, 4):
            for g in range(4): a(f"ds_read_b128 {vr(ACC+16*i+4*g,4)}, v{24+i} offset:{off(4*(i-1)+g)}")
        if h2: h2()
        for i in range(1, 4):
            a(f"s_waitcnt lgkmcnt({4*(3-i)})")
            for r in range(16): a(f"v_add_f32 v{ACC+r}, v{ACC+r}, v{ACC+16*i+r}")
    def flagload(soff, n):
        vo = {32: 28, 28: 26, 8: 27}[n]
        if n == 32: a(f"v_min_u32 v28, {n-1}, v{vLANE}\nv_lshlrev_b32 v28, {3+FS}, v28")
        a(f"buffer_load_dwordx2 v[30:31], v{vo}, {sr(R_WS,4)}, s{soff} offen sc1"); vm.issue('fl')
    def flagcheck(okl, pr=0):
        a(f"s_setprio 3\nv_cmp_ne_u64 vcc, {sr(sTAG,2)}, v[30:31]\ns_setprio {pr}\ns_cbranch_vccz {okl}")
    def fill_poll(upA, upB, soff, n, mid=None):
        prefill(upA)
        flagload(soff, n)
        prefill(upB)
        if mid: mid()
        w = vm.wait({'fl'})
        a(f"s_waitcnt vmcnt({w})")
        okl = a.label("flok")
        flagcheck(okl)
        poll(a, soff, n)
        a(f"{okl}:")
    nog1 = a.label("nog1"); join = a.label("gjoin")
    g_xread(a)
    a(f"s_cmp_eq_u32 s{sHasG1}, 0\ns_cbranch_scc1 {nog1}")
    a(f"s_setprio {OPT.prio_g}")
    stamp(a, 8)
    if OPT.nodma: a(f"s_mov_b32 s{R_W1+2}, 0")
    a(f"v_lshlrev_b32 v23, 3, v{vHH}")
    for g in range(4): a(f"buffer_load_dwordx2 {vr(14+2*g,2)}, v23, {sr(R_B1,4)}, s{sB1o} offen offset:{16*g}")
    for g in range(4): vm.issue('b')
    prefill(OPT.a1)
    lds_arrive(a, C_PRE, nowait=True)
    stamp(a, 9)
    fill_poll(OPT.a1, OPT.b1, sFH, 32, lambda: (g_setup2(a), b2load(), vm.issue('b2')))
    stamp(a, 10)
    def init1():
        for i in range(8): a(f"v_lshlrev_b32 v{ACC+2*i}, 16, v{14+i}\nv_and_b32 v{ACC+2*i+1}, 0xffff0000, v{14+i}")
    def cpf(sid, val, saddr):
        sk = a.label("cpf")
        a(f"s_cmp_lg_u32 s{sid}, {val}\ns_cbranch_scc1 {sk}\nbuffer_load_dword v253, v{vPF}, {sr(R_WS,4)}, s{saddr} offen sc1\n{sk}:")
    def mkhooks(hl):
        d = {}
        for k, f in hl: d.setdefault(k, []).append(f)
        return {k: (lambda fs=fs: [f() for f in fs]) for k, fs in d.items()}
    a('s_setprio 3')
    begin(0, OPT.nl0, None, init1)
    a(f's_setprio {OPT.prio_g}')
    hl = [(0, lambda: stamp(a, 11)), (16, lambda: stamp(a, 12)), (OPT.gatek, lambda: (a('s_setprio 3'), lds_wait(a, C_Q, 4), a(f's_setprio {OPT.prio_g}')))]
    if OPT.kt: hl.append((N1 - 4 - OPT.kt, lambda: a(f's_setprio {OPT.prio_t}')))
    if OPT.ka: hl.append((OPT.ka, lambda: lds_arrive(a, C_GO, nowait=True)))
    if OPT.kp: hl.append((OPT.kp, lambda: a(f's_setprio {OPT.prio_g1b}')))
    for b in range(2, 8): hl.append((max(0, 4 * b - OPT.pfd), lambda b=b: cpf(sSH1, b, sPH)))
    for i, k in enumerate(range(OPT.b1, OPT.pre0 + nsg)): hl.append((i, lambda k=k: prefill(k + 1)))
    T1 = {N1 - 4 + i: SG + 8 * i for i in range(4)}
    assert OPT.e2 <= OPT.pre
    run(0, N1 - 4, N1, N1, N1, first=0, hooks=mkhooks(hl), tail=T1)
    tail_reduce(T1, C_R1, (L_RED, 12288, lambda i: 1024 * i), 13, 16,
            lambda: prefill(N1 + OPT.e0), lambda: prefill(N1 + OPT.e1), lambda: prefill(N1 + OPT.e2))
    lds_arrive(a, C_R1D, nowait=True)
    k = 2 * math.sqrt(2 / math.pi) * math.log2(math.e)
    a(f"s_mov_b32 s{sT0}, {f32(-k*0.044715)}\nv_mov_b32 v18, {f32(-k)}")
    T = ACC + 16
    for h in range(2):
        R = range(8 * h, 8 * h + 8)
        for r in R: a(f"v_mul_f32 v{T+r}, v{ACC+r}, v{ACC+r}")
        for r in R: a(f"v_fma_f32 v{T+r}, v{T+r}, s{sT0}, v18")
        for r in R: a(f"v_mul_f32 v{T+r}, v{T+r}, v{ACC+r}")
        for r in R: a(f"v_exp_f32 v{T+r}, v{T+r}")
        for r in R: a(f"v_add_f32 v{T+r}, 1.0, v{T+r}")
        for r in R: a(f"v_rcp_f32 v{T+r}, v{T+r}")
        for r in R: a(f"v_mul_f32 v{T+r}, v{T+r}, v{ACC+r}")
        for i in range(4 * h, 4 * h + 4): a(f"v_cvt_pk_bf16_f32 v{T+16+i}, v{T+2*i}, v{T+2*i+1}")
        a(f"buffer_store_dwordx4 {vr(T+16+4*h,4)}, v{vLN}, {sr(R_WS,4)}, s{sUS} offen offset:{2048*h} sc1")
    stamp(a, 17)
    if OPT.gdel: a(f's_sleep {OPT.gdel}')
    init2()
    set_flag(a, sFU)
    stamp(a, 27)
    a(f"s_branch {join}\n{nog1}:")
    lds_arrive(a, C_R1D, nowait=True)
    lds_arrive(a, C_GO, nowait=True)
    lds_arrive(a, C_PRE, nowait=True)
    g_setup2(a)
    b2load()
    a("s_waitcnt vmcnt(0) lgkmcnt(0)")
    init2()
    a(f"""
    s_lshr_b32 s{sT0}, s{sJ}, 3
    s_lshl_b32 s{sT0}, s{sT0}, 1
    s_and_b32 s{sT1}, s{sCB}, 1
    s_add_u32 s{sT0}, s{sT0}, s{sT1}
    s_sub_u32 s{sT0}, s{sT0}, 1
    s_cmp_eq_u32 s{sJ}, 6
    s_cbranch_scc1 engdone
    s_mul_i32 s{sT1}, s{sG}, 28
    s_add_u32 s{sT1}, s{sT1}, s{sT0}
    s_lshl_b32 s{sT1}, s{sT1}, 16
    s_lshl_b32 s{sT2}, s{sXCD}, 9
    s_add_u32 s{sT1}, s{sT1}, s{sT2}
    s_lshl_b32 s{sT2}, s{sT0}, 2
    s_add_u32 s{sT2}, s{sT2}, s{sG}
    s_lshl_b32 s{sT2}, s{sT2}, 13
    s_add_u32 s{sPFW}, s{sPFW}, {OPT.npf0*56*3584}
    """)
    if OPT.engw: lds_wait(a, C_X, 4, sleep=1)
    for i in range(10 - OPT.npf0 if OPT.eng & 1 else 0):
        a(f"s_waitcnt vmcnt({OPT.engd})\nbuffer_load_dword v{249+i%2}, v{vPF1}, {sr(R_W1,4)}, s{sPFW} offen\ns_add_u32 s{sPFW}, s{sPFW}, {56*3584}")
    stamp(a, 28)
    for i in range(4 if OPT.eng & 2 else 0):
        a(f"s_waitcnt vmcnt({OPT.engd})\nbuffer_load_dword v{249+i%2}, v{vPF2}, {sr(R_W2,4)}, s{sT1} offen\ns_add_u32 s{sT1}, s{sT1}, {7*16*4096}")
    stamp(a, 29)
    a(f"""
    s_cmp_lg_u32 s{sCB}, 7
    s_cbranch_scc1 engdone
    s_lshr_b32 s{sT2}, s{sJ}, 3
    s_lshl_b32 s{sT2}, s{sT2}, 2
    s_add_u32 s{sT2}, s{sT2}, s{sG}
    s_lshl_b32 s{sT2}, s{sT2}, 13
    """)
    for i in range(4 if OPT.eng & 4 else 0):
        a(f"s_waitcnt vmcnt({OPT.engd})\nbuffer_load_dword v{249+i%2}, v{vPF}, {sr(R_WO,4)}, s{sT2} offen\ns_add_u32 s{sT2}, s{sT2}, {16*8192}")
    stamp(a, 30)
    a(f"s_branch epw\nengdone:\ns_waitcnt vmcnt(0)")
    lds_wait(a, C_Q, 4)
    state['nd'] = N1
    prefill(N1 + OPT.e2)
    a(f"{join}:")
    a(f"s_setprio {OPT.prio_b}")
    vm.q = [('d', k) for k in range(N1, N1 + OPT.e2) for h in range(2)]
    prefill(N1 + OPT.a2)
    stamp(a, 18)
    fill_poll(N1 + OPT.a2, N1 + OPT.b2, sFUc, 28)
    stamp(a, 19)
    begin(N1, OPT.nl0)
    a(f"s_setprio {OPT.prio_g2}\ns_lshr_b32 s{sSH1}, s{sJ}, 3")
    assert not OPT.odeep or (SG + 64 <= 240 and N1 + OPT.pre + nsg2 - 3 <= N2 - OPT.ock)
    KC = N2 - OPT.ock
    hl = [(N1, lambda: stamp(a, 20)), (N1 + 14, lambda: stamp(a, 21)), (KC - 3, lambda: flagload(sFOc, 8))]
    for b in range(3, 7): hl.append((N1 + max(0, 4 * b - OPT.pfd), lambda b=b: cpf(sSH1, b - 3, sPU)))
    for i, k in enumerate(range(N1 + OPT.b2, N1 + OPT.pre + nsg2)): hl.append((N1 + i, lambda k=k: prefill(k + 1)))
    run(N1, KC, N2, N3, N2, first=N1, hooks=mkhooks(hl))
    w = vm.wait({'fl'})
    if w is not None: a(f"s_waitcnt vmcnt({w})")
    ordy = a.label("ordy"); red2 = a.label("red2")
    flagcheck(ordy)
    sv = (list(vm.q), dict(state))
    run(KC, N2, N2, N3, N2)
    prefill(N3)
    stamp(a, 22)
    poll(a, sFOc, 8); vm.q = []
    stamp(a, 23)
    a(f"s_setprio {OPT.prio_e}")
    begin(N2, 8 if OPT.odeep else min(8, DH))
    assert OPT.odeep
    T3 = {N3 - 4 + i: BF + 8 * i for i in range(4)}
    run(N2, N3 - 4, N3, N3, N3, hooks={N2: lambda: stamp(a, 24)}, tail=T3)
    qn = list(vm.q)
    a(f"s_branch {red2}\n{ordy}:")
    vm.q = sv[0]; state.update(sv[1])
    run(KC, N3 - 4, N3, N3, N3, hooks={N2: lambda: stamp(a, 24)}, tail=T3)
    assert state['nl'] == N3
    assert all(t[0] == 'l' for t in qn + vm.q), (qn, vm.q)
    if len(qn) > len(vm.q): vm.q = qn
    a(f"{red2}:")
    tail_reduce(T3, C_R2, (L_RING, 2048, lambda i: (i >> 1) * 8192 + (i & 1) * 1024), 25, 26)
    for i in range(8): a(f"v_cvt_pk_bf16_f32 v{ACC+16+i}, v{ACC+2*i}, v{ACC+2*i+1}")
    a(f"""
    s_nop 1
    v_permlane32_swap_b32 v{ACC+16}, v{ACC+18}
    v_permlane32_swap_b32 v{ACC+17}, v{ACC+19}
    v_permlane32_swap_b32 v{ACC+20}, v{ACC+22}
    v_permlane32_swap_b32 v{ACC+21}, v{ACC+23}
    buffer_store_dwordx4 {vr(ACC+16,4)}, v{vOUT}, {sr(R_OUT,4)}, s{sOUT} offen
    buffer_store_dwordx4 {vr(ACC+20,4)}, v{vOUT}, {sr(R_OUT,4)}, s{sOUT} offen offset:32
    s_branch {done}
    epw:
    s_lshl_b32 s{sT0}, s{sG}, 8
    s_add_u32 s{sT0}, s{sT0}, s2
    s_cmp_lg_u32 s{sT0}, 56
    s_cbranch_scc1 {done}
    """)
    lds_wait(a, C_ATT, 4, sleep=8)
    for i in range(4):
        a(f"s_mov_b32 s{sT0}, {FL_O + (2048*i << FS)}")
        poll(a, sT0, 64, sh=5)
    a(f"s_mov_b32 s{sT0}, {WS_EPOCH}")
    set_flag(a, sT0)

def kend(a, e):
    a(f"{e}:")
    if OPT.stamps:
        stamp(a, 14); a("s_waitcnt vmcnt(0)"); stamp(a, 15)
        a(f"""
        s_lshl_b32 s100, s2, 3
        s_add_u32 s100, s100, s{sW}
        s_lshl_b32 s100, s100, 8
        s_add_u32 s100, s100, {WS_STAMP}
        v_lshlrev_b32 v254, 2, v{vLANE}
        buffer_store_dword v255, v254, {sr(R_WS,4)}, s100 offen
        """)
    if OPT.amp >= 0:
        if OPT.amp == 14: stamp(a, 14)
        a(f"""
        s_cmp_ge_u32 s{sW}, 4
        s_cbranch_scc{0 if OPT.ampg else 1} {e}x
        s_nop 4
        v_readlane_b32 s16, v255, 0
        v_readlane_b32 s17, v255, 1
        s_nop 4
        s_cmp_eq_u32 s17, 0
        s_cbranch_scc1 {e}x
        s_sub_u32 s18, s17, s16
        s_min_u32 s18, s18, 4000
        s_mul_i32 s18, s18, 5
        s_add_u32 s18, s18, 4000
        ampl:
        s_memrealtime s[20:21]
        s_waitcnt lgkmcnt(0)
        s_sub_u32 s20, s20, s16
        s_cmp_lt_u32 s20, s18
        s_cbranch_scc1 ampl
        """)
    if OPT.double:
        a(f"""
        s_waitcnt vmcnt(0)
        s_memrealtime s[16:17]
        s_waitcnt lgkmcnt(0)
        s_sub_u32 s18, s16, s100
        s_min_u32 s18, s18, 20000
        dbl:
        s_memrealtime s[20:21]
        s_waitcnt lgkmcnt(0)
        s_sub_u32 s20, s20, s16
        s_cmp_lt_u32 s20, s18
        s_cbranch_scc1 dbl
        """)
    a(f"{e}x:\ns_endpgm\ncode_end:")

DOC = '''; ---------------------------------------------------------------------------------------------
; Hand-offs between workgroups (h, K/V, u, o) go through d_ws with sc1 stores, a drained per-wave flag
; and sc1 loads.  Flags carry a 64-bit tag derived from an epoch word in d_ws that every launch advances.
; Softmax: each wave shifts by a score maximum of its first key tile; the row sums are range-checked and
; ---------------------------------------------------------------------------------------------
'''
def build():
    a = Asm()
    n = NAME + "_kernel"
    a('.amdgcn_target "amdgcn-amd-amdhsa--gfx950"\n.text')
    a(f".globl {n}\n.p2align 8\n.type {n},@function\n{n}:")
    e = "fin"
    prologue(a, e)
    p1_a(a); attention(a, e)
    a("p1g:"); p1_g(a); gpath(a, e)
    kend(a, e)
    if OPT.nogv:
        i0 = a.L.index("p1g:")
        i1 = [i for i, l in enumerate(a.L) if l.startswith("gpfw")][0]
        a.L = [("s_nop 0" if (i > i1 and l.startswith("buffer_load_dwordx4")) else l) for i, l in enumerate(a.L)]
    check(a.L)
    head = open(f"refhead.txt").read().split("; Override")[0]
    ll = f"; @launch grid=(256,1,1) block=(512,1,1) lds={LDS_TOTAL}\n"
    desc = f""".section .rodata,"a"
.p2align 6
.amdhsa_kernel {n}
  .amdhsa_next_free_vgpr 256
  .amdhsa_next_free_sgpr 102
  .amdhsa_accum_offset 256
  .amdhsa_group_segment_fixed_size 0
  .amdhsa_kernarg_size 104
  .amdhsa_user_sgpr_count 2
  .amdhsa_user_sgpr_kernarg_segment_ptr 1
  .amdhsa_system_sgpr_workgroup_id_x 1
  .amdhsa_float_denorm_mode_32 3
.end_amdhsa_kernel
"""
    return head + DOC + ll + a.text() + desc

if __name__ == "__main__":
    args = []
    for x in sys.argv[1:]:
        if x.startswith("--"):
            k, _, v = x[2:].partition("=")
            if k == "FS": FS = int(v)
            else: setattr(OPT, k, int(v) if v else True)
        else: args.append(x)
    assert all((t * 37) >> 8 == t // 7 for t in range(56))
    open(args[0] if args else f"cdna_kernels/{NAME}.s", "w").write(build())
```

```python
import sys, math, struct
sys.path.insert(0, "dev")
from asmlib import Asm, vr, sr, check

NAME = "parallel_sum__grouped_kv_mqa__mixer_token_mlp__prompt"
WS_HT = 0
WS_KV = 2 << 20
WS_U  = 5 << 20
WS_O  = 7 << 20
WS_FLG = 10 << 20
FL_H  = WS_FLG
FS = 3
FL_KV = WS_FLG + (8192 << 4)
FL_U  = WS_FLG + (12288 << 4)
FL_O  = WS_FLG + (20480 << 4)
WS_EPOCH = WS_FLG + (32768 << 4)
WS_STAMP = 12 << 20
WS_SIZE = 16 << 20
DBLK = 64
class O: pass
OPT = O(); OPT.stamps = False; OPT.double = False; OPT.prio_g = 0; OPT.prio_e = 3; OPT.prio_a = 0; OPT.pf2step = 6; OPT.pre = 12; OPT.lw = 6; OPT.lw2 = 11; OPT.odeep = 1; OPT.fine = 0; OPT.prio_b = 0; OPT.kp = 0; OPT.one = 1; OPT.mix = 4369; OPT.order2 = 0; OPT.spread = 1; OPT.two1 = 1; OPT.gld = 1; OPT.anold = 0; OPT.anow = 0; OPT.d1 = 0; OPT.flate = 0; OPT.unroll = 0; OPT.ldpos = 11; OPT.nmax = 16; OPT.adel = 0; OPT.gdel = 0; OPT.odel = 0; OPT.tdeep = 1; OPT.kt = 0; OPT.hot = 0; OPT.pdefer = 0; OPT.lsleep = 1; OPT.psleep = 0; OPT.npfa = 9; OPT.prio_t = 3; OPT.ka = 0; OPT.amp = -1; OPT.ampg = 0; OPT.prio_g1b = 0; OPT.fine0 = 2; OPT.dh = 5; OPT.pre0 = 4; OPT.nsg = 6; OPT.nsg2 = 9; OPT.e0 = 4; OPT.e1 = 8; OPT.e2 = 11; OPT.pf1pos = 3; OPT.order = 1; OPT.nogm = 0; OPT.nogv = 0; OPT.a1 = 10; OPT.b1 = 10; OPT.nl0 = 4; OPT.pfd = -100; OPT.kvpf = 1; OPT.a2 = 21; OPT.b2 = 21; OPT.ock = 2; OPT.early = 0; OPT.npf0 = 2; OPT.prio_g2 = 0; OPT.twice = 0; OPT.codepf = 1; OPT.prio_ld = 0; OPT.gatek = 8; OPT.ke = 12; OPT.fl_late = 0; OPT.rdin = 2; OPT.pre1 = 0; OPT.engd = 0; OPT.eng = 7; OPT.engw = 1; OPT.ra = 0; OPT.rb = 4; OPT.nou = 0; OPT.now2 = 0; OPT.dropw = 0; OPT.nocomb = 0; OPT.kvflag = 8; OPT.attit = 4; OPT.nold = 0; OPT.nodma = 0; OPT.nokv = 0
L_XT = 0; L_WQ = 57344; L_WKV = 114688
HB_STRIDE = 912
L_HB = 141056; L_QS = 147456; L_KC = 155648; L_KS = L_KC + 1024; L_MX = L_KC
L_ST = 158720; L_RT = 159232; L_CNT = 159360; LDS_TOTAL = 159744
RING = 12; L_RING = 49152; L_RED = 0
def slotp(k): return 8 + k % 4 if k < OPT.ke else (k - OPT.ke) % RING
C_X, C_KV, C_H, C_ST, C_Q, C_ISS, C_R1, C_R1D, C_ATT, C_R2, C_X1, C_XA, C_FL, C_PRE, C_KS, C_GO = range(16)
sXCD, sJ, sRB, sCB, sW = 3, 4, 5, 6, 7
sT0, sT1, sT2, sT3, sT4, sT5 = 8, 9, 10, 11, 12, 13
sHI = 14
P_X, P_WQ, P_WK, P_WV, P_WO, P_BX, P_W1, P_B1, P_W2, P_B2, P_OUT, P_DBG, P_WS = 16, 18, 20, 22, 24, 26, 28, 30, 32, 34, 36, 38, 40
sTAG = 42
R_X, R_WQ, R_WKV, R_WS, R_W1, R_W2, R_WO, R_OUT, R_KV = 44, 48, 52, 56, 60, 64, 68, 72, 76
R_B1, R_B2 = R_WKV, 20
sONES, sSPIN, sPFW = 82, 83, 99
sG, sGM, sGN, sRing, sA, sD, sL, sFB, sDb, sD2, sLb, sL2, sOUT, sB2 = range(84, 98)
sU0, sU1, sU2, sU3, sU4, sU5 = range(84, 90)
OOB = 0x40000000
EPS = 0x3727c5ac
QSCALE = (28 ** -0.5) * math.log2(math.e)
def f32(x): return "0x%08x" % struct.unpack("<I", struct.pack("<f", x))[0]
vLANE, vJ, vHH, vL16 = 1, 2, 3, 4
MF = "v_mfma_f32_32x32x16_bf16"

def stamp(a, idx):
    if OPT.amp >= 0:
        if idx == 0: a("v_mov_b32 v255, 0\ns_memrealtime s[100:101]\ns_waitcnt lgkmcnt(0)\nv_writelane_b32 v255, s100, 0")
        elif idx == OPT.amp: a("s_memrealtime s[100:101]\ns_waitcnt lgkmcnt(0)\nv_writelane_b32 v255, s100, 1")
        return
    if not OPT.stamps: return
    if OPT.stamps == 2 and idx not in (0, 15): return
    if OPT.stamps == 3 and idx not in (0, 12, 13, 15): return
    a(f"s_memrealtime s[100:101]\ns_waitcnt lgkmcnt(0)\nv_writelane_b32 v255, s100, {idx}")
    if idx in (0, 12, 13, 15): a(f"s_memtime s[100:101]\ns_waitcnt lgkmcnt(0)\nv_writelane_b32 v255, s100, {idx+32}")

def srd(a, r, p, size):
    a(f"s_mov_b32 s{r}, s{p}\ns_mov_b32 s{r+1}, s{p+1}\ns_mov_b32 s{r+2}, {size}\ns_mov_b32 s{r+3}, 0x20000")

def get_tag(a):
    a(f"""
    s_waitcnt lgkmcnt(0)
    s_mul_i32 s{sTAG}, s{sTAG}, 0x9e3779b5
    s_mul_i32 s{sTAG+1}, s{sTAG+1}, 0x85ebca6d
    s_add_u32 s{sTAG}, s{sTAG}, 0x7f4a7c15
    s_add_u32 s{sTAG+1}, s{sTAG+1}, 0x165667b1
    """)

def set_flag(a, soff, vt=30):
    a(f"""
    v_mov_b32 v{vt}, s{sTAG}
    v_mov_b32 v{vt+1}, s{sTAG+1}
    s_waitcnt vmcnt(0)
    s_mov_b64 exec, 1
    buffer_store_dwordx2 {vr(vt,2)}, off, {sr(R_WS,4)}, s{soff} sc1
    s_mov_b64 exec, -1
    """)

def poll(a, soff, n, vo=28, vt=30, sh=3):
    lp = a.label("poll"); dn = a.label("polld")
    a(f"""
    s_setprio 3
    v_min_u32 v{vo}, {n-1}, v{vLANE}
    v_lshlrev_b32 v{vo}, {sh+FS}, v{vo}
    s_mov_b32 s{sSPIN}, 20000
    {lp}:
    buffer_load_dwordx2 {vr(vt,2)}, v{vo}, {sr(R_WS,4)}, s{soff} offen sc1
    s_waitcnt vmcnt(0)
    v_cmp_ne_u64 vcc, {sr(sTAG,2)}, {vr(vt,2)}
    s_cbranch_vccz {dn}
    {f's_sleep {OPT.psleep}' if OPT.psleep else ''}
    s_sub_u32 s{sSPIN}, s{sSPIN}, 1
    s_cmp_lg_u32 s{sSPIN}, 0
    s_cbranch_scc1 {lp}
    {dn}:
    s_setprio 0
    """)

def lds_arrive(a, cnt, nowait=False):
    a(f"""
    s_mov_b64 exec, 1
    {'' if nowait else 's_waitcnt lgkmcnt(0)'}
    ds_add_u32 v0, v29 offset:{4*cnt}
    s_mov_b64 exec, -1
    """)
def lds_wait(a, cnt, target, sleep=0):
    spin = a.label("spin"); ent = a.label("spe")
    sleep = sleep or OPT.lsleep
    if sleep: a(f"s_branch {ent}\n{spin}:\ns_sleep {sleep}\n{ent}:")
    else: a(f"{spin}:")
    a(f"""
    ds_read_b32 v28, v0 offset:{4*cnt}
    s_waitcnt lgkmcnt(0)
    v_readfirstlane_b32 s{sT5}, v28
    s_cmp_lt_u32 s{sT5}, {target}
    s_cbranch_scc1 {spin}
    """)

def bf16_stats(a, vs, vq, vm, vr_, t):
    a(f"""
    v_mul_f32 v{vs}, {f32(1/448)}, v{vs}
    v_mul_f32 v{vq}, {f32(1/448)}, v{vq}
    v_fma_f32 v{vq}, -v{vs}, v{vs}, v{vq}
    v_max_f32 v{vq}, 0, v{vq}
    v_cvt_pk_bf16_f32 v{t}, v{vs}, v{vq}
    v_lshlrev_b32 v{vm}, 16, v{t}
    v_and_b32 v{t}, 0xffff0000, v{t}
    v_add_f32 v{t}, {EPS:#x}, v{t}
    v_cvt_pk_bf16_f32 v{t}, v{t}, v{t}
    v_and_b32 v{t}, 0xffff0000, v{t}
    v_sqrt_f32 v{t}, v{t}
    s_nop 0
    v_cvt_pk_bf16_f32 v{t}, v{t}, v{t}
    v_and_b32 v{t}, 0xffff0000, v{t}
    v_rcp_f32 v{vr_}, v{t}
    s_nop 0
    """)

def dpp_reduce(a, vs, vq, modes):
    a("s_nop 2")
    for mode in modes:
        a(f"v_add_f32_dpp v{vs}, v{vs}, v{vs} {mode} row_mask:0xf bank_mask:0xf")
        a(f"v_add_f32_dpp v{vq}, v{vq}, v{vq} {mode} row_mask:0xf bank_mask:0xf")
        a("s_nop 0")
QP1, QP2, RHM, RM = "quad_perm:[1,0,3,2]", "quad_perm:[2,3,0,1]", "row_half_mirror", "row_mirror"

def split_hi_lo(a, dst, src, t):
    a(f"""
    v_cvt_pk_bf16_f32 v{t}, v{src}, v{src}
    v_and_b32 v{t}, 0xffff0000, v{t}
    v_sub_f32 v{t}, v{src}, v{t}
    v_cvt_pk_bf16_f32 v{dst}, v{src}, v{t}
    """)

def prologue(a, end):
    a(f"s_cmp_ge_u32 s2, 256\ns_cbranch_scc1 {end}x")
    if OPT.double: a("s_memrealtime s[100:101]")
    if OPT.stamps: a("v_mov_b32 v255, 0")
    stamp(a, 0)
    a(f"""
    s_load_dwordx16 s[16:31], s[0:1], 0
    s_load_dwordx8 s[32:39], s[0:1], 64
    s_load_dwordx2 s[40:41], s[0:1], 96
    v_lshrrev_b32 v5, 6, v0
    v_and_b32 v{vLANE}, 63, v0
    v_readfirstlane_b32 s{sW}, v5
    v_and_b32 v{vJ}, 31, v0
    v_lshrrev_b32 v{vHH}, 5, v{vLANE}
    v_lshlrev_b32 v{vL16}, 4, v{vLANE}
    s_and_b32 s{sXCD}, s2, 7
    s_lshr_b32 s{sJ}, s2, 3
    """)
    if OPT.codepf:
        a(f"""
        s_cmp_lg_u32 s{sW}, 7
        s_cbranch_scc1 nocpf
        s_getpc_b64 s[{R_OUT}:{R_OUT+1}]
        cpf_here:
        s_sub_u32 s{R_OUT}, s{R_OUT}, cpf_here-{NAME}_kernel
        s_subb_u32 s{R_OUT+1}, s{R_OUT+1}, 0
        s_mov_b32 s{R_OUT+2}, code_end-{NAME}_kernel
        s_mov_b32 s{R_OUT+3}, 0x20000
        s_lshl_b32 s{sT0}, s{sJ}, 7
        v_lshlrev_b32 v6, 12, v{vLANE}
        buffer_load_dword v250, v6, {sr(R_OUT,4)}, s{sT0} offen
        nocpf:
        """)
    a(f"""
    s_lshr_b32 s{sT0}, s{sJ}, 3
    s_lshl_b32 s{sRB}, s{sXCD}, 2
    s_add_u32 s{sRB}, s{sRB}, s{sT0}
    s_and_b32 s{sCB}, s{sJ}, 7
    s_mov_b32 s{sHI}, 0
    s_mov_b32 s{sHI+1}, -1
    s_mov_b32 s{sONES}, 0x3f803f80
    v_lshlrev_b32 v5, 2, v{vLANE}
    v_add_u32 v5, {L_CNT}, v5
    v_mov_b32 v6, 0
    ds_write_b32 v5, v6
    v_mov_b32 v0, {L_CNT}
    v_mov_b32 v29, 1
    v_lshrrev_b32 v5, 3, v{vLANE}
    v_and_b32 v6, 7, v{vLANE}
    v_lshrrev_b32 v7, 4, v{vLANE}
    v_bfe_u32 v8, v{vLANE}, 2, 2
    v_and_b32 v9, 3, v{vLANE}
    v_and_b32 v10, 1, v7
    v_lshlrev_b32 v9, 3, v9
    v_lshl_add_u32 v9, v10, 5, v9
    """)
    p1_addr(a)
    a(f"s_cmp_ge_u32 s{sW}, 4\ns_cbranch_scc1 p1g")

def common_srds(a):
    a(f"s_mov_b32 s{sT5}, {WS_EPOCH}\ns_waitcnt lgkmcnt(0)")
    stamp(a, 1)
    a(f"s_load_dwordx2 {sr(sTAG,2)}, {sr(P_WS,2)}, s{sT5}")
    srd(a, R_X, P_X, 2048 * 896)
    srd(a, R_WS, P_WS, WS_SIZE)

def epoch_load(a): pass

vXe, vXo, vWQd = 11, 12, 13
sNL, sXs, sXm, sNT, sW3 = 76, 77, 78, 79, 80
sXs2, sXm2, sQs, sQm = 26, 27, 38, 39
def p1_addr(a):
    a(f"""
    v_mul_u32_u24 v20, 896, v5
    v_xor_b32 v21, v6, v7
    v_lshl_add_u32 v{vXe}, v21, 4, v20
    v_xor_b32 v21, 4, v21
    v_lshl_add_u32 v{vXo}, v21, 4, v20
    v_lshlrev_b32 v21, 2, v10
    v_xor_b32 v21, v21, v6
    v_lshl_add_u32 v{vWQd}, v21, 4, v20
    s_and_b32 s{sW3}, s{sW}, 3
    s_cmp_eq_u32 s{sW3}, 3
    s_cselect_b32 s{sNL}, 1, 2
    s_bfe_u32 s{sNT}, s{sCB}, 0x10001
    s_lshl_b32 s{sT0}, s{sRB}, 1
    s_add_u32 s{sT0}, s{sT0}, s{sNT}
    s_mul_i32 s{sXs}, s{sT0}, {32*896}
    s_lshl_b32 s{sT0}, s{sW3}, 8
    s_add_u32 s{sXs}, s{sXs}, s{sT0}
    s_lshl_b32 s{sXm}, s{sW3}, 14
    s_lshl_b32 s{sT0}, s{sNT}, 12
    s_add_u32 s{sXm}, s{sXm}, s{sT0}
    """)
def rest_dma(a, after_x=None):
    srd(a, R_WQ, P_WQ, 448 * 896)
    a(f"""
    s_xor_b32 s{sXm2}, s{sXm}, 4096
    s_mul_i32 s{sT0}, s{sNT}, {2*32*896}
    s_add_u32 s{sXs2}, s{sXs}, {32*896}
    s_sub_u32 s{sXs2}, s{sXs2}, s{sT0}
    s_mul_i32 s{sQs}, s{sW3}, {128*896}
    s_mul_i32 s{sT0}, s{sCB}, 112
    s_add_u32 s{sQs}, s{sQs}, s{sT0}
    s_lshl_b32 s{sQm}, s{sW3}, 14
    """)
    if after_x: after_x()
    PF1 = f"buffer_load_dword v249, v{vPF1}, {sr(R_W1,4)}, s{sPFW} offen"
    if OPT.pf1pos == 0: a(PF1)
    l1 = a.label("rd1"); l2 = a.label("rd2")
    for line in range(2):
        if line: a(f"s_cmp_eq_u32 s{sNL}, 1\ns_cbranch_scc1 {l1}")
        for b in range(4):
            a(f"""
            s_add_u32 m0, s{sXm2}, {L_XT + line*8192 + b*1024}
            s_add_u32 s{sT0}, s{sXs2}, {b*8*896 + line*128}
            buffer_load_dwordx4 v{vXo if b & 1 else vXe}, {sr(R_X,4)}, s{sT0} offen lds
            """)
    a(f"{l1}:")
    if OPT.pf1pos == 1: a(PF1)
    for line in range(2):
        if line:
            a(f"s_waitcnt vmcnt({9 if OPT.pf1pos == 1 else 8})")
            lds_arrive(a, C_XA, nowait=True)
            a(f"s_cmp_eq_u32 s{sNL}, 1\ns_cbranch_scc1 {l2}")
        for b in range(8):
            a(f"""
            s_add_u32 m0, s{sQm}, {L_WQ + line*8192 + b*1024}
            s_add_u32 s{sT0}, s{sQs}, {(line*64 + b*8)*896}
            buffer_load_dwordx4 v{vWQd}, {sr(R_WQ,4)}, s{sT0} offen lds
            """)
    a(f"{l2}:")

vPF1 = 246
def pf1_addr(a):
    a(f"""
    v_min_u32 v14, 6, v6
    v_mul_u32_u24 v{vPF1}, 3584, v5
    v_lshl_add_u32 v{vPF1}, v14, 7, v{vPF1}
    s_lshl_b32 s{sT1}, s{sW3}, 6
    s_lshr_b32 s{sT2}, s{sJ}, 3
    s_lshl_b32 s{sT2}, s{sT2}, 1
    s_add_u32 s{sT1}, s{sT1}, s{sT2}
    s_and_b32 s{sT2}, s{sCB}, 1
    s_add_u32 s{sT1}, s{sT1}, s{sT2}
    s_sub_u32 s{sT1}, s{sT1}, 1
    s_mul_i32 s{sPFW}, s{sT1}, {8*3584}
    s_lshr_b32 s{sT2}, s{sXCD}, 1
    s_mul_i32 s{sT2}, s{sT2}, 896
    s_add_u32 s{sPFW}, s{sPFW}, s{sT2}
    """)
    srd(a, R_W1, P_W1, 2048 * 3584)

def stats_code(a, st0, st1, sRBk, SX=128, T=40):
    a(f"""
    v_lshrrev_b32 v{T}, 2, v{vLANE}
    v_and_b32 v{T+1}, 3, v{vLANE}
    v_lshlrev_b32 v{T+1}, 5, v{T+1}
    v_lshl_add_u32 v{T+1}, v{T}, 7, v{T+1}
    v_lshlrev_b32 v{T+2}, 1, v{vLANE}
    v_and_b32 v{T+2}, 16, v{T+2}
    v_add_u32 v{T+1}, v{T+1}, v{T+2}
    s_lshl_b32 s{sT0}, s{sRBk}, 11
    v_add_u32 v{T+1}, s{sT0}, v{T+1}
    v_xor_b32 v{T+3}, 16, v{T+1}
    s_lshl_b32 s{sT0}, s{sRBk}, 7
    s_add_u32 s{sT0}, s{sT0}, {L_ST}
    v_lshl_add_u32 v{T}, v{T}, 3, s{sT0}
    v_mov_b32 v{T+4}, 0
    v_mov_b32 v{T+5}, 0
    """)
    lds_wait(a, C_X1, 4)
    lds_wait(a, C_XA, 4)
    stamp(a, st0)
    for c in range(7):
        a(f"ds_read_b128 {vr(SX+8*c,4)}, v{T+1} offset:{L_XT + c*8192}")
        a(f"ds_read_b128 {vr(SX+8*c+4,4)}, v{T+3} offset:{L_XT + c*8192}")
    for c in range(7):
        a(f"s_waitcnt lgkmcnt({2*(6-c)})")
        for i in range(8):
            a(f"v_dot2c_f32_bf16 v{T+4}, s{sONES}, v{SX+8*c+i}")
            a(f"v_dot2c_f32_bf16 v{T+5}, v{SX+8*c+i}, v{SX+8*c+i}")
    dpp_reduce(a, T + 4, T + 5, [QP1, QP2])
    bf16_stats(a, T + 4, T + 5, T + 3, T + 7, T + 2)
    a(f"""
    v_cvt_pk_bf16_f32 v{T+6}, -v{T+3}, -v{T+3}
    v_mul_f32 v{T+7}, {f32(QSCALE)}, v{T+7}
    ds_write_b64 v{T}, {vr(T+6,2)}
    """)
    lds_arrive(a, C_ST, nowait=True)
    stamp(a, st1)

def p1_a(a):
    vXF, vWK, vWQr = 14, 18, 19
    sB, sM = 94, 96
    a(f"""
    s_and_b32 s{sT1}, s{sCB}, 1
    s_lshl_b32 s{sT2}, s{sT1}, 11
    s_xor_b32 s{sM}, s{sXm}, s{sT2}
    s_lshr_b32 s{sT3}, s{sJ}, 3
    s_lshl_b32 s{sT3}, s{sT3}, 1
    s_add_u32 s{sT3}, s{sT3}, s{sT1}
    s_mul_i32 s{sT1}, s{sT1}, {16*896}
    s_add_u32 s{sB}, s{sXs}, s{sT1}
    s_add_u32 s{sT2}, s{sXs}, {16*896}
    s_sub_u32 s{sB+1}, s{sT2}, s{sT1}
    v_lshlrev_b32 v21, 7, v{vLANE}
    s_mov_b32 s{sT4}, 0
    """)
    common_srds(a)
    def x_half(h):
        sk = a.label("xh")
        for line in range(2):
            if line: a(f"s_cmp_eq_u32 s{sNL}, 1\ns_cbranch_scc1 {sk}")
            for b in range(2):
                a(f"""
                s_xor_b32 m0, s{sM}, {line*8192 + h*2048 + b*1024}
                s_add_u32 s{sT0}, s{sB+h}, {b*8*896 + line*128}
                buffer_load_dwordx4 v{vXo if b else vXe}, {sr(R_X,4)}, s{sT0} offen lds
                """)
        a(f"{sk}:")
    def frag_addr():
        a(f"""
        v_lshrrev_b32 v20, 1, v{vJ}
        v_and_b32 v20, 7, v20
        v_xor_b32 v20, v20, v{vHH}
        v_lshlrev_b32 v20, 4, v20
        v_lshl_add_u32 v{vXF}, v{vJ}, 7, v20
        v_xor_b32 v{vXF+1}, 32, v{vXF}
        v_xor_b32 v{vXF+2}, 64, v{vXF}
        v_xor_b32 v{vXF+3}, 96, v{vXF}
        v_lshl_add_u32 v20, v{vHH}, 3, v8
        """)
    nop_ = a.label("notp"); other = a.label("notkv"); htype = a.label("htype"); qgo = a.label("qgo"); dostats = a.label("dostats"); poststats = a.label("poststats")
    x_half(0)
    a(f"s_cmp_ge_u32 s{sCB}, 4\ns_cbranch_scc1 {other}")
    x_half(1)
    a(f"""
    s_bitcmp1_b32 s{sCB}, 0
    s_cselect_b32 s{R_WKV}, s{P_WV}, s{P_WK}
    s_cselect_b32 s{R_WKV+1}, s{P_WV+1}, s{P_WK+1}
    s_mov_b32 s{R_WKV+2}, {448*56}
    s_mov_b32 s{R_WKV+3}, 0x20000
    s_mul_i32 s{sT1}, s{sW}, 7168
    s_add_u32 m0, s{sT1}, {L_WKV}
    s_cmp_eq_u32 s{sNL}, 1
    """)
    w3 = a.label("wk3")
    for i in range(4): a(f"buffer_load_dwordx4 v{vL16}, {sr(R_WKV,4)}, s{sT1} offen offset:{1024*i} lds")
    a(f"""
    s_cbranch_scc1 {w3}
    s_add_u32 m0, m0, 4096
    s_add_u32 s{sT1}, s{sT1}, 4096
    """)
    for i in range(3): a(f"buffer_load_dwordx4 v{vL16}, {sr(R_WKV,4)}, s{sT1} offen offset:{1024*i} lds")
    a(f"{w3}:")
    epoch_load(a)
    a("s_barrier")
    frag_addr()
    ACC, XF, WF = 96, 32, 64
    vQ, vS, vC = 22, 23, 21
    a(f"""
    v_mul_u32_u24 v{vWK}, 56, v20
    v_add_u32 v{vWK}, v{vWK}, v9
    s_mul_i32 s{sT1}, s{sW}, 7168
    s_add_u32 s{sT1}, s{sT1}, {L_WKV}
    v_add_u32 v{vWK}, s{sT1}, v{vWK}
    v_add_u32 v24, s{sXm}, v{vXF}
    v_xor_b32 v25, 32, v24
    v_xor_b32 v30, 64, v24
    v_xor_b32 v31, 96, v24
    v_mov_b32 v{vS}, 0
    v_mov_b32 v{vQ}, 0
    v_mov_b32 v{vC}, 0
    s_lshl_b32 s{sT0}, s{sW}, 4
    s_add_u32 s{sT0}, s{sT0}, {L_KS}
    v_lshlrev_b32 v120, 6, v{vJ}
    v_lshl_add_u32 v121, v{vHH}, 3, v120
    v_add_u32 v121, s{sT0}, v121
    s_lshl_b32 s{sT0}, s{sW}, 2
    s_add_u32 s{sT0}, s{sT0}, {L_KC}
    v_add_u32 v122, s{sT0}, v{vL16}
    v_add_u32 v123, s{sT1}, v{vL16}
    """)
    xa = [24, 25, 30, 31]
    l0 = a.label("kv0"); l1 = a.label("kv1a"); l2 = a.label("kv1b"); l3 = a.label("kv1c"); vlab = a.label("kvv"); fin = a.label("kvfin")
    def skip1(lab): a(f"s_cmp_eq_u32 s{sNL}, 1\ns_cbranch_scc1 {lab}")
    a(f"s_waitcnt vmcnt(7)\ns_cmp_eq_u32 s{sNL}, 1\ns_cbranch_scc0 {l0}\ns_waitcnt vmcnt(4)\n{l0}:")
    stamp(a, 2)
    for line in range(2):
        for q in range(4): a(f"ds_read_b128 {vr(XF+16*line+4*q,4)}, v{xa[q]} offset:{L_XT + line*8192}")
    lds_arrive(a, C_X1, nowait=True)
    for line in range(2):
        if line: skip1(l1)
        for q in range(4):
            a(f"s_waitcnt lgkmcnt({8-4*line-q})")
            for i in range(4):
                r = XF + 16 * line + 4 * q + i
                a(f"v_dot2c_f32_bf16 v{vS}, s{sONES}, v{r}\nv_dot2c_f32_bf16 v{vQ}, v{r}, v{r}")
    a(f"{l1}:\ns_waitcnt vmcnt(0) lgkmcnt(0)\ns_nop 1\nds_write_b64 v121, v[22:23]")
    stamp(a, 18)
    for k in range(8):
        if k == 7: a("s_waitcnt lgkmcnt(13)")
        a(f"ds_read_b64_tr_b16 {vr(WF+4*k,2)}, v{vWK} offset:{k*896}")
        a(f"ds_read_b64_tr_b16 {vr(WF+4*k+2,2)}, v{vWK} offset:{k*896+224}")
    for k in range(8):
        if k == 4: skip1(l3)
        a(f"s_waitcnt lgkmcnt({14-2*k})")
        for i in range(4): a(f"v_dot2c_f32_bf16 v{vC}, s{sONES}, v{WF+4*k+i}")
    a(f"{l3}:\ns_bitcmp1_b32 s{sCB}, 0\ns_cbranch_scc1 {vlab}")
    for isv in (0, 1):
        if isv: a(f"{vlab}:")
        for k in range(8):
            if k == 4: skip1(fin)
            A, B = (vr(XF+4*k,4), vr(WF+4*k,4)) if isv else (vr(WF+4*k,4), vr(XF+4*k,4))
            a(f"{MF} {vr(ACC,16)}, {A}, {B}, {vr(ACC,16) if k else 0}")
            if k == 0:
                split_hi_lo(a, 24, vC, 31)
                a("ds_write_b32 v122, v24")
                lds_arrive(a, C_KS, nowait=True)
        if not isv: a(f"s_branch {l2}")
    a(f"""
    {l2}:
    s_lshl_b32 s{sT2}, s{sNT}, 1
    s_xor_b32 s{sT2}, s{sT2}, 2
    s_add_u32 s{sT2}, s{sT2}, s{sW}
    """)
    get_tag(a)
    a("s_nop 3")
    for g in range(4): a(f"ds_write_b128 v123, {vr(ACC+4*g,4)} offset:{1024*g}")
    lds_arrive(a, C_KV, nowait=True)
    stamp(a, 3)
    a(f"s_cmp_lt_u32 s{sW}, 2\ns_cbranch_scc1 {dostats}")
    lds_arrive(a, C_ST, nowait=True)
    a(f"s_branch {qgo}")
    vfin = a.label("vfin"); kvst = a.label("kvst"); vf2 = a.label("vf2"); cm = a.label("kvcm")
    a(f"""
    {fin}:
    s_setprio 3
    v_add_u32 v24, {L_KS}, v120
    v_add_u32 v25, {L_WKV}, v{vL16}
    v_add_u32 v21, {L_KC}, v{vL16}
    s_lshl_b32 s{sT1}, s{sRB}, 1
    s_add_u32 s{sT1}, s{sT1}, s{sNT}
    s_lshl_b32 s{sT1}, s{sT1}, 12
    s_add_u32 s{sT1}, s{sT1}, {WS_KV}
    s_lshl_b32 s{sT4}, s{sRB}, 2
    s_add_u32 s{sT4}, s{sT4}, s{sCB}
    s_lshl_b32 s{sT4}, s{sT4}, {3+FS}
    s_add_u32 s{sT4}, s{sT4}, {FL_KV}
    s_lshl_b32 s{sT0}, s{sNT}, 8
    s_add_u32 s{sT0}, s{sT0}, {L_ST}
    v_lshl_add_u32 v30, v{vJ}, 3, s{sT0}
    s_waitcnt vmcnt(0)
    """)
    get_tag(a)
    lds_wait(a, C_KS, 4)
    for g in range(4): a(f"ds_read_b128 {vr(XF+4*g,4)}, v24 offset:{16*g}")
    a(f"ds_read_b128 {vr(112,4)}, v21\ns_waitcnt lgkmcnt(1)")
    for i in range(4): a(f"v_pk_add_f32 {vr(XF+4*i,2)}, {vr(XF+4*i,2)}, {vr(XF+4*i+2,2)}")
    a(f"""
    v_pk_add_f32 {vr(XF,2)}, {vr(XF,2)}, {vr(XF+4,2)}
    v_pk_add_f32 {vr(XF+8,2)}, {vr(XF+8,2)}, {vr(XF+12,2)}
    v_pk_add_f32 {vr(XF,2)}, {vr(XF,2)}, {vr(XF+8,2)}
    """)
    bf16_stats(a, XF + 1, XF, 22, 23, 21)
    a(f"""
    v_cvt_pk_bf16_f32 v116, -v22, -v22
    v_lshlrev_b32 v21, 2, v{vJ}
    v_add_u32 v21, {L_RT}, v21
    ds_write_b32 v21, v23
    v_mul_f32 v117, {f32(QSCALE)}, v23
    v_lshlrev_b32 v21, 4, v{vHH}
    v_add_u32 v21, {L_RT}, v21
    ds_write_b64 v30, v[116:117]
    v_mov_b32 v118, v116
    v_mov_b32 v119, v116
    v_mov_b32 v22, v23
    """)
    lds_arrive(a, C_ST, nowait=True)
    a(f"""
    s_waitcnt lgkmcnt(0)
    v_mov_b32 v117, v116
    s_bitcmp1_b32 s{sCB}, 0
    s_cbranch_scc1 {vfin}
    {MF} {vr(ACC,16)}, {vr(112,4)}, {vr(116,4)}, {vr(ACC,16)}
    s_branch {cm}
    {vfin}:
    {MF} {vr(ACC,16)}, {vr(116,4)}, {vr(112,4)}, {vr(ACC,16)}
    """)
    for g in range(4): a(f"ds_read_b128 {vr(XF+4*g,4)}, v21 offset:{32*g}")
    a(f"""
    s_add_u32 s{sT1}, s{sT1}, 2048
    v_cmp_eq_u32 vcc, 28, v{vJ}
    v_mov_b32 v24, 0x3f803f80
    s_nop 1
    v_cndmask_b32 v24, 0, v24, vcc
    """)
    for i in range(8): a(f"v_mov_b32 v{120+i}, v24")
    a(f"{cm}:")
    lds_wait(a, C_KV, 3)
    stamp(a, 4)
    for w in range(3):
        for g in range(4): a(f"ds_read_b128 {vr(128+16*w+4*g,4)}, v25 offset:{7168*w+1024*g}")
    for w in range(3):
        a(f"s_waitcnt lgkmcnt({8-4*w})")
        for r in range(0, 16, 2): a(f"v_pk_add_f32 {vr(ACC+r,2)}, {vr(ACC+r,2)}, {vr(128+16*w+r,2)}")
    a(f"s_bitcmp1_b32 s{sCB}, 0\ns_cbranch_scc1 {vf2}")
    for r in range(0, 16, 2): a(f"v_pk_mul_f32 {vr(ACC+r,2)}, {vr(ACC+r,2)}, v[22:23]")
    for i in range(8): a(f"v_cvt_pk_bf16_f32 v{120+i}, v{ACC+2*i}, v{ACC+2*i+1}")
    a(f"""
    s_mov_b64 exec, {sr(sHI,2)}
    v_mov_b32 v126, 0x3f803f80
    v_mov_b32 v127, 0x00003f80
    s_branch {kvst}
    {vf2}:
    s_mov_b32 exec_lo, 0x0fffffff
    s_mov_b32 exec_hi, 0x0fffffff
    """)
    for r in range(0, 16, 2): a(f"v_pk_mul_f32 {vr(ACC+r,2)}, {vr(ACC+r,2)}, {vr(XF+r,2)}")
    for i in range(8): a(f"v_cvt_pk_bf16_f32 v{120+i}, v{ACC+2*i}, v{ACC+2*i+1}")
    a(f"""
    {kvst}:
    s_mov_b64 exec, -1
    buffer_store_dwordx4 {vr(120,4)}, v{vL16}, {sr(R_WS,4)}, s{sT1} offen sc1
    buffer_store_dwordx4 {vr(124,4)}, v{vL16}, {sr(R_WS,4)}, s{sT1} offen offset:1024 sc1
    """)
    stamp(a, 5)
    if OPT.kvflag < 0:
        set_flag(a, sT4)
        a(f"s_mov_b32 s{sT4}, 0\ns_setprio 0")
        stamp(a, 6)
    if not OPT.fl_late or OPT.kvflag < 0: lds_arrive(a, C_FL, nowait=True)
    a(f"s_branch {qgo}")
    a(f"{other}:")
    a(f"""
    s_lshr_b32 s{sT3}, s{sJ}, 3
    s_lshl_b32 s{sT3}, s{sT3}, 2
    s_add_u32 s{sT3}, s{sT3}, s{sCB}
    s_sub_u32 s{sT3}, s{sT3}, 4
    s_lshl_b32 s{sT0}, s{sT3}, 2
    s_add_u32 s{sT0}, s{sT0}, s{sW}
    s_cmp_eq_u32 s{sT3}, 1
    s_cselect_b32 s{R_WKV}, s{P_WV}, s{P_WK}
    s_cselect_b32 s{R_WKV+1}, s{P_WV+1}, s{P_WK+1}
    s_mov_b32 s{R_WKV+2}, {448*896}
    s_sub_u32 s{sT1}, s{sT0}, 8
    s_cmp_lt_u32 s{sT3}, 2
    s_cselect_b32 s{R_WKV}, s{R_WKV}, s{P_WQ}
    s_cselect_b32 s{R_WKV+1}, s{R_WKV+1}, s{P_WQ+1}
    s_cselect_b32 s{R_WKV+2}, {448*56}, s{R_WKV+2}
    s_cselect_b32 s{sT1}, s{sW}, s{sT1}
    s_mov_b32 s{R_WKV+3}, 0x20000
    s_lshl_b32 s{sT1}, s{sT1}, 13
    buffer_load_dword v250, v21, {sr(R_WKV,4)}, s{sT1} offen
    """)
    pf1_addr(a)
    frag_addr()
    a(f"s_mov_b32 s{sT2}, s{sW}\ns_barrier\ns_waitcnt vmcnt(1)")
    stamp(a, 2)
    lds_arrive(a, C_X1, nowait=True)
    def early():
        ne = a.label("noearly"); nw = a.label("nowait")
        a(f"s_cmp_lt_u32 s{sCB}, 6\ns_cbranch_scc1 {nw if OPT.pdefer else ne}\ns_cmp_eq_u32 s{sJ}, 6\ns_cbranch_scc1 {nw if OPT.pdefer else ne}")
        for i in range(OPT.npf0):
            if i == OPT.npfa: lds_wait(a, C_FL, 4)
            a(f"buffer_load_dword v{251+i%3}, v{vPF1}, {sr(R_W1,4)}, s{sPFW} offen\ns_add_u32 s{sPFW}, s{sPFW}, {56*3584}")
        a(f"{nw}:")
        lds_wait(a, C_FL, 4)
        a(f"{ne}:")
        x_half(1)
    rest_dma(a, early)
    lds_arrive(a, C_ISS, nowait=True)
    get_tag(a)
    stamp(a, 3)
    a(f"{dostats}:")
    stats_code(a, 20, 21, sT2)
    a(f"s_cmp_lt_u32 s{sCB}, 4\ns_cbranch_scc1 {qgo}\ns_waitcnt vmcnt(0)")
    lds_arrive(a, C_X, nowait=True)
    QACC, B0 = 128, 32
    a(f"""
    {qgo}:
    s_and_b32 s{sT0}, s{sW}, 1
    s_mul_i32 s{sT0}, s{sT0}, 56
    v_add_u32 v{vWQr}, s{sT0}, v9
    v_lshlrev_b32 v21, 5, v8
    v_and_b32 v21, 64, v21
    v_xor_b32 v{vWQr}, v{vWQr}, v21
    v_lshl_add_u32 v{vWQr}, v20, 7, v{vWQr}
    v_add_u32 v{vWQr}, {L_WQ}, v{vWQr}
    s_lshr_b32 s{sT1}, s{sW}, 1
    s_lshl_b32 s{sT0}, s{sT1}, 12
    v_mov_b32 v23, 0
    v_mov_b32 v113, 0
    v_mov_b32 v114, 0
    v_mov_b32 v115, 0
    v_mov_b32 v118, 0
    v_mov_b32 v119, 0
    """)
    for q in range(4): a(f"v_add_u32 v{vXF+q}, s{sT0}, v{vXF+q}")
    a(f"""
    s_lshl_b32 s{sT1}, s{sT1}, 8
    s_add_u32 s{sT1}, s{sT1}, {L_ST}
    v_lshl_add_u32 v24, v{vJ}, 3, s{sT1}
    """)
    lds_wait(a, C_X1, 4)
    lds_wait(a, C_X, 4)
    stamp(a, 7)
    D = 4; NB = 8
    WR = list(range(64, 112, 4)) + list(range(144, 176, 4)) + list(range(224, 248, 4)) + [120, 124]
    def wreg(ks): return WR[ks]
    def reads(ks):
        b = wreg(ks)
        a(f"ds_read_b64_tr_b16 {vr(b,2)}, v{vWQr} offset:{ks*2048}")
        a(f"ds_read_b64_tr_b16 {vr(b+2,2)}, v{vWQr} offset:{ks*2048+512}")
        a(f"ds_read_b128 {vr(B0+4*(ks%NB),4)}, v{vXF+(ks&3)} offset:{L_XT + (ks>>2)*8192}")
    for ks in range(D): reads(ks)
    for ks in range(28):
        if ks + D < 28: reads(ks + D)
        a(f"s_waitcnt lgkmcnt({3*min(D, 27-ks)})")
        a(f"{MF} {vr(QACC,16)}, {vr(wreg(ks),4)}, {vr(B0+4*(ks%NB),4)}, {'0' if ks == 0 else vr(QACC,16)}")
        if ks == OPT.kvflag:
            nf = a.label("nofl")
            a(f"s_cmp_eq_u32 s{sT4}, 0\ns_cbranch_scc1 {nf}")
            set_flag(a, sT4)
            if OPT.fl_late: lds_arrive(a, C_FL, nowait=True)
            a("s_setprio 0")
            stamp(a, 6)
            a(f"{nf}:")
    stamp(a, 19)
    if OPT.prio_ld: a(f"s_setprio {OPT.prio_ld}")
    att_setup(a)
    if OPT.early: a(f"buffer_load_dwordx2 v[30:31], v25, {sr(R_WS,4)}, s{sKF} offen sc1")
    for ks in range(28):
        for i in range(4): a(f"v_dot2c_f32_bf16 v23, s{sONES}, v{wreg(ks)+i}")
    if OPT.early:
        nk = a.label("nokvyet")
        a(f"""
        s_waitcnt vmcnt(0)
        v_cmp_ne_u64 vcc, {sr(sTAG,2)}, v[30:31]
        s_cbranch_vccnz {nk}
        """)
        first_kv(a)
        a(f"s_mov_b32 s{sKF}, 0\n{nk}:")
    stamp(a, 8)
    lds_wait(a, C_ST, 8)
    a(f"ds_read_b64 v[116:117], v24")
    split_hi_lo(a, 112, 23, 21)
    a(f"""
    s_waitcnt lgkmcnt(0)
    v_mov_b32 v22, v117
    v_mov_b32 v23, v117
    v_mov_b32 v117, 0
    s_nop 1
    {MF} {vr(QACC,16)}, {vr(112,4)}, {vr(116,4)}, {vr(QACC,16)}
    s_lshl_b32 s{sT1}, s{sW}, 11
    s_add_u32 s{sT1}, s{sT1}, {L_QS}
    v_add_u32 v21, s{sT1}, v{vL16}
    """)
    for r in range(64, 76): a(f"v_mov_b32 v{r}, 0")
    for r in range(0, 16, 2): a(f"v_pk_mul_f32 {vr(QACC+r,2)}, {vr(QACC+r,2)}, v[22:23]")
    for i in range(8): a(f"v_cvt_pk_bf16_f32 v{32+i}, v{QACC+2*i}, v{QACC+2*i+1}")
    a(f"""
    s_mov_b64 exec, {sr(sHI,2)}
    v_mov_b32 v38, 0
    v_mov_b32 v39, 0
    s_mov_b64 exec, -1
    ds_write_b128 v21, {vr(32,4)}
    ds_write_b128 v21, {vr(36,4)} offset:1024
    """)
    lds_arrive(a, C_Q, nowait=True)

vDW1, vDW2, vDWO, vOUT, vT1, vT2, vT3, vLN, vLM, vPF, vPF2 = 48, 49, 50, 51, 52, 54, 56, 58, 60, 62, 63
vTH, vSW = 240, 247
sHasG1 = 98
sLb0, sLbE, sDb0, sDbE = 34, 35, 36, 37
sFH, sPH, sB1o, sFU, sUS, sFUc, sPU, sFOc, sSH1 = 16, 17, 28, 29, 30, 31, 32, 33, 81
def g_setup1(a, mid=None):
    srd(a, R_B1, P_B1, 1792 * 2)
    a(f"""
    s_lshr_b32 s{sGM}, s{sG}, 1
    s_and_b32 s{sGN}, s{sG}, 1
    s_lshl_b32 s{sRing}, s{sG}, 11
    s_add_u32 s{sRing}, s{sRing}, {L_RING}
    v_lshlrev_b32 v{vDWO}, 2, v10
    v_xor_b32 v{vDWO}, v{vDWO}, v6
    v_lshlrev_b32 v{vDWO}, 4, v{vDWO}
    v_lshl_add_u32 v{vT3}, v8, 7, v9
    v_lshlrev_b32 v24, 5, v8
    v_and_b32 v24, 64, v24
    v_add_u32 v{vT3}, v{vT3}, v24
    v_add_u32 v{vT3}, s{sRing}, v{vT3}
    s_lshr_b32 s{sT0}, s{sJ}, 3
    s_mul_i32 s{sT0}, s{sT0}, 6
    s_add_u32 s{sT0}, s{sT0}, s{sCB}
    s_cmp_lt_u32 s{sCB}, 6
    s_cselect_b32 s{sHasG1}, 1, 0
    s_and_b32 s{sT1}, s2, 0xf9
    s_cmp_eq_u32 s{sT1}, 48
    s_cselect_b32 s{sT0}, 24, s{sT0}
    s_cselect_b32 s{sHasG1}, 1, s{sHasG1}
    s_and_b32 s{sT1}, s{sXCD}, 1
    s_mul_i32 s{sT1}, s{sT1}, 25
    s_add_u32 s{sT0}, s{sT0}, s{sT1}
    s_mul_i32 s{sA}, s{sT0}, 37
    s_lshr_b32 s{sA}, s{sA}, 8
    s_mul_i32 s{sT1}, s{sA}, 7
    s_sub_u32 s{sPH}, s{sT0}, s{sT1}
    s_lshr_b32 s{sFB}, s{sXCD}, 1
    s_mul_i32 s{sFB}, s{sFB}, 7
    s_add_u32 s{sFB}, s{sFB}, s{sPH}
    """)
    if mid: mid()
    a(f"""
    v_mul_u32_u24 v{vDW1}, 3584, v5
    v_add_u32 v{vDW1}, v{vDW1}, v{vDWO}
    v_lshl_add_u32 v{vDW2}, v5, 12, v{vDWO}
    v_mul_u32_u24 v24, 896, v5
    v_add_u32 v{vDWO}, v24, v{vDWO}
    s_mul_i32 s{sD}, s{sG}, {512*3584}
    s_lshl_b32 s{sT0}, s{sFB}, 7
    s_add_u32 s{sD}, s{sD}, s{sT0}
    s_lshl_b32 s{sT1}, s{sGM}, 6
    s_add_u32 s{sB1o}, s{sT0}, s{sT1}
    v_lshl_add_u32 v24, v{vHH}, 10, v{vT3}
    v_xor_b32 v{vT1}, s{sT1}, v24
    v_xor_b32 v{vT1+1}, 64, v{vT1}
    v_add_u32 v{vTH}, 0x10000, v{vT1}
    v_add_u32 v{vTH+1}, 0x10000, v{vT1+1}
    s_lshl_b32 s{sT0}, s{sGN}, 10
    v_add_u32 v{vLN}, s{sT0}, v{vL16}
    v_xor_b32 v{vLN+1}, 0x400, v{vLN}
    s_lshl_b32 s{sL}, s{sA}, 18
    s_lshl_b32 s{sT0}, s{sG}, 16
    s_add_u32 s{sL}, s{sL}, s{sT0}
    s_add_u32 s{sSH1}, s{sPH}, 1
    s_lshl_b32 s{sPH}, s{sSH1}, 13
    s_add_u32 s{sPH}, s{sPH}, s{sL}
    v_lshlrev_b32 v{vPF}, 7, v{vLANE}
    v_add_u32 v{vSW}, s{sRing}, v{vL16}
    v_add_u32 v{vSW+1}, 0x10000, v{vSW}
    s_lshr_b32 s{sFH}, s{sA}, 1
    s_lshl_b32 s{sFH}, s{sFH}, 10
    s_lshl_b32 s{sT0}, s{sG}, 8
    s_add_u32 s{sFH}, s{sFH}, s{sT0}
    s_lshl_b32 s{sFH}, s{sFH}, {FS}
    s_add_u32 s{sFH}, s{sFH}, {FL_H}
    v_bfe_u32 v32, v{vJ}, 1, 3
    v_lshlrev_b32 v32, 4, v32
    v_xor_b32 v32, s{sT1}, v32
    v_lshl_add_u32 v32, v{vJ}, 7, v32
    v_lshl_add_u32 v32, v{vHH}, 3, v32
    s_lshl_b32 s{sT0}, s{sCB}, 13
    s_lshl_b32 s{sT1}, s{sGN}, 12
    s_add_u32 s{sT0}, s{sT0}, s{sT1}
    v_add_u32 v32, s{sT0}, v32
    v_xor_b32 v33, 16, v32
    v_xor_b32 v34, 32, v32
    v_xor_b32 v35, 48, v32
    """)
    assert WS_HT == 0
def g_xread(a):
    lds_wait(a, C_X1, 4)
    lds_wait(a, C_XA, 4)
    for g, v in enumerate((32, 33, 34, 35)): a(f"ds_read_b64 {vr(80+2*g,2)}, v{v} offset:{L_XT}")
    lds_arrive(a, C_ST, nowait=True)

def g_setup2(a):
    srd(a, R_W2, P_W2, 1792 * 4096)
    srd(a, R_WO, P_WO, 448 * 896)
    srd(a, R_OUT, P_OUT, 2048 * 896)
    srd(a, R_B2, P_B2, 2048 * 2)
    a(f"""
    s_mul_i32 s{sDb}, s{sG}, {448*4096}
    s_lshl_b32 s{sT0}, s{sRB}, 7
    s_add_u32 s{sDb}, s{sDb}, s{sT0}
    s_mul_i32 s{sD2}, s{sG}, {112*896}
    s_lshl_b32 s{sT0}, s{sCB}, 7
    s_add_u32 s{sD2}, s{sD2}, s{sT0}
    s_lshl_b32 s{sT0}, s{sGM}, 6
    s_lshl_b32 s{sT1}, s{sGN}, 6
    v_lshl_add_u32 v24, v{vHH}, 9, v{vT3}
    v_xor_b32 v{vT2}, s{sT1}, v24
    v_xor_b32 v{vT2+1}, 64, v{vT2}
    v_xor_b32 v{vT3}, s{sT0}, v24
    v_xor_b32 v{vT3+1}, 64, v{vT3}
    s_lshl_b32 s{sT0}, s{sGM}, 10
    v_add_u32 v{vLM}, s{sT0}, v{vL16}
    v_xor_b32 v{vLM+1}, 0x400, v{vLM}
    s_mul_i32 s{sLb}, s{sCB}, 112
    s_mul_i32 s{sT0}, s{sG}, 28
    s_add_u32 s{sLb}, s{sLb}, s{sT0}
    s_lshl_b32 s{sLb}, s{sLb}, 11
    s_add_u32 s{sLb}, s{sLb}, {WS_U}
    s_lshr_b32 s{sT0}, s{sJ}, 3
    s_add_u32 s{sT0}, s{sT0}, 3
    s_lshl_b32 s{sT0}, s{sT0}, 13
    s_add_u32 s{sPU}, s{sT0}, s{sLb}
    s_lshl_b32 s{sL2}, s{sRB}, 16
    s_lshl_b32 s{sT0}, s{sG}, 14
    s_add_u32 s{sL2}, s{sL2}, s{sT0}
    s_add_u32 s{sL2}, s{sL2}, {WS_O}
    v_mul_u32_u24 v{vOUT}, 896, v{vJ}
    v_lshl_add_u32 v{vOUT}, v{vHH}, 4, v{vOUT}
    s_lshl_b32 s{sT0}, s{sRB}, 1
    s_add_u32 s{sT0}, s{sT0}, s{sGN}
    s_lshl_b32 s{sB2}, s{sT0}, 6
    s_mul_i32 s{sT0}, s{sT0}, {32*896}
    s_lshl_b32 s{sT1}, s{sCB}, 7
    s_add_u32 s{sT0}, s{sT0}, s{sT1}
    s_lshl_b32 s{sT1}, s{sGM}, 6
    s_add_u32 s{sOUT}, s{sT0}, s{sT1}
    v_lshrrev_b32 v{vPF2}, 2, v{vLANE}
    v_and_b32 v24, 3, v{vLANE}
    v_lshlrev_b32 v{vPF2}, 12, v{vPF2}
    v_lshl_add_u32 v{vPF2}, v24, 7, v{vPF2}
    s_mul_i32 s{sT0}, s{sA}, 112
    s_lshl_b32 s{sT1}, s{sFB}, 2
    s_add_u32 s{sT0}, s{sT0}, s{sT1}
    s_lshl_b32 s{sT2}, s{sGM}, 1
    s_add_u32 s{sT0}, s{sT0}, s{sT2}
    s_lshl_b32 s{sT0}, s{sT0}, 11
    s_add_u32 s{sUS}, s{sT0}, {WS_U}
    s_lshl_b32 s{sT0}, s{sA}, 7
    s_add_u32 s{sT0}, s{sT0}, s{sT1}
    s_add_u32 s{sT0}, s{sT0}, s{sG}
    s_lshl_b32 s{sT0}, s{sT0}, 3
    s_lshl_b32 s{sT0}, s{sT0}, {FS}
    s_add_u32 s{sFU}, s{sT0}, {FL_U}
    s_lshl_b32 s{sT0}, s{sCB}, 10
    s_mul_i32 s{sT1}, s{sG}, 224
    s_add_u32 s{sT0}, s{sT0}, s{sT1}
    s_lshl_b32 s{sT0}, s{sT0}, {FS}
    s_add_u32 s{sFUc}, s{sT0}, {FL_U}
    s_lshl_b32 s{sT0}, s{sRB}, 8
    s_lshl_b32 s{sT1}, s{sG}, 6
    s_add_u32 s{sT0}, s{sT0}, s{sT1}
    s_lshl_b32 s{sT0}, s{sT0}, {FS}
    s_add_u32 s{sFOc}, s{sT0}, {FL_O}
    """)
    for i in range(2, 6): a(f"v_add_u32 v{vTH+i}, 0x10000, v{vT1+i}")
    if OPT.ra or OPT.rb:
        a(f"""
        s_lshr_b32 s{sT0}, s{sJ}, 3
        s_mul_i32 s{sT0}, s{sT0}, {OPT.ra}
        s_mul_i32 s{sT1}, s{sXCD}, {OPT.rb}
        s_add_u32 s{sT0}, s{sT0}, s{sT1}
        s_mul_i32 s{sT1}, s{sT0}, 2341
        s_lshr_b32 s{sT1}, s{sT1}, 16
        s_mul_i32 s{sT1}, s{sT1}, 28
        s_sub_u32 s{sT0}, s{sT0}, s{sT1}
        s_mov_b32 s{sLb0}, s{sLb}
        s_add_u32 s{sLbE}, s{sLb}, {28*2048}
        s_mov_b32 s{sDb0}, s{sDb}
        s_add_u32 s{sDbE}, s{sDb}, {28*16*4096}
        s_lshl_b32 s{sT1}, s{sT0}, 11
        s_add_u32 s{sLb}, s{sLb}, s{sT1}
        s_lshl_b32 s{sT1}, s{sT0}, 16
        s_add_u32 s{sDb}, s{sDb}, s{sT1}
        """)
        assert all((x * 2341) >> 16 == x // 28 for x in range(200))
    if OPT.nou: a(f"v_mov_b32 v{vLM}, {OOB}\nv_mov_b32 v{vLM+1}, {OOB}")
    if OPT.now2: a(f"v_mov_b32 v{vDW2}, {OOB}")

L_HB2 = L_WKV
def p1_g(a):
    X, U = 128, 160
    htype = a.label("gh"); pfw = a.label("gpfw")
    a(f"s_sub_u32 s{sG}, s{sW}, 4")
    common_srds(a)
    pf1_addr(a)
    a(f"s_cmp_ge_u32 s{sCB}, 4\ns_cbranch_scc1 {htype}")
    a("s_barrier")
    rest_dma(a)
    stamp(a, 2)
    get_tag(a)
    g_setup1(a, lambda: (a("s_waitcnt vmcnt(0)"), lds_arrive(a, C_X, nowait=True), stamp(a, 3)))
    lds_wait(a, C_FL, 1)
    a(f"s_branch {pfw}")
    a(f"""
    {htype}:
    s_sub_u32 s{sT1}, s{sCB}, 4
    s_lshl_b32 s{sT0}, s{sRB}, 2
    s_add_u32 s{sT0}, s{sT0}, s{sT1}
    s_lshl_b32 s{sT1}, s{sT1}, 4
    s_lshl_b32 s{sT2}, s{sG}, 2
    s_add_u32 s{sT1}, s{sT1}, s{sT2}
    v_add_u32 v11, s{sT1}, v7
    v_and_b32 v13, 1, v5
    v_lshlrev_b32 v12, 13, v13
    v_lshl_add_u32 v12, v11, 7, v12
    v_lshl_add_u32 v12, v6, 4, v12
    v_bfe_u32 v11, v11, 1, 3
    v_xor_b32 v11, v11, v6
    v_mul_u32_u24 v14, {HB_STRIDE}, v7
    v_lshl_add_u32 v14, v11, 4, v14
    v_lshl_add_u32 v14, v13, 7, v14
    s_mul_i32 s{sT2}, s{sG}, {4*HB_STRIDE}
    s_add_u32 s{sT2}, s{sT2}, {L_HB2}
    v_add_u32 v14, s{sT2}, v14
    v_lshl_add_u32 v15, v{vHH}, 3, v8
    v_mul_u32_u24 v15, {HB_STRIDE}, v15
    v_add_u32 v15, v15, v9
    s_lshl_b32 s{sT2}, s{sG}, 8
    s_add_u32 s{sT2}, s{sT2}, {L_HB2}
    v_add_u32 v15, s{sT2}, v15
    s_lshl_b32 s{sT2}, s{sG}, 19
    s_lshl_b32 s{sT3}, s{sT0}, 11
    s_add_u32 s{sT2}, s{sT2}, s{sT3}
    s_add_u32 s{sT3}, s{sT2}, {128*2048}
    s_lshl_b32 s{sT4}, s{sG}, 7
    s_add_u32 s{sT4}, s{sT4}, s{sT0}
    s_lshl_b32 s{sT4}, s{sT4}, {3+FS}
    s_add_u32 s{sT4}, s{sT4}, {FL_H}
    v_mov_b32 v17, 0xffff0000
    s_mov_b32 vcc_lo, 0x00ff00ff
    s_mov_b32 vcc_hi, 0x00ff00ff
    """)
    for p in range(1):
        for i in range(4): a(f"v_mov_b32 v{X+16*p+12+i}, 0")
    S = [32, 40]
    for p in range(1): a(f"v_mov_b32 v{S[p]}, 0\nv_mov_b32 v{S[p]+1}, 0")
    a("s_barrier\ns_setprio 3")
    lds_wait(a, C_X1, 4)
    stamp(a, 2)
    for p in range(1):
        for i in range(3): a(f"ds_read_b128 {vr(X+16*p+4*i,4)}, v12 offset:{L_XT + 16384*i + 2048*p}")
        a(f"s_mov_b64 exec, vcc\nds_read_b128 {vr(X+16*p+12,4)}, v12 offset:{L_XT + 16384*3 + 2048*p}\ns_mov_b64 exec, -1")
    for p in range(1):
        for i in range(16):
            if i % 4 == 0: a(f"s_waitcnt lgkmcnt({3-i//4})")
            a(f"v_dot2c_f32_bf16 v{S[p]}, s{sONES}, v{X+16*p+i}")
            a(f"v_dot2c_f32_bf16 v{S[p]+1}, v{X+16*p+i}, v{X+16*p+i}")
    un = []
    for i in range(16): un += [f"v_lshlrev_b32 v{U+2*i}, 16, v{X+i}", f"v_and_b32 v{U+2*i+1}, v17, v{X+i}"]
    for x in un[:3]: a(x)
    un = un[3:]
    def both(txt):
        for line in txt.strip().split("\n"):
            p = 0; t_ = line.strip().format(s=S[p], q=S[p]+1, t=S[p]+2, r=S[p]+4, r2=S[p]+5, m=S[p]+6)
            a(t_)
            if t_.startswith(("v_sqrt", "v_rcp")) or (t_.startswith("v_add_f32_dpp") and f"v{S[0]+1}," in t_): a(un.pop(0))
    for mode in (QP1, QP2, RHM, RM):
        both("v_add_f32_dpp v{s}, v{s}, v{s} %s row_mask:0xf bank_mask:0xf\nv_add_f32_dpp v{q}, v{q}, v{q} %s row_mask:0xf bank_mask:0xf" % (mode, mode))
    rstd = """
    v_and_b32 v{t}, v17, v{t}
    v_add_f32 v{t}, %#x, v{t}
    v_cvt_pk_bf16_f32 v{t}, v{t}, v{t}
    v_and_b32 v{t}, v17, v{t}
    v_sqrt_f32 v{t}, v{t}
    v_cvt_pk_bf16_f32 v{t}, v{t}, v{t}
    v_and_b32 v{t}, v17, v{t}
    v_rcp_f32 v{%s}, v{t}
    """
    both("""
    v_mul_f32 v{s}, %s, v{s}
    v_mul_f32 v{q}, %s, v{q}
    v_fma_f32 v{q}, -v{s}, v{s}, v{q}
    v_max_f32 v{q}, 0, v{q}
    v_cvt_pk_bf16_f32 v{t}, v{s}, v{q}
    v_lshlrev_b32 v{m}, 16, v{t}
    """ % (f32(1/448), f32(1/448)))
    both(rstd % (EPS, "r"))
    both("""
    v_sub_f32 v{s}, v{s}, v{m}
    v_mul_f32 v{s}, v{s}, v{r}
    v_mul_f32 v{q}, v{q}, v{r}
    v_mul_f32 v{q}, v{q}, v{r}
    v_cvt_pk_bf16_f32 v{t}, v{s}, v{q}
    v_lshlrev_b32 v{s}, 16, v{t}
    v_fma_f32 v{m}, v{m}, v{r}, v{s}
    """)
    both(rstd % (EPS, "r2"))
    for x in un: a(x)
    both("v_mul_f32 v{m}, v{m}, v{r2}\nv_mul_f32 v{r}, v{r}, v{r2}")
    for p in range(1):
        for i in range(16):
            if i == 12: a("s_mov_b64 exec, vcc")
            u = U + 32 * p + 2 * i
            a(f"""
            v_pk_fma_f32 {vr(u,2)}, {vr(u,2)}, {vr(S[p]+4,2)}, {vr(S[p]+6,2)} op_sel_hi:[1,0,0] neg_lo:[0,0,1] neg_hi:[0,0,1]
            v_cvt_pk_bf16_f32 v{X+16*p+i}, v{u}, v{u+1}
            """)
            if i % 4 == 3: a(f"ds_write_b128 v14, {vr(X+16*p+i-3,4)} offset:{256*(i//4) + 16*HB_STRIDE*p}")
        a("s_mov_b64 exec, -1")
    stamp(a, 3)
    lds_arrive(a, C_H, nowait=True)
    lds_wait(a, C_H, 4)
    n = 0
    for p in range(1):
        for f in range(4):
            for x in range(2):
                if n == 15: a("s_waitcnt lgkmcnt(14)")
                a(f"ds_read_b64_tr_b16 {vr(U+16*p+4*f+2*x,2)}, v15 offset:{x*4*HB_STRIDE + f*64 + 16*HB_STRIDE*p}"); n += 1
    for p in range(1):
        for f in range(4):
            a(f"s_waitcnt lgkmcnt({6-2*f})")
            a(f"buffer_store_dwordx4 {vr(U+16*p+4*f,4)}, v{vL16}, {sr(R_WS,4)}, s{sT2 + (f>>1)} offen offset:{1024*(f&1) + 2048*p} sc1")
    lds_arrive(a, C_FL, nowait=True)
    stamp(a, 4)
    g_setup1(a)
    get_tag(a)
    set_flag(a, sT4)
    a("s_setprio 0")
    stamp(a, 5)
    lds_wait(a, C_FL, 4)
    lds_wait(a, C_ISS, 4)
    a(f"{pfw}:")

sK, sKF, sKP = 94, 95, 96
AQ, AO, AS, AP, AKV = 32, 64, 128, 160, 176
def att_setup(a):
    a(f"""
    s_add_u32 s{R_KV}, s{P_WS}, {WS_KV}
    s_addc_u32 s{R_KV+1}, s{P_WS+1}, 0
    s_add_u32 s{sT0}, s{sW}, 1
    s_lshl_b32 s{R_KV+2}, s{sT0}, 16
    s_mov_b32 s{R_KV+3}, 0x20000
    v_lshlrev_b32 v5, 7, v{vLANE}
    v_lshlrev_b32 v25, {3+FS}, v{vJ}
    s_lshr_b32 s{sKP}, s{sJ}, 1
    s_and_b32 s{sKP}, s{sKP}, 4
    s_add_u32 s{sKP}, s{sKP}, s{sCB}
    s_lshl_b32 s{sKP}, s{sKP}, 13
    s_lshl_b32 s{sT0}, s{sW}, 16
    s_add_u32 s{sKP}, s{sKP}, s{sT0}
    s_and_b32 s{sT0}, s{sJ}, 0x14
    s_cmp_lg_u32 s{sT0}, 0
    s_cselect_b32 s{sKP}, {OOB}, s{sKP}
    s_lshl_b32 s{sKF}, s{sW}, 8
    s_lshl_b32 s{sKF}, s{sKF}, {FS}
    s_add_u32 s{sKF}, s{sKF}, {FL_KV}
    """)
def kvload(a, buf):
    for j in range(4):
        a(f"buffer_load_dwordx4 {vr(AKV+16*buf+4*j,4)}, v{vL16}, {sr(R_KV,4)}, s{sK} offen offset:{1024*j} sc1")
    a(f"s_add_u32 s{sK}, s{sK}, 4096")
def first_kv(a):
    a(f"s_lshl_b32 s{sK}, s{sW}, 16")
    kvload(a, 0)
    a(f"buffer_load_dword v253, v5, {sr(R_KV,4)}, s{sKP} offen sc1")
    kvload(a, 1); kvload(a, 2)

def attention(a, done):
    Q, O, S, P, KV = AQ, AO, AS, AP, AKV
    NM = 20
    sIt, sRetry, sOS, sOF = sT1, sT3, 84, 85
    vMW, vRW, vMR, vRR = 8, 12, 15, 16
    go = a.label("att_go"); mloop = a.label("att_mloop"); loop = a.label("att_loop"); ok = a.label("att_ok"); havekv = a.label("att_havekv")
    a(f"s_mov_b32 s{sRetry}, {1 if OPT.anold else 0}\ns_cmp_eq_u32 s{sKF}, 0\ns_cbranch_scc1 {havekv}")
    lds_wait(a, C_PRE, 4)
    stamp(a, 9)
    poll(a, sKF, 32)
    stamp(a, 10)
    first_kv(a)
    a(f"{havekv}:")
    for i in range(1, 4):
        a(f"""
        s_add_u32 s{sT0}, s{sW}, {i}
        s_and_b32 s{sT0}, s{sT0}, 3
        s_lshl_b32 s{sT0}, s{sT0}, 11
        s_add_u32 s{sT0}, s{sT0}, {L_QS}
        v_add_u32 v{16+i}, s{sT0}, v{vL16}
        """)
    lds_wait(a, C_Q, 4)
    for i in range(1, 4):
        a(f"ds_read_b128 {vr(Q+8*i,4)}, v{16+i}\nds_read_b128 {vr(Q+8*i+4,4)}, v{16+i} offset:1024")
    for r in range(12, 64): a(f"v_mov_b32 v{O+r}, 0")
    for i in range(4):
        a(f"""
        s_add_u32 s{sT0}, s{sW}, {i+1}
        s_and_b32 s{sT0}, s{sT0}, 3
        s_lshl_b32 s{sT2}, s{sT0}, 9
        s_add_u32 s{sT2}, s{sT2}, {L_MX + 128*i}
        v_lshl_add_u32 v{vMW+i}, v{vJ}, 2, s{sT2}
        s_mul_i32 s{sT2}, s{sT0}, 12288
        s_add_u32 s{sT2}, s{sT2}, {L_RED + 4096*(i%3)}
        v_add_u32 v{vRW+i if i < 3 else vRR}, s{sT2}, v{vL16}
        """)
    a(f"""
    v_subrev_u32 v{vMR}, 384, v{vMW+3}
    s_add_u32 s{sT0}, s{sW}, 3
    s_and_b32 s{sT2}, s{sT0}, 1
    s_lshl_b32 s{sOS}, s{sCB}, 1
    s_add_u32 s{sOS}, s{sOS}, s{sT2}
    s_lshl_b32 s{sOS}, s{sOS}, 12
    s_lshl_b32 s{sT2}, s{sRB}, 16
    s_add_u32 s{sOS}, s{sOS}, s{sT2}
    s_and_b32 s{sT2}, s{sT0}, 2
    s_lshl_b32 s{sT2}, s{sT2}, 9
    s_add_u32 s{sOS}, s{sOS}, s{sT2}
    s_add_u32 s{sOS}, s{sOS}, {WS_O}
    s_lshl_b32 s{sOF}, s{sRB}, 3
    s_add_u32 s{sOF}, s{sOF}, s{sCB}
    s_lshl_b32 s{sOF}, s{sOF}, 2
    s_add_u32 s{sOF}, s{sOF}, s{sW}
    s_lshl_b32 s{sOF}, s{sOF}, {3+FS}
    s_add_u32 s{sOF}, s{sOF}, {FL_O}
    s_mov_b32 s{sT4}, 0x71800000
    """)
    TMP = [S, S + 16, KV + 48, P]
    def scan_mf(kreg):
        for i in range(4):
            a(f"{MF} {vr(TMP[i],16)}, {vr(kreg,4)}, {vr(Q+8*i,4)}, 0")
            a(f"{MF} {vr(TMP[i],16)}, {vr(kreg+4,4)}, {vr(Q+8*i+4,4)}, {vr(TMP[i],16)}")
    a("s_waitcnt vmcnt(11) lgkmcnt(0)")
    stamp(a, 11)
    scan_mf(KV)
    a(f"s_nop 4\ns_mov_b64 exec, {sr(sHI,2)}")
    for i in range(4):
        t = TMP[i]
        a(f"v_max3_f32 v{NM+i}, v{t}, v{t+1}, v{t+2}")
        for j in range(3, 15, 2): a(f"v_max3_f32 v{NM+i}, v{t+j}, v{t+j+1}, v{NM+i}")
        a(f"""
        v_max_f32 v{NM+i}, v{t+15}, v{NM+i}
        v_cvt_pk_bf16_f32 v{Q+8*i+6}, -v{NM+i}, 0
        v_lshlrev_b32 v{NM+i}, 16, v{Q+8*i+6}
        """)
    a(f"{go}:")
    for i in range(4): a(f"ds_write_b32 v{vMW+i}, v{NM+i}")
    a("s_mov_b64 exec, -1")
    a(f"{MF} {vr(S,16)}, {vr(KV,4)}, {vr(Q,4)}, 0")
    a(f"{MF} {vr(S,16)}, {vr(KV+4,4)}, {vr(Q+4,4)}, {vr(S,16)}")
    a(f"s_add_u32 s{sT0}, s{sK}, 4096\nv_add_u32 v7, s{sT0}, v{vL16}")
    for r in range(8): a(f"v_mov_b32 v{KV+48+8+r}, 0")
    for r in range(8): a(f"v_mov_b32 v{P+8+r}, 0")
    a(f"v_mov_b32 v{S+30}, 0\nv_mov_b32 v{S+31}, 0")
    def smf(q, b, kb):
        d = vr(S + 16 * b, 16)
        return [f"{MF} {d}, {vr(KV+16*kb,4)}, {vr(Q+8*q,4)}, 0", f"{MF} {d}, {vr(KV+16*kb+4,4)}, {vr(Q+8*q+4,4)}, {d}"]
    def pv(q, b, kb):
        d = vr(O + 16 * q, 16)
        return [f"{MF} {d}, {vr(KV+16*kb+8,4)}, {vr(P+8*b,4)}, {d}", f"{MF} {d}, {vr(KV+16*kb+12,4)}, {vr(P+8*b+4,4)}, {d}"]
    def pk(b, i): return f"v_cvt_pk_bf16_f32 v{P+8*b+i}, v{S+16*b+2*i}, v{S+16*b+2*i+1}"
    def owrite(i): return ['s_nop 0'] * 4 if OPT.nocomb else [f"ds_write_b128 v{vRW+i}, {vr(O+16*i+4*g,4)} offset:{1024*g}" for g in range(4)]
    a(f"s_mov_b32 s{sIt}, {OPT.attit-1}\ns_waitcnt vmcnt(8)")
    if OPT.anold:
        a("s_waitcnt vmcnt(0)")
        for r in range(16): a(f"v_mov_b32 v{KV+48+r}, v{KV+r}")
    if OPT.ka: lds_wait(a, C_GO, 4, sleep=2)
    if OPT.adel: a(f's_sleep {OPT.adel}')
    stamp(a, 12)
    if OPT.prio_ld: a(f"s_setprio {OPT.prio_a}")
    def body(lastit):
        for n in range(16):
            T, q, b = n // 4, n % 4, n % 2
            if lastit and n == 14: lds_wait(a, C_R1D, 4)
            va = []
            for i in range(8):
                r = S + 16 * b + 2 * i
                va += [f"v_exp_f32 v{r}, v{r}", f"v_exp_f32 v{r+1}, v{r+1}", pk(b, i - 1) if i else pk(1 - b, 7)]
            s = smf((q + 1) % 4, 1 - b, ((n + 1) // 4) % 4)
            p = pv((q - 1) % 4, 1 - b, ((n - 1) // 4) % 4)
            pos = [[3, 9, 15, 21], [3, 7, 15, 19], [3, 7, 12, 19], [3, 8, 15, 20], [3, 7, 16, 21], [2, 6, 15, 19]][OPT.order if lastit or not (OPT.mix >> n) & 1 else OPT.order2]
            ins = {pos[0]: [s[0]], pos[1]: [s[1]], pos[2]: [p[0]], pos[3]: [p[1]]}
            if lastit and n == 15: ins = {pos[0]: [p[0]], pos[1]: [p[1]]}
            if q == 3 and not (lastit and T == 3):
                ins[1] = [f"s_waitcnt vmcnt({7 if not lastit or T == 0 else 4 if T == 1 else 0})"]
            if not lastit or T == 0:
                buf = (T - 1) % 4
                ins[OPT.ldpos] = [f"buffer_load_dwordx4 {vr(KV+16*buf+4*q,4)}, v{vL16}, {sr(R_KV,4)}, s{sK} offen offset:{1024*q} sc1"]
                if OPT.gld: ins[OPT.ldpos] = [f"global_load_dwordx4 {vr(KV+16*buf+4*q,4)}, v7, {sr(R_KV,2)} offset:{1024*q - (4096 if T % 2 == 0 else 0)} sc1"]
                if OPT.prio_ld:
                    ins[10] = [f"s_setprio {OPT.prio_ld}"]
                    ins[13] = [f"s_setprio {OPT.prio_a}"]
                if OPT.gld:
                    if q == 3 and T % 2: ins[14] = ["v_add_u32 v7, 0x2000, v7"]
                elif q == 3 and not OPT.hot & 16: ins[21 if OPT.ldpos > 13 else 14] = [f"s_add_u32 s{sK}, s{sK}, 4096"]
            if n == 15 and not lastit:
                ins[17] = [f"s_sub_u32 s{sIt}, s{sIt}, 1"]
                ins[22] = [f"s_cmp_lg_u32 s{sIt}, 0"]
            if lastit and n == 14:
                for g, x in enumerate(owrite(0)): ins.setdefault([10, 13, 17, 22][g], []).append(x)
            if lastit and n == 15:
                for g, x in enumerate(owrite(1)): ins.setdefault([8, 10, 13, 16][g], []).append(x)
                for g, x in enumerate(owrite(2)[:2]): ins.setdefault([20, 22][g], []).append(x)
            for i, x in enumerate(va):
                for y in ins.get(i, []):
                    if OPT.anold and y.startswith(("buffer_load", "global_load")): continue
                    if OPT.anow and y.startswith("s_waitcnt vmcnt"): continue
                    a(y)
                a(x)
    if OPT.unroll:
        for _ in range(3): body(False)
    elif OPT.attit > 1:
        a(".p2align 6")
        a(f"{loop}:")
        body(False)
        a(f"s_cbranch_scc1 {loop}")
    body(True)
    if OPT.prio_ld: a(f"s_setprio {OPT.prio_ld}")
    a(pk(1, 7))
    for x in owrite(2)[2:]: a(x)
    for x in pv(3, 1, 3): a(x)
    stamp(a, 13)
    a(f"""
    v_add_f32 v17, v{O+12}, v{O+28}
    v_add_f32 v17, v17, v{O+44}
    v_min3_f32 v18, v{O+12}, v{O+28}, v{O+44}
    s_mov_b32 s{sT0}, 0x21800000
    s_nop 7
    v_add_f32 v17, v17, v{O+60}
    v_min_f32 v18, v18, v{O+60}
    v_cmp_nlt_f32_e64 vcc, v17, s{sT4}
    v_cmp_ngt_f32_e64 s[86:87], v18, s{sT0}
    s_or_b64 vcc, vcc, s[86:87]
    s_and_b64 vcc, vcc, {sr(sHI,2)}
    s_cbranch_scc0 {ok}
    s_cmp_lg_u32 s{sRetry}, 0
    s_cbranch_scc1 {ok}
    s_mov_b32 s{sRetry}, 1
    s_waitcnt lgkmcnt(0)
    s_mov_b64 exec, {sr(sHI,2)}
    """)
    for i in range(4): a(f"v_mov_b32 v{Q+8*i+6}, 0\nv_mov_b32 v{Q+8*i+7}, 0")
    a(f"s_mov_b64 exec, -1\ns_lshl_b32 s{sK}, s{sW}, 16\ns_mov_b32 s{sIt}, 16")
    for r in range(64): a(f"v_mov_b32 v{O+r}, 0")
    for i in range(4): a(f"v_mov_b32 v{NM+i}, 0xff800000")
    a(f"""
    {mloop}:
    buffer_load_dwordx4 {vr(KV,4)}, v{vL16}, {sr(R_KV,4)}, s{sK} offen sc1
    buffer_load_dwordx4 {vr(KV+4,4)}, v{vL16}, {sr(R_KV,4)}, s{sK} offen offset:1024 sc1
    s_add_u32 s{sK}, s{sK}, 4096
    s_waitcnt vmcnt(0)
    """)
    scan_mf(KV)
    a("s_nop 11")
    for i in range(4):
        for j in range(8): a(f"v_max3_f32 v{NM+i}, v{TMP[i]+2*j}, v{TMP[i]+2*j+1}, v{NM+i}")
    a(f"""
    s_sub_u32 s{sIt}, s{sIt}, 1
    s_cmp_lg_u32 s{sIt}, 0
    s_cbranch_scc1 {mloop}
    """)
    first_kv(a)
    for i in range(4): a(f"v_mov_b32 v{S+i}, v{NM+i}")
    a("s_nop 1")
    for i in range(4): a(f"v_permlane32_swap_b32 v{S+i}, v{NM+i}")
    for i in range(4): a(f"v_max_f32 v{NM+i}, v{S+i}, v{NM+i}")
    a(f"s_mov_b64 exec, {sr(sHI,2)}")
    for i in range(4):
        a(f"""
        v_sub_f32 v{NM+i}, 0, v{NM+i}
        v_cvt_pk_bf16_f32 v17, v{NM+i}, 0
        v_lshlrev_b32 v18, 16, v17
        v_sub_f32 v18, v{NM+i}, v18
        v_cvt_pk_bf16_f32 v19, v18, 0
        v_lshl_or_b32 v{Q+8*i+6}, v19, 16, v17
        v_lshlrev_b32 v19, 16, v19
        v_sub_f32 v18, v18, v19
        v_cvt_pk_bf16_f32 v{Q+8*i+7}, v18, 0
        """)
    a(f"s_waitcnt vmcnt(11)\ns_branch {go}\n{ok}:")
    lds_arrive(a, C_ATT, nowait=True)
    if not OPT.nocomb: lds_wait(a, C_ATT, 4)
    stamp(a, 16)
    OW = O + 48
    if OPT.nocomb: a(f"v_mov_b32 v17, v{OW+12}\nv_mov_b32 v18, v{OW+12}\ns_nop 1\nv_permlane32_swap_b32 v17, v18\nv_rcp_f32 v18, v18\ns_branch nocomb")
    for i in range(4): a(f"ds_read_b32 v{NM+i}, v{vMR} offset:{128*i}")
    for i in range(3):
        for g in range(4):
            if i == 2 and g == 3: a("s_waitcnt lgkmcnt(11)")
            a(f"ds_read_b128 {vr(O+16*i+4*g,4)}, v{vRR} offset:{4096*i+1024*g}")
    a(f"""
    v_min3_f32 v17, v{NM}, v{NM+1}, v{NM+2}
    v_min_f32 v17, v17, v{NM+3}
    """)
    for i in (3, 0, 1, 2): a(f"v_sub_f32 v{NM+i}, v17, v{NM+i}")
    for i in (3, 0, 1, 2): a(f"v_exp_f32 v{NM+i}, v{NM+i}")
    for r in range(16): a(f"v_mul_f32 v{OW+r}, v{NM+3}, v{OW+r}")
    for i in range(3):
        a(f"s_waitcnt lgkmcnt({4*(2-i)})")
        R = [12] + [r for r in range(16) if r != 12] if i == 2 else range(16)
        for n, r in enumerate(R):
            a(f"v_fmac_f32 v{OW+r}, v{NM+i}, v{O+16*i+r}")
            if i == 2 and n == 0: a(f"v_mov_b32 v17, v{OW+12}\nv_mov_b32 v18, v{OW+12}")
            if i == 2 and n == 2: a("v_permlane32_swap_b32 v17, v18")
            if i == 2 and n == 3: a("v_rcp_f32 v18, v18")
    a("nocomb:")
    for h in range(2):
        for r in range(8 * h, 8 * h + 8): a(f"v_mul_f32 v{OW+r}, v18, v{OW+r}")
        for i in range(4 * h, 4 * h + 4): a(f"v_cvt_pk_bf16_f32 v{O+i}, v{OW+2*i}, v{OW+2*i+1}")
        if h: a(f"s_mov_b64 exec, {sr(sHI,2)}\nv_mov_b32 v{O+6}, 0\nv_mov_b32 v{O+7}, 0\ns_mov_b64 exec, -1")
        a(f"buffer_store_dwordx4 {vr(O+4*h,4)}, v{vL16}, {sr(R_WS,4)}, s{sOS} offen offset:{2048*h} sc1")
    stamp(a, 17)
    if OPT.odel: a(f's_sleep {OPT.odel}')
    set_flag(a, sOF)
    a(f"s_branch {done}")

class VM:
    def __init__(self): self.q = []
    def issue(self, tag):
        if OPT.dropw and tag[0] == 'd' and tag[1] >= OPT.dropw: return
        if OPT.d1 and tag[0] == 'd' and OPT.d1 <= tag[1] < 32: return
        self.q.append(tag)
    def wait(self, tags):
        idx = [i for i, t in enumerate(self.q) if t in tags]
        if not idx: return None
        n = len(self.q) - 1 - max(idx)
        assert n <= 63
        self.q = self.q[max(idx) + 1:]
        return n

ACC, AF, BF, DH, SG = 64, 32, 128, 8, 192
def reduce4(a, cnt, red, st0, st1, h0=None, h1=None, h2=None):
    base, stride, off = red
    stamp(a, st0)
    if h0: h0()
    for i in range(4):
        a(f"""
        s_xor_b32 s{sT0}, s{sG}, {i}
        s_mul_i32 s{sT1}, s{sT0}, {stride}
        s_add_u32 s{sT1}, s{sT1}, {base}
        v_add_u32 v{24+i}, s{sT1}, v{vL16}
        """)
    for i in range(1, 4):
        for g in range(4): a(f"ds_write_b128 v24, {vr(ACC+16*i+4*g,4)} offset:{off(4*(i-1)+g)}")
    lds_arrive(a, cnt, nowait=True)
    if h1: h1()
    lds_wait(a, cnt, 4)
    stamp(a, st1)
    for i in range(1, 4):
        for g in range(4): a(f"ds_read_b128 {vr(ACC+16*i+4*g,4)}, v{24+i} offset:{off(4*(i-1)+g)}")
    if h2: h2()
    for i in range(1, 4):
        a(f"s_waitcnt lgkmcnt({4*(3-i)})")
        for r in range(16): a(f"v_add_f32 v{ACC+r}, v{ACC+r}, v{ACC+16*i+r}")

GK = 2 * math.sqrt(2 / math.pi) * math.log2(math.e)
def gpath(a, done):
    global DH, SG
    DH = OPT.dh; SG = BF + 8 * DH
    assert SG + 8 * max(OPT.nsg, OPT.nsg2) <= 240
    vm = VM()
    N1, N2, N3 = 32, 60, 68
    nsg = OPT.nsg
    staged = {OPT.pre0 + i: i for i in range(nsg)}
    nsg2 = OPT.nsg2
    staged.update({N1 + OPT.pre + i: i for i in range(nsg2)})
    def wsrc(k, h):
        if k < N1: return vDW1, R_W1, sD, 8 * 3584
        if k < N2: return vDW2, R_W2, sDb, 8 * 4096
        return vDWO, R_WO, sD2, (4 if ((k - N2) & 1 and h) else 8) * 896
    rot = OPT.ra or OPT.rb
    def wadv(k, h):
        v, R, sd, inc = wsrc(k, h)
        t = f"s_add_u32 s{sd}, s{sd}, {inc}"
        if (OPT.hot & 1 and k < N1) or (OPT.hot & 2 and k >= N1): t = "s_nop 0"
        if rot and N1 <= k < N2 and h and k & 1: t += f"\ns_cmp_eq_u32 s{sd}, s{sDbE}\ns_cselect_b32 s{sd}, s{sDb0}, s{sd}"
        return t
    V2 = {vDW1: 249, vDW2: 250}
    def dma(k):
        out = []
        drop = (OPT.dropw and k >= OPT.dropw) or (OPT.d1 and OPT.d1 <= k < 32)
        if OPT.one and k < N2 and not state.get('plain'):
            v, R, sd, inc = wsrc(k, 0)
            adv = wadv(k, 1).replace(f", {inc}", f", {2*inc}", 1)
            return [(f"s_add_u32 m0, s{sRing}, {slotp(k)*8192}", f"buffer_load_dwordx4 v{v}, {sr(R,4)}, s{sd} offen lds", ""),
                    ("", f"buffer_load_dwordx4 v{V2[v]}, {sr(R,4)}, s{sd} offen offset:1024 lds", adv)]
        for h in range(2):
            v, R, sd, inc = wsrc(k, h)
            out.append((f"s_add_u32 m0, s{sRing}, {slotp(k)*8192 + h*1024}",
                        f"buffer_load_dwordx4 v{v}, {sr(R,4)}, s{sd} offen lds" if not drop else "s_nop 0", wadv(k, h)))
        return out
    state = {'nd': 0}
    def prefill(upto):
        while state['nd'] < upto:
            k = state['nd']; state['nd'] += 1
            if k in staged:
                for h in range(2):
                    v, R, sd, inc = wsrc(k, h)
                    a(f"buffer_load_dwordx4 {vr(SG+8*staged[k]+4*h,4)}, v{v}, {sr(R,4)}, s{sd} offen")
                    a(wadv(k, h)); vm.issue(('s', k))
            else:
                for m, l, adv in dma(k):
                    if m: a(m); a("s_nop 0")
                    a(l); a(adv); vm.issue(('d', k))
    def swrite(k):
        off = slotp(k) * 8192; v = vSW
        if off >= 65536: off -= 65536; v += 1
        return [f"ds_write_b128 v{v}, {vr(SG+8*staged[k]+4*h,4)} offset:{off+1024*h}" for h in range(2)]
    def deep(k): return OPT.tdeep and N1 - 4 <= k < N1
    def breg(k): return SG + 32 + 8 * (k - N1 + 4) if deep(k) else SG + 8 * (k - N2) if (k >= N2 and OPT.odeep) else BF + 8 * (k % DH)
    def ld(k):
        r = breg(k)
        v, sl = (vLN, sL) if k < N1 else (vLM, sLb) if k < N2 else (vLN, sL2)
        off = 2048 * (k & 1)
        o = [f"buffer_load_dwordx4 {vr(r,4)}, v{v}, {sr(R_WS,4)}, s{sl} offen offset:{off} sc1",
             f"buffer_load_dwordx4 {vr(r+4,4)}, v{v+1}, {sr(R_WS,4)}, s{sl} offen offset:{off} sc1"]
        adv = f"s_add_u32 s{sl}, s{sl}, 4096"
        if (OPT.hot & 4 and k < N1) or (OPT.hot & 8 and k >= N1): adv = "s_nop 0"
        if rot and N1 <= k < N2: adv += f"\ns_cmp_eq_u32 s{sl}, s{sLbE}\ns_cselect_b32 s{sl}, s{sLb0}, s{sl}"
        return o, (adv if k & 1 else None)
    def ld_now(k):
        o, adv = ld(k)
        for x in o: a(x); vm.issue(('l', k))
        if adv: a(adv)
    def tr(k, r=None):
        b0, xo = (vT1, 512) if k < N1 else (vT2, 1024) if k < N2 else (vT3, 1024)
        r = r or AF + 8 * (k % 2); off = slotp(k) * 8192
        if off >= 65536: off -= 65536; b0 += vTH - vT1
        return [f"ds_read_b64_tr_b16 {vr(r,2)}, v{b0} offset:{off}", f"ds_read_b64_tr_b16 {vr(r+2,2)}, v{b0} offset:{off+xo}",
                f"ds_read_b64_tr_b16 {vr(r+4,2)}, v{b0+1} offset:{off}", f"ds_read_b64_tr_b16 {vr(r+6,2)}, v{b0+1} offset:{off+xo}"]
    state['nl'] = 0
    XI = 8
    def b2load(): a(f"v_lshlrev_b32 v6, 1, v{vJ}\nbuffer_load_ushort v5, v6, {sr(R_B2,4)}, s{sB2} offen")
    def init2():
        a("v_lshlrev_b32 v5, 16, v5")
        for i in range(8): a(f"v_lshlrev_b32 v{XI+2*i}, 16, v{80+i}\nv_and_b32 v{XI+2*i+1}, 0xffff0000, v{80+i}")
        for r in range(16): a(f"v_add_f32 v{XI+r}, v5, v{XI+r}")
        a(f"v_min_u32 v251, 27, v{vLANE}\nv_lshlrev_b32 v251, {3+FS}, v251\nv_min_u32 v252, 7, v{vLANE}\nv_lshlrev_b32 v252, {3+FS}, v252")
    def red_addr(base, stride):
        for i in range(4):
            a(f"""
            s_xor_b32 s{sT0}, s{sG}, {i}
            s_mul_i32 s{sT1}, s{sT0}, {stride}
            s_add_u32 s{sT1}, s{sT1}, {base}
            v_add_u32 v{24+i}, s{sT1}, v{vL16}
            """)
    def free(kd, k):
        if kd >= OPT.ke and k < OPT.gatek and slotp(kd) < 8: return False
        prev = [j for j in range(kd) if slotp(j) == slotp(kd)]
        return not prev or prev[-1] <= k - 1
    def begin(lo, nld, pfi=None, after=None):
        state['nl'] = lo
        for k in range(lo, lo + nld):
            ld_now(k); state['nl'] += 1
            if pfi and k == lo + 1: a(pfi); vm.issue('pf')
        if after: after()
        n = vm.wait({('d', lo)})
        if n is not None: a(f"s_waitcnt vmcnt({n})")
        for x in tr(lo): a(x)
    def run(lo, hi, last, dlimit, llimit, first=None, hooks={}, tail=None):
        dh = OPT.dh
        for k in range(lo, hi):
            need = {('l', k)}
            if k + 1 < last: need.add(('d', k + 1))
            if tail and k + 1 == hi: need |= {('d', j) for j in tail}
            if k + 3 in staged: need.add(('s', k + 3))
            need |= hooks.get(('need', k), set())
            n = vm.wait(need)
            a(f"s_waitcnt vmcnt({n}) lgkmcnt(0)" if n is not None else "s_waitcnt lgkmcnt(0)")
            if k in hooks: hooks[k]()
            if OPT.fine and k % 4 == 0 and OPT.stamps == 1 and 0 <= k // 4 - OPT.fine0 < 15: stamp(a, 48 + k // 4 - OPT.fine0)
            l = AF + 8 * (k % 2); d = breg(k)
            lds_is_a = not (N1 <= k < N2)
            mf = []
            for i in range(4):
                mi, ni = i >> 1, i & 1
                A, B = (vr(l + 4 * mi, 4), vr(d + 4 * ni, 4)) if lds_is_a else (vr(d + 4 * mi, 4), vr(l + 4 * ni, 4))
                c = "0" if k == first and i else vr(XI, 16) if k == N1 else vr(ACC + 16 * i, 16)
                mf.append(f"{MF} {vr(ACC+16*i,16)}, {A}, {B}, {c}" if not OPT.nogm else "s_nop 0")
            t = tr(k + 1) if k + 1 < last else []
            t2 = []
            if tail and k + 1 == hi:
                assert state['nd'] > max(tail)
                tt = sum((tr(j, r) for j, r in tail.items()), []); t, t2 = tt[:8], tt[8:]
            sw = swrite(k + 3) if k + 3 in staged else []
            assert not sw or free(k + 3, k)
            kd = state['nd']; dm = []
            if kd < dlimit and kd <= k + (OPT.lw if k < N1 else OPT.lw2) and free(kd, k) and kd not in staged:
                assert kd >= k + 2
                dm = dma(kd); state['nd'] += 1
            lo_, adv = ([], None)
            kl = state['nl']
            if kl < llimit and (kl <= k + dh - 1 or deep(kl) or (kl >= N2 and OPT.odeep)): lo_, adv = ld(kl); state['nl'] += 1
            if OPT.spread == 0 or (OPT.spread == 2 and k >= N1):
                a(mf[0])
                for x in t: a(x)
                if dm: a(dm[0][0])
                a(mf[1])
                if lo_: a(lo_[0]); vm.issue(('l', kl))
                if lo_: a(lo_[1]); vm.issue(('l', kl))
                if adv: a(adv)
                if dm: a(dm[0][1]); vm.issue(('d', kd)); a(dm[0][2]); a(dm[1][0])
                a(mf[2])
                if dm: a(dm[1][1]); vm.issue(('d', kd)); a(dm[1][2])
                for x in sw: a(x)
                if t2: a('s_waitcnt lgkmcnt(4)')
                for x in t2: a(x)
                a(mf[3])
            else:
                a(mf[0])
                for x in t: a(x)
                if lo_: a(lo_[0]); vm.issue(('l', kl))
                a(mf[1])
                if lo_: a(lo_[1]); vm.issue(('l', kl))
                if adv: a(adv)
                if dm: a(dm[0][0])
                a(mf[2])
                if dm: a(dm[0][1]); vm.issue(('d', kd)); a(dm[0][2]); a(dm[1][0])
                for x in sw: a(x)
                if t2: a('s_waitcnt lgkmcnt(4)')
                for x in t2: a(x)
                a(mf[3])
                if dm: a(dm[1][1]); vm.issue(('d', kd)); a(dm[1][2])
            kd = state['nd']
            if kd < dlimit and kd <= k + (OPT.lw if k < N1 else OPT.lw2) and free(kd, k) and kd not in staged: prefill(kd + 1)
            kl = state['nl']
            if kl < llimit and (kl <= k + dh - 1 or deep(kl) or (kl >= N2 and OPT.odeep)): ld_now(kl); state['nl'] += 1
    def tail_reduce(tail, cnt, red, st0, st1, h0=None, h1=None, h2=None, lazy=(), pk=False):
        base, stride, off = red
        while state['nl'] <= max(tail): ld_now(state['nl']); state['nl'] += 1
        a(f"s_setprio {OPT.prio_t}")
        if pk: red_addr(base, stride)
        def wr(i): return [f"ds_write_b128 v24, {vr(ACC+16*i+4*g,4)} offset:{off(4*(i-1)+g)}" for g in range(4)]
        prev = None; L = len(tail); lazy = list(lazy)
        two = L > 4 and OPT.two1
        for i in ((1, 3, 0) if two else (1, 2, 3, 0)):
            W = wr(prev) if prev else []
            if two and i == 3: W = wr(1) + wr(2)[:3]
            if two and i == 0: W = wr(2)[3:] + wr(3)
            for n, (k, l) in enumerate(tail.items()):
                if i == 1:
                    need = {('l', k)}
                    if lazy: need.add(('d', lazy[0]))
                    w = vm.wait(need)
                    lg = "lgkmcnt(0)" if (n == 0 or n == L - 1) else "lgkmcnt(4)" if L > 4 and n >= 2 else ""
                    if L == 4 and n: lg = ""
                    x = (f"vmcnt({w}) " if w is not None else "") + lg
                    if x: a("s_waitcnt " + x)
                d = breg(k); mi, ni = i >> 1, i & 1
                A, B = (vr(l + 4 * mi, 4), vr(d + 4 * ni, 4)) if not (N1 <= k < N2) else (vr(d + 4 * mi, 4), vr(l + 4 * ni, 4))
                a(f"{MF} {vr(ACC+16*i,16)}, {A}, {B}, {vr(ACC+16*i,16)}")
                if i == 1 and two: a(f"{MF} {vr(ACC+32,16)}, {vr(l+4,4)}, {vr(d,4)}, {vr(ACC+32,16)}")
                if i == 1 and lazy:
                    j = lazy.pop(0)
                    for x in tr(j, tail[j]): a(x)
                if L == 4:
                    if W and n == 1: a("s_nop 9"); a(W[0]); a(W[1])
                    if W and n == 2: a(W[2]); a(W[3])
                    if i == 0 and n == 2: lds_arrive(a, cnt, nowait=True)
                elif two:
                    if i == 3:
                        if n == 1: a("s_nop 8")
                        if n >= 1: a(W[n - 1])
                    if i == 0:
                        if n == 1: a("s_nop 8")
                        if n <= 4: a(W[n])
                        if n == 4: lds_arrive(a, cnt, nowait=True)
                else:
                    if W and n == 1: a("s_nop 9")
                    if W and 1 <= n <= 4: a(W[n - 1])
                    if i == 0 and n == 4: lds_arrive(a, cnt, nowait=True)
            if i == 1 and h0: h0()
            prev = i
        a(f"s_setprio {OPT.prio_e}")
        stamp(a, st0)
        if h1: h1()
        lds_wait(a, cnt, 4)
        stamp(a, st1)
        for i in range(1, 4):
            for g in range(4): a(f"ds_read_b128 {vr(ACC+16*i+4*g,4)}, v{24+i} offset:{off(4*(i-1)+g)}")
        if h2: h2()
        for i in range(1, 4):
            a(f"s_waitcnt lgkmcnt({4*(3-i)})")
            if pk:
                for r in range(0, 16, 2): a(f"v_pk_add_f32 {vr(ACC+r,2)}, {vr(ACC+r,2)}, {vr(ACC+16*i+r,2)}")
            else:
                for r in range(16): a(f"v_add_f32 v{ACC+r}, v{ACC+r}, v{ACC+16*i+r}")
    def flagload(soff, n):
        vo = {32: 28, 28: 251, 8: 252}[n]
        if n == 32: a(f"v_min_u32 v28, {n-1}, v{vLANE}\nv_lshlrev_b32 v28, {3+FS}, v28")
        a(f"buffer_load_dwordx2 v[30:31], v{vo}, {sr(R_WS,4)}, s{soff} offen sc1"); vm.issue('fl')
    def flagcheck(okl, pr=0):
        a(f"s_setprio 3\nv_cmp_ne_u64 vcc, {sr(sTAG,2)}, v[30:31]\ns_setprio {pr}\ns_cbranch_vccz {okl}")
    def fill_poll(upA, upB, soff, n, mid=None):
        prefill(upA)
        flagload(soff, n)
        prefill(upB)
        if mid: mid()
        w = vm.wait({'fl'})
        a(f"s_waitcnt vmcnt({w})")
        okl = a.label("flok")
        flagcheck(okl)
        poll(a, soff, n)
        a(f"{okl}:")
    nog1 = a.label("nog1"); join = a.label("gjoin")
    g_xread(a)
    a(f"s_cmp_eq_u32 s{sHasG1}, 0\ns_cbranch_scc1 {nog1}")
    a(f"s_setprio {OPT.prio_g}")
    stamp(a, 8)
    if OPT.nodma: a(f"s_mov_b32 s{R_W1+2}, 0")
    a(f"v_add_u32 v249, {8*3584-1024}, v{vDW1}\nv_add_u32 v250, {8*4096-1024}, v{vDW2}")
    a(f"v_lshlrev_b32 v7, 3, v{vHH}")
    for g in range(4): a(f"buffer_load_dwordx2 {vr(88+2*g,2)}, v7, {sr(R_B1,4)}, s{sB1o} offen offset:{16*g}")
    for g in range(4): vm.issue('b')
    prefill(OPT.a1)
    lds_arrive(a, C_PRE, nowait=True)
    stamp(a, 9)
    fill_poll(OPT.a1, OPT.b1, sFH, 32, lambda: (g_setup2(a), b2load(), vm.issue('b2')))
    stamp(a, 10)
    def init1():
        for i in range(8): a(f"v_lshlrev_b32 v{ACC+2*i}, 16, v{88+i}\nv_and_b32 v{ACC+2*i+1}, 0xffff0000, v{88+i}")
        red_addr(L_RED, 12288)
        a(f"v_mov_b32 v7, {f32(-GK)}")
        w = vm.wait({'b2'}); a(f"s_waitcnt vmcnt({w}) lgkmcnt(0)")
        init2()
    def cpf(sid, val, saddr):
        sk = a.label("cpf")
        a(f"s_cmp_lg_u32 s{sid}, {val}\ns_cbranch_scc1 {sk}\nbuffer_load_dword v253, v{vPF}, {sr(R_WS,4)}, s{saddr} offen sc1\n{sk}:")
    def mkhooks(hl):
        d = {}
        for k, f in hl: d.setdefault(k, []).append(f)
        return {k: (lambda fs=fs: [f() for f in fs]) for k, fs in d.items()}
    a('s_setprio 3')
    begin(0, OPT.nl0, None, init1)
    a(f's_setprio {OPT.prio_g}')
    hl = [(0, lambda: stamp(a, 11)), (16, lambda: stamp(a, 12)), (OPT.gatek, lambda: (a('s_setprio 3'), lds_wait(a, C_Q, 4), a(f's_setprio {OPT.prio_g}')))]
    if OPT.kt: hl.append((N1 - 4 - OPT.kt, lambda: a(f's_setprio {OPT.prio_t}')))
    if OPT.ka: hl.append((OPT.ka, lambda: lds_arrive(a, C_GO, nowait=True)))
    if OPT.kp: hl.append((OPT.kp, lambda: a(f's_setprio {OPT.prio_g1b}')))
    for b in range(2, 8): hl.append((max(0, 4 * b - OPT.pfd), lambda b=b: cpf(sSH1, b, sPH)))
    for i, k in enumerate(range(OPT.b1, OPT.pre0 + nsg)): hl.append((i, lambda k=k: prefill(k + 1)))
    T1 = {N1 - 4 + i: SG + 8 * i for i in range(4)}
    assert OPT.e2 <= OPT.pre
    run(0, N1 - 4, N1, N1, N1, first=0, hooks=mkhooks(hl), tail=T1)
    tail_reduce(T1, C_R1, (L_RED, 12288, lambda i: 1024 * i), 13, 16,
            lambda: prefill(N1 + OPT.e0), lambda: prefill(N1 + OPT.e1), lambda: prefill(N1 + OPT.e2))
    lds_arrive(a, C_R1D, nowait=True)
    k = 2 * math.sqrt(2 / math.pi) * math.log2(math.e)
    a(f"s_mov_b32 s{sT0}, {f32(-k*0.044715)}")
    T = ACC + 16
    for h in range(2):
        R = range(8 * h, 8 * h + 8)
        for r in R: a(f"v_mul_f32 v{T+r}, v{ACC+r}, v{ACC+r}")
        for r in R: a(f"v_fma_f32 v{T+r}, v{T+r}, s{sT0}, v7")
        for r in R: a(f"v_mul_f32 v{T+r}, v{T+r}, v{ACC+r}")
        for r in R: a(f"v_exp_f32 v{T+r}, v{T+r}")
        for r in R: a(f"v_add_f32 v{T+r}, 1.0, v{T+r}")
        for r in R: a(f"v_rcp_f32 v{T+r}, v{T+r}")
        for r in R: a(f"v_mul_f32 v{T+r}, v{T+r}, v{ACC+r}")
        for i in range(4 * h, 4 * h + 4): a(f"v_cvt_pk_bf16_f32 v{T+16+i}, v{T+2*i}, v{T+2*i+1}")
        a(f"buffer_store_dwordx4 {vr(T+16+4*h,4)}, v{vLN}, {sr(R_WS,4)}, s{sUS} offen offset:{2048*h} sc1")
    stamp(a, 17)
    if OPT.gdel: a(f's_sleep {OPT.gdel}')
    if not OPT.flate: set_flag(a, sFU)
    stamp(a, 27)
    a(f"s_branch {join}\n{nog1}:")
    lds_arrive(a, C_R1D, nowait=True)
    lds_arrive(a, C_GO, nowait=True)
    lds_arrive(a, C_PRE, nowait=True)
    g_setup2(a)
    b2load()
    a("s_waitcnt vmcnt(0) lgkmcnt(0)")
    init2()
    a(f"""
    s_lshr_b32 s{sT0}, s{sJ}, 3
    s_lshl_b32 s{sT0}, s{sT0}, 1
    s_and_b32 s{sT1}, s{sCB}, 1
    s_add_u32 s{sT0}, s{sT0}, s{sT1}
    s_sub_u32 s{sT0}, s{sT0}, 1
    s_cmp_eq_u32 s{sJ}, 6
    s_cbranch_scc1 engdone
    s_mul_i32 s{sT1}, s{sG}, 28
    s_add_u32 s{sT1}, s{sT1}, s{sT0}
    s_lshl_b32 s{sT1}, s{sT1}, 16
    s_lshl_b32 s{sT2}, s{sXCD}, 9
    s_add_u32 s{sT1}, s{sT1}, s{sT2}
    s_lshl_b32 s{sT2}, s{sT0}, 2
    s_add_u32 s{sT2}, s{sT2}, s{sG}
    s_lshl_b32 s{sT2}, s{sT2}, 13
    s_add_u32 s{sPFW}, s{sPFW}, {OPT.npf0*56*3584}
    """)
    if OPT.engw: lds_wait(a, C_X, 4, sleep=1)
    for i in range(10 - OPT.npf0 if OPT.eng & 1 else 0):
        a(f"s_waitcnt vmcnt({OPT.engd})\nbuffer_load_dword v{249+i%2}, v{vPF1}, {sr(R_W1,4)}, s{sPFW} offen\ns_add_u32 s{sPFW}, s{sPFW}, {56*3584}")
    stamp(a, 28)
    for i in range(4 if OPT.eng & 2 else 0):
        a(f"s_waitcnt vmcnt({OPT.engd})\nbuffer_load_dword v{249+i%2}, v{vPF2}, {sr(R_W2,4)}, s{sT1} offen\ns_add_u32 s{sT1}, s{sT1}, {7*16*4096}")
    stamp(a, 29)
    a(f"""
    s_cmp_lg_u32 s{sCB}, 7
    s_cbranch_scc1 engdone
    s_lshr_b32 s{sT2}, s{sJ}, 3
    s_lshl_b32 s{sT2}, s{sT2}, 2
    s_add_u32 s{sT2}, s{sT2}, s{sG}
    s_lshl_b32 s{sT2}, s{sT2}, 13
    """)
    for i in range(4 if OPT.eng & 4 else 0):
        a(f"s_waitcnt vmcnt({OPT.engd})\nbuffer_load_dword v{249+i%2}, v{vPF}, {sr(R_WO,4)}, s{sT2} offen\ns_add_u32 s{sT2}, s{sT2}, {16*8192}")
    stamp(a, 30)
    a(f"s_branch epw\nengdone:\ns_waitcnt vmcnt(0)")
    a("s_setprio 3")
    a(f"v_add_u32 v249, {8*3584-1024}, v{vDW1}\nv_add_u32 v250, {8*4096-1024}, v{vDW2}")
    lds_wait(a, C_Q, 4)
    state['nd'] = N1
    prefill(N1 + OPT.e2)
    a(f"{join}:")
    a(f"s_setprio {OPT.prio_b}")
    vm.q = [('d', k) for k in range(N1, N1 + OPT.e2) for h in range(2)]
    prefill(N1 + OPT.a2)
    if OPT.flate:
        a(f's_cmp_eq_u32 s{sHasG1}, 0\ns_cbranch_scc1 nfl\ns_sleep {OPT.flate}'); set_flag(a, sFU); a('nfl:')
    stamp(a, 18)
    fill_poll(N1 + OPT.a2, N1 + OPT.b2, sFUc, 28)
    stamp(a, 19)
    begin(N1, OPT.nl0)
    a(f"s_setprio {OPT.prio_g2}\ns_lshr_b32 s{sSH1}, s{sJ}, 3")
    assert not OPT.odeep or (SG + 64 <= 240 and N1 + OPT.pre + nsg2 - 3 <= N2 - OPT.ock)
    KC = N2 - OPT.ock
    hl = [(N1, lambda: stamp(a, 20)), (N1 + 14, lambda: stamp(a, 21)), (KC - 3, lambda: flagload(sFOc, 8))]
    for b in range(3, 7): hl.append((N1 + max(0, 4 * b - OPT.pfd), lambda b=b: cpf(sSH1, b - 3, sPU)))
    for i, k in enumerate(range(N1 + OPT.b2, N1 + OPT.pre + nsg2)): hl.append((N1 + i, lambda k=k: prefill(k + 1)))
    run(N1, KC, N2, N3, N2, first=N1, hooks=mkhooks(hl))
    w = vm.wait({'fl'})
    if w is not None: a(f"s_waitcnt vmcnt({w})")
    ordy = a.label("ordy"); red2 = a.label("red2")
    flagcheck(ordy)
    sv = (list(vm.q), dict(state))
    assert OPT.odeep and DH >= 4
    R8 = [8, 16] + [BF + 8 * i for i in range(4)] + [AF, AF + 8]
    T3 = {N2 + i: R8[i] for i in range(8)}
    T3a = {k: T3[k] for k in (N2, N2 + 1)}
    run(KC, N2, N3, N3, N2, tail=T3a)
    prefill(N3)
    stamp(a, 22)
    poll(a, sFOc, 8); vm.q = []
    stamp(a, 23)
    a(f"s_setprio {OPT.prio_e}")
    for k in range(N2, N3): ld_now(k)
    qn = list(vm.q)
    a(f"s_branch {red2}\n{ordy}:")
    vm.q = sv[0]; state.update(sv[1])
    run(KC, N2, N3, N3, N3, tail=T3a)
    prefill(N3)
    while state['nl'] < N3: ld_now(state['nl']); state['nl'] += 1
    w = vm.wait({('d', k) for k in range(N2, N3)})
    if w is not None: a(f"s_waitcnt vmcnt({w})")
    assert all(t[0] == 'l' for t in qn + vm.q), (qn, vm.q)
    if len(qn) > len(vm.q): vm.q = qn
    a(f"{red2}:")
    stamp(a, 24)
    tail_reduce(T3, C_R2, (L_RING, 2048, lambda i: (i >> 1) * 8192 + (i & 1) * 1024), 25, 26, lazy=range(N2 + 2, N3), pk=True)
    for i in range(8): a(f"v_cvt_pk_bf16_f32 v{ACC+16+i}, v{ACC+2*i}, v{ACC+2*i+1}")
    a(f"""
    s_nop 1
    v_permlane32_swap_b32 v{ACC+16}, v{ACC+18}
    v_permlane32_swap_b32 v{ACC+17}, v{ACC+19}
    v_permlane32_swap_b32 v{ACC+20}, v{ACC+22}
    v_permlane32_swap_b32 v{ACC+21}, v{ACC+23}
    buffer_store_dwordx4 {vr(ACC+16,4)}, v{vOUT}, {sr(R_OUT,4)}, s{sOUT} offen
    buffer_store_dwordx4 {vr(ACC+20,4)}, v{vOUT}, {sr(R_OUT,4)}, s{sOUT} offen offset:32
    s_branch {done}
    epw:
    s_lshl_b32 s{sT0}, s{sG}, 8
    s_add_u32 s{sT0}, s{sT0}, s2
    s_cmp_lg_u32 s{sT0}, 56
    s_cbranch_scc1 {done}
    """)
    lds_wait(a, C_ATT, 4, sleep=8)
    for i in range(4):
        a(f"s_mov_b32 s{sT0}, {FL_O + (2048*i << FS)}")
        poll(a, sT0, 64, sh=5)
    a(f"s_mov_b32 s{sT0}, {WS_EPOCH}")
    set_flag(a, sT0)

def kend(a, e):
    a(f"{e}:")
    if OPT.stamps:
        stamp(a, 14); a("s_waitcnt vmcnt(0)"); stamp(a, 15)
        a(f"""
        s_lshl_b32 s100, s2, 3
        s_add_u32 s100, s100, s{sW}
        s_lshl_b32 s100, s100, 8
        s_add_u32 s100, s100, {WS_STAMP}
        v_lshlrev_b32 v254, 2, v{vLANE}
        buffer_store_dword v255, v254, {sr(R_WS,4)}, s100 offen
        """)
    if OPT.amp >= 0:
        if OPT.amp == 14: stamp(a, 14)
        a(f"""
        s_cmp_ge_u32 s{sW}, 4
        s_cbranch_scc{0 if OPT.ampg else 1} {e}x
        s_nop 4
        v_readlane_b32 s16, v255, 0
        v_readlane_b32 s17, v255, 1
        s_nop 4
        s_cmp_eq_u32 s17, 0
        s_cbranch_scc1 {e}x
        s_sub_u32 s18, s17, s16
        s_min_u32 s18, s18, 4000
        s_mul_i32 s18, s18, 5
        s_add_u32 s18, s18, 4000
        ampl:
        s_memrealtime s[20:21]
        s_waitcnt lgkmcnt(0)
        s_sub_u32 s20, s20, s16
        s_cmp_lt_u32 s20, s18
        s_cbranch_scc1 ampl
        """)
    if OPT.double:
        a(f"""
        s_waitcnt vmcnt(0)
        s_memrealtime s[16:17]
        s_waitcnt lgkmcnt(0)
        s_sub_u32 s18, s16, s100
        s_min_u32 s18, s18, 20000
        dbl:
        s_memrealtime s[20:21]
        s_waitcnt lgkmcnt(0)
        s_sub_u32 s20, s20, s16
        s_cmp_lt_u32 s20, s18
        s_cbranch_scc1 dbl
        """)
    a(f"{e}x:\ns_endpgm\ncode_end:")

DOC = '''; ---------------------------------------------------------------------------------------------
; Hand-offs between workgroups (h, K/V, u, o) go through d_ws with sc1 stores, a drained per-wave flag
; and sc1 loads.  Flags carry a 64-bit tag derived from an epoch word in d_ws that every launch advances.
; Softmax: each wave shifts by a score maximum of its first key tile; the row sums are range-checked and
; ---------------------------------------------------------------------------------------------
'''
def build():
    a = Asm()
    n = NAME + "_kernel"
    a('.amdgcn_target "amdgcn-amd-amdhsa--gfx950"\n.text')
    a(f".globl {n}\n.p2align 8\n.type {n},@function\n{n}:")
    e = "fin"
    prologue(a, e)
    p1_a(a); attention(a, e)
    a("p1g:"); p1_g(a); gpath(a, e)
    kend(a, e)
    if OPT.nogv:
        i0 = a.L.index("p1g:")
        i1 = [i for i, l in enumerate(a.L) if l.startswith("gpfw")][0]
        a.L = [("s_nop 0" if (i > i1 and l.startswith("buffer_load_dwordx4")) else l) for i, l in enumerate(a.L)]
    check(a.L)
    head = open(f"refhead.txt").read().split("; Override")[0]
    ll = f"; @launch grid=(256,1,1) block=(512,1,1) lds={LDS_TOTAL}\n"
    desc = f""".section .rodata,"a"
.p2align 6
.amdhsa_kernel {n}
  .amdhsa_next_free_vgpr 256
  .amdhsa_next_free_sgpr 102
  .amdhsa_accum_offset 256
  .amdhsa_group_segment_fixed_size 0
  .amdhsa_kernarg_size 104
  .amdhsa_user_sgpr_count 2
  .amdhsa_user_sgpr_kernarg_segment_ptr 1
  .amdhsa_system_sgpr_workgroup_id_x 1
  .amdhsa_float_denorm_mode_32 3
.end_amdhsa_kernel
"""
    return head + DOC + ll + a.text() + desc

if __name__ == "__main__":
    args = []
    for x in sys.argv[1:]:
        if x.startswith("--"):
            k, _, v = x[2:].partition("=")
            if k == "FS": FS = int(v)
            else: setattr(OPT, k, int(v) if v else True)
        else: args.append(x)
    assert all((t * 37) >> 8 == t // 7 for t in range(56))
    open(args[0] if args else f"cdna_kernels/{NAME}.s", "w").write(build())
```

```python
import sys, math, struct
sys.path.insert(0, "dev")
from asmlib import Asm, vr, sr, check

NAME = "parallel_sum__grouped_kv_mqa__mixer_token_mlp__prompt"
WS_HT = 0
WS_KV = 2 << 20
WS_U  = 5 << 20
WS_O  = 7 << 20
WS_FLG = 10 << 20
FL_H  = WS_FLG
FS = 3
FL_KV = WS_FLG + (8192 << 4)
FL_U  = WS_FLG + (12288 << 4)
FL_O  = WS_FLG + (20480 << 4)
WS_EPOCH = WS_FLG + (32768 << 4)
WS_STAMP = 12 << 20
WS_SIZE = 16 << 20
DBLK = 64
class O: pass
OPT = O(); OPT.stamps = False; OPT.double = False; OPT.prio_g = 0; OPT.prio_e = 3; OPT.prio_a = 0; OPT.pf2step = 6; OPT.pre = 12; OPT.lw = 6; OPT.lw2 = 11; OPT.odeep = 1; OPT.fine = 0; OPT.prio_b = 0; OPT.kp = 0; OPT.engp = -1; OPT.w1r = 8; OPT.wor = 3; OPT.wkf = 0; OPT.zpre = 30; OPT.one = 1; OPT.mix = 4369; OPT.order2 = 0; OPT.spread = 1; OPT.two1 = 1; OPT.gld = 1; OPT.anold = 0; OPT.anow = 0; OPT.d1 = 0; OPT.flate = 0; OPT.unroll = 0; OPT.ldpos = 11; OPT.nmax = 16; OPT.adel = 0; OPT.gdel = 0; OPT.odel = 0; OPT.tdeep = 1; OPT.kt = 0; OPT.hot = 0; OPT.pdefer = 0; OPT.lsleep = 1; OPT.psleep = 0; OPT.npfa = 9; OPT.prio_t = 3; OPT.ka = 0; OPT.amp = -1; OPT.ampg = 0; OPT.prio_g1b = 0; OPT.fine0 = 2; OPT.dh = 5; OPT.pre0 = 4; OPT.nsg = 6; OPT.nsg2 = 9; OPT.e0 = 4; OPT.e1 = 8; OPT.e2 = 11; OPT.pf1pos = 3; OPT.order = 1; OPT.nogm = 0; OPT.nogv = 0; OPT.a1 = 10; OPT.b1 = 10; OPT.nl0 = 4; OPT.pfd = -100; OPT.kvpf = 1; OPT.a2 = 21; OPT.b2 = 21; OPT.ock = 2; OPT.early = 0; OPT.npf0 = 2; OPT.prio_g2 = 0; OPT.twice = 0; OPT.codepf = 1; OPT.prio_ld = 0; OPT.gatek = 8; OPT.ke = 12; OPT.fl_late = 0; OPT.rdin = 2; OPT.pre1 = 0; OPT.engd = 0; OPT.eng = 7; OPT.engw = 1; OPT.ra = 0; OPT.rb = 4; OPT.nou = 0; OPT.now2 = 0; OPT.dropw = 0; OPT.nocomb = 0; OPT.kvflag = 8; OPT.attit = 4; OPT.nold = 0; OPT.nodma = 0; OPT.nokv = 0
L_XT = 0; L_WQ = 57344; L_WKV = 114688
HB_STRIDE = 912
L_HB = 141056; L_QS = 147456; L_KC = 155648; L_KS = L_KC + 1024; L_MX = L_KC
L_ST = 158720; L_RT = 159232; L_CNT = 159360; LDS_TOTAL = 159744
RING = 12; L_RING = 49152; L_RED = 0
def slotp(k): return 8 + k % 4 if k < OPT.ke else (k - OPT.ke) % RING
C_X, C_KV, C_H, C_ST, C_Q, C_ISS, C_R1, C_R1D, C_ATT, C_R2, C_X1, C_XA, C_FL, C_PRE, C_KS, C_GO, C_AS = range(17)
sXCD, sJ, sRB, sCB, sW = 3, 4, 5, 6, 7
sT0, sT1, sT2, sT3, sT4, sT5 = 8, 9, 10, 11, 12, 13
sHI = 14
P_X, P_WQ, P_WK, P_WV, P_WO, P_BX, P_W1, P_B1, P_W2, P_B2, P_OUT, P_DBG, P_WS = 16, 18, 20, 22, 24, 26, 28, 30, 32, 34, 36, 38, 40
sTAG = 42
R_X, R_WQ, R_WKV, R_WS, R_W1, R_W2, R_WO, R_OUT, R_KV = 44, 48, 52, 56, 60, 64, 68, 72, 76
R_B1, R_B2 = R_WKV, 20
sONES, sSPIN, sPFW = 82, 83, 99
sG, sGM, sGN, sRing, sA, sD, sL, sFB, sDb, sD2, sLb, sL2, sOUT, sB2 = range(84, 98)
sU0, sU1, sU2, sU3, sU4, sU5 = range(84, 90)
OOB = 0x40000000
EPS = 0x3727c5ac
QSCALE = (28 ** -0.5) * math.log2(math.e)
def f32(x): return "0x%08x" % struct.unpack("<I", struct.pack("<f", x))[0]
vLANE, vJ, vHH, vL16 = 1, 2, 3, 4
MF = "v_mfma_f32_32x32x16_bf16"

def stamp(a, idx):
    if OPT.amp >= 0:
        if idx == 0: a("v_mov_b32 v255, 0\ns_memrealtime s[100:101]\ns_waitcnt lgkmcnt(0)\nv_writelane_b32 v255, s100, 0")
        elif idx == OPT.amp: a("s_memrealtime s[100:101]\ns_waitcnt lgkmcnt(0)\nv_writelane_b32 v255, s100, 1")
        return
    if not OPT.stamps: return
    if OPT.stamps == 2 and idx not in (0, 15): return
    if OPT.stamps == 3 and idx not in (0, 12, 13, 15): return
    a(f"s_memrealtime s[100:101]\ns_waitcnt lgkmcnt(0)\nv_writelane_b32 v255, s100, {idx}")
    if idx in (0, 12, 13, 15): a(f"s_memtime s[100:101]\ns_waitcnt lgkmcnt(0)\nv_writelane_b32 v255, s100, {idx+32}")

def srd(a, r, p, size):
    a(f"s_mov_b32 s{r}, s{p}\ns_mov_b32 s{r+1}, s{p+1}\ns_mov_b32 s{r+2}, {size}\ns_mov_b32 s{r+3}, 0x20000")

def get_tag(a):
    a(f"""
    s_waitcnt lgkmcnt(0)
    s_mul_i32 s{sTAG}, s{sTAG}, 0x9e3779b5
    s_mul_i32 s{sTAG+1}, s{sTAG+1}, 0x85ebca6d
    s_add_u32 s{sTAG}, s{sTAG}, 0x7f4a7c15
    s_add_u32 s{sTAG+1}, s{sTAG+1}, 0x165667b1
    """)

def set_flag(a, soff, vt=30):
    a(f"""
    v_mov_b32 v{vt}, s{sTAG}
    v_mov_b32 v{vt+1}, s{sTAG+1}
    s_waitcnt vmcnt(0)
    s_mov_b64 exec, 1
    buffer_store_dwordx2 {vr(vt,2)}, off, {sr(R_WS,4)}, s{soff} sc1
    s_mov_b64 exec, -1
    """)

def poll(a, soff, n, vo=28, vt=30, sh=3):
    lp = a.label("poll"); dn = a.label("polld")
    a(f"""
    s_setprio 3
    v_min_u32 v{vo}, {n-1}, v{vLANE}
    v_lshlrev_b32 v{vo}, {sh+FS}, v{vo}
    s_mov_b32 s{sSPIN}, 20000
    {lp}:
    buffer_load_dwordx2 {vr(vt,2)}, v{vo}, {sr(R_WS,4)}, s{soff} offen sc1
    s_waitcnt vmcnt(0)
    v_cmp_ne_u64 vcc, {sr(sTAG,2)}, {vr(vt,2)}
    s_cbranch_vccz {dn}
    {f's_sleep {OPT.psleep}' if OPT.psleep else ''}
    s_sub_u32 s{sSPIN}, s{sSPIN}, 1
    s_cmp_lg_u32 s{sSPIN}, 0
    s_cbranch_scc1 {lp}
    {dn}:
    s_setprio 0
    """)

def lds_arrive(a, cnt, nowait=False):
    a(f"""
    s_mov_b64 exec, 1
    {'' if nowait else 's_waitcnt lgkmcnt(0)'}
    ds_add_u32 v0, v29 offset:{4*cnt}
    s_mov_b64 exec, -1
    """)
def lds_wait(a, cnt, target, sleep=0):
    spin = a.label("spin"); ent = a.label("spe")
    sleep = sleep or OPT.lsleep
    if sleep: a(f"s_branch {ent}\n{spin}:\ns_sleep {sleep}\n{ent}:")
    else: a(f"{spin}:")
    a(f"""
    ds_read_b32 v28, v0 offset:{4*cnt}
    s_waitcnt lgkmcnt(0)
    v_readfirstlane_b32 s{sT5}, v28
    s_cmp_lt_u32 s{sT5}, {target}
    s_cbranch_scc1 {spin}
    """)

def bf16_stats(a, vs, vq, vm, vr_, t):
    a(f"""
    v_mul_f32 v{vs}, {f32(1/448)}, v{vs}
    v_mul_f32 v{vq}, {f32(1/448)}, v{vq}
    v_fma_f32 v{vq}, -v{vs}, v{vs}, v{vq}
    v_max_f32 v{vq}, 0, v{vq}
    v_cvt_pk_bf16_f32 v{t}, v{vs}, v{vq}
    v_lshlrev_b32 v{vm}, 16, v{t}
    v_and_b32 v{t}, 0xffff0000, v{t}
    v_add_f32 v{t}, {EPS:#x}, v{t}
    v_cvt_pk_bf16_f32 v{t}, v{t}, v{t}
    v_and_b32 v{t}, 0xffff0000, v{t}
    v_sqrt_f32 v{t}, v{t}
    s_nop 0
    v_cvt_pk_bf16_f32 v{t}, v{t}, v{t}
    v_and_b32 v{t}, 0xffff0000, v{t}
    v_rcp_f32 v{vr_}, v{t}
    s_nop 0
    """)

def dpp_reduce(a, vs, vq, modes):
    a("s_nop 2")
    for mode in modes:
        a(f"v_add_f32_dpp v{vs}, v{vs}, v{vs} {mode} row_mask:0xf bank_mask:0xf")
        a(f"v_add_f32_dpp v{vq}, v{vq}, v{vq} {mode} row_mask:0xf bank_mask:0xf")
        a("s_nop 0")
QP1, QP2, RHM, RM = "quad_perm:[1,0,3,2]", "quad_perm:[2,3,0,1]", "row_half_mirror", "row_mirror"

def split_hi_lo(a, dst, src, t):
    a(f"""
    v_cvt_pk_bf16_f32 v{t}, v{src}, v{src}
    v_and_b32 v{t}, 0xffff0000, v{t}
    v_sub_f32 v{t}, v{src}, v{t}
    v_cvt_pk_bf16_f32 v{dst}, v{src}, v{t}
    """)

def prologue(a, end):
    a(f"s_cmp_ge_u32 s2, 256\ns_cbranch_scc1 {end}x")
    if OPT.double: a("s_memrealtime s[100:101]")
    if OPT.stamps: a("v_mov_b32 v255, 0")
    stamp(a, 0)
    a(f"""
    s_load_dwordx16 s[16:31], s[0:1], 0
    s_load_dwordx8 s[32:39], s[0:1], 64
    s_load_dwordx2 s[40:41], s[0:1], 96
    v_lshrrev_b32 v5, 6, v0
    v_and_b32 v{vLANE}, 63, v0
    v_readfirstlane_b32 s{sW}, v5
    v_and_b32 v{vJ}, 31, v0
    v_lshrrev_b32 v{vHH}, 5, v{vLANE}
    v_lshlrev_b32 v{vL16}, 4, v{vLANE}
    s_and_b32 s{sXCD}, s2, 7
    s_lshr_b32 s{sJ}, s2, 3
    """)
    if OPT.codepf:
        a(f"""
        s_cmp_lg_u32 s{sW}, 7
        s_cbranch_scc1 nocpf
        s_getpc_b64 s[{R_OUT}:{R_OUT+1}]
        cpf_here:
        s_sub_u32 s{R_OUT}, s{R_OUT}, cpf_here-{NAME}_kernel
        s_subb_u32 s{R_OUT+1}, s{R_OUT+1}, 0
        s_mov_b32 s{R_OUT+2}, code_end-{NAME}_kernel
        s_mov_b32 s{R_OUT+3}, 0x20000
        s_lshl_b32 s{sT0}, s{sJ}, 7
        v_lshlrev_b32 v6, 12, v{vLANE}
        buffer_load_dword v250, v6, {sr(R_OUT,4)}, s{sT0} offen
        nocpf:
        """)
    a(f"""
    s_lshr_b32 s{sT0}, s{sJ}, 3
    s_lshl_b32 s{sRB}, s{sXCD}, 2
    s_add_u32 s{sRB}, s{sRB}, s{sT0}
    s_and_b32 s{sCB}, s{sJ}, 7
    s_mov_b32 s{sHI}, 0
    s_mov_b32 s{sHI+1}, -1
    s_mov_b32 s{sONES}, 0x3f803f80
    v_lshlrev_b32 v5, 2, v{vLANE}
    v_add_u32 v5, {L_CNT}, v5
    v_mov_b32 v6, 0
    ds_write_b32 v5, v6
    v_mov_b32 v0, {L_CNT}
    v_mov_b32 v29, 1
    v_lshrrev_b32 v5, 3, v{vLANE}
    v_and_b32 v6, 7, v{vLANE}
    v_lshrrev_b32 v7, 4, v{vLANE}
    v_bfe_u32 v8, v{vLANE}, 2, 2
    v_and_b32 v9, 3, v{vLANE}
    v_and_b32 v10, 1, v7
    v_lshlrev_b32 v9, 3, v9
    v_lshl_add_u32 v9, v10, 5, v9
    """)
    p1_addr(a)
    a(f"s_cmp_ge_u32 s{sW}, 4\ns_cbranch_scc1 p1g")

def common_srds(a):
    a(f"s_mov_b32 s{sT5}, {WS_EPOCH}\ns_waitcnt lgkmcnt(0)")
    stamp(a, 1)
    a(f"s_load_dwordx2 {sr(sTAG,2)}, {sr(P_WS,2)}, s{sT5}")
    srd(a, R_X, P_X, 2048 * 896)
    srd(a, R_WS, P_WS, WS_SIZE)

def epoch_load(a): pass

vXe, vXo, vWQd = 11, 12, 13
sNL, sXs, sXm, sNT, sW3 = 76, 77, 78, 79, 80
sXs2, sXm2, sQs, sQm = 26, 27, 38, 39
def p1_addr(a):
    a(f"""
    v_mul_u32_u24 v20, 896, v5
    v_xor_b32 v21, v6, v7
    v_lshl_add_u32 v{vXe}, v21, 4, v20
    v_xor_b32 v21, 4, v21
    v_lshl_add_u32 v{vXo}, v21, 4, v20
    v_lshlrev_b32 v21, 2, v10
    v_xor_b32 v21, v21, v6
    v_lshl_add_u32 v{vWQd}, v21, 4, v20
    s_and_b32 s{sW3}, s{sW}, 3
    s_cmp_eq_u32 s{sW3}, 3
    s_cselect_b32 s{sNL}, 1, 2
    s_bfe_u32 s{sNT}, s{sCB}, 0x10001
    s_lshl_b32 s{sT0}, s{sRB}, 1
    s_add_u32 s{sT0}, s{sT0}, s{sNT}
    s_mul_i32 s{sXs}, s{sT0}, {32*896}
    s_lshl_b32 s{sT0}, s{sW3}, 8
    s_add_u32 s{sXs}, s{sXs}, s{sT0}
    s_lshl_b32 s{sXm}, s{sW3}, 14
    s_lshl_b32 s{sT0}, s{sNT}, 12
    s_add_u32 s{sXm}, s{sXm}, s{sT0}
    """)
def rest_dma(a, after_x=None):
    srd(a, R_WQ, P_WQ, 448 * 896)
    a(f"""
    s_xor_b32 s{sXm2}, s{sXm}, 4096
    s_mul_i32 s{sT0}, s{sNT}, {2*32*896}
    s_add_u32 s{sXs2}, s{sXs}, {32*896}
    s_sub_u32 s{sXs2}, s{sXs2}, s{sT0}
    s_mul_i32 s{sQs}, s{sW3}, {128*896}
    s_mul_i32 s{sT0}, s{sCB}, 112
    s_add_u32 s{sQs}, s{sQs}, s{sT0}
    s_lshl_b32 s{sQm}, s{sW3}, 14
    """)
    if after_x: after_x()
    PF1 = f"buffer_load_dword v249, v{vPF1}, {sr(R_W1,4)}, s{sPFW} offen"
    if OPT.pf1pos == 0: a(PF1)
    l1 = a.label("rd1"); l2 = a.label("rd2")
    for line in range(2):
        if line: a(f"s_cmp_eq_u32 s{sNL}, 1\ns_cbranch_scc1 {l1}")
        for b in range(4):
            a(f"""
            s_add_u32 m0, s{sXm2}, {L_XT + line*8192 + b*1024}
            s_add_u32 s{sT0}, s{sXs2}, {b*8*896 + line*128}
            buffer_load_dwordx4 v{vXo if b & 1 else vXe}, {sr(R_X,4)}, s{sT0} offen lds
            """)
    a(f"{l1}:")
    if OPT.pf1pos == 1: a(PF1)
    for line in range(2):
        if line:
            a(f"s_waitcnt vmcnt({9 if OPT.pf1pos == 1 else 8})")
            lds_arrive(a, C_XA, nowait=True)
            a(f"s_cmp_eq_u32 s{sNL}, 1\ns_cbranch_scc1 {l2}")
        for b in range(8):
            a(f"""
            s_add_u32 m0, s{sQm}, {L_WQ + line*8192 + b*1024}
            s_add_u32 s{sT0}, s{sQs}, {(line*64 + b*8)*896}
            buffer_load_dwordx4 v{vWQd}, {sr(R_WQ,4)}, s{sT0} offen lds
            """)
    a(f"{l2}:")

vPF1 = 246
def pf1_addr(a):
    a(f"""
    v_min_u32 v14, 62, v{vLANE}
    v_mul_u32_u24 v{vPF1}, 37, v14
    v_lshrrev_b32 v{vPF1}, 8, v{vPF1}
    v_mul_u32_u24 v{vPF1}, {3584 - 7*128}, v{vPF1}
    v_lshl_add_u32 v{vPF1}, v14, 7, v{vPF1}
    s_lshr_b32 s{sT1}, s{sJ}, 3
    s_lshl_b32 s{sT1}, s{sT1}, 1
    s_and_b32 s{sT2}, s{sCB}, 1
    s_add_u32 s{sT1}, s{sT1}, s{sT2}
    s_sub_u32 s{sT1}, s{sT1}, 1
    s_mul_i32 s{sT1}, s{sT1}, 9
    s_lshl_b32 s{sT2}, s{sW3}, 9
    s_add_u32 s{sT1}, s{sT1}, s{sT2}
    s_mul_i32 s{sPFW}, s{sT1}, 3584
    s_lshr_b32 s{sT2}, s{sXCD}, 1
    s_mul_i32 s{sT2}, s{sT2}, 896
    s_add_u32 s{sPFW}, s{sPFW}, s{sT2}
    """)
    srd(a, R_W1, P_W1, 2048 * 3584)

def stats_code(a, st0, st1, sRBk, SX=128, T=40):
    a(f"""
    v_lshrrev_b32 v{T}, 2, v{vLANE}
    v_and_b32 v{T+1}, 3, v{vLANE}
    v_lshlrev_b32 v{T+1}, 5, v{T+1}
    v_lshl_add_u32 v{T+1}, v{T}, 7, v{T+1}
    v_lshlrev_b32 v{T+2}, 1, v{vLANE}
    v_and_b32 v{T+2}, 16, v{T+2}
    v_add_u32 v{T+1}, v{T+1}, v{T+2}
    s_lshl_b32 s{sT0}, s{sRBk}, 11
    v_add_u32 v{T+1}, s{sT0}, v{T+1}
    v_xor_b32 v{T+3}, 16, v{T+1}
    s_lshl_b32 s{sT0}, s{sRBk}, 7
    s_add_u32 s{sT0}, s{sT0}, {L_ST}
    v_lshl_add_u32 v{T}, v{T}, 3, s{sT0}
    v_mov_b32 v{T+4}, 0
    v_mov_b32 v{T+5}, 0
    """)
    lds_wait(a, C_X1, 4)
    lds_wait(a, C_XA, 4)
    stamp(a, st0)
    for c in range(7):
        a(f"ds_read_b128 {vr(SX+8*c,4)}, v{T+1} offset:{L_XT + c*8192}")
        a(f"ds_read_b128 {vr(SX+8*c+4,4)}, v{T+3} offset:{L_XT + c*8192}")
    for c in range(7):
        a(f"s_waitcnt lgkmcnt({2*(6-c)})")
        for i in range(8):
            a(f"v_dot2c_f32_bf16 v{T+4}, s{sONES}, v{SX+8*c+i}")
            a(f"v_dot2c_f32_bf16 v{T+5}, v{SX+8*c+i}, v{SX+8*c+i}")
    dpp_reduce(a, T + 4, T + 5, [QP1, QP2])
    bf16_stats(a, T + 4, T + 5, T + 3, T + 7, T + 2)
    a(f"""
    v_cvt_pk_bf16_f32 v{T+6}, -v{T+3}, -v{T+3}
    v_mul_f32 v{T+7}, {f32(QSCALE)}, v{T+7}
    ds_write_b64 v{T}, {vr(T+6,2)}
    """)
    lds_arrive(a, C_ST, nowait=True)
    stamp(a, st1)

def p1_a(a):
    vXF, vWK, vWQr = 14, 18, 19
    sB, sM = 94, 96
    a(f"""
    s_and_b32 s{sT1}, s{sCB}, 1
    s_lshl_b32 s{sT2}, s{sT1}, 11
    s_xor_b32 s{sM}, s{sXm}, s{sT2}
    s_lshr_b32 s{sT3}, s{sJ}, 3
    s_lshl_b32 s{sT3}, s{sT3}, 1
    s_add_u32 s{sT3}, s{sT3}, s{sT1}
    s_mul_i32 s{sT1}, s{sT1}, {16*896}
    s_add_u32 s{sB}, s{sXs}, s{sT1}
    s_add_u32 s{sT2}, s{sXs}, {16*896}
    s_sub_u32 s{sB+1}, s{sT2}, s{sT1}
    v_lshlrev_b32 v21, 7, v{vLANE}
    s_mov_b32 s{sT4}, 0
    """)
    common_srds(a)
    def x_half(h):
        sk = a.label("xh")
        for line in range(2):
            if line: a(f"s_cmp_eq_u32 s{sNL}, 1\ns_cbranch_scc1 {sk}")
            for b in range(2):
                a(f"""
                s_xor_b32 m0, s{sM}, {line*8192 + h*2048 + b*1024}
                s_add_u32 s{sT0}, s{sB+h}, {b*8*896 + line*128}
                buffer_load_dwordx4 v{vXo if b else vXe}, {sr(R_X,4)}, s{sT0} offen lds
                """)
        a(f"{sk}:")
    def frag_addr():
        a(f"""
        v_lshrrev_b32 v20, 1, v{vJ}
        v_and_b32 v20, 7, v20
        v_xor_b32 v20, v20, v{vHH}
        v_lshlrev_b32 v20, 4, v20
        v_lshl_add_u32 v{vXF}, v{vJ}, 7, v20
        v_xor_b32 v{vXF+1}, 32, v{vXF}
        v_xor_b32 v{vXF+2}, 64, v{vXF}
        v_xor_b32 v{vXF+3}, 96, v{vXF}
        v_lshl_add_u32 v20, v{vHH}, 3, v8
        """)
    nop_ = a.label("notp"); other = a.label("notkv"); htype = a.label("htype"); qgo = a.label("qgo"); dostats = a.label("dostats"); poststats = a.label("poststats")
    if OPT.wkf:
        nw_ = a.label("nowkf")
        a(f"""
        s_and_b32 s{sT0}, s{sJ}, 0x1e
        s_cmp_lg_u32 s{sT0}, {OPT.wkf}
        s_cbranch_scc1 {nw_}
        s_bitcmp1_b32 s{sCB}, 0
        s_cselect_b32 s{R_WKV}, s{P_WV}, s{P_WK}
        s_cselect_b32 s{R_WKV+1}, s{P_WV+1}, s{P_WK+1}
        s_mov_b32 s{R_WKV+2}, {448*56}
        s_mov_b32 s{R_WKV+3}, 0x20000
        s_lshl_b32 s{sT0}, s{sW}, 13
        buffer_load_dword v251, v21, {sr(R_WKV,4)}, s{sT0} offen
        {nw_}:
        """)
    x_half(0)
    a(f"s_cmp_ge_u32 s{sCB}, 4\ns_cbranch_scc1 {other}")
    x_half(1)
    a(f"""
    s_bitcmp1_b32 s{sCB}, 0
    s_cselect_b32 s{R_WKV}, s{P_WV}, s{P_WK}
    s_cselect_b32 s{R_WKV+1}, s{P_WV+1}, s{P_WK+1}
    s_mov_b32 s{R_WKV+2}, {448*56}
    s_mov_b32 s{R_WKV+3}, 0x20000
    s_mul_i32 s{sT1}, s{sW}, 7168
    s_add_u32 m0, s{sT1}, {L_WKV}
    s_cmp_eq_u32 s{sNL}, 1
    """)
    w3 = a.label("wk3")
    for i in range(4): a(f"buffer_load_dwordx4 v{vL16}, {sr(R_WKV,4)}, s{sT1} offen offset:{1024*i} lds")
    a(f"""
    s_cbranch_scc1 {w3}
    s_add_u32 m0, m0, 4096
    s_add_u32 s{sT1}, s{sT1}, 4096
    """)
    for i in range(3): a(f"buffer_load_dwordx4 v{vL16}, {sr(R_WKV,4)}, s{sT1} offen offset:{1024*i} lds")
    a(f"{w3}:")
    epoch_load(a)
    a("s_barrier")
    frag_addr()
    ACC, XF, WF = 96, 32, 64
    vQ, vS, vC = 22, 23, 21
    a(f"""
    v_mul_u32_u24 v{vWK}, 56, v20
    v_add_u32 v{vWK}, v{vWK}, v9
    s_mul_i32 s{sT1}, s{sW}, 7168
    s_add_u32 s{sT1}, s{sT1}, {L_WKV}
    v_add_u32 v{vWK}, s{sT1}, v{vWK}
    v_add_u32 v24, s{sXm}, v{vXF}
    v_xor_b32 v25, 32, v24
    v_xor_b32 v30, 64, v24
    v_xor_b32 v31, 96, v24
    v_mov_b32 v{vS}, 0
    v_mov_b32 v{vQ}, 0
    v_mov_b32 v{vC}, 0
    s_lshl_b32 s{sT0}, s{sW}, 4
    s_add_u32 s{sT0}, s{sT0}, {L_KS}
    v_lshlrev_b32 v120, 6, v{vJ}
    v_lshl_add_u32 v121, v{vHH}, 3, v120
    v_add_u32 v121, s{sT0}, v121
    s_lshl_b32 s{sT0}, s{sW}, 2
    s_add_u32 s{sT0}, s{sT0}, {L_KC}
    v_add_u32 v122, s{sT0}, v{vL16}
    v_add_u32 v123, s{sT1}, v{vL16}
    """)
    xa = [24, 25, 30, 31]
    l0 = a.label("kv0"); l1 = a.label("kv1a"); l2 = a.label("kv1b"); l3 = a.label("kv1c"); vlab = a.label("kvv"); fin = a.label("kvfin")
    def skip1(lab): a(f"s_cmp_eq_u32 s{sNL}, 1\ns_cbranch_scc1 {lab}")
    a(f"s_waitcnt vmcnt(7)\ns_cmp_eq_u32 s{sNL}, 1\ns_cbranch_scc0 {l0}\ns_waitcnt vmcnt(4)\n{l0}:")
    stamp(a, 2)
    for line in range(2):
        for q in range(4): a(f"ds_read_b128 {vr(XF+16*line+4*q,4)}, v{xa[q]} offset:{L_XT + line*8192}")
    lds_arrive(a, C_X1, nowait=True)
    for line in range(2):
        if line: skip1(l1)
        for q in range(4):
            a(f"s_waitcnt lgkmcnt({8-4*line-q})")
            for i in range(4):
                r = XF + 16 * line + 4 * q + i
                a(f"v_dot2c_f32_bf16 v{vS}, s{sONES}, v{r}\nv_dot2c_f32_bf16 v{vQ}, v{r}, v{r}")
    a(f"{l1}:\ns_waitcnt vmcnt(0) lgkmcnt(0)\ns_nop 1\nds_write_b64 v121, v[22:23]")
    stamp(a, 18)
    for k in range(8):
        if k == 7: a("s_waitcnt lgkmcnt(13)")
        a(f"ds_read_b64_tr_b16 {vr(WF+4*k,2)}, v{vWK} offset:{k*896}")
        a(f"ds_read_b64_tr_b16 {vr(WF+4*k+2,2)}, v{vWK} offset:{k*896+224}")
    for k in range(8):
        if k == 4: skip1(l3)
        a(f"s_waitcnt lgkmcnt({14-2*k})")
        for i in range(4): a(f"v_dot2c_f32_bf16 v{vC}, s{sONES}, v{WF+4*k+i}")
    a(f"{l3}:\ns_bitcmp1_b32 s{sCB}, 0\ns_cbranch_scc1 {vlab}")
    for isv in (0, 1):
        if isv: a(f"{vlab}:")
        for k in range(8):
            if k == 4: skip1(fin)
            A, B = (vr(XF+4*k,4), vr(WF+4*k,4)) if isv else (vr(WF+4*k,4), vr(XF+4*k,4))
            a(f"{MF} {vr(ACC,16)}, {A}, {B}, {vr(ACC,16) if k else 0}")
            if k == 0:
                split_hi_lo(a, 24, vC, 31)
                a("ds_write_b32 v122, v24")
                lds_arrive(a, C_KS, nowait=True)
        if not isv: a(f"s_branch {l2}")
    a(f"""
    {l2}:
    s_lshl_b32 s{sT2}, s{sNT}, 1
    s_xor_b32 s{sT2}, s{sT2}, 2
    s_add_u32 s{sT2}, s{sT2}, s{sW}
    """)
    get_tag(a)
    a("s_nop 3")
    for g in range(4): a(f"ds_write_b128 v123, {vr(ACC+4*g,4)} offset:{1024*g}")
    lds_arrive(a, C_KV, nowait=True)
    stamp(a, 3)
    a(f"s_cmp_lt_u32 s{sW}, 2\ns_cbranch_scc1 {dostats}")
    lds_arrive(a, C_ST, nowait=True)
    a(f"s_branch {qgo}")
    vfin = a.label("vfin"); kvst = a.label("kvst"); vf2 = a.label("vf2"); cm = a.label("kvcm")
    a(f"""
    {fin}:
    s_setprio 3
    v_add_u32 v24, {L_KS}, v120
    v_add_u32 v25, {L_WKV}, v{vL16}
    v_add_u32 v21, {L_KC}, v{vL16}
    s_lshl_b32 s{sT1}, s{sRB}, 1
    s_add_u32 s{sT1}, s{sT1}, s{sNT}
    s_lshl_b32 s{sT1}, s{sT1}, 12
    s_add_u32 s{sT1}, s{sT1}, {WS_KV}
    s_lshl_b32 s{sT4}, s{sRB}, 2
    s_add_u32 s{sT4}, s{sT4}, s{sCB}
    s_lshl_b32 s{sT4}, s{sT4}, {3+FS}
    s_add_u32 s{sT4}, s{sT4}, {FL_KV}
    s_lshl_b32 s{sT0}, s{sNT}, 8
    s_add_u32 s{sT0}, s{sT0}, {L_ST}
    v_lshl_add_u32 v30, v{vJ}, 3, s{sT0}
    s_waitcnt vmcnt(0)
    """)
    get_tag(a)
    lds_wait(a, C_KS, 4)
    for g in range(4): a(f"ds_read_b128 {vr(XF+4*g,4)}, v24 offset:{16*g}")
    a(f"ds_read_b128 {vr(112,4)}, v21\ns_waitcnt lgkmcnt(1)")
    for i in range(4): a(f"v_pk_add_f32 {vr(XF+4*i,2)}, {vr(XF+4*i,2)}, {vr(XF+4*i+2,2)}")
    a(f"""
    v_pk_add_f32 {vr(XF,2)}, {vr(XF,2)}, {vr(XF+4,2)}
    v_pk_add_f32 {vr(XF+8,2)}, {vr(XF+8,2)}, {vr(XF+12,2)}
    v_pk_add_f32 {vr(XF,2)}, {vr(XF,2)}, {vr(XF+8,2)}
    """)
    bf16_stats(a, XF + 1, XF, 22, 23, 21)
    a(f"""
    v_cvt_pk_bf16_f32 v116, -v22, -v22
    v_lshlrev_b32 v21, 2, v{vJ}
    v_add_u32 v21, {L_RT}, v21
    ds_write_b32 v21, v23
    v_mul_f32 v117, {f32(QSCALE)}, v23
    v_lshlrev_b32 v21, 4, v{vHH}
    v_add_u32 v21, {L_RT}, v21
    ds_write_b64 v30, v[116:117]
    v_mov_b32 v118, v116
    v_mov_b32 v119, v116
    v_mov_b32 v22, v23
    """)
    lds_arrive(a, C_ST, nowait=True)
    a(f"""
    s_waitcnt lgkmcnt(0)
    v_mov_b32 v117, v116
    s_bitcmp1_b32 s{sCB}, 0
    s_cbranch_scc1 {vfin}
    {MF} {vr(ACC,16)}, {vr(112,4)}, {vr(116,4)}, {vr(ACC,16)}
    s_branch {cm}
    {vfin}:
    {MF} {vr(ACC,16)}, {vr(116,4)}, {vr(112,4)}, {vr(ACC,16)}
    """)
    for g in range(4): a(f"ds_read_b128 {vr(XF+4*g,4)}, v21 offset:{32*g}")
    a(f"""
    s_add_u32 s{sT1}, s{sT1}, 2048
    v_cmp_eq_u32 vcc, 28, v{vJ}
    v_mov_b32 v24, 0x3f803f80
    s_nop 1
    v_cndmask_b32 v24, 0, v24, vcc
    """)
    for i in range(8): a(f"v_mov_b32 v{120+i}, v24")
    a(f"{cm}:")
    lds_wait(a, C_KV, 3)
    stamp(a, 4)
    for w in range(3):
        for g in range(4): a(f"ds_read_b128 {vr(128+16*w+4*g,4)}, v25 offset:{7168*w+1024*g}")
    for w in range(3):
        a(f"s_waitcnt lgkmcnt({8-4*w})")
        for r in range(0, 16, 2): a(f"v_pk_add_f32 {vr(ACC+r,2)}, {vr(ACC+r,2)}, {vr(128+16*w+r,2)}")
    a(f"s_bitcmp1_b32 s{sCB}, 0\ns_cbranch_scc1 {vf2}")
    for r in range(0, 16, 2): a(f"v_pk_mul_f32 {vr(ACC+r,2)}, {vr(ACC+r,2)}, v[22:23]")
    for i in range(8): a(f"v_cvt_pk_bf16_f32 v{120+i}, v{ACC+2*i}, v{ACC+2*i+1}")
    a(f"""
    s_mov_b64 exec, {sr(sHI,2)}
    v_mov_b32 v126, 0x3f803f80
    v_mov_b32 v127, 0x00003f80
    s_branch {kvst}
    {vf2}:
    s_mov_b32 exec_lo, 0x0fffffff
    s_mov_b32 exec_hi, 0x0fffffff
    """)
    for r in range(0, 16, 2): a(f"v_pk_mul_f32 {vr(ACC+r,2)}, {vr(ACC+r,2)}, {vr(XF+r,2)}")
    for i in range(8): a(f"v_cvt_pk_bf16_f32 v{120+i}, v{ACC+2*i}, v{ACC+2*i+1}")
    a(f"""
    {kvst}:
    s_mov_b64 exec, -1
    buffer_store_dwordx4 {vr(120,4)}, v{vL16}, {sr(R_WS,4)}, s{sT1} offen sc1
    buffer_store_dwordx4 {vr(124,4)}, v{vL16}, {sr(R_WS,4)}, s{sT1} offen offset:1024 sc1
    """)
    stamp(a, 5)
    if OPT.kvflag < 0:
        set_flag(a, sT4)
        a(f"s_mov_b32 s{sT4}, 0\ns_setprio 0")
        stamp(a, 6)
    if not OPT.fl_late or OPT.kvflag < 0: lds_arrive(a, C_FL, nowait=True)
    a(f"s_branch {qgo}")
    a(f"{other}:")
    a(f"""
    s_lshr_b32 s{sT3}, s{sJ}, 3
    s_lshl_b32 s{sT3}, s{sT3}, 2
    s_add_u32 s{sT3}, s{sT3}, s{sCB}
    s_sub_u32 s{sT3}, s{sT3}, 4
    s_lshl_b32 s{sT0}, s{sT3}, 2
    s_add_u32 s{sT0}, s{sT0}, s{sW}
    s_cmp_eq_u32 s{sT3}, 1
    s_cselect_b32 s{R_WKV}, s{P_WV}, s{P_WK}
    s_cselect_b32 s{R_WKV+1}, s{P_WV+1}, s{P_WK+1}
    s_mov_b32 s{R_WKV+2}, {448*896}
    s_sub_u32 s{sT1}, s{sT0}, 8
    s_cmp_lt_u32 s{sT3}, 2
    s_cselect_b32 s{R_WKV}, s{R_WKV}, s{P_WQ}
    s_cselect_b32 s{R_WKV+1}, s{R_WKV+1}, s{P_WQ+1}
    s_cselect_b32 s{R_WKV+2}, {448*56}, s{R_WKV+2}
    s_cselect_b32 s{sT1}, s{sW}, s{sT1}
    s_mov_b32 s{R_WKV+3}, 0x20000
    s_lshl_b32 s{sT1}, s{sT1}, 13
    buffer_load_dword v250, v21, {sr(R_WKV,4)}, s{sT1} offen
    """)
    pf1_addr(a)
    frag_addr()
    a(f"s_mov_b32 s{sT2}, s{sW}\ns_barrier\ns_waitcnt vmcnt(1)")
    stamp(a, 2)
    lds_arrive(a, C_X1, nowait=True)
    def early():
        ne = a.label("noearly"); nw = a.label("nowait")
        a(f"s_cmp_lt_u32 s{sCB}, 6\ns_cbranch_scc1 {nw if OPT.pdefer else ne}\ns_cmp_eq_u32 s{sJ}, 6\ns_cbranch_scc1 {nw if OPT.pdefer else ne}")
        for i in range(OPT.npf0):
            if i == OPT.npfa: lds_wait(a, C_FL, 4)
            a(f"buffer_load_dword v{251+i%3}, v{vPF1}, {sr(R_W1,4)}, s{sPFW} offen\ns_add_u32 s{sPFW}, s{sPFW}, {63*3584}")
        a(f"{nw}:")
        lds_wait(a, C_FL, 4)
        a(f"{ne}:")
        x_half(1)
    rest_dma(a, early)
    lds_arrive(a, C_ISS, nowait=True)
    get_tag(a)
    stamp(a, 3)
    a(f"{dostats}:")
    stats_code(a, 20, 21, sT2)
    a(f"s_cmp_lt_u32 s{sCB}, 4\ns_cbranch_scc1 {qgo}\ns_waitcnt vmcnt(0)")
    lds_arrive(a, C_X, nowait=True)
    QACC, B0 = 128, 32
    a(f"""
    {qgo}:
    s_and_b32 s{sT0}, s{sW}, 1
    s_mul_i32 s{sT0}, s{sT0}, 56
    v_add_u32 v{vWQr}, s{sT0}, v9
    v_lshlrev_b32 v21, 5, v8
    v_and_b32 v21, 64, v21
    v_xor_b32 v{vWQr}, v{vWQr}, v21
    v_lshl_add_u32 v{vWQr}, v20, 7, v{vWQr}
    v_add_u32 v{vWQr}, {L_WQ}, v{vWQr}
    s_lshr_b32 s{sT1}, s{sW}, 1
    s_lshl_b32 s{sT0}, s{sT1}, 12
    v_mov_b32 v23, 0
    v_mov_b32 v113, 0
    v_mov_b32 v114, 0
    v_mov_b32 v115, 0
    v_mov_b32 v118, 0
    v_mov_b32 v119, 0
    """)
    for q in range(4): a(f"v_add_u32 v{vXF+q}, s{sT0}, v{vXF+q}")
    a(f"""
    s_lshl_b32 s{sT1}, s{sT1}, 8
    s_add_u32 s{sT1}, s{sT1}, {L_ST}
    v_lshl_add_u32 v24, v{vJ}, 3, s{sT1}
    """)
    lds_wait(a, C_X1, 4)
    lds_wait(a, C_X, 4)
    stamp(a, 7)
    D = 4; NB = 8
    WR = list(range(64, 112, 4)) + list(range(144, 176, 4)) + list(range(224, 248, 4)) + [120, 124]
    def wreg(ks): return WR[ks]
    def reads(ks):
        b = wreg(ks)
        a(f"ds_read_b64_tr_b16 {vr(b,2)}, v{vWQr} offset:{ks*2048}")
        a(f"ds_read_b64_tr_b16 {vr(b+2,2)}, v{vWQr} offset:{ks*2048+512}")
        a(f"ds_read_b128 {vr(B0+4*(ks%NB),4)}, v{vXF+(ks&3)} offset:{L_XT + (ks>>2)*8192}")
    for ks in range(D): reads(ks)
    for ks in range(28):
        if ks + D < 28: reads(ks + D)
        a(f"s_waitcnt lgkmcnt({3*min(D, 27-ks)})")
        a(f"{MF} {vr(QACC,16)}, {vr(wreg(ks),4)}, {vr(B0+4*(ks%NB),4)}, {'0' if ks == 0 else vr(QACC,16)}")
        if ks == OPT.kvflag:
            nf = a.label("nofl")
            a(f"s_cmp_eq_u32 s{sT4}, 0\ns_cbranch_scc1 {nf}")
            set_flag(a, sT4)
            if OPT.fl_late: lds_arrive(a, C_FL, nowait=True)
            a("s_setprio 0")
            stamp(a, 6)
            a(f"{nf}:")
    stamp(a, 19)
    if OPT.prio_ld: a(f"s_setprio {OPT.prio_ld}")
    att_setup(a)
    if OPT.early: a(f"buffer_load_dwordx2 v[30:31], v25, {sr(R_WS,4)}, s{sKF} offen sc1")
    for ks in range(28):
        for i in range(4): a(f"v_dot2c_f32_bf16 v23, s{sONES}, v{wreg(ks)+i}")
    if OPT.early:
        nk = a.label("nokvyet")
        a(f"""
        s_waitcnt vmcnt(0)
        v_cmp_ne_u64 vcc, {sr(sTAG,2)}, v[30:31]
        s_cbranch_vccnz {nk}
        """)
        first_kv(a)
        a(f"s_mov_b32 s{sKF}, 0\n{nk}:")
    stamp(a, 8)
    lds_wait(a, C_ST, 8)
    a(f"ds_read_b64 v[116:117], v24")
    split_hi_lo(a, 112, 23, 21)
    a(f"""
    s_waitcnt lgkmcnt(0)
    v_mov_b32 v22, v117
    v_mov_b32 v23, v117
    v_mov_b32 v117, 0
    s_nop 1
    {MF} {vr(QACC,16)}, {vr(112,4)}, {vr(116,4)}, {vr(QACC,16)}
    s_lshl_b32 s{sT1}, s{sW}, 11
    s_add_u32 s{sT1}, s{sT1}, {L_QS}
    v_add_u32 v21, s{sT1}, v{vL16}
    """)
    for r in range(64, 76): a(f"v_mov_b32 v{r}, 0")
    for r in range(0, 16, 2): a(f"v_pk_mul_f32 {vr(QACC+r,2)}, {vr(QACC+r,2)}, v[22:23]")
    for i in range(8): a(f"v_cvt_pk_bf16_f32 v{32+i}, v{QACC+2*i}, v{QACC+2*i+1}")
    a(f"""
    s_mov_b64 exec, {sr(sHI,2)}
    v_mov_b32 v38, 0
    v_mov_b32 v39, 0
    s_mov_b64 exec, -1
    ds_write_b128 v21, {vr(32,4)}
    ds_write_b128 v21, {vr(36,4)} offset:1024
    """)
    lds_arrive(a, C_Q, nowait=True)

vDW1, vDW2, vDWO, vOUT, vT1, vT2, vT3, vLN, vLM, vPF, vPF2 = 48, 49, 50, 51, 52, 54, 56, 58, 60, 62, 63
vTH, vSW = 240, 247
sHasG1 = 98
sLb0, sLbE, sDb0, sDbE = 34, 35, 36, 37
sFH, sPH, sB1o, sFU, sUS, sFUc, sPU, sFOc, sSH1 = 16, 17, 28, 29, 30, 31, 32, 33, 81
def g_setup1(a, mid=None):
    srd(a, R_B1, P_B1, 1792 * 2)
    a(f"""
    s_lshr_b32 s{sGM}, s{sG}, 1
    s_and_b32 s{sGN}, s{sG}, 1
    s_lshl_b32 s{sRing}, s{sG}, 11
    s_add_u32 s{sRing}, s{sRing}, {L_RING}
    v_lshlrev_b32 v{vDWO}, 2, v10
    v_xor_b32 v{vDWO}, v{vDWO}, v6
    v_lshlrev_b32 v{vDWO}, 4, v{vDWO}
    v_lshl_add_u32 v{vT3}, v8, 7, v9
    v_lshlrev_b32 v24, 5, v8
    v_and_b32 v24, 64, v24
    v_add_u32 v{vT3}, v{vT3}, v24
    v_add_u32 v{vT3}, s{sRing}, v{vT3}
    s_lshr_b32 s{sT0}, s{sJ}, 3
    s_mul_i32 s{sT0}, s{sT0}, 6
    s_add_u32 s{sT0}, s{sT0}, s{sCB}
    s_cmp_lt_u32 s{sCB}, 6
    s_cselect_b32 s{sHasG1}, 1, 0
    s_and_b32 s{sT1}, s2, 0xf9
    s_cmp_eq_u32 s{sT1}, 48
    s_cselect_b32 s{sT0}, 24, s{sT0}
    s_cselect_b32 s{sHasG1}, 1, s{sHasG1}
    s_and_b32 s{sT1}, s{sXCD}, 1
    s_mul_i32 s{sT1}, s{sT1}, 25
    s_add_u32 s{sT0}, s{sT0}, s{sT1}
    s_mul_i32 s{sA}, s{sT0}, 37
    s_lshr_b32 s{sA}, s{sA}, 8
    s_mul_i32 s{sT1}, s{sA}, 7
    s_sub_u32 s{sPH}, s{sT0}, s{sT1}
    s_lshr_b32 s{sFB}, s{sXCD}, 1
    s_mul_i32 s{sFB}, s{sFB}, 7
    s_add_u32 s{sFB}, s{sFB}, s{sPH}
    """)
    if mid: mid()
    a(f"""
    v_mul_u32_u24 v{vDW1}, 3584, v5
    v_add_u32 v{vDW1}, v{vDW1}, v{vDWO}
    v_lshl_add_u32 v{vDW2}, v5, 12, v{vDWO}
    v_mul_u32_u24 v24, 896, v5
    v_add_u32 v{vDWO}, v24, v{vDWO}
    s_mul_i32 s{sD}, s{sG}, {512*3584}
    s_lshl_b32 s{sT0}, s{sFB}, 7
    s_add_u32 s{sD}, s{sD}, s{sT0}
    s_lshl_b32 s{sT1}, s{sGM}, 6
    s_add_u32 s{sB1o}, s{sT0}, s{sT1}
    v_lshl_add_u32 v24, v{vHH}, 10, v{vT3}
    v_xor_b32 v{vT1}, s{sT1}, v24
    v_xor_b32 v{vT1+1}, 64, v{vT1}
    v_add_u32 v{vTH}, 0x10000, v{vT1}
    v_add_u32 v{vTH+1}, 0x10000, v{vT1+1}
    s_lshl_b32 s{sT0}, s{sGN}, 10
    v_add_u32 v{vLN}, s{sT0}, v{vL16}
    v_xor_b32 v{vLN+1}, 0x400, v{vLN}
    s_lshl_b32 s{sL}, s{sA}, 18
    s_lshl_b32 s{sT0}, s{sG}, 16
    s_add_u32 s{sL}, s{sL}, s{sT0}
    s_add_u32 s{sSH1}, s{sPH}, 1
    s_lshl_b32 s{sPH}, s{sSH1}, 13
    s_add_u32 s{sPH}, s{sPH}, s{sL}
    v_lshlrev_b32 v{vPF}, 7, v{vLANE}
    v_add_u32 v{vSW}, s{sRing}, v{vL16}
    v_add_u32 v{vSW+1}, 0x10000, v{vSW}
    s_lshr_b32 s{sFH}, s{sA}, 1
    s_lshl_b32 s{sFH}, s{sFH}, 10
    s_lshl_b32 s{sT0}, s{sG}, 8
    s_add_u32 s{sFH}, s{sFH}, s{sT0}
    s_lshl_b32 s{sFH}, s{sFH}, {FS}
    s_add_u32 s{sFH}, s{sFH}, {FL_H}
    v_bfe_u32 v32, v{vJ}, 1, 3
    v_lshlrev_b32 v32, 4, v32
    v_xor_b32 v32, s{sT1}, v32
    v_lshl_add_u32 v32, v{vJ}, 7, v32
    v_lshl_add_u32 v32, v{vHH}, 3, v32
    s_lshl_b32 s{sT0}, s{sCB}, 13
    s_lshl_b32 s{sT1}, s{sGN}, 12
    s_add_u32 s{sT0}, s{sT0}, s{sT1}
    v_add_u32 v32, s{sT0}, v32
    v_xor_b32 v33, 16, v32
    v_xor_b32 v34, 32, v32
    v_xor_b32 v35, 48, v32
    """)
    assert WS_HT == 0
def g_xread(a):
    lds_wait(a, C_X1, 4)
    lds_wait(a, C_XA, 4)
    for g, v in enumerate((32, 33, 34, 35)): a(f"ds_read_b64 {vr(80+2*g,2)}, v{v} offset:{L_XT}")
    lds_arrive(a, C_ST, nowait=True)

def g_setup2(a):
    srd(a, R_W2, P_W2, 1792 * 4096)
    srd(a, R_WO, P_WO, 448 * 896)
    srd(a, R_OUT, P_OUT, 2048 * 896)
    srd(a, R_B2, P_B2, 2048 * 2)
    a(f"""
    s_mul_i32 s{sDb}, s{sG}, {448*4096}
    s_lshl_b32 s{sT0}, s{sRB}, 7
    s_add_u32 s{sDb}, s{sDb}, s{sT0}
    s_mul_i32 s{sD2}, s{sG}, {112*896}
    s_lshl_b32 s{sT0}, s{sCB}, 7
    s_add_u32 s{sD2}, s{sD2}, s{sT0}
    s_lshl_b32 s{sT0}, s{sGM}, 6
    s_lshl_b32 s{sT1}, s{sGN}, 6
    v_lshl_add_u32 v24, v{vHH}, 9, v{vT3}
    v_xor_b32 v{vT2}, s{sT1}, v24
    v_xor_b32 v{vT2+1}, 64, v{vT2}
    v_xor_b32 v{vT3}, s{sT0}, v24
    v_xor_b32 v{vT3+1}, 64, v{vT3}
    s_lshl_b32 s{sT0}, s{sGM}, 10
    v_add_u32 v{vLM}, s{sT0}, v{vL16}
    v_xor_b32 v{vLM+1}, 0x400, v{vLM}
    s_mul_i32 s{sLb}, s{sCB}, 112
    s_mul_i32 s{sT0}, s{sG}, 28
    s_add_u32 s{sLb}, s{sLb}, s{sT0}
    s_lshl_b32 s{sLb}, s{sLb}, 11
    s_add_u32 s{sLb}, s{sLb}, {WS_U}
    s_lshr_b32 s{sT0}, s{sJ}, 3
    s_add_u32 s{sT0}, s{sT0}, 3
    s_lshl_b32 s{sT0}, s{sT0}, 13
    s_add_u32 s{sPU}, s{sT0}, s{sLb}
    s_lshl_b32 s{sL2}, s{sRB}, 16
    s_lshl_b32 s{sT0}, s{sG}, 14
    s_add_u32 s{sL2}, s{sL2}, s{sT0}
    s_add_u32 s{sL2}, s{sL2}, {WS_O}
    v_mul_u32_u24 v{vOUT}, 896, v{vJ}
    v_lshl_add_u32 v{vOUT}, v{vHH}, 4, v{vOUT}
    s_lshl_b32 s{sT0}, s{sRB}, 1
    s_add_u32 s{sT0}, s{sT0}, s{sGN}
    s_lshl_b32 s{sB2}, s{sT0}, 6
    s_mul_i32 s{sT0}, s{sT0}, {32*896}
    s_lshl_b32 s{sT1}, s{sCB}, 7
    s_add_u32 s{sT0}, s{sT0}, s{sT1}
    s_lshl_b32 s{sT1}, s{sGM}, 6
    s_add_u32 s{sOUT}, s{sT0}, s{sT1}
    v_lshrrev_b32 v{vPF2}, 2, v{vLANE}
    v_and_b32 v24, 3, v{vLANE}
    v_lshlrev_b32 v{vPF2}, 12, v{vPF2}
    v_lshl_add_u32 v{vPF2}, v24, 7, v{vPF2}
    s_mul_i32 s{sT0}, s{sA}, 112
    s_lshl_b32 s{sT1}, s{sFB}, 2
    s_add_u32 s{sT0}, s{sT0}, s{sT1}
    s_lshl_b32 s{sT2}, s{sGM}, 1
    s_add_u32 s{sT0}, s{sT0}, s{sT2}
    s_lshl_b32 s{sT0}, s{sT0}, 11
    s_add_u32 s{sUS}, s{sT0}, {WS_U}
    s_lshl_b32 s{sT0}, s{sA}, 7
    s_add_u32 s{sT0}, s{sT0}, s{sT1}
    s_add_u32 s{sT0}, s{sT0}, s{sG}
    s_lshl_b32 s{sT0}, s{sT0}, 3
    s_lshl_b32 s{sT0}, s{sT0}, {FS}
    s_add_u32 s{sFU}, s{sT0}, {FL_U}
    s_lshl_b32 s{sT0}, s{sCB}, 10
    s_mul_i32 s{sT1}, s{sG}, 224
    s_add_u32 s{sT0}, s{sT0}, s{sT1}
    s_lshl_b32 s{sT0}, s{sT0}, {FS}
    s_add_u32 s{sFUc}, s{sT0}, {FL_U}
    s_lshl_b32 s{sT0}, s{sRB}, 8
    s_lshl_b32 s{sT1}, s{sG}, 6
    s_add_u32 s{sT0}, s{sT0}, s{sT1}
    s_lshl_b32 s{sT0}, s{sT0}, {FS}
    s_add_u32 s{sFOc}, s{sT0}, {FL_O}
    """)
    for i in range(2, 6): a(f"v_add_u32 v{vTH+i}, 0x10000, v{vT1+i}")
    if OPT.ra or OPT.rb:
        a(f"""
        s_lshr_b32 s{sT0}, s{sJ}, 3
        s_mul_i32 s{sT0}, s{sT0}, {OPT.ra}
        s_mul_i32 s{sT1}, s{sXCD}, {OPT.rb}
        s_add_u32 s{sT0}, s{sT0}, s{sT1}
        s_mul_i32 s{sT1}, s{sT0}, 2341
        s_lshr_b32 s{sT1}, s{sT1}, 16
        s_mul_i32 s{sT1}, s{sT1}, 28
        s_sub_u32 s{sT0}, s{sT0}, s{sT1}
        s_mov_b32 s{sLb0}, s{sLb}
        s_add_u32 s{sLbE}, s{sLb}, {28*2048}
        s_mov_b32 s{sDb0}, s{sDb}
        s_add_u32 s{sDbE}, s{sDb}, {28*16*4096}
        s_lshl_b32 s{sT1}, s{sT0}, 11
        s_add_u32 s{sLb}, s{sLb}, s{sT1}
        s_lshl_b32 s{sT1}, s{sT0}, 16
        s_add_u32 s{sDb}, s{sDb}, s{sT1}
        """)
        assert all((x * 2341) >> 16 == x // 28 for x in range(200))
    if OPT.nou: a(f"v_mov_b32 v{vLM}, {OOB}\nv_mov_b32 v{vLM+1}, {OOB}")
    if OPT.now2: a(f"v_mov_b32 v{vDW2}, {OOB}")

L_HB2 = L_WKV
def p1_g(a):
    X, U = 128, 160
    htype = a.label("gh"); pfw = a.label("gpfw")
    a(f"s_sub_u32 s{sG}, s{sW}, 4")
    common_srds(a)
    pf1_addr(a)
    a(f"s_cmp_ge_u32 s{sCB}, 4\ns_cbranch_scc1 {htype}")
    a("s_barrier")
    rest_dma(a)
    stamp(a, 2)
    get_tag(a)
    g_setup1(a, lambda: (a("s_waitcnt vmcnt(0)"), lds_arrive(a, C_X, nowait=True), stamp(a, 3)))
    lds_wait(a, C_FL, 1)
    a(f"s_branch {pfw}")
    a(f"""
    {htype}:
    s_sub_u32 s{sT1}, s{sCB}, 4
    s_lshl_b32 s{sT0}, s{sRB}, 2
    s_add_u32 s{sT0}, s{sT0}, s{sT1}
    s_lshl_b32 s{sT1}, s{sT1}, 4
    s_lshl_b32 s{sT2}, s{sG}, 2
    s_add_u32 s{sT1}, s{sT1}, s{sT2}
    v_add_u32 v11, s{sT1}, v7
    v_and_b32 v13, 1, v5
    v_lshlrev_b32 v12, 13, v13
    v_lshl_add_u32 v12, v11, 7, v12
    v_lshl_add_u32 v12, v6, 4, v12
    v_bfe_u32 v11, v11, 1, 3
    v_xor_b32 v11, v11, v6
    v_mul_u32_u24 v14, {HB_STRIDE}, v7
    v_lshl_add_u32 v14, v11, 4, v14
    v_lshl_add_u32 v14, v13, 7, v14
    s_mul_i32 s{sT2}, s{sG}, {4*HB_STRIDE}
    s_add_u32 s{sT2}, s{sT2}, {L_HB2}
    v_add_u32 v14, s{sT2}, v14
    v_lshl_add_u32 v15, v{vHH}, 3, v8
    v_mul_u32_u24 v15, {HB_STRIDE}, v15
    v_add_u32 v15, v15, v9
    s_lshl_b32 s{sT2}, s{sG}, 8
    s_add_u32 s{sT2}, s{sT2}, {L_HB2}
    v_add_u32 v15, s{sT2}, v15
    s_lshl_b32 s{sT2}, s{sG}, 19
    s_lshl_b32 s{sT3}, s{sT0}, 11
    s_add_u32 s{sT2}, s{sT2}, s{sT3}
    s_add_u32 s{sT3}, s{sT2}, {128*2048}
    s_lshl_b32 s{sT4}, s{sG}, 7
    s_add_u32 s{sT4}, s{sT4}, s{sT0}
    s_lshl_b32 s{sT4}, s{sT4}, {3+FS}
    s_add_u32 s{sT4}, s{sT4}, {FL_H}
    v_mov_b32 v17, 0xffff0000
    s_mov_b32 vcc_lo, 0x00ff00ff
    s_mov_b32 vcc_hi, 0x00ff00ff
    """)
    for p in range(1):
        for i in range(4): a(f"v_mov_b32 v{X+16*p+12+i}, 0")
    S = [32, 40]
    for p in range(1): a(f"v_mov_b32 v{S[p]}, 0\nv_mov_b32 v{S[p]+1}, 0")
    a("s_barrier\ns_setprio 3")
    lds_wait(a, C_X1, 4)
    stamp(a, 2)
    for p in range(1):
        for i in range(3): a(f"ds_read_b128 {vr(X+16*p+4*i,4)}, v12 offset:{L_XT + 16384*i + 2048*p}")
        a(f"s_mov_b64 exec, vcc\nds_read_b128 {vr(X+16*p+12,4)}, v12 offset:{L_XT + 16384*3 + 2048*p}\ns_mov_b64 exec, -1")
    for p in range(1):
        for i in range(16):
            if i % 4 == 0: a(f"s_waitcnt lgkmcnt({3-i//4})")
            a(f"v_dot2c_f32_bf16 v{S[p]}, s{sONES}, v{X+16*p+i}")
            a(f"v_dot2c_f32_bf16 v{S[p]+1}, v{X+16*p+i}, v{X+16*p+i}")
    un = []
    for i in range(16): un += [f"v_lshlrev_b32 v{U+2*i}, 16, v{X+i}", f"v_and_b32 v{U+2*i+1}, v17, v{X+i}"]
    for x in un[:3]: a(x)
    un = un[3:]
    def both(txt):
        for line in txt.strip().split("\n"):
            p = 0; t_ = line.strip().format(s=S[p], q=S[p]+1, t=S[p]+2, r=S[p]+4, r2=S[p]+5, m=S[p]+6)
            a(t_)
            if t_.startswith(("v_sqrt", "v_rcp")) or (t_.startswith("v_add_f32_dpp") and f"v{S[0]+1}," in t_): a(un.pop(0))
    for mode in (QP1, QP2, RHM, RM):
        both("v_add_f32_dpp v{s}, v{s}, v{s} %s row_mask:0xf bank_mask:0xf\nv_add_f32_dpp v{q}, v{q}, v{q} %s row_mask:0xf bank_mask:0xf" % (mode, mode))
    rstd = """
    v_and_b32 v{t}, v17, v{t}
    v_add_f32 v{t}, %#x, v{t}
    v_cvt_pk_bf16_f32 v{t}, v{t}, v{t}
    v_and_b32 v{t}, v17, v{t}
    v_sqrt_f32 v{t}, v{t}
    v_cvt_pk_bf16_f32 v{t}, v{t}, v{t}
    v_and_b32 v{t}, v17, v{t}
    v_rcp_f32 v{%s}, v{t}
    """
    both("""
    v_mul_f32 v{s}, %s, v{s}
    v_mul_f32 v{q}, %s, v{q}
    v_fma_f32 v{q}, -v{s}, v{s}, v{q}
    v_max_f32 v{q}, 0, v{q}
    v_cvt_pk_bf16_f32 v{t}, v{s}, v{q}
    v_lshlrev_b32 v{m}, 16, v{t}
    """ % (f32(1/448), f32(1/448)))
    both(rstd % (EPS, "r"))
    both("""
    v_sub_f32 v{s}, v{s}, v{m}
    v_mul_f32 v{s}, v{s}, v{r}
    v_mul_f32 v{q}, v{q}, v{r}
    v_mul_f32 v{q}, v{q}, v{r}
    v_cvt_pk_bf16_f32 v{t}, v{s}, v{q}
    v_lshlrev_b32 v{s}, 16, v{t}
    v_fma_f32 v{m}, v{m}, v{r}, v{s}
    """)
    both(rstd % (EPS, "r2"))
    for x in un: a(x)
    both("v_mul_f32 v{m}, v{m}, v{r2}\nv_mul_f32 v{r}, v{r}, v{r2}")
    for p in range(1):
        for i in range(16):
            if i == 12: a("s_mov_b64 exec, vcc")
            u = U + 32 * p + 2 * i
            a(f"""
            v_pk_fma_f32 {vr(u,2)}, {vr(u,2)}, {vr(S[p]+4,2)}, {vr(S[p]+6,2)} op_sel_hi:[1,0,0] neg_lo:[0,0,1] neg_hi:[0,0,1]
            v_cvt_pk_bf16_f32 v{X+16*p+i}, v{u}, v{u+1}
            """)
            if i % 4 == 3: a(f"ds_write_b128 v14, {vr(X+16*p+i-3,4)} offset:{256*(i//4) + 16*HB_STRIDE*p}")
        a("s_mov_b64 exec, -1")
    stamp(a, 3)
    lds_arrive(a, C_H, nowait=True)
    lds_wait(a, C_H, 4)
    n = 0
    for p in range(1):
        for f in range(4):
            for x in range(2):
                if n == 15: a("s_waitcnt lgkmcnt(14)")
                a(f"ds_read_b64_tr_b16 {vr(U+16*p+4*f+2*x,2)}, v15 offset:{x*4*HB_STRIDE + f*64 + 16*HB_STRIDE*p}"); n += 1
    for p in range(1):
        for f in range(4):
            a(f"s_waitcnt lgkmcnt({6-2*f})")
            a(f"buffer_store_dwordx4 {vr(U+16*p+4*f,4)}, v{vL16}, {sr(R_WS,4)}, s{sT2 + (f>>1)} offen offset:{1024*(f&1) + 2048*p} sc1")
    lds_arrive(a, C_FL, nowait=True)
    stamp(a, 4)
    g_setup1(a)
    get_tag(a)
    set_flag(a, sT4)
    a("s_setprio 0")
    stamp(a, 5)
    lds_wait(a, C_FL, 4)
    lds_wait(a, C_ISS, 4)
    a(f"{pfw}:")

sK, sKF, sKP = 94, 95, 96
AQ, AO, AS, AP, AKV = 32, 64, 128, 160, 176
def att_setup(a):
    a(f"""
    s_add_u32 s{R_KV}, s{P_WS}, {WS_KV}
    s_addc_u32 s{R_KV+1}, s{P_WS+1}, 0
    s_add_u32 s{sT0}, s{sW}, 1
    s_lshl_b32 s{R_KV+2}, s{sT0}, 16
    s_mov_b32 s{R_KV+3}, 0x20000
    v_lshlrev_b32 v5, 7, v{vLANE}
    v_lshlrev_b32 v25, {3+FS}, v{vJ}
    s_lshr_b32 s{sKP}, s{sJ}, 1
    s_and_b32 s{sKP}, s{sKP}, 4
    s_add_u32 s{sKP}, s{sKP}, s{sCB}
    s_lshl_b32 s{sKP}, s{sKP}, 13
    s_lshl_b32 s{sT0}, s{sW}, 16
    s_add_u32 s{sKP}, s{sKP}, s{sT0}
    s_and_b32 s{sT0}, s{sJ}, 0x14
    s_cmp_lg_u32 s{sT0}, 0
    s_cselect_b32 s{sKP}, {OOB}, s{sKP}
    s_lshl_b32 s{sKF}, s{sW}, 8
    s_lshl_b32 s{sKF}, s{sKF}, {FS}
    s_add_u32 s{sKF}, s{sKF}, {FL_KV}
    """)
def kvload(a, buf):
    for j in range(4):
        a(f"buffer_load_dwordx4 {vr(AKV+16*buf+4*j,4)}, v{vL16}, {sr(R_KV,4)}, s{sK} offen offset:{1024*j} sc1")
    a(f"s_add_u32 s{sK}, s{sK}, 4096")
def first_kv(a):
    a(f"s_lshl_b32 s{sK}, s{sW}, 16")
    kvload(a, 0)
    a(f"buffer_load_dword v253, v5, {sr(R_KV,4)}, s{sKP} offen sc1")
    kvload(a, 1); kvload(a, 2)

def attention(a, done):
    Q, O, S, P, KV = AQ, AO, AS, AP, AKV
    NM = 20
    sIt, sRetry, sOS, sOF = sT1, sT3, 84, 85
    vMW, vRW, vMR, vRR = 8, 12, 15, 16
    go = a.label("att_go"); mloop = a.label("att_mloop"); loop = a.label("att_loop"); ok = a.label("att_ok"); havekv = a.label("att_havekv")
    a(f"s_mov_b32 s{sRetry}, {1 if OPT.anold else 0}")
    lds_wait(a, C_PRE, 4)
    stamp(a, 9)
    a(f"buffer_load_dwordx2 v[30:31], v25, {sr(R_WS,4)}, s{sKF} offen sc1")
    for i in range(1, 4):
        a(f"""
        s_add_u32 s{sT0}, s{sW}, {i}
        s_and_b32 s{sT0}, s{sT0}, 3
        s_lshl_b32 s{sT0}, s{sT0}, 11
        s_add_u32 s{sT0}, s{sT0}, {L_QS}
        v_add_u32 v{16+i}, s{sT0}, v{vL16}
        """)
    for i in range(4):
        a(f"""
        s_add_u32 s{sT0}, s{sW}, {i+1}
        s_and_b32 s{sT0}, s{sT0}, 3
        s_lshl_b32 s{sT2}, s{sT0}, 9
        s_add_u32 s{sT2}, s{sT2}, {L_MX + 128*i}
        v_lshl_add_u32 v{vMW+i}, v{vJ}, 2, s{sT2}
        s_mul_i32 s{sT2}, s{sT0}, 12288
        s_add_u32 s{sT2}, s{sT2}, {L_RED + 4096*(i%3)}
        v_add_u32 v{vRW+i if i < 3 else vRR}, s{sT2}, v{vL16}
        """)
    a(f"""
    v_subrev_u32 v{vMR}, 384, v{vMW+3}
    s_add_u32 s{sT0}, s{sW}, 3
    s_and_b32 s{sT2}, s{sT0}, 1
    s_lshl_b32 s{sOS}, s{sCB}, 1
    s_add_u32 s{sOS}, s{sOS}, s{sT2}
    s_lshl_b32 s{sOS}, s{sOS}, 12
    s_lshl_b32 s{sT2}, s{sRB}, 16
    s_add_u32 s{sOS}, s{sOS}, s{sT2}
    s_and_b32 s{sT2}, s{sT0}, 2
    s_lshl_b32 s{sT2}, s{sT2}, 9
    s_add_u32 s{sOS}, s{sOS}, s{sT2}
    s_add_u32 s{sOS}, s{sOS}, {WS_O}
    s_lshl_b32 s{sOF}, s{sRB}, 3
    s_add_u32 s{sOF}, s{sOF}, s{sCB}
    s_lshl_b32 s{sOF}, s{sOF}, 2
    s_add_u32 s{sOF}, s{sOF}, s{sW}
    s_lshl_b32 s{sOF}, s{sOF}, {3+FS}
    s_add_u32 s{sOF}, s{sOF}, {FL_O}
    s_mov_b32 s{sT4}, 0x71800000
    """)
    for r in range(12, 12 + OPT.zpre): a(f"v_mov_b32 v{O+r}, 0")
    a(f"s_waitcnt vmcnt(0)\nv_cmp_ne_u64 vcc, {sr(sTAG,2)}, v[30:31]\ns_cbranch_vccz {havekv}")
    poll(a, sKF, 32)
    a(f"{havekv}:")
    stamp(a, 10)
    first_kv(a)
    lds_wait(a, C_Q, 4)
    for i in range(1, 4):
        a(f"ds_read_b128 {vr(Q+8*i,4)}, v{16+i}\nds_read_b128 {vr(Q+8*i+4,4)}, v{16+i} offset:1024")
    for r in range(12 + OPT.zpre, 64): a(f"v_mov_b32 v{O+r}, 0")
    TMP = [S, S + 16, KV + 48, P]
    def scan_mf(kreg):
        for i in range(4):
            a(f"{MF} {vr(TMP[i],16)}, {vr(kreg,4)}, {vr(Q+8*i,4)}, 0")
            a(f"{MF} {vr(TMP[i],16)}, {vr(kreg+4,4)}, {vr(Q+8*i+4,4)}, {vr(TMP[i],16)}")
    if OPT.engp >= 0: lds_arrive(a, C_AS, nowait=True)
    a("s_waitcnt vmcnt(11) lgkmcnt(0)")
    stamp(a, 11)
    scan_mf(KV)
    a(f"s_nop 4\ns_mov_b64 exec, {sr(sHI,2)}")
    for i in range(4):
        t = TMP[i]
        a(f"v_max3_f32 v{NM+i}, v{t}, v{t+1}, v{t+2}")
        for j in range(3, 15, 2): a(f"v_max3_f32 v{NM+i}, v{t+j}, v{t+j+1}, v{NM+i}")
        a(f"""
        v_max_f32 v{NM+i}, v{t+15}, v{NM+i}
        v_cvt_pk_bf16_f32 v{Q+8*i+6}, -v{NM+i}, 0
        v_lshlrev_b32 v{NM+i}, 16, v{Q+8*i+6}
        """)
    a(f"{go}:")
    for i in range(4): a(f"ds_write_b32 v{vMW+i}, v{NM+i}")
    a("s_mov_b64 exec, -1")
    a(f"{MF} {vr(S,16)}, {vr(KV,4)}, {vr(Q,4)}, 0")
    a(f"{MF} {vr(S,16)}, {vr(KV+4,4)}, {vr(Q+4,4)}, {vr(S,16)}")
    a(f"s_add_u32 s{sT0}, s{sK}, 4096\nv_add_u32 v7, s{sT0}, v{vL16}")
    for r in range(8): a(f"v_mov_b32 v{KV+48+8+r}, 0")
    for r in range(8): a(f"v_mov_b32 v{P+8+r}, 0")
    a(f"v_mov_b32 v{S+30}, 0\nv_mov_b32 v{S+31}, 0")
    def smf(q, b, kb):
        d = vr(S + 16 * b, 16)
        return [f"{MF} {d}, {vr(KV+16*kb,4)}, {vr(Q+8*q,4)}, 0", f"{MF} {d}, {vr(KV+16*kb+4,4)}, {vr(Q+8*q+4,4)}, {d}"]
    def pv(q, b, kb):
        d = vr(O + 16 * q, 16)
        return [f"{MF} {d}, {vr(KV+16*kb+8,4)}, {vr(P+8*b,4)}, {d}", f"{MF} {d}, {vr(KV+16*kb+12,4)}, {vr(P+8*b+4,4)}, {d}"]
    def pk(b, i): return f"v_cvt_pk_bf16_f32 v{P+8*b+i}, v{S+16*b+2*i}, v{S+16*b+2*i+1}"
    def owrite(i): return ['s_nop 0'] * 4 if OPT.nocomb else [f"ds_write_b128 v{vRW+i}, {vr(O+16*i+4*g,4)} offset:{1024*g}" for g in range(4)]
    a(f"s_mov_b32 s{sIt}, {OPT.attit-1}\ns_waitcnt vmcnt(8)")
    if OPT.anold:
        a("s_waitcnt vmcnt(0)")
        for r in range(16): a(f"v_mov_b32 v{KV+48+r}, v{KV+r}")
    if OPT.ka: lds_wait(a, C_GO, 4, sleep=2)
    if OPT.adel: a(f's_sleep {OPT.adel}')
    stamp(a, 12)
    if OPT.prio_ld: a(f"s_setprio {OPT.prio_a}")
    def body(lastit):
        for n in range(16):
            T, q, b = n // 4, n % 4, n % 2
            if lastit and n == 14: lds_wait(a, C_R1D, 4)
            va = []
            for i in range(8):
                r = S + 16 * b + 2 * i
                va += [f"v_exp_f32 v{r}, v{r}", f"v_exp_f32 v{r+1}, v{r+1}", pk(b, i - 1) if i else pk(1 - b, 7)]
            s = smf((q + 1) % 4, 1 - b, ((n + 1) // 4) % 4)
            p = pv((q - 1) % 4, 1 - b, ((n - 1) // 4) % 4)
            pos = [[3, 9, 15, 21], [3, 7, 15, 19], [3, 7, 12, 19], [3, 8, 15, 20], [3, 7, 16, 21], [2, 6, 15, 19]][OPT.order if lastit or not (OPT.mix >> n) & 1 else OPT.order2]
            ins = {pos[0]: [s[0]], pos[1]: [s[1]], pos[2]: [p[0]], pos[3]: [p[1]]}
            if lastit and n == 15: ins = {pos[0]: [p[0]], pos[1]: [p[1]]}
            if q == 3 and not (lastit and T == 3):
                ins[1] = [f"s_waitcnt vmcnt({7 if not lastit or T == 0 else 4 if T == 1 else 0})"]
            if not lastit or T == 0:
                buf = (T - 1) % 4
                ins[OPT.ldpos] = [f"buffer_load_dwordx4 {vr(KV+16*buf+4*q,4)}, v{vL16}, {sr(R_KV,4)}, s{sK} offen offset:{1024*q} sc1"]
                if OPT.gld: ins[OPT.ldpos] = [f"global_load_dwordx4 {vr(KV+16*buf+4*q,4)}, v7, {sr(R_KV,2)} offset:{1024*q - (4096 if T % 2 == 0 else 0)} sc1"]
                if OPT.prio_ld:
                    ins[10] = [f"s_setprio {OPT.prio_ld}"]
                    ins[13] = [f"s_setprio {OPT.prio_a}"]
                if OPT.gld:
                    if q == 3 and T % 2: ins[14] = ["v_add_u32 v7, 0x2000, v7"]
                elif q == 3 and not OPT.hot & 16: ins[21 if OPT.ldpos > 13 else 14] = [f"s_add_u32 s{sK}, s{sK}, 4096"]
            if n == 15 and not lastit:
                ins[17] = [f"s_sub_u32 s{sIt}, s{sIt}, 1"]
                ins[22] = [f"s_cmp_lg_u32 s{sIt}, 0"]
            if lastit and n == 14:
                for g, x in enumerate(owrite(0)): ins.setdefault([10, 13, 17, 22][g], []).append(x)
            if lastit and n == 15:
                for g, x in enumerate(owrite(1)): ins.setdefault([8, 10, 13, 16][g], []).append(x)
                for g, x in enumerate(owrite(2)[:2]): ins.setdefault([20, 22][g], []).append(x)
            for i, x in enumerate(va):
                for y in ins.get(i, []):
                    if OPT.anold and y.startswith(("buffer_load", "global_load")): continue
                    if OPT.anow and y.startswith("s_waitcnt vmcnt"): continue
                    a(y)
                a(x)
    if OPT.unroll:
        for _ in range(3): body(False)
    elif OPT.attit > 1:
        a(".p2align 6")
        a(f"{loop}:")
        body(False)
        a(f"s_cbranch_scc1 {loop}")
    body(True)
    if OPT.prio_ld: a(f"s_setprio {OPT.prio_ld}")
    a(pk(1, 7))
    for x in owrite(2)[2:]: a(x)
    for x in pv(3, 1, 3): a(x)
    stamp(a, 13)
    a(f"""
    v_add_f32 v17, v{O+12}, v{O+28}
    v_add_f32 v17, v17, v{O+44}
    v_min3_f32 v18, v{O+12}, v{O+28}, v{O+44}
    s_mov_b32 s{sT0}, 0x21800000
    s_nop 7
    v_add_f32 v17, v17, v{O+60}
    v_min_f32 v18, v18, v{O+60}
    v_cmp_nlt_f32_e64 vcc, v17, s{sT4}
    v_cmp_ngt_f32_e64 s[86:87], v18, s{sT0}
    s_or_b64 vcc, vcc, s[86:87]
    s_and_b64 vcc, vcc, {sr(sHI,2)}
    s_cbranch_scc0 {ok}
    s_cmp_lg_u32 s{sRetry}, 0
    s_cbranch_scc1 {ok}
    s_mov_b32 s{sRetry}, 1
    s_waitcnt lgkmcnt(0)
    s_mov_b64 exec, {sr(sHI,2)}
    """)
    for i in range(4): a(f"v_mov_b32 v{Q+8*i+6}, 0\nv_mov_b32 v{Q+8*i+7}, 0")
    a(f"s_mov_b64 exec, -1\ns_lshl_b32 s{sK}, s{sW}, 16\ns_mov_b32 s{sIt}, 16")
    for r in range(64): a(f"v_mov_b32 v{O+r}, 0")
    for i in range(4): a(f"v_mov_b32 v{NM+i}, 0xff800000")
    a(f"""
    {mloop}:
    buffer_load_dwordx4 {vr(KV,4)}, v{vL16}, {sr(R_KV,4)}, s{sK} offen sc1
    buffer_load_dwordx4 {vr(KV+4,4)}, v{vL16}, {sr(R_KV,4)}, s{sK} offen offset:1024 sc1
    s_add_u32 s{sK}, s{sK}, 4096
    s_waitcnt vmcnt(0)
    """)
    scan_mf(KV)
    a("s_nop 11")
    for i in range(4):
        for j in range(8): a(f"v_max3_f32 v{NM+i}, v{TMP[i]+2*j}, v{TMP[i]+2*j+1}, v{NM+i}")
    a(f"""
    s_sub_u32 s{sIt}, s{sIt}, 1
    s_cmp_lg_u32 s{sIt}, 0
    s_cbranch_scc1 {mloop}
    """)
    first_kv(a)
    for i in range(4): a(f"v_mov_b32 v{S+i}, v{NM+i}")
    a("s_nop 1")
    for i in range(4): a(f"v_permlane32_swap_b32 v{S+i}, v{NM+i}")
    for i in range(4): a(f"v_max_f32 v{NM+i}, v{S+i}, v{NM+i}")
    a(f"s_mov_b64 exec, {sr(sHI,2)}")
    for i in range(4):
        a(f"""
        v_sub_f32 v{NM+i}, 0, v{NM+i}
        v_cvt_pk_bf16_f32 v17, v{NM+i}, 0
        v_lshlrev_b32 v18, 16, v17
        v_sub_f32 v18, v{NM+i}, v18
        v_cvt_pk_bf16_f32 v19, v18, 0
        v_lshl_or_b32 v{Q+8*i+6}, v19, 16, v17
        v_lshlrev_b32 v19, 16, v19
        v_sub_f32 v18, v18, v19
        v_cvt_pk_bf16_f32 v{Q+8*i+7}, v18, 0
        """)
    a(f"s_waitcnt vmcnt(11)\ns_branch {go}\n{ok}:")
    lds_arrive(a, C_ATT, nowait=True)
    if not OPT.nocomb: lds_wait(a, C_ATT, 4)
    stamp(a, 16)
    OW = O + 48
    if OPT.nocomb: a(f"v_mov_b32 v17, v{OW+12}\nv_mov_b32 v18, v{OW+12}\ns_nop 1\nv_permlane32_swap_b32 v17, v18\nv_rcp_f32 v18, v18\ns_branch nocomb")
    for i in range(4): a(f"ds_read_b32 v{NM+i}, v{vMR} offset:{128*i}")
    for i in range(3):
        for g in range(4):
            if i == 2 and g == 3: a("s_waitcnt lgkmcnt(11)")
            a(f"ds_read_b128 {vr(O+16*i+4*g,4)}, v{vRR} offset:{4096*i+1024*g}")
    a(f"""
    v_min3_f32 v17, v{NM}, v{NM+1}, v{NM+2}
    v_min_f32 v17, v17, v{NM+3}
    """)
    for i in (3, 0, 1, 2): a(f"v_sub_f32 v{NM+i}, v17, v{NM+i}")
    for i in (3, 0, 1, 2): a(f"v_exp_f32 v{NM+i}, v{NM+i}")
    for r in range(16): a(f"v_mul_f32 v{OW+r}, v{NM+3}, v{OW+r}")
    for i in range(3):
        a(f"s_waitcnt lgkmcnt({4*(2-i)})")
        R = [12] + [r for r in range(16) if r != 12] if i == 2 else range(16)
        for n, r in enumerate(R):
            a(f"v_fmac_f32 v{OW+r}, v{NM+i}, v{O+16*i+r}")
            if i == 2 and n == 0: a(f"v_mov_b32 v17, v{OW+12}\nv_mov_b32 v18, v{OW+12}")
            if i == 2 and n == 2: a("v_permlane32_swap_b32 v17, v18")
            if i == 2 and n == 3: a("v_rcp_f32 v18, v18")
    a("nocomb:")
    for h in range(2):
        for r in range(8 * h, 8 * h + 8): a(f"v_mul_f32 v{OW+r}, v18, v{OW+r}")
        for i in range(4 * h, 4 * h + 4): a(f"v_cvt_pk_bf16_f32 v{O+i}, v{OW+2*i}, v{OW+2*i+1}")
        if h: a(f"s_mov_b64 exec, {sr(sHI,2)}\nv_mov_b32 v{O+6}, 0\nv_mov_b32 v{O+7}, 0\ns_mov_b64 exec, -1")
        a(f"buffer_store_dwordx4 {vr(O+4*h,4)}, v{vL16}, {sr(R_WS,4)}, s{sOS} offen offset:{2048*h} sc1")
    stamp(a, 17)
    if OPT.odel: a(f's_sleep {OPT.odel}')
    set_flag(a, sOF)
    a(f"s_branch {done}")

class VM:
    def __init__(self): self.q = []
    def issue(self, tag):
        if OPT.dropw and tag[0] == 'd' and tag[1] >= OPT.dropw: return
        if OPT.d1 and tag[0] == 'd' and OPT.d1 <= tag[1] < 32: return
        self.q.append(tag)
    def wait(self, tags):
        idx = [i for i, t in enumerate(self.q) if t in tags]
        if not idx: return None
        n = len(self.q) - 1 - max(idx)
        assert n <= 63
        self.q = self.q[max(idx) + 1:]
        return n

ACC, AF, BF, DH, SG = 64, 32, 128, 8, 192
def reduce4(a, cnt, red, st0, st1, h0=None, h1=None, h2=None):
    base, stride, off = red
    stamp(a, st0)
    if h0: h0()
    for i in range(4):
        a(f"""
        s_xor_b32 s{sT0}, s{sG}, {i}
        s_mul_i32 s{sT1}, s{sT0}, {stride}
        s_add_u32 s{sT1}, s{sT1}, {base}
        v_add_u32 v{24+i}, s{sT1}, v{vL16}
        """)
    for i in range(1, 4):
        for g in range(4): a(f"ds_write_b128 v24, {vr(ACC+16*i+4*g,4)} offset:{off(4*(i-1)+g)}")
    lds_arrive(a, cnt, nowait=True)
    if h1: h1()
    lds_wait(a, cnt, 4)
    stamp(a, st1)
    for i in range(1, 4):
        for g in range(4): a(f"ds_read_b128 {vr(ACC+16*i+4*g,4)}, v{24+i} offset:{off(4*(i-1)+g)}")
    if h2: h2()
    for i in range(1, 4):
        a(f"s_waitcnt lgkmcnt({4*(3-i)})")
        for r in range(16): a(f"v_add_f32 v{ACC+r}, v{ACC+r}, v{ACC+16*i+r}")

GK = 2 * math.sqrt(2 / math.pi) * math.log2(math.e)
def gpath(a, done):
    global DH, SG
    DH = OPT.dh; SG = BF + 8 * DH
    assert SG + 8 * max(OPT.nsg, OPT.nsg2) <= 240
    vm = VM()
    N1, N2, N3 = 32, 60, 68
    nsg = OPT.nsg
    staged = {OPT.pre0 + i: i for i in range(nsg)}
    nsg2 = OPT.nsg2
    staged.update({N1 + OPT.pre + i: i for i in range(nsg2)})
    def wsrc(k, h):
        if k < N1: return vDW1, R_W1, sD, 8 * 3584
        if k < N2: return vDW2, R_W2, sDb, 8 * 4096
        return vDWO, R_WO, sD2, (4 if ((k - N2) & 1 and h) else 8) * 896
    rot = OPT.ra or OPT.rb
    def wadv(k, h):
        v, R, sd, inc = wsrc(k, h)
        t = f"s_add_u32 s{sd}, s{sd}, {inc}"
        if (OPT.hot & 1 and k < N1) or (OPT.hot & 2 and k >= N1): t = "s_nop 0"
        if rot and N1 <= k < N2 and h and k & 1: t += f"\ns_cmp_eq_u32 s{sd}, s{sDbE}\ns_cselect_b32 s{sd}, s{sDb0}, s{sd}"
        return t
    V2 = {vDW1: 249, vDW2: 250}
    def dma(k):
        out = []
        drop = (OPT.dropw and k >= OPT.dropw) or (OPT.d1 and OPT.d1 <= k < 32)
        if OPT.one and k < N2 and not state.get('plain'):
            v, R, sd, inc = wsrc(k, 0)
            adv = wadv(k, 1).replace(f", {inc}", f", {2*inc}", 1)
            return [(f"s_add_u32 m0, s{sRing}, {slotp(k)*8192}", f"buffer_load_dwordx4 v{v}, {sr(R,4)}, s{sd} offen lds", ""),
                    ("", f"buffer_load_dwordx4 v{V2[v]}, {sr(R,4)}, s{sd} offen offset:1024 lds", adv)]
        for h in range(2):
            v, R, sd, inc = wsrc(k, h)
            out.append((f"s_add_u32 m0, s{sRing}, {slotp(k)*8192 + h*1024}",
                        f"buffer_load_dwordx4 v{v}, {sr(R,4)}, s{sd} offen lds" if not drop else "s_nop 0", wadv(k, h)))
        return out
    state = {'nd': 0}
    def prefill(upto):
        while state['nd'] < upto:
            k = state['nd']; state['nd'] += 1
            if k in staged:
                for h in range(2):
                    v, R, sd, inc = wsrc(k, h)
                    a(f"buffer_load_dwordx4 {vr(SG+8*staged[k]+4*h,4)}, v{v}, {sr(R,4)}, s{sd} offen")
                    a(wadv(k, h)); vm.issue(('s', k))
            else:
                for m, l, adv in dma(k):
                    if m: a(m); a("s_nop 0")
                    a(l); a(adv); vm.issue(('d', k))
    def swrite(k):
        off = slotp(k) * 8192; v = vSW
        if off >= 65536: off -= 65536; v += 1
        return [f"ds_write_b128 v{v}, {vr(SG+8*staged[k]+4*h,4)} offset:{off+1024*h}" for h in range(2)]
    def deep(k): return OPT.tdeep and N1 - 4 <= k < N1
    def breg(k): return SG + 32 + 8 * (k - N1 + 4) if deep(k) else SG + 8 * (k - N2) if (k >= N2 and OPT.odeep) else BF + 8 * (k % DH)
    def ld(k):
        r = breg(k)
        v, sl = (vLN, sL) if k < N1 else (vLM, sLb) if k < N2 else (vLN, sL2)
        off = 2048 * (k & 1)
        o = [f"buffer_load_dwordx4 {vr(r,4)}, v{v}, {sr(R_WS,4)}, s{sl} offen offset:{off} sc1",
             f"buffer_load_dwordx4 {vr(r+4,4)}, v{v+1}, {sr(R_WS,4)}, s{sl} offen offset:{off} sc1"]
        adv = f"s_add_u32 s{sl}, s{sl}, 4096"
        if (OPT.hot & 4 and k < N1) or (OPT.hot & 8 and k >= N1): adv = "s_nop 0"
        if rot and N1 <= k < N2: adv += f"\ns_cmp_eq_u32 s{sl}, s{sLbE}\ns_cselect_b32 s{sl}, s{sLb0}, s{sl}"
        return o, (adv if k & 1 else None)
    def ld_now(k):
        o, adv = ld(k)
        for x in o: a(x); vm.issue(('l', k))
        if adv: a(adv)
    def tr(k, r=None):
        b0, xo = (vT1, 512) if k < N1 else (vT2, 1024) if k < N2 else (vT3, 1024)
        r = r or AF + 8 * (k % 2); off = slotp(k) * 8192
        if off >= 65536: off -= 65536; b0 += vTH - vT1
        return [f"ds_read_b64_tr_b16 {vr(r,2)}, v{b0} offset:{off}", f"ds_read_b64_tr_b16 {vr(r+2,2)}, v{b0} offset:{off+xo}",
                f"ds_read_b64_tr_b16 {vr(r+4,2)}, v{b0+1} offset:{off}", f"ds_read_b64_tr_b16 {vr(r+6,2)}, v{b0+1} offset:{off+xo}"]
    state['nl'] = 0
    XI = 8
    def b2load(): a(f"v_lshlrev_b32 v6, 1, v{vJ}\nbuffer_load_ushort v5, v6, {sr(R_B2,4)}, s{sB2} offen")
    def init2():
        a("v_lshlrev_b32 v5, 16, v5")
        for i in range(8): a(f"v_lshlrev_b32 v{XI+2*i}, 16, v{80+i}\nv_and_b32 v{XI+2*i+1}, 0xffff0000, v{80+i}")
        for r in range(16): a(f"v_add_f32 v{XI+r}, v5, v{XI+r}")
        a(f"v_min_u32 v251, 27, v{vLANE}\nv_lshlrev_b32 v251, {3+FS}, v251\nv_min_u32 v252, 7, v{vLANE}\nv_lshlrev_b32 v252, {3+FS}, v252")
    def red_addr(base, stride):
        for i in range(4):
            a(f"""
            s_xor_b32 s{sT0}, s{sG}, {i}
            s_mul_i32 s{sT1}, s{sT0}, {stride}
            s_add_u32 s{sT1}, s{sT1}, {base}
            v_add_u32 v{24+i}, s{sT1}, v{vL16}
            """)
    def free(kd, k):
        if kd >= OPT.ke and k < OPT.gatek and slotp(kd) < 8: return False
        prev = [j for j in range(kd) if slotp(j) == slotp(kd)]
        return not prev or prev[-1] <= k - 1
    def begin(lo, nld, pfi=None, after=None):
        state['nl'] = lo
        for k in range(lo, lo + nld):
            ld_now(k); state['nl'] += 1
            if pfi and k == lo + 1: a(pfi); vm.issue('pf')
        if after: after()
        n = vm.wait({('d', lo)})
        if n is not None: a(f"s_waitcnt vmcnt({n})")
        for x in tr(lo): a(x)
    def run(lo, hi, last, dlimit, llimit, first=None, hooks={}, tail=None):
        dh = OPT.dh
        for k in range(lo, hi):
            need = {('l', k)}
            if k + 1 < last: need.add(('d', k + 1))
            if tail and k + 1 == hi: need |= {('d', j) for j in tail}
            if k + 3 in staged: need.add(('s', k + 3))
            need |= hooks.get(('need', k), set())
            n = vm.wait(need)
            a(f"s_waitcnt vmcnt({n}) lgkmcnt(0)" if n is not None else "s_waitcnt lgkmcnt(0)")
            if k in hooks: hooks[k]()
            if OPT.fine and k % 4 == 0 and OPT.stamps == 1 and 0 <= k // 4 - OPT.fine0 < 15: stamp(a, 48 + k // 4 - OPT.fine0)
            l = AF + 8 * (k % 2); d = breg(k)
            lds_is_a = not (N1 <= k < N2)
            mf = []
            for i in range(4):
                mi, ni = i >> 1, i & 1
                A, B = (vr(l + 4 * mi, 4), vr(d + 4 * ni, 4)) if lds_is_a else (vr(d + 4 * mi, 4), vr(l + 4 * ni, 4))
                c = "0" if k == first and i else vr(XI, 16) if k == N1 else vr(ACC + 16 * i, 16)
                mf.append(f"{MF} {vr(ACC+16*i,16)}, {A}, {B}, {c}" if not OPT.nogm else "s_nop 0")
            t = tr(k + 1) if k + 1 < last else []
            t2 = []
            if tail and k + 1 == hi:
                assert state['nd'] > max(tail)
                tt = sum((tr(j, r) for j, r in tail.items()), []); t, t2 = tt[:8], tt[8:]
            sw = swrite(k + 3) if k + 3 in staged else []
            assert not sw or free(k + 3, k)
            kd = state['nd']; dm = []
            if kd < dlimit and kd <= k + (OPT.lw if k < N1 else OPT.lw2) and free(kd, k) and kd not in staged:
                assert kd >= k + 2
                dm = dma(kd); state['nd'] += 1
            lo_, adv = ([], None)
            kl = state['nl']
            if kl < llimit and (kl <= k + dh - 1 or deep(kl) or (kl >= N2 and OPT.odeep)): lo_, adv = ld(kl); state['nl'] += 1
            if OPT.spread == 0 or (OPT.spread == 2 and k >= N1):
                a(mf[0])
                for x in t: a(x)
                if dm: a(dm[0][0])
                a(mf[1])
                if lo_: a(lo_[0]); vm.issue(('l', kl))
                if lo_: a(lo_[1]); vm.issue(('l', kl))
                if adv: a(adv)
                if dm: a(dm[0][1]); vm.issue(('d', kd)); a(dm[0][2]); a(dm[1][0])
                a(mf[2])
                if dm: a(dm[1][1]); vm.issue(('d', kd)); a(dm[1][2])
                for x in sw: a(x)
                if t2: a('s_waitcnt lgkmcnt(4)')
                for x in t2: a(x)
                a(mf[3])
            else:
                a(mf[0])
                for x in t: a(x)
                if lo_: a(lo_[0]); vm.issue(('l', kl))
                a(mf[1])
                if lo_: a(lo_[1]); vm.issue(('l', kl))
                if adv: a(adv)
                if dm: a(dm[0][0])
                a(mf[2])
                if dm: a(dm[0][1]); vm.issue(('d', kd)); a(dm[0][2]); a(dm[1][0])
                for x in sw: a(x)
                if t2: a('s_waitcnt lgkmcnt(4)')
                for x in t2: a(x)
                a(mf[3])
                if dm: a(dm[1][1]); vm.issue(('d', kd)); a(dm[1][2])
            kd = state['nd']
            if kd < dlimit and kd <= k + (OPT.lw if k < N1 else OPT.lw2) and free(kd, k) and kd not in staged: prefill(kd + 1)
            kl = state['nl']
            if kl < llimit and (kl <= k + dh - 1 or deep(kl) or (kl >= N2 and OPT.odeep)): ld_now(kl); state['nl'] += 1
    def tail_reduce(tail, cnt, red, st0, st1, h0=None, h1=None, h2=None, lazy=(), pk=False):
        base, stride, off = red
        while state['nl'] <= max(tail): ld_now(state['nl']); state['nl'] += 1
        a(f"s_setprio {OPT.prio_t}")
        if pk: red_addr(base, stride)
        def wr(i): return [f"ds_write_b128 v24, {vr(ACC+16*i+4*g,4)} offset:{off(4*(i-1)+g)}" for g in range(4)]
        prev = None; L = len(tail); lazy = list(lazy)
        two = L > 4 and OPT.two1
        for i in ((1, 3, 0) if two else (1, 2, 3, 0)):
            W = wr(prev) if prev else []
            if two and i == 3: W = wr(1) + wr(2)[:3]
            if two and i == 0: W = wr(2)[3:] + wr(3)
            for n, (k, l) in enumerate(tail.items()):
                if i == 1:
                    need = {('l', k)}
                    if lazy: need.add(('d', lazy[0]))
                    w = vm.wait(need)
                    lg = "lgkmcnt(0)" if (n == 0 or n == L - 1) else "lgkmcnt(4)" if L > 4 and n >= 2 else ""
                    if L == 4 and n: lg = ""
                    x = (f"vmcnt({w}) " if w is not None else "") + lg
                    if x: a("s_waitcnt " + x)
                d = breg(k); mi, ni = i >> 1, i & 1
                A, B = (vr(l + 4 * mi, 4), vr(d + 4 * ni, 4)) if not (N1 <= k < N2) else (vr(d + 4 * mi, 4), vr(l + 4 * ni, 4))
                a(f"{MF} {vr(ACC+16*i,16)}, {A}, {B}, {vr(ACC+16*i,16)}")
                if i == 1 and two: a(f"{MF} {vr(ACC+32,16)}, {vr(l+4,4)}, {vr(d,4)}, {vr(ACC+32,16)}")
                if i == 1 and lazy:
                    j = lazy.pop(0)
                    for x in tr(j, tail[j]): a(x)
                if L == 4:
                    if W and n == 1: a("s_nop 9"); a(W[0]); a(W[1])
                    if W and n == 2: a(W[2]); a(W[3])
                    if i == 0 and n == 2: lds_arrive(a, cnt, nowait=True)
                elif two:
                    if i == 3:
                        if n == 1: a("s_nop 8")
                        if n >= 1: a(W[n - 1])
                    if i == 0:
                        if n == 1: a("s_nop 8")
                        if n <= 4: a(W[n])
                        if n == 4: lds_arrive(a, cnt, nowait=True)
                else:
                    if W and n == 1: a("s_nop 9")
                    if W and 1 <= n <= 4: a(W[n - 1])
                    if i == 0 and n == 4: lds_arrive(a, cnt, nowait=True)
            if i == 1 and h0: h0()
            prev = i
        a(f"s_setprio {OPT.prio_e}")
        stamp(a, st0)
        if h1: h1()
        lds_wait(a, cnt, 4)
        stamp(a, st1)
        for i in range(1, 4):
            for g in range(4): a(f"ds_read_b128 {vr(ACC+16*i+4*g,4)}, v{24+i} offset:{off(4*(i-1)+g)}")
        if h2: h2()
        for i in range(1, 4):
            a(f"s_waitcnt lgkmcnt({4*(3-i)})")
            if pk:
                for r in range(0, 16, 2): a(f"v_pk_add_f32 {vr(ACC+r,2)}, {vr(ACC+r,2)}, {vr(ACC+16*i+r,2)}")
            else:
                for r in range(16): a(f"v_add_f32 v{ACC+r}, v{ACC+r}, v{ACC+16*i+r}")
    def flagload(soff, n):
        vo = {32: 28, 28: 251, 8: 252}[n]
        if n == 32: a(f"v_min_u32 v28, {n-1}, v{vLANE}\nv_lshlrev_b32 v28, {3+FS}, v28")
        a(f"buffer_load_dwordx2 v[30:31], v{vo}, {sr(R_WS,4)}, s{soff} offen sc1"); vm.issue('fl')
    def flagcheck(okl, pr=0):
        a(f"s_setprio 3\nv_cmp_ne_u64 vcc, {sr(sTAG,2)}, v[30:31]\ns_setprio {pr}\ns_cbranch_vccz {okl}")
    def fill_poll(upA, upB, soff, n, mid=None):
        prefill(upA)
        flagload(soff, n)
        prefill(upB)
        if mid: mid()
        w = vm.wait({'fl'})
        a(f"s_waitcnt vmcnt({w})")
        okl = a.label("flok")
        flagcheck(okl)
        poll(a, soff, n)
        a(f"{okl}:")
    nog1 = a.label("nog1"); join = a.label("gjoin")
    g_xread(a)
    a(f"s_cmp_eq_u32 s{sHasG1}, 0\ns_cbranch_scc1 {nog1}")
    a(f"s_setprio {OPT.prio_g}")
    stamp(a, 8)
    if OPT.nodma: a(f"s_mov_b32 s{R_W1+2}, 0")
    a(f"v_add_u32 v249, {8*3584-1024}, v{vDW1}\nv_add_u32 v250, {8*4096-1024}, v{vDW2}")
    a(f"v_lshlrev_b32 v7, 3, v{vHH}")
    for g in range(4): a(f"buffer_load_dwordx2 {vr(88+2*g,2)}, v7, {sr(R_B1,4)}, s{sB1o} offen offset:{16*g}")
    for g in range(4): vm.issue('b')
    prefill(OPT.a1)
    lds_arrive(a, C_PRE, nowait=True)
    stamp(a, 9)
    fill_poll(OPT.a1, OPT.b1, sFH, 32, lambda: (g_setup2(a), b2load(), vm.issue('b2')))
    stamp(a, 10)
    def init1():
        for i in range(8): a(f"v_lshlrev_b32 v{ACC+2*i}, 16, v{88+i}\nv_and_b32 v{ACC+2*i+1}, 0xffff0000, v{88+i}")
        red_addr(L_RED, 12288)
        a(f"v_mov_b32 v7, {f32(-GK)}")
        w = vm.wait({'b2'}); a(f"s_waitcnt vmcnt({w}) lgkmcnt(0)")
        init2()
    def cpf(sid, val, saddr):
        sk = a.label("cpf")
        a(f"s_cmp_lg_u32 s{sid}, {val}\ns_cbranch_scc1 {sk}\nbuffer_load_dword v253, v{vPF}, {sr(R_WS,4)}, s{saddr} offen sc1\n{sk}:")
    def mkhooks(hl):
        d = {}
        for k, f in hl: d.setdefault(k, []).append(f)
        return {k: (lambda fs=fs: [f() for f in fs]) for k, fs in d.items()}
    a('s_setprio 3')
    begin(0, OPT.nl0, None, init1)
    a(f's_setprio {OPT.prio_g}')
    hl = [(0, lambda: stamp(a, 11)), (16, lambda: stamp(a, 12)), (OPT.gatek, lambda: (a('s_setprio 3'), lds_wait(a, C_Q, 4), a(f's_setprio {OPT.prio_g}')))]
    if OPT.kt: hl.append((N1 - 4 - OPT.kt, lambda: a(f's_setprio {OPT.prio_t}')))
    if OPT.ka: hl.append((OPT.ka, lambda: lds_arrive(a, C_GO, nowait=True)))
    if OPT.kp: hl.append((OPT.kp, lambda: a(f's_setprio {OPT.prio_g1b}')))
    for b in range(2, 8): hl.append((max(0, 4 * b - OPT.pfd), lambda b=b: cpf(sSH1, b, sPH)))
    for i, k in enumerate(range(OPT.b1, OPT.pre0 + nsg)): hl.append((i, lambda k=k: prefill(k + 1)))
    T1 = {N1 - 4 + i: SG + 8 * i for i in range(4)}
    assert OPT.e2 <= OPT.pre
    run(0, N1 - 4, N1, N1, N1, first=0, hooks=mkhooks(hl), tail=T1)
    tail_reduce(T1, C_R1, (L_RED, 12288, lambda i: 1024 * i), 13, 16,
            lambda: prefill(N1 + OPT.e0), lambda: prefill(N1 + OPT.e1), lambda: prefill(N1 + OPT.e2))
    lds_arrive(a, C_R1D, nowait=True)
    k = 2 * math.sqrt(2 / math.pi) * math.log2(math.e)
    a(f"s_mov_b32 s{sT0}, {f32(-k*0.044715)}")
    T = ACC + 16
    for h in range(2):
        R = range(8 * h, 8 * h + 8)
        for r in R: a(f"v_mul_f32 v{T+r}, v{ACC+r}, v{ACC+r}")
        for r in R: a(f"v_fma_f32 v{T+r}, v{T+r}, s{sT0}, v7")
        for r in R: a(f"v_mul_f32 v{T+r}, v{T+r}, v{ACC+r}")
        for r in R: a(f"v_exp_f32 v{T+r}, v{T+r}")
        for r in R: a(f"v_add_f32 v{T+r}, 1.0, v{T+r}")
        for r in R: a(f"v_rcp_f32 v{T+r}, v{T+r}")
        for r in R: a(f"v_mul_f32 v{T+r}, v{T+r}, v{ACC+r}")
        for i in range(4 * h, 4 * h + 4): a(f"v_cvt_pk_bf16_f32 v{T+16+i}, v{T+2*i}, v{T+2*i+1}")
        a(f"buffer_store_dwordx4 {vr(T+16+4*h,4)}, v{vLN}, {sr(R_WS,4)}, s{sUS} offen offset:{2048*h} sc1")
    stamp(a, 17)
    if OPT.gdel: a(f's_sleep {OPT.gdel}')
    if not OPT.flate: set_flag(a, sFU)
    stamp(a, 27)
    a(f"s_branch {join}\n{nog1}:")
    lds_arrive(a, C_R1D, nowait=True)
    lds_arrive(a, C_GO, nowait=True)
    lds_arrive(a, C_PRE, nowait=True)
    g_setup2(a)
    b2load()
    a("s_waitcnt vmcnt(0) lgkmcnt(0)")
    init2()
    a(f"""
    s_lshr_b32 s{sT0}, s{sJ}, 3
    s_lshl_b32 s{sT0}, s{sT0}, 1
    s_and_b32 s{sT1}, s{sCB}, 1
    s_add_u32 s{sT0}, s{sT0}, s{sT1}
    s_sub_u32 s{sT0}, s{sT0}, 1
    s_cmp_eq_u32 s{sJ}, 6
    s_cbranch_scc1 engdone
    s_mul_i32 s{sT1}, s{sG}, 28
    s_add_u32 s{sT1}, s{sT1}, s{sT0}
    s_lshl_b32 s{sT1}, s{sT1}, 16
    s_lshl_b32 s{sT2}, s{sXCD}, 9
    s_add_u32 s{sT1}, s{sT1}, s{sT2}
    s_lshl_b32 s{sT2}, s{sT0}, 2
    s_add_u32 s{sT2}, s{sT2}, s{sG}
    s_lshl_b32 s{sT2}, s{sT2}, 13
    s_add_u32 s{sPFW}, s{sPFW}, {OPT.npf0*63*3584}
    """)
    if OPT.engw: lds_wait(a, C_X, 4, sleep=1)
    for i in range(OPT.w1r - OPT.npf0 if OPT.eng & 1 else 0):
        if i == OPT.engp: lds_wait(a, C_AS, 4, sleep=2)
        a(f"s_waitcnt vmcnt({OPT.engd})\nbuffer_load_dword v{249+i%2}, v{vPF1}, {sr(R_W1,4)}, s{sPFW} offen\ns_add_u32 s{sPFW}, s{sPFW}, {63*3584}")
    stamp(a, 28)
    for i in range(4 if OPT.eng & 2 else 0):
        a(f"s_waitcnt vmcnt({OPT.engd})\nbuffer_load_dword v{249+i%2}, v{vPF2}, {sr(R_W2,4)}, s{sT1} offen\ns_add_u32 s{sT1}, s{sT1}, {7*16*4096}")
    stamp(a, 29)
    a(f"""
    s_cmp_lg_u32 s{sCB}, 7
    s_cbranch_scc1 engdone
    s_lshr_b32 s{sT2}, s{sJ}, 3
    s_lshl_b32 s{sT2}, s{sT2}, 2
    s_add_u32 s{sT2}, s{sT2}, s{sG}
    s_lshl_b32 s{sT2}, s{sT2}, 13
    """)
    for i in range(OPT.wor if OPT.eng & 4 else 0):
        a(f"s_waitcnt vmcnt({OPT.engd})\nbuffer_load_dword v{249+i%2}, v{vPF}, {sr(R_WO,4)}, s{sT2} offen\ns_add_u32 s{sT2}, s{sT2}, {16*8192}")
    stamp(a, 30)
    a(f"s_branch epw\nengdone:\ns_waitcnt vmcnt(0)")
    a("s_setprio 3")
    a(f"v_add_u32 v249, {8*3584-1024}, v{vDW1}\nv_add_u32 v250, {8*4096-1024}, v{vDW2}")
    lds_wait(a, C_Q, 4)
    state['nd'] = N1
    prefill(N1 + OPT.e2)
    a(f"{join}:")
    a(f"s_setprio {OPT.prio_b}")
    vm.q = [('d', k) for k in range(N1, N1 + OPT.e2) for h in range(2)]
    prefill(N1 + OPT.a2)
    if OPT.flate:
        a(f's_cmp_eq_u32 s{sHasG1}, 0\ns_cbranch_scc1 nfl\ns_sleep {OPT.flate}'); set_flag(a, sFU); a('nfl:')
    stamp(a, 18)
    fill_poll(N1 + OPT.a2, N1 + OPT.b2, sFUc, 28)
    stamp(a, 19)
    begin(N1, OPT.nl0)
    a(f"s_setprio {OPT.prio_g2}\ns_lshr_b32 s{sSH1}, s{sJ}, 3")
    assert not OPT.odeep or (SG + 64 <= 240 and N1 + OPT.pre + nsg2 - 3 <= N2 - OPT.ock)
    KC = N2 - OPT.ock
    hl = [(N1, lambda: stamp(a, 20)), (N1 + 14, lambda: stamp(a, 21)), (KC - 3, lambda: flagload(sFOc, 8))]
    for b in range(3, 7): hl.append((N1 + max(0, 4 * b - OPT.pfd), lambda b=b: cpf(sSH1, b - 3, sPU)))
    for i, k in enumerate(range(N1 + OPT.b2, N1 + OPT.pre + nsg2)): hl.append((N1 + i, lambda k=k: prefill(k + 1)))
    run(N1, KC, N2, N3, N2, first=N1, hooks=mkhooks(hl))
    w = vm.wait({'fl'})
    if w is not None: a(f"s_waitcnt vmcnt({w})")
    ordy = a.label("ordy"); red2 = a.label("red2")
    flagcheck(ordy)
    sv = (list(vm.q), dict(state))
    assert OPT.odeep and DH >= 4
    R8 = [8, 16] + [BF + 8 * i for i in range(4)] + [AF, AF + 8]
    T3 = {N2 + i: R8[i] for i in range(8)}
    T3a = {k: T3[k] for k in (N2, N2 + 1)}
    run(KC, N2, N3, N3, N2, tail=T3a)
    prefill(N3)
    stamp(a, 22)
    poll(a, sFOc, 8); vm.q = []
    stamp(a, 23)
    a(f"s_setprio {OPT.prio_e}")
    for k in range(N2, N3): ld_now(k)
    qn = list(vm.q)
    a(f"s_branch {red2}\n{ordy}:")
    vm.q = sv[0]; state.update(sv[1])
    run(KC, N2, N3, N3, N3, tail=T3a)
    prefill(N3)
    while state['nl'] < N3: ld_now(state['nl']); state['nl'] += 1
    w = vm.wait({('d', k) for k in range(N2, N3)})
    if w is not None: a(f"s_waitcnt vmcnt({w})")
    assert all(t[0] == 'l' for t in qn + vm.q), (qn, vm.q)
    if len(qn) > len(vm.q): vm.q = qn
    a(f"{red2}:")
    stamp(a, 24)
    tail_reduce(T3, C_R2, (L_RING, 2048, lambda i: (i >> 1) * 8192 + (i & 1) * 1024), 25, 26, lazy=range(N2 + 2, N3), pk=True)
    for i in range(8): a(f"v_cvt_pk_bf16_f32 v{ACC+16+i}, v{ACC+2*i}, v{ACC+2*i+1}")
    a(f"""
    s_nop 1
    v_permlane32_swap_b32 v{ACC+16}, v{ACC+18}
    v_permlane32_swap_b32 v{ACC+17}, v{ACC+19}
    v_permlane32_swap_b32 v{ACC+20}, v{ACC+22}
    v_permlane32_swap_b32 v{ACC+21}, v{ACC+23}
    buffer_store_dwordx4 {vr(ACC+16,4)}, v{vOUT}, {sr(R_OUT,4)}, s{sOUT} offen
    buffer_store_dwordx4 {vr(ACC+20,4)}, v{vOUT}, {sr(R_OUT,4)}, s{sOUT} offen offset:32
    s_branch {done}
    epw:
    s_lshl_b32 s{sT0}, s{sG}, 8
    s_add_u32 s{sT0}, s{sT0}, s2
    s_cmp_lg_u32 s{sT0}, 56
    s_cbranch_scc1 {done}
    """)
    lds_wait(a, C_ATT, 4, sleep=8)
    for i in range(4):
        a(f"s_mov_b32 s{sT0}, {FL_O + (2048*i << FS)}")
        poll(a, sT0, 64, sh=5)
    a(f"s_mov_b32 s{sT0}, {WS_EPOCH}")
    set_flag(a, sT0)

def kend(a, e):
    a(f"{e}:")
    if OPT.stamps:
        stamp(a, 14); a("s_waitcnt vmcnt(0)"); stamp(a, 15)
        a(f"""
        s_lshl_b32 s100, s2, 3
        s_add_u32 s100, s100, s{sW}
        s_lshl_b32 s100, s100, 8
        s_add_u32 s100, s100, {WS_STAMP}
        v_lshlrev_b32 v254, 2, v{vLANE}
        buffer_store_dword v255, v254, {sr(R_WS,4)}, s100 offen
        """)
    if OPT.amp >= 0:
        if OPT.amp == 14: stamp(a, 14)
        a(f"""
        s_cmp_ge_u32 s{sW}, 4
        s_cbranch_scc{0 if OPT.ampg else 1} {e}x
        s_nop 4
        v_readlane_b32 s16, v255, 0
        v_readlane_b32 s17, v255, 1
        s_nop 4
        s_cmp_eq_u32 s17, 0
        s_cbranch_scc1 {e}x
        s_sub_u32 s18, s17, s16
        s_min_u32 s18, s18, 4000
        s_mul_i32 s18, s18, 5
        s_add_u32 s18, s18, 4000
        ampl:
        s_memrealtime s[20:21]
        s_waitcnt lgkmcnt(0)
        s_sub_u32 s20, s20, s16
        s_cmp_lt_u32 s20, s18
        s_cbranch_scc1 ampl
        """)
    if OPT.double:
        a(f"""
        s_waitcnt vmcnt(0)
        s_memrealtime s[16:17]
        s_waitcnt lgkmcnt(0)
        s_sub_u32 s18, s16, s100
        s_min_u32 s18, s18, 20000
        dbl:
        s_memrealtime s[20:21]
        s_waitcnt lgkmcnt(0)
        s_sub_u32 s20, s20, s16
        s_cmp_lt_u32 s20, s18
        s_cbranch_scc1 dbl
        """)
    a(f"{e}x:\ns_endpgm\ncode_end:")

DOC = '''; ---------------------------------------------------------------------------------------------
; Hand-offs between workgroups (h, K/V, u, o) go through d_ws with sc1 stores, a drained per-wave flag
; and sc1 loads.  Flags carry a 64-bit tag derived from an epoch word in d_ws that every launch advances.
; Softmax: each wave shifts by a score maximum of its first key tile; the row sums are range-checked and
; ---------------------------------------------------------------------------------------------
'''
def build():
    a = Asm()
    n = NAME + "_kernel"
    a('.amdgcn_target "amdgcn-amd-amdhsa--gfx950"\n.text')
    a(f".globl {n}\n.p2align 8\n.type {n},@function\n{n}:")
    e = "fin"
    prologue(a, e)
    p1_a(a); attention(a, e)
    a("p1g:"); p1_g(a); gpath(a, e)
    kend(a, e)
    if OPT.nogv:
        i0 = a.L.index("p1g:")
        i1 = [i for i, l in enumerate(a.L) if l.startswith("gpfw")][0]
        a.L = [("s_nop 0" if (i > i1 and l.startswith("buffer_load_dwordx4")) else l) for i, l in enumerate(a.L)]
    check(a.L)
    head = open(f"refhead.txt").read().split("; Override")[0]
    ll = f"; @launch grid=(256,1,1) block=(512,1,1) lds={LDS_TOTAL}\n"
    desc = f""".section .rodata,"a"
.p2align 6
.amdhsa_kernel {n}
  .amdhsa_next_free_vgpr 256
  .amdhsa_next_free_sgpr 102
  .amdhsa_accum_offset 256
  .amdhsa_group_segment_fixed_size 0
  .amdhsa_kernarg_size 104
  .amdhsa_user_sgpr_count 2
  .amdhsa_user_sgpr_kernarg_segment_ptr 1
  .amdhsa_system_sgpr_workgroup_id_x 1
  .amdhsa_float_denorm_mode_32 3
.end_amdhsa_kernel
"""
    return head + DOC + ll + a.text() + desc

if __name__ == "__main__":
    args = []
    for x in sys.argv[1:]:
        if x.startswith("--"):
            k, _, v = x[2:].partition("=")
            if k == "FS": FS = int(v)
            else: setattr(OPT, k, int(v) if v else True)
        else: args.append(x)
    assert all((t * 37) >> 8 == t // 7 for t in range(63))
    open(args[0] if args else f"cdna_kernels/{NAME}.s", "w").write(build())
```

```python
import sys, math, struct
sys.path.insert(0, "dev")
from asmlib import Asm, vr, sr, check

NAME = "parallel_sum__grouped_kv_mqa__mixer_token_mlp__prompt"
WS_HT = 0
WS_KV = 2 << 20
WS_U  = 5 << 20
WS_O  = 7 << 20
WS_FLG = 10 << 20
FL_H  = WS_FLG
FS = 3
FL_KV = WS_FLG + (8192 << 4)
FL_U  = WS_FLG + (12288 << 4)
FL_O  = WS_FLG + (20480 << 4)
WS_EPOCH = WS_FLG + (32768 << 4)
WS_STAMP = 12 << 20
WS_SIZE = 16 << 20
DBLK = 64
class O: pass
OPT = O(); OPT.stamps = False; OPT.double = False; OPT.prio_g = 0; OPT.prio_e = 3; OPT.prio_a = 0; OPT.pf2step = 6; OPT.pre = 12; OPT.lw = 6; OPT.lw2 = 11; OPT.odeep = 1; OPT.fine = 0; OPT.prio_b = 0; OPT.kp = 0; OPT.gst = 1; OPT.wkf = 0; OPT.zpre = 30; OPT.one = 1; OPT.mix = 4369; OPT.order2 = 0; OPT.spread = 1; OPT.two1 = 1; OPT.gld = 1; OPT.anold = 0; OPT.anow = 0; OPT.d1 = 0; OPT.flate = 0; OPT.unroll = 0; OPT.ldpos = 11; OPT.nmax = 16; OPT.adel = 0; OPT.gdel = 0; OPT.odel = 0; OPT.tdeep = 1; OPT.kt = 0; OPT.hot = 0; OPT.pdefer = 0; OPT.lsleep = 1; OPT.psleep = 0; OPT.npfa = 9; OPT.prio_t = 3; OPT.ka = 0; OPT.amp = -1; OPT.ampg = 0; OPT.prio_g1b = 0; OPT.fine0 = 2; OPT.dh = 5; OPT.pre0 = 4; OPT.nsg = 6; OPT.nsg2 = 9; OPT.e0 = 4; OPT.e1 = 8; OPT.e2 = 11; OPT.pf1pos = 3; OPT.order = 1; OPT.nogm = 0; OPT.nogv = 0; OPT.a1 = 10; OPT.b1 = 10; OPT.nl0 = 4; OPT.pfd = -100; OPT.kvpf = 1; OPT.a2 = 21; OPT.b2 = 21; OPT.ock = 2; OPT.early = 0; OPT.npf0 = 1; OPT.prio_g2 = 0; OPT.twice = 0; OPT.codepf = 1; OPT.prio_ld = 0; OPT.gatek = 8; OPT.ke = 12; OPT.fl_late = 0; OPT.rdin = 2; OPT.pre1 = 0; OPT.engd = 0; OPT.eng = 7; OPT.engw = 1; OPT.ra = 0; OPT.rb = 4; OPT.nou = 0; OPT.now2 = 0; OPT.dropw = 0; OPT.nocomb = 0; OPT.kvflag = 8; OPT.attit = 4; OPT.nold = 0; OPT.nodma = 0; OPT.nokv = 0
L_XT = 0; L_WQ = 57344; L_WKV = 114688
HB_STRIDE = 912
L_HB = 141056; L_QS = 147456; L_KC = 155648; L_KS = L_KC + 1024; L_MX = L_KC
L_ST = 158720; L_RT = 159232; L_CNT = 159360; LDS_TOTAL = 159744
RING = 12; L_RING = 49152; L_RED = 0
def slotp(k): return 8 + k % 4 if k < OPT.ke else (k - OPT.ke) % RING
C_X, C_KV, C_H, C_ST, C_Q, C_ISS, C_R1, C_R1D, C_ATT, C_R2, C_X1, C_XA, C_FL, C_PRE, C_KS, C_GO = range(16)
sXCD, sJ, sRB, sCB, sW = 3, 4, 5, 6, 7
sT0, sT1, sT2, sT3, sT4, sT5 = 8, 9, 10, 11, 12, 13
sHI = 14
P_X, P_WQ, P_WK, P_WV, P_WO, P_BX, P_W1, P_B1, P_W2, P_B2, P_OUT, P_DBG, P_WS = 16, 18, 20, 22, 24, 26, 28, 30, 32, 34, 36, 38, 40
sTAG = 42
R_X, R_WQ, R_WKV, R_WS, R_W1, R_W2, R_WO, R_OUT, R_KV = 44, 48, 52, 56, 60, 64, 68, 72, 76
R_B1, R_B2 = R_WKV, 20
sONES, sSPIN, sPFW = 82, 83, 99
sG, sGM, sGN, sRing, sA, sD, sL, sFB, sDb, sD2, sLb, sL2, sOUT, sB2 = range(84, 98)
sU0, sU1, sU2, sU3, sU4, sU5 = range(84, 90)
OOB = 0x40000000
EPS = 0x3727c5ac
QSCALE = (28 ** -0.5) * math.log2(math.e)
def f32(x): return "0x%08x" % struct.unpack("<I", struct.pack("<f", x))[0]
vLANE, vJ, vHH, vL16 = 1, 2, 3, 4
MF = "v_mfma_f32_32x32x16_bf16"

def stamp(a, idx):
    if OPT.amp >= 0:
        if idx == 0: a("v_mov_b32 v255, 0\ns_memrealtime s[100:101]\ns_waitcnt lgkmcnt(0)\nv_writelane_b32 v255, s100, 0")
        elif idx == OPT.amp: a("s_memrealtime s[100:101]\ns_waitcnt lgkmcnt(0)\nv_writelane_b32 v255, s100, 1")
        return
    if not OPT.stamps: return
    if OPT.stamps == 2 and idx not in (0, 15): return
    if OPT.stamps == 3 and idx not in (0, 12, 13, 15): return
    a(f"s_memrealtime s[100:101]\ns_waitcnt lgkmcnt(0)\nv_writelane_b32 v255, s100, {idx}")
    if idx in (0, 12, 13, 15): a(f"s_memtime s[100:101]\ns_waitcnt lgkmcnt(0)\nv_writelane_b32 v255, s100, {idx+32}")

def srd(a, r, p, size):
    a(f"s_mov_b32 s{r}, s{p}\ns_mov_b32 s{r+1}, s{p+1}\ns_mov_b32 s{r+2}, {size}\ns_mov_b32 s{r+3}, 0x20000")

def get_tag(a):
    a(f"""
    s_waitcnt lgkmcnt(0)
    s_mul_i32 s{sTAG}, s{sTAG}, 0x9e3779b5
    s_mul_i32 s{sTAG+1}, s{sTAG+1}, 0x85ebca6d
    s_add_u32 s{sTAG}, s{sTAG}, 0x7f4a7c15
    s_add_u32 s{sTAG+1}, s{sTAG+1}, 0x165667b1
    """)

def set_flag(a, soff, vt=30):
    a(f"""
    v_mov_b32 v{vt}, s{sTAG}
    v_mov_b32 v{vt+1}, s{sTAG+1}
    s_waitcnt vmcnt(0)
    s_mov_b64 exec, 1
    buffer_store_dwordx2 {vr(vt,2)}, off, {sr(R_WS,4)}, s{soff} sc1
    s_mov_b64 exec, -1
    """)

def poll(a, soff, n, vo=28, vt=30, sh=3):
    lp = a.label("poll"); dn = a.label("polld")
    a(f"""
    s_setprio 3
    v_min_u32 v{vo}, {n-1}, v{vLANE}
    v_lshlrev_b32 v{vo}, {sh+FS}, v{vo}
    s_mov_b32 s{sSPIN}, 20000
    {lp}:
    buffer_load_dwordx2 {vr(vt,2)}, v{vo}, {sr(R_WS,4)}, s{soff} offen sc1
    s_waitcnt vmcnt(0)
    v_cmp_ne_u64 vcc, {sr(sTAG,2)}, {vr(vt,2)}
    s_cbranch_vccz {dn}
    {f's_sleep {OPT.psleep}' if OPT.psleep else ''}
    s_sub_u32 s{sSPIN}, s{sSPIN}, 1
    s_cmp_lg_u32 s{sSPIN}, 0
    s_cbranch_scc1 {lp}
    {dn}:
    s_setprio 0
    """)

def lds_arrive(a, cnt, nowait=False):
    a(f"""
    s_mov_b64 exec, 1
    {'' if nowait else 's_waitcnt lgkmcnt(0)'}
    ds_add_u32 v0, v29 offset:{4*cnt}
    s_mov_b64 exec, -1
    """)
def lds_wait(a, cnt, target, sleep=0):
    spin = a.label("spin"); ent = a.label("spe")
    sleep = sleep or OPT.lsleep
    if sleep: a(f"s_branch {ent}\n{spin}:\ns_sleep {sleep}\n{ent}:")
    else: a(f"{spin}:")
    a(f"""
    ds_read_b32 v28, v0 offset:{4*cnt}
    s_waitcnt lgkmcnt(0)
    v_readfirstlane_b32 s{sT5}, v28
    s_cmp_lt_u32 s{sT5}, {target}
    s_cbranch_scc1 {spin}
    """)

def bf16_stats(a, vs, vq, vm, vr_, t):
    a(f"""
    v_mul_f32 v{vs}, {f32(1/448)}, v{vs}
    v_mul_f32 v{vq}, {f32(1/448)}, v{vq}
    v_fma_f32 v{vq}, -v{vs}, v{vs}, v{vq}
    v_max_f32 v{vq}, 0, v{vq}
    v_cvt_pk_bf16_f32 v{t}, v{vs}, v{vq}
    v_lshlrev_b32 v{vm}, 16, v{t}
    v_and_b32 v{t}, 0xffff0000, v{t}
    v_add_f32 v{t}, {EPS:#x}, v{t}
    v_cvt_pk_bf16_f32 v{t}, v{t}, v{t}
    v_and_b32 v{t}, 0xffff0000, v{t}
    v_sqrt_f32 v{t}, v{t}
    s_nop 0
    v_cvt_pk_bf16_f32 v{t}, v{t}, v{t}
    v_and_b32 v{t}, 0xffff0000, v{t}
    v_rcp_f32 v{vr_}, v{t}
    s_nop 0
    """)

def dpp_reduce(a, vs, vq, modes):
    a("s_nop 2")
    for mode in modes:
        a(f"v_add_f32_dpp v{vs}, v{vs}, v{vs} {mode} row_mask:0xf bank_mask:0xf")
        a(f"v_add_f32_dpp v{vq}, v{vq}, v{vq} {mode} row_mask:0xf bank_mask:0xf")
        a("s_nop 0")
QP1, QP2, RHM, RM = "quad_perm:[1,0,3,2]", "quad_perm:[2,3,0,1]", "row_half_mirror", "row_mirror"

def split_hi_lo(a, dst, src, t):
    a(f"""
    v_cvt_pk_bf16_f32 v{t}, v{src}, v{src}
    v_and_b32 v{t}, 0xffff0000, v{t}
    v_sub_f32 v{t}, v{src}, v{t}
    v_cvt_pk_bf16_f32 v{dst}, v{src}, v{t}
    """)

def prologue(a, end):
    a(f"s_cmp_ge_u32 s2, 256\ns_cbranch_scc1 {end}x")
    if OPT.double: a("s_memrealtime s[100:101]")
    if OPT.stamps: a("v_mov_b32 v255, 0")
    stamp(a, 0)
    a(f"""
    s_load_dwordx16 s[16:31], s[0:1], 0
    s_load_dwordx8 s[32:39], s[0:1], 64
    s_load_dwordx2 s[40:41], s[0:1], 96
    v_lshrrev_b32 v5, 6, v0
    v_and_b32 v{vLANE}, 63, v0
    v_readfirstlane_b32 s{sW}, v5
    v_and_b32 v{vJ}, 31, v0
    v_lshrrev_b32 v{vHH}, 5, v{vLANE}
    v_lshlrev_b32 v{vL16}, 4, v{vLANE}
    s_and_b32 s{sXCD}, s2, 7
    s_lshr_b32 s{sJ}, s2, 3
    """)
    if OPT.codepf:
        a(f"""
        s_cmp_lg_u32 s{sW}, 7
        s_cbranch_scc1 nocpf
        s_getpc_b64 s[{R_OUT}:{R_OUT+1}]
        cpf_here:
        s_sub_u32 s{R_OUT}, s{R_OUT}, cpf_here-{NAME}_kernel
        s_subb_u32 s{R_OUT+1}, s{R_OUT+1}, 0
        s_mov_b32 s{R_OUT+2}, code_end-{NAME}_kernel
        s_mov_b32 s{R_OUT+3}, 0x20000
        s_lshl_b32 s{sT0}, s{sJ}, 7
        v_lshlrev_b32 v6, 12, v{vLANE}
        buffer_load_dword v250, v6, {sr(R_OUT,4)}, s{sT0} offen
        nocpf:
        """)
    a(f"""
    s_lshr_b32 s{sT0}, s{sJ}, 3
    s_lshl_b32 s{sRB}, s{sXCD}, 2
    s_add_u32 s{sRB}, s{sRB}, s{sT0}
    s_and_b32 s{sCB}, s{sJ}, 7
    s_mov_b32 s{sHI}, 0
    s_mov_b32 s{sHI+1}, -1
    s_mov_b32 s{sONES}, 0x3f803f80
    v_lshlrev_b32 v5, 2, v{vLANE}
    v_add_u32 v5, {L_CNT}, v5
    v_mov_b32 v6, 0
    ds_write_b32 v5, v6
    v_mov_b32 v0, {L_CNT}
    v_mov_b32 v29, 1
    v_lshrrev_b32 v5, 3, v{vLANE}
    v_and_b32 v6, 7, v{vLANE}
    v_lshrrev_b32 v7, 4, v{vLANE}
    v_bfe_u32 v8, v{vLANE}, 2, 2
    v_and_b32 v9, 3, v{vLANE}
    v_and_b32 v10, 1, v7
    v_lshlrev_b32 v9, 3, v9
    v_lshl_add_u32 v9, v10, 5, v9
    """)
    p1_addr(a)
    a(f"s_cmp_ge_u32 s{sW}, 4\ns_cbranch_scc1 p1g")

def common_srds(a):
    a(f"s_mov_b32 s{sT5}, {WS_EPOCH}\ns_waitcnt lgkmcnt(0)")
    stamp(a, 1)
    a(f"s_load_dwordx2 {sr(sTAG,2)}, {sr(P_WS,2)}, s{sT5}")
    srd(a, R_X, P_X, 2048 * 896)
    srd(a, R_WS, P_WS, WS_SIZE)

def epoch_load(a): pass

vXe, vXo, vWQd = 11, 12, 13
sNL, sXs, sXm, sNT, sW3 = 76, 77, 78, 79, 80
sXs2, sXm2, sQs, sQm = 26, 27, 38, 39
def p1_addr(a):
    a(f"""
    v_mul_u32_u24 v20, 896, v5
    v_xor_b32 v21, v6, v7
    v_lshl_add_u32 v{vXe}, v21, 4, v20
    v_xor_b32 v21, 4, v21
    v_lshl_add_u32 v{vXo}, v21, 4, v20
    v_lshlrev_b32 v21, 2, v10
    v_xor_b32 v21, v21, v6
    v_lshl_add_u32 v{vWQd}, v21, 4, v20
    s_and_b32 s{sW3}, s{sW}, 3
    s_cmp_eq_u32 s{sW3}, 3
    s_cselect_b32 s{sNL}, 1, 2
    s_bfe_u32 s{sNT}, s{sCB}, 0x10001
    s_lshl_b32 s{sT0}, s{sRB}, 1
    s_add_u32 s{sT0}, s{sT0}, s{sNT}
    s_mul_i32 s{sXs}, s{sT0}, {32*896}
    s_lshl_b32 s{sT0}, s{sW3}, 8
    s_add_u32 s{sXs}, s{sXs}, s{sT0}
    s_lshl_b32 s{sXm}, s{sW3}, 14
    s_lshl_b32 s{sT0}, s{sNT}, 12
    s_add_u32 s{sXm}, s{sXm}, s{sT0}
    """)
def rest_dma(a, after_x=None):
    srd(a, R_WQ, P_WQ, 448 * 896)
    a(f"""
    s_xor_b32 s{sXm2}, s{sXm}, 4096
    s_mul_i32 s{sT0}, s{sNT}, {2*32*896}
    s_add_u32 s{sXs2}, s{sXs}, {32*896}
    s_sub_u32 s{sXs2}, s{sXs2}, s{sT0}
    s_mul_i32 s{sQs}, s{sW3}, {128*896}
    s_mul_i32 s{sT0}, s{sCB}, 112
    s_add_u32 s{sQs}, s{sQs}, s{sT0}
    s_lshl_b32 s{sQm}, s{sW3}, 14
    """)
    if after_x: after_x()
    PF1 = f"buffer_load_dword v249, v{vPF1}, {sr(R_W1,4)}, s{sPFW} offen"
    if OPT.pf1pos == 0: a(PF1)
    l1 = a.label("rd1"); l2 = a.label("rd2")
    for line in range(2):
        if line: a(f"s_cmp_eq_u32 s{sNL}, 1\ns_cbranch_scc1 {l1}")
        for b in range(4):
            a(f"""
            s_add_u32 m0, s{sXm2}, {L_XT + line*8192 + b*1024}
            s_add_u32 s{sT0}, s{sXs2}, {b*8*896 + line*128}
            buffer_load_dwordx4 v{vXo if b & 1 else vXe}, {sr(R_X,4)}, s{sT0} offen lds
            """)
    a(f"{l1}:")
    if OPT.pf1pos == 1: a(PF1)
    for line in range(2):
        if line:
            a(f"s_waitcnt vmcnt({9 if OPT.pf1pos == 1 else 8})")
            lds_arrive(a, C_XA, nowait=True)
            a(f"s_cmp_eq_u32 s{sNL}, 1\ns_cbranch_scc1 {l2}")
        for b in range(8):
            a(f"""
            s_add_u32 m0, s{sQm}, {L_WQ + line*8192 + b*1024}
            s_add_u32 s{sT0}, s{sQs}, {(line*64 + b*8)*896}
            buffer_load_dwordx4 v{vWQd}, {sr(R_WQ,4)}, s{sT0} offen lds
            """)
    a(f"{l2}:")

vPF1 = 246
def pf1_addr(a):
    a(f"""
    v_min_u32 v14, 6, v6
    v_mul_u32_u24 v{vPF1}, 3584, v5
    v_lshl_add_u32 v{vPF1}, v14, 7, v{vPF1}
    s_lshl_b32 s{sT1}, s{sW3}, 6
    s_lshr_b32 s{sT2}, s{sJ}, 3
    s_lshl_b32 s{sT2}, s{sT2}, 1
    s_add_u32 s{sT1}, s{sT1}, s{sT2}
    s_and_b32 s{sT2}, s{sCB}, 1
    s_add_u32 s{sT1}, s{sT1}, s{sT2}
    s_sub_u32 s{sT1}, s{sT1}, 1
    s_mul_i32 s{sPFW}, s{sT1}, {8*3584}
    s_lshr_b32 s{sT2}, s{sXCD}, 1
    s_mul_i32 s{sT2}, s{sT2}, 896
    s_add_u32 s{sPFW}, s{sPFW}, s{sT2}
    """)
    srd(a, R_W1, P_W1, 2048 * 3584)

def stats_code(a, st0, st1, sRBk, SX=128, T=40):
    a(f"""
    v_lshrrev_b32 v{T}, 2, v{vLANE}
    v_and_b32 v{T+1}, 3, v{vLANE}
    v_lshlrev_b32 v{T+1}, 5, v{T+1}
    v_lshl_add_u32 v{T+1}, v{T}, 7, v{T+1}
    v_lshlrev_b32 v{T+2}, 1, v{vLANE}
    v_and_b32 v{T+2}, 16, v{T+2}
    v_add_u32 v{T+1}, v{T+1}, v{T+2}
    s_lshl_b32 s{sT0}, s{sRBk}, 11
    v_add_u32 v{T+1}, s{sT0}, v{T+1}
    v_xor_b32 v{T+3}, 16, v{T+1}
    s_lshl_b32 s{sT0}, s{sRBk}, 7
    s_add_u32 s{sT0}, s{sT0}, {L_ST}
    v_lshl_add_u32 v{T}, v{T}, 3, s{sT0}
    v_mov_b32 v{T+4}, 0
    v_mov_b32 v{T+5}, 0
    """)
    lds_wait(a, C_X1, 4)
    lds_wait(a, C_XA, 4)
    stamp(a, st0)
    for c in range(7):
        a(f"ds_read_b128 {vr(SX+8*c,4)}, v{T+1} offset:{L_XT + c*8192}")
        a(f"ds_read_b128 {vr(SX+8*c+4,4)}, v{T+3} offset:{L_XT + c*8192}")
    for c in range(7):
        a(f"s_waitcnt lgkmcnt({2*(6-c)})")
        for i in range(8):
            a(f"v_dot2c_f32_bf16 v{T+4}, s{sONES}, v{SX+8*c+i}")
            a(f"v_dot2c_f32_bf16 v{T+5}, v{SX+8*c+i}, v{SX+8*c+i}")
    dpp_reduce(a, T + 4, T + 5, [QP1, QP2])
    bf16_stats(a, T + 4, T + 5, T + 3, T + 7, T + 2)
    a(f"""
    v_cvt_pk_bf16_f32 v{T+6}, -v{T+3}, -v{T+3}
    v_mul_f32 v{T+7}, {f32(QSCALE)}, v{T+7}
    ds_write_b64 v{T}, {vr(T+6,2)}
    """)
    lds_arrive(a, C_ST, nowait=True)
    stamp(a, st1)

def p1_a(a):
    vXF, vWK, vWQr = 14, 18, 19
    sB, sM = 94, 96
    a(f"""
    s_and_b32 s{sT1}, s{sCB}, 1
    s_lshl_b32 s{sT2}, s{sT1}, 11
    s_xor_b32 s{sM}, s{sXm}, s{sT2}
    s_lshr_b32 s{sT3}, s{sJ}, 3
    s_lshl_b32 s{sT3}, s{sT3}, 1
    s_add_u32 s{sT3}, s{sT3}, s{sT1}
    s_mul_i32 s{sT1}, s{sT1}, {16*896}
    s_add_u32 s{sB}, s{sXs}, s{sT1}
    s_add_u32 s{sT2}, s{sXs}, {16*896}
    s_sub_u32 s{sB+1}, s{sT2}, s{sT1}
    v_lshlrev_b32 v21, 7, v{vLANE}
    s_mov_b32 s{sT4}, 0
    """)
    common_srds(a)
    def x_half(h):
        sk = a.label("xh")
        for line in range(2):
            if line: a(f"s_cmp_eq_u32 s{sNL}, 1\ns_cbranch_scc1 {sk}")
            for b in range(2):
                a(f"""
                s_xor_b32 m0, s{sM}, {line*8192 + h*2048 + b*1024}
                s_add_u32 s{sT0}, s{sB+h}, {b*8*896 + line*128}
                buffer_load_dwordx4 v{vXo if b else vXe}, {sr(R_X,4)}, s{sT0} offen lds
                """)
        a(f"{sk}:")
    def frag_addr():
        a(f"""
        v_lshrrev_b32 v20, 1, v{vJ}
        v_and_b32 v20, 7, v20
        v_xor_b32 v20, v20, v{vHH}
        v_lshlrev_b32 v20, 4, v20
        v_lshl_add_u32 v{vXF}, v{vJ}, 7, v20
        v_xor_b32 v{vXF+1}, 32, v{vXF}
        v_xor_b32 v{vXF+2}, 64, v{vXF}
        v_xor_b32 v{vXF+3}, 96, v{vXF}
        v_lshl_add_u32 v20, v{vHH}, 3, v8
        """)
    nop_ = a.label("notp"); other = a.label("notkv"); htype = a.label("htype"); qgo = a.label("qgo"); dostats = a.label("dostats"); poststats = a.label("poststats")
    if OPT.wkf:
        nw_ = a.label("nowkf")
        a(f"""
        s_and_b32 s{sT0}, s{sJ}, 0x1e
        s_cmp_lg_u32 s{sT0}, {OPT.wkf}
        s_cbranch_scc1 {nw_}
        s_bitcmp1_b32 s{sCB}, 0
        s_cselect_b32 s{R_WKV}, s{P_WV}, s{P_WK}
        s_cselect_b32 s{R_WKV+1}, s{P_WV+1}, s{P_WK+1}
        s_mov_b32 s{R_WKV+2}, {448*56}
        s_mov_b32 s{R_WKV+3}, 0x20000
        s_lshl_b32 s{sT0}, s{sW}, 13
        buffer_load_dword v251, v21, {sr(R_WKV,4)}, s{sT0} offen
        {nw_}:
        """)
    x_half(0)
    a(f"s_cmp_ge_u32 s{sCB}, 4\ns_cbranch_scc1 {other}")
    x_half(1)
    a(f"""
    s_bitcmp1_b32 s{sCB}, 0
    s_cselect_b32 s{R_WKV}, s{P_WV}, s{P_WK}
    s_cselect_b32 s{R_WKV+1}, s{P_WV+1}, s{P_WK+1}
    s_mov_b32 s{R_WKV+2}, {448*56}
    s_mov_b32 s{R_WKV+3}, 0x20000
    s_mul_i32 s{sT1}, s{sW}, 7168
    s_add_u32 m0, s{sT1}, {L_WKV}
    s_cmp_eq_u32 s{sNL}, 1
    """)
    w3 = a.label("wk3")
    for i in range(4): a(f"buffer_load_dwordx4 v{vL16}, {sr(R_WKV,4)}, s{sT1} offen offset:{1024*i} lds")
    a(f"""
    s_cbranch_scc1 {w3}
    s_add_u32 m0, m0, 4096
    s_add_u32 s{sT1}, s{sT1}, 4096
    """)
    for i in range(3): a(f"buffer_load_dwordx4 v{vL16}, {sr(R_WKV,4)}, s{sT1} offen offset:{1024*i} lds")
    a(f"{w3}:")
    epoch_load(a)
    a("s_barrier")
    frag_addr()
    ACC, XF, WF = 96, 32, 64
    vQ, vS, vC = 22, 23, 21
    a(f"""
    v_mul_u32_u24 v{vWK}, 56, v20
    v_add_u32 v{vWK}, v{vWK}, v9
    s_mul_i32 s{sT1}, s{sW}, 7168
    s_add_u32 s{sT1}, s{sT1}, {L_WKV}
    v_add_u32 v{vWK}, s{sT1}, v{vWK}
    v_add_u32 v24, s{sXm}, v{vXF}
    v_xor_b32 v25, 32, v24
    v_xor_b32 v30, 64, v24
    v_xor_b32 v31, 96, v24
    v_mov_b32 v{vS}, 0
    v_mov_b32 v{vQ}, 0
    v_mov_b32 v{vC}, 0
    s_lshl_b32 s{sT0}, s{sW}, 4
    s_add_u32 s{sT0}, s{sT0}, {L_KS}
    v_lshlrev_b32 v120, 6, v{vJ}
    v_lshl_add_u32 v121, v{vHH}, 3, v120
    v_add_u32 v121, s{sT0}, v121
    s_lshl_b32 s{sT0}, s{sW}, 2
    s_add_u32 s{sT0}, s{sT0}, {L_KC}
    v_add_u32 v122, s{sT0}, v{vL16}
    v_add_u32 v123, s{sT1}, v{vL16}
    """)
    xa = [24, 25, 30, 31]
    l0 = a.label("kv0"); l1 = a.label("kv1a"); l2 = a.label("kv1b"); l3 = a.label("kv1c"); vlab = a.label("kvv"); fin = a.label("kvfin")
    def skip1(lab): a(f"s_cmp_eq_u32 s{sNL}, 1\ns_cbranch_scc1 {lab}")
    a(f"s_waitcnt vmcnt(7)\ns_cmp_eq_u32 s{sNL}, 1\ns_cbranch_scc0 {l0}\ns_waitcnt vmcnt(4)\n{l0}:")
    stamp(a, 2)
    for line in range(2):
        for q in range(4): a(f"ds_read_b128 {vr(XF+16*line+4*q,4)}, v{xa[q]} offset:{L_XT + line*8192}")
    lds_arrive(a, C_X1, nowait=True)
    for line in range(2):
        if line: skip1(l1)
        for q in range(4):
            a(f"s_waitcnt lgkmcnt({8-4*line-q})")
            for i in range(4):
                r = XF + 16 * line + 4 * q + i
                a(f"v_dot2c_f32_bf16 v{vS}, s{sONES}, v{r}\nv_dot2c_f32_bf16 v{vQ}, v{r}, v{r}")
    a(f"{l1}:\ns_waitcnt vmcnt(0) lgkmcnt(0)\ns_nop 1\nds_write_b64 v121, v[22:23]")
    stamp(a, 18)
    for k in range(8):
        if k == 7: a("s_waitcnt lgkmcnt(13)")
        a(f"ds_read_b64_tr_b16 {vr(WF+4*k,2)}, v{vWK} offset:{k*896}")
        a(f"ds_read_b64_tr_b16 {vr(WF+4*k+2,2)}, v{vWK} offset:{k*896+224}")
    for k in range(8):
        if k == 4: skip1(l3)
        a(f"s_waitcnt lgkmcnt({14-2*k})")
        for i in range(4): a(f"v_dot2c_f32_bf16 v{vC}, s{sONES}, v{WF+4*k+i}")
    a(f"{l3}:\ns_bitcmp1_b32 s{sCB}, 0\ns_cbranch_scc1 {vlab}")
    for isv in (0, 1):
        if isv: a(f"{vlab}:")
        for k in range(8):
            if k == 4: skip1(fin)
            A, B = (vr(XF+4*k,4), vr(WF+4*k,4)) if isv else (vr(WF+4*k,4), vr(XF+4*k,4))
            a(f"{MF} {vr(ACC,16)}, {A}, {B}, {vr(ACC,16) if k else 0}")
            if k == 0:
                split_hi_lo(a, 24, vC, 31)
                a("ds_write_b32 v122, v24")
                lds_arrive(a, C_KS, nowait=True)
        if not isv: a(f"s_branch {l2}")
    a(f"""
    {l2}:
    s_lshl_b32 s{sT2}, s{sNT}, 1
    s_xor_b32 s{sT2}, s{sT2}, 2
    s_add_u32 s{sT2}, s{sT2}, s{sW}
    """)
    get_tag(a)
    a("s_nop 3")
    for g in range(4): a(f"ds_write_b128 v123, {vr(ACC+4*g,4)} offset:{1024*g}")
    lds_arrive(a, C_KV, nowait=True)
    stamp(a, 3)
    a(f"s_cmp_lt_u32 s{sW}, 2\ns_cbranch_scc1 {dostats}")
    lds_arrive(a, C_ST, nowait=True)
    a(f"s_branch {qgo}")
    vfin = a.label("vfin"); kvst = a.label("kvst"); vf2 = a.label("vf2"); cm = a.label("kvcm")
    a(f"""
    {fin}:
    s_setprio 3
    v_add_u32 v24, {L_KS}, v120
    v_add_u32 v25, {L_WKV}, v{vL16}
    v_add_u32 v21, {L_KC}, v{vL16}
    s_lshl_b32 s{sT1}, s{sRB}, 1
    s_add_u32 s{sT1}, s{sT1}, s{sNT}
    s_lshl_b32 s{sT1}, s{sT1}, 12
    s_add_u32 s{sT1}, s{sT1}, {WS_KV}
    s_lshl_b32 s{sT4}, s{sRB}, 2
    s_add_u32 s{sT4}, s{sT4}, s{sCB}
    s_lshl_b32 s{sT4}, s{sT4}, {3+FS}
    s_add_u32 s{sT4}, s{sT4}, {FL_KV}
    s_lshl_b32 s{sT0}, s{sNT}, 8
    s_add_u32 s{sT0}, s{sT0}, {L_ST}
    v_lshl_add_u32 v30, v{vJ}, 3, s{sT0}
    s_waitcnt vmcnt(0)
    """)
    get_tag(a)
    lds_wait(a, C_KS, 4)
    for g in range(4): a(f"ds_read_b128 {vr(XF+4*g,4)}, v24 offset:{16*g}")
    a(f"ds_read_b128 {vr(112,4)}, v21\ns_waitcnt lgkmcnt(1)")
    for i in range(4): a(f"v_pk_add_f32 {vr(XF+4*i,2)}, {vr(XF+4*i,2)}, {vr(XF+4*i+2,2)}")
    a(f"""
    v_pk_add_f32 {vr(XF,2)}, {vr(XF,2)}, {vr(XF+4,2)}
    v_pk_add_f32 {vr(XF+8,2)}, {vr(XF+8,2)}, {vr(XF+12,2)}
    v_pk_add_f32 {vr(XF,2)}, {vr(XF,2)}, {vr(XF+8,2)}
    """)
    bf16_stats(a, XF + 1, XF, 22, 23, 21)
    a(f"""
    v_cvt_pk_bf16_f32 v116, -v22, -v22
    v_lshlrev_b32 v21, 2, v{vJ}
    v_add_u32 v21, {L_RT}, v21
    ds_write_b32 v21, v23
    v_mul_f32 v117, {f32(QSCALE)}, v23
    v_lshlrev_b32 v21, 4, v{vHH}
    v_add_u32 v21, {L_RT}, v21
    ds_write_b64 v30, v[116:117]
    v_mov_b32 v118, v116
    v_mov_b32 v119, v116
    v_mov_b32 v22, v23
    """)
    lds_arrive(a, C_ST, nowait=True)
    a(f"""
    s_waitcnt lgkmcnt(0)
    v_mov_b32 v117, v116
    s_bitcmp1_b32 s{sCB}, 0
    s_cbranch_scc1 {vfin}
    {MF} {vr(ACC,16)}, {vr(112,4)}, {vr(116,4)}, {vr(ACC,16)}
    s_branch {cm}
    {vfin}:
    {MF} {vr(ACC,16)}, {vr(116,4)}, {vr(112,4)}, {vr(ACC,16)}
    """)
    for g in range(4): a(f"ds_read_b128 {vr(XF+4*g,4)}, v21 offset:{32*g}")
    a(f"""
    s_add_u32 s{sT1}, s{sT1}, 2048
    v_cmp_eq_u32 vcc, 28, v{vJ}
    v_mov_b32 v24, 0x3f803f80
    s_nop 1
    v_cndmask_b32 v24, 0, v24, vcc
    """)
    for i in range(8): a(f"v_mov_b32 v{120+i}, v24")
    a(f"{cm}:")
    lds_wait(a, C_KV, 3)
    stamp(a, 4)
    for w in range(3):
        for g in range(4): a(f"ds_read_b128 {vr(128+16*w+4*g,4)}, v25 offset:{7168*w+1024*g}")
    for w in range(3):
        a(f"s_waitcnt lgkmcnt({8-4*w})")
        for r in range(0, 16, 2): a(f"v_pk_add_f32 {vr(ACC+r,2)}, {vr(ACC+r,2)}, {vr(128+16*w+r,2)}")
    a(f"s_bitcmp1_b32 s{sCB}, 0\ns_cbranch_scc1 {vf2}")
    for r in range(0, 16, 2): a(f"v_pk_mul_f32 {vr(ACC+r,2)}, {vr(ACC+r,2)}, v[22:23]")
    for i in range(8): a(f"v_cvt_pk_bf16_f32 v{120+i}, v{ACC+2*i}, v{ACC+2*i+1}")
    a(f"""
    s_mov_b64 exec, {sr(sHI,2)}
    v_mov_b32 v126, 0x3f803f80
    v_mov_b32 v127, 0x00003f80
    s_branch {kvst}
    {vf2}:
    s_mov_b32 exec_lo, 0x0fffffff
    s_mov_b32 exec_hi, 0x0fffffff
    """)
    for r in range(0, 16, 2): a(f"v_pk_mul_f32 {vr(ACC+r,2)}, {vr(ACC+r,2)}, {vr(XF+r,2)}")
    for i in range(8): a(f"v_cvt_pk_bf16_f32 v{120+i}, v{ACC+2*i}, v{ACC+2*i+1}")
    a(f"""
    {kvst}:
    s_mov_b64 exec, -1
    buffer_store_dwordx4 {vr(120,4)}, v{vL16}, {sr(R_WS,4)}, s{sT1} offen sc1
    buffer_store_dwordx4 {vr(124,4)}, v{vL16}, {sr(R_WS,4)}, s{sT1} offen offset:1024 sc1
    """)
    stamp(a, 5)
    if OPT.kvflag < 0:
        set_flag(a, sT4)
        a(f"s_mov_b32 s{sT4}, 0\ns_setprio 0")
        stamp(a, 6)
    if not OPT.fl_late or OPT.kvflag < 0: lds_arrive(a, C_FL, nowait=True)
    a(f"s_branch {qgo}")
    a(f"{other}:")
    a(f"""
    s_lshr_b32 s{sT3}, s{sJ}, 3
    s_lshl_b32 s{sT3}, s{sT3}, 2
    s_add_u32 s{sT3}, s{sT3}, s{sCB}
    s_sub_u32 s{sT3}, s{sT3}, 4
    s_lshl_b32 s{sT0}, s{sT3}, 2
    s_add_u32 s{sT0}, s{sT0}, s{sW}
    s_cmp_eq_u32 s{sT3}, 1
    s_cselect_b32 s{R_WKV}, s{P_WV}, s{P_WK}
    s_cselect_b32 s{R_WKV+1}, s{P_WV+1}, s{P_WK+1}
    s_mov_b32 s{R_WKV+2}, {448*896}
    s_sub_u32 s{sT1}, s{sT0}, 8
    s_cmp_lt_u32 s{sT3}, 2
    s_cselect_b32 s{R_WKV}, s{R_WKV}, s{P_WQ}
    s_cselect_b32 s{R_WKV+1}, s{R_WKV+1}, s{P_WQ+1}
    s_cselect_b32 s{R_WKV+2}, {448*56}, s{R_WKV+2}
    s_cselect_b32 s{sT1}, s{sW}, s{sT1}
    s_mov_b32 s{R_WKV+3}, 0x20000
    s_lshl_b32 s{sT1}, s{sT1}, 13
    buffer_load_dword v250, v21, {sr(R_WKV,4)}, s{sT1} offen
    """)
    pf1_addr(a)
    frag_addr()
    a(f"s_mov_b32 s{sT2}, s{sW}\ns_barrier\ns_waitcnt vmcnt(1)")
    stamp(a, 2)
    lds_arrive(a, C_X1, nowait=True)
    def early():
        ne = a.label("noearly"); nw = a.label("nowait")
        a(f"s_cmp_lt_u32 s{sCB}, 6\ns_cbranch_scc1 {nw if OPT.pdefer else ne}\ns_cmp_eq_u32 s{sJ}, 6\ns_cbranch_scc1 {nw if OPT.pdefer else ne}")
        for i in range(OPT.npf0):
            if i == OPT.npfa: lds_wait(a, C_FL, 4)
            a(f"buffer_load_dword v{251+i%3}, v{vPF1}, {sr(R_W1,4)}, s{sPFW} offen\ns_add_u32 s{sPFW}, s{sPFW}, {56*3584}")
        a(f"{nw}:")
        lds_wait(a, C_FL, 4)
        a(f"{ne}:")
        x_half(1)
    rest_dma(a, early)
    lds_arrive(a, C_ISS, nowait=True)
    get_tag(a)
    stamp(a, 3)
    if OPT.gst:
        a(f"""
        s_cmp_lt_u32 s{sCB}, 6
        s_cbranch_scc1 {dostats}
        s_and_b32 s{sT0}, s2, 0xf9
        s_cmp_lg_u32 s{sT0}, 48
        s_cbranch_scc1 {poststats}
        """)
    a(f"{dostats}:")
    stats_code(a, 20, 21, sT2)
    a(f"s_cmp_lt_u32 s{sCB}, 4\ns_cbranch_scc1 {qgo}\n{poststats}:\ns_waitcnt vmcnt(0)")
    lds_arrive(a, C_X, nowait=True)
    QACC, B0 = 128, 32
    a(f"""
    {qgo}:
    s_and_b32 s{sT0}, s{sW}, 1
    s_mul_i32 s{sT0}, s{sT0}, 56
    v_add_u32 v{vWQr}, s{sT0}, v9
    v_lshlrev_b32 v21, 5, v8
    v_and_b32 v21, 64, v21
    v_xor_b32 v{vWQr}, v{vWQr}, v21
    v_lshl_add_u32 v{vWQr}, v20, 7, v{vWQr}
    v_add_u32 v{vWQr}, {L_WQ}, v{vWQr}
    s_lshr_b32 s{sT1}, s{sW}, 1
    s_lshl_b32 s{sT0}, s{sT1}, 12
    v_mov_b32 v23, 0
    v_mov_b32 v113, 0
    v_mov_b32 v114, 0
    v_mov_b32 v115, 0
    v_mov_b32 v118, 0
    v_mov_b32 v119, 0
    """)
    for q in range(4): a(f"v_add_u32 v{vXF+q}, s{sT0}, v{vXF+q}")
    a(f"""
    s_lshl_b32 s{sT1}, s{sT1}, 8
    s_add_u32 s{sT1}, s{sT1}, {L_ST}
    v_lshl_add_u32 v24, v{vJ}, 3, s{sT1}
    """)
    lds_wait(a, C_X1, 4)
    lds_wait(a, C_X, 4)
    stamp(a, 7)
    D = 4; NB = 8
    WR = list(range(64, 112, 4)) + list(range(144, 176, 4)) + list(range(224, 248, 4)) + [120, 124]
    def wreg(ks): return WR[ks]
    def reads(ks):
        b = wreg(ks)
        a(f"ds_read_b64_tr_b16 {vr(b,2)}, v{vWQr} offset:{ks*2048}")
        a(f"ds_read_b64_tr_b16 {vr(b+2,2)}, v{vWQr} offset:{ks*2048+512}")
        a(f"ds_read_b128 {vr(B0+4*(ks%NB),4)}, v{vXF+(ks&3)} offset:{L_XT + (ks>>2)*8192}")
    for ks in range(D): reads(ks)
    for ks in range(28):
        if ks + D < 28: reads(ks + D)
        a(f"s_waitcnt lgkmcnt({3*min(D, 27-ks)})")
        a(f"{MF} {vr(QACC,16)}, {vr(wreg(ks),4)}, {vr(B0+4*(ks%NB),4)}, {'0' if ks == 0 else vr(QACC,16)}")
        if ks == OPT.kvflag:
            nf = a.label("nofl")
            a(f"s_cmp_eq_u32 s{sT4}, 0\ns_cbranch_scc1 {nf}")
            set_flag(a, sT4)
            if OPT.fl_late: lds_arrive(a, C_FL, nowait=True)
            a("s_setprio 0")
            stamp(a, 6)
            a(f"{nf}:")
    stamp(a, 19)
    if OPT.prio_ld: a(f"s_setprio {OPT.prio_ld}")
    att_setup(a)
    if OPT.early: a(f"buffer_load_dwordx2 v[30:31], v25, {sr(R_WS,4)}, s{sKF} offen sc1")
    for ks in range(28):
        for i in range(4): a(f"v_dot2c_f32_bf16 v23, s{sONES}, v{wreg(ks)+i}")
    if OPT.early:
        nk = a.label("nokvyet")
        a(f"""
        s_waitcnt vmcnt(0)
        v_cmp_ne_u64 vcc, {sr(sTAG,2)}, v[30:31]
        s_cbranch_vccnz {nk}
        """)
        first_kv(a)
        a(f"s_mov_b32 s{sKF}, 0\n{nk}:")
    stamp(a, 8)
    lds_wait(a, C_ST, 8)
    a(f"ds_read_b64 v[116:117], v24")
    split_hi_lo(a, 112, 23, 21)
    a(f"""
    s_waitcnt lgkmcnt(0)
    v_mov_b32 v22, v117
    v_mov_b32 v23, v117
    v_mov_b32 v117, 0
    s_nop 1
    {MF} {vr(QACC,16)}, {vr(112,4)}, {vr(116,4)}, {vr(QACC,16)}
    s_lshl_b32 s{sT1}, s{sW}, 11
    s_add_u32 s{sT1}, s{sT1}, {L_QS}
    v_add_u32 v21, s{sT1}, v{vL16}
    """)
    for r in range(64, 76): a(f"v_mov_b32 v{r}, 0")
    for r in range(0, 16, 2): a(f"v_pk_mul_f32 {vr(QACC+r,2)}, {vr(QACC+r,2)}, v[22:23]")
    for i in range(8): a(f"v_cvt_pk_bf16_f32 v{32+i}, v{QACC+2*i}, v{QACC+2*i+1}")
    a(f"""
    s_mov_b64 exec, {sr(sHI,2)}
    v_mov_b32 v38, 0
    v_mov_b32 v39, 0
    s_mov_b64 exec, -1
    ds_write_b128 v21, {vr(32,4)}
    ds_write_b128 v21, {vr(36,4)} offset:1024
    """)
    lds_arrive(a, C_Q, nowait=True)

vDW1, vDW2, vDWO, vOUT, vT1, vT2, vT3, vLN, vLM, vPF, vPF2 = 48, 49, 50, 51, 52, 54, 56, 58, 60, 62, 63
vTH, vSW = 240, 247
sHasG1 = 98
sLb0, sLbE, sDb0, sDbE = 34, 35, 36, 37
sFH, sPH, sB1o, sFU, sUS, sFUc, sPU, sFOc, sSH1 = 16, 17, 28, 29, 30, 31, 32, 33, 81
def g_setup1(a, mid=None):
    srd(a, R_B1, P_B1, 1792 * 2)
    a(f"""
    s_lshr_b32 s{sGM}, s{sG}, 1
    s_and_b32 s{sGN}, s{sG}, 1
    s_lshl_b32 s{sRing}, s{sG}, 11
    s_add_u32 s{sRing}, s{sRing}, {L_RING}
    v_lshlrev_b32 v{vDWO}, 2, v10
    v_xor_b32 v{vDWO}, v{vDWO}, v6
    v_lshlrev_b32 v{vDWO}, 4, v{vDWO}
    v_lshl_add_u32 v{vT3}, v8, 7, v9
    v_lshlrev_b32 v24, 5, v8
    v_and_b32 v24, 64, v24
    v_add_u32 v{vT3}, v{vT3}, v24
    v_add_u32 v{vT3}, s{sRing}, v{vT3}
    s_lshr_b32 s{sT0}, s{sJ}, 3
    s_mul_i32 s{sT0}, s{sT0}, 6
    s_add_u32 s{sT0}, s{sT0}, s{sCB}
    s_cmp_lt_u32 s{sCB}, 6
    s_cselect_b32 s{sHasG1}, 1, 0
    s_and_b32 s{sT1}, s2, 0xf9
    s_cmp_eq_u32 s{sT1}, 48
    s_cselect_b32 s{sT0}, 24, s{sT0}
    s_cselect_b32 s{sHasG1}, 1, s{sHasG1}
    s_and_b32 s{sT1}, s{sXCD}, 1
    s_mul_i32 s{sT1}, s{sT1}, 25
    s_add_u32 s{sT0}, s{sT0}, s{sT1}
    s_mul_i32 s{sA}, s{sT0}, 37
    s_lshr_b32 s{sA}, s{sA}, 8
    s_mul_i32 s{sT1}, s{sA}, 7
    s_sub_u32 s{sPH}, s{sT0}, s{sT1}
    s_lshr_b32 s{sFB}, s{sXCD}, 1
    s_mul_i32 s{sFB}, s{sFB}, 7
    s_add_u32 s{sFB}, s{sFB}, s{sPH}
    """)
    if mid: mid()
    a(f"""
    v_mul_u32_u24 v{vDW1}, 3584, v5
    v_add_u32 v{vDW1}, v{vDW1}, v{vDWO}
    v_lshl_add_u32 v{vDW2}, v5, 12, v{vDWO}
    v_mul_u32_u24 v24, 896, v5
    v_add_u32 v{vDWO}, v24, v{vDWO}
    s_mul_i32 s{sD}, s{sG}, {512*3584}
    s_lshl_b32 s{sT0}, s{sFB}, 7
    s_add_u32 s{sD}, s{sD}, s{sT0}
    s_lshl_b32 s{sT1}, s{sGM}, 6
    s_add_u32 s{sB1o}, s{sT0}, s{sT1}
    v_lshl_add_u32 v24, v{vHH}, 10, v{vT3}
    v_xor_b32 v{vT1}, s{sT1}, v24
    v_xor_b32 v{vT1+1}, 64, v{vT1}
    v_add_u32 v{vTH}, 0x10000, v{vT1}
    v_add_u32 v{vTH+1}, 0x10000, v{vT1+1}
    s_lshl_b32 s{sT0}, s{sGN}, 10
    v_add_u32 v{vLN}, s{sT0}, v{vL16}
    v_xor_b32 v{vLN+1}, 0x400, v{vLN}
    s_lshl_b32 s{sL}, s{sA}, 18
    s_lshl_b32 s{sT0}, s{sG}, 16
    s_add_u32 s{sL}, s{sL}, s{sT0}
    s_add_u32 s{sSH1}, s{sPH}, 1
    s_lshl_b32 s{sPH}, s{sSH1}, 13
    s_add_u32 s{sPH}, s{sPH}, s{sL}
    v_lshlrev_b32 v{vPF}, 7, v{vLANE}
    v_add_u32 v{vSW}, s{sRing}, v{vL16}
    v_add_u32 v{vSW+1}, 0x10000, v{vSW}
    s_lshr_b32 s{sFH}, s{sA}, 1
    s_lshl_b32 s{sFH}, s{sFH}, 10
    s_lshl_b32 s{sT0}, s{sG}, 8
    s_add_u32 s{sFH}, s{sFH}, s{sT0}
    s_lshl_b32 s{sFH}, s{sFH}, {FS}
    s_add_u32 s{sFH}, s{sFH}, {FL_H}
    v_bfe_u32 v32, v{vJ}, 1, 3
    v_lshlrev_b32 v32, 4, v32
    v_xor_b32 v32, s{sT1}, v32
    v_lshl_add_u32 v32, v{vJ}, 7, v32
    v_lshl_add_u32 v32, v{vHH}, 3, v32
    s_lshl_b32 s{sT0}, s{sCB}, 13
    s_lshl_b32 s{sT1}, s{sGN}, 12
    s_add_u32 s{sT0}, s{sT0}, s{sT1}
    v_add_u32 v32, s{sT0}, v32
    v_xor_b32 v33, 16, v32
    v_xor_b32 v34, 32, v32
    v_xor_b32 v35, 48, v32
    """)
    assert WS_HT == 0
def g_xread(a):
    lds_wait(a, C_X1, 4)
    lds_wait(a, C_XA, 4)
    for g, v in enumerate((32, 33, 34, 35)): a(f"ds_read_b64 {vr(80+2*g,2)}, v{v} offset:{L_XT}")
    lds_arrive(a, C_ST, nowait=True)

def g_setup2(a):
    srd(a, R_W2, P_W2, 1792 * 4096)
    srd(a, R_WO, P_WO, 448 * 896)
    srd(a, R_OUT, P_OUT, 2048 * 896)
    srd(a, R_B2, P_B2, 2048 * 2)
    a(f"""
    s_mul_i32 s{sDb}, s{sG}, {448*4096}
    s_lshl_b32 s{sT0}, s{sRB}, 7
    s_add_u32 s{sDb}, s{sDb}, s{sT0}
    s_mul_i32 s{sD2}, s{sG}, {112*896}
    s_lshl_b32 s{sT0}, s{sCB}, 7
    s_add_u32 s{sD2}, s{sD2}, s{sT0}
    s_lshl_b32 s{sT0}, s{sGM}, 6
    s_lshl_b32 s{sT1}, s{sGN}, 6
    v_lshl_add_u32 v24, v{vHH}, 9, v{vT3}
    v_xor_b32 v{vT2}, s{sT1}, v24
    v_xor_b32 v{vT2+1}, 64, v{vT2}
    v_xor_b32 v{vT3}, s{sT0}, v24
    v_xor_b32 v{vT3+1}, 64, v{vT3}
    s_lshl_b32 s{sT0}, s{sGM}, 10
    v_add_u32 v{vLM}, s{sT0}, v{vL16}
    v_xor_b32 v{vLM+1}, 0x400, v{vLM}
    s_mul_i32 s{sLb}, s{sCB}, 112
    s_mul_i32 s{sT0}, s{sG}, 28
    s_add_u32 s{sLb}, s{sLb}, s{sT0}
    s_lshl_b32 s{sLb}, s{sLb}, 11
    s_add_u32 s{sLb}, s{sLb}, {WS_U}
    s_lshr_b32 s{sT0}, s{sJ}, 3
    s_add_u32 s{sT0}, s{sT0}, 3
    s_lshl_b32 s{sT0}, s{sT0}, 13
    s_add_u32 s{sPU}, s{sT0}, s{sLb}
    s_lshl_b32 s{sL2}, s{sRB}, 16
    s_lshl_b32 s{sT0}, s{sG}, 14
    s_add_u32 s{sL2}, s{sL2}, s{sT0}
    s_add_u32 s{sL2}, s{sL2}, {WS_O}
    v_mul_u32_u24 v{vOUT}, 896, v{vJ}
    v_lshl_add_u32 v{vOUT}, v{vHH}, 4, v{vOUT}
    s_lshl_b32 s{sT0}, s{sRB}, 1
    s_add_u32 s{sT0}, s{sT0}, s{sGN}
    s_lshl_b32 s{sB2}, s{sT0}, 6
    s_mul_i32 s{sT0}, s{sT0}, {32*896}
    s_lshl_b32 s{sT1}, s{sCB}, 7
    s_add_u32 s{sT0}, s{sT0}, s{sT1}
    s_lshl_b32 s{sT1}, s{sGM}, 6
    s_add_u32 s{sOUT}, s{sT0}, s{sT1}
    v_lshrrev_b32 v{vPF2}, 2, v{vLANE}
    v_and_b32 v24, 3, v{vLANE}
    v_lshlrev_b32 v{vPF2}, 12, v{vPF2}
    v_lshl_add_u32 v{vPF2}, v24, 7, v{vPF2}
    s_mul_i32 s{sT0}, s{sA}, 112
    s_lshl_b32 s{sT1}, s{sFB}, 2
    s_add_u32 s{sT0}, s{sT0}, s{sT1}
    s_lshl_b32 s{sT2}, s{sGM}, 1
    s_add_u32 s{sT0}, s{sT0}, s{sT2}
    s_lshl_b32 s{sT0}, s{sT0}, 11
    s_add_u32 s{sUS}, s{sT0}, {WS_U}
    s_lshl_b32 s{sT0}, s{sA}, 7
    s_add_u32 s{sT0}, s{sT0}, s{sT1}
    s_add_u32 s{sT0}, s{sT0}, s{sG}
    s_lshl_b32 s{sT0}, s{sT0}, 3
    s_lshl_b32 s{sT0}, s{sT0}, {FS}
    s_add_u32 s{sFU}, s{sT0}, {FL_U}
    s_lshl_b32 s{sT0}, s{sCB}, 10
    s_mul_i32 s{sT1}, s{sG}, 224
    s_add_u32 s{sT0}, s{sT0}, s{sT1}
    s_lshl_b32 s{sT0}, s{sT0}, {FS}
    s_add_u32 s{sFUc}, s{sT0}, {FL_U}
    s_lshl_b32 s{sT0}, s{sRB}, 8
    s_lshl_b32 s{sT1}, s{sG}, 6
    s_add_u32 s{sT0}, s{sT0}, s{sT1}
    s_lshl_b32 s{sT0}, s{sT0}, {FS}
    s_add_u32 s{sFOc}, s{sT0}, {FL_O}
    """)
    for i in range(2, 6): a(f"v_add_u32 v{vTH+i}, 0x10000, v{vT1+i}")
    if OPT.ra or OPT.rb:
        a(f"""
        s_lshr_b32 s{sT0}, s{sJ}, 3
        s_mul_i32 s{sT0}, s{sT0}, {OPT.ra}
        s_mul_i32 s{sT1}, s{sXCD}, {OPT.rb}
        s_add_u32 s{sT0}, s{sT0}, s{sT1}
        s_mul_i32 s{sT1}, s{sT0}, 2341
        s_lshr_b32 s{sT1}, s{sT1}, 16
        s_mul_i32 s{sT1}, s{sT1}, 28
        s_sub_u32 s{sT0}, s{sT0}, s{sT1}
        s_mov_b32 s{sLb0}, s{sLb}
        s_add_u32 s{sLbE}, s{sLb}, {28*2048}
        s_mov_b32 s{sDb0}, s{sDb}
        s_add_u32 s{sDbE}, s{sDb}, {28*16*4096}
        s_lshl_b32 s{sT1}, s{sT0}, 11
        s_add_u32 s{sLb}, s{sLb}, s{sT1}
        s_lshl_b32 s{sT1}, s{sT0}, 16
        s_add_u32 s{sDb}, s{sDb}, s{sT1}
        """)
        assert all((x * 2341) >> 16 == x // 28 for x in range(200))
    if OPT.nou: a(f"v_mov_b32 v{vLM}, {OOB}\nv_mov_b32 v{vLM+1}, {OOB}")
    if OPT.now2: a(f"v_mov_b32 v{vDW2}, {OOB}")

L_HB2 = L_WKV
def p1_g(a):
    X, U = 128, 160
    htype = a.label("gh"); pfw = a.label("gpfw")
    a(f"s_sub_u32 s{sG}, s{sW}, 4")
    common_srds(a)
    pf1_addr(a)
    a(f"s_cmp_ge_u32 s{sCB}, 4\ns_cbranch_scc1 {htype}")
    a("s_barrier")
    rest_dma(a)
    stamp(a, 2)
    get_tag(a)
    g_setup1(a, lambda: (a("s_waitcnt vmcnt(0)"), lds_arrive(a, C_X, nowait=True), stamp(a, 3)))
    lds_wait(a, C_FL, 1)
    a(f"s_branch {pfw}")
    a(f"""
    {htype}:
    s_sub_u32 s{sT1}, s{sCB}, 4
    s_lshl_b32 s{sT0}, s{sRB}, 2
    s_add_u32 s{sT0}, s{sT0}, s{sT1}
    s_lshl_b32 s{sT1}, s{sT1}, 4
    s_lshl_b32 s{sT2}, s{sG}, 2
    s_add_u32 s{sT1}, s{sT1}, s{sT2}
    v_add_u32 v11, s{sT1}, v7
    v_and_b32 v13, 1, v5
    v_lshlrev_b32 v12, 13, v13
    v_lshl_add_u32 v12, v11, 7, v12
    v_lshl_add_u32 v12, v6, 4, v12
    v_bfe_u32 v11, v11, 1, 3
    v_xor_b32 v11, v11, v6
    v_mul_u32_u24 v14, {HB_STRIDE}, v7
    v_lshl_add_u32 v14, v11, 4, v14
    v_lshl_add_u32 v14, v13, 7, v14
    s_mul_i32 s{sT2}, s{sG}, {4*HB_STRIDE}
    s_add_u32 s{sT2}, s{sT2}, {L_HB2}
    v_add_u32 v14, s{sT2}, v14
    v_lshl_add_u32 v15, v{vHH}, 3, v8
    v_mul_u32_u24 v15, {HB_STRIDE}, v15
    v_add_u32 v15, v15, v9
    s_lshl_b32 s{sT2}, s{sG}, 8
    s_add_u32 s{sT2}, s{sT2}, {L_HB2}
    v_add_u32 v15, s{sT2}, v15
    s_lshl_b32 s{sT2}, s{sG}, 19
    s_lshl_b32 s{sT3}, s{sT0}, 11
    s_add_u32 s{sT2}, s{sT2}, s{sT3}
    s_add_u32 s{sT3}, s{sT2}, {128*2048}
    s_lshl_b32 s{sT4}, s{sG}, 7
    s_add_u32 s{sT4}, s{sT4}, s{sT0}
    s_lshl_b32 s{sT4}, s{sT4}, {3+FS}
    s_add_u32 s{sT4}, s{sT4}, {FL_H}
    v_mov_b32 v17, 0xffff0000
    s_mov_b32 vcc_lo, 0x00ff00ff
    s_mov_b32 vcc_hi, 0x00ff00ff
    """)
    for p in range(1):
        for i in range(4): a(f"v_mov_b32 v{X+16*p+12+i}, 0")
    S = [32, 40]
    for p in range(1): a(f"v_mov_b32 v{S[p]}, 0\nv_mov_b32 v{S[p]+1}, 0")
    a("s_barrier\ns_setprio 3")
    lds_wait(a, C_X1, 4)
    stamp(a, 2)
    for p in range(1):
        for i in range(3): a(f"ds_read_b128 {vr(X+16*p+4*i,4)}, v12 offset:{L_XT + 16384*i + 2048*p}")
        a(f"s_mov_b64 exec, vcc\nds_read_b128 {vr(X+16*p+12,4)}, v12 offset:{L_XT + 16384*3 + 2048*p}\ns_mov_b64 exec, -1")
    for p in range(1):
        for i in range(16):
            if i % 4 == 0: a(f"s_waitcnt lgkmcnt({3-i//4})")
            a(f"v_dot2c_f32_bf16 v{S[p]}, s{sONES}, v{X+16*p+i}")
            a(f"v_dot2c_f32_bf16 v{S[p]+1}, v{X+16*p+i}, v{X+16*p+i}")
    un = []
    for i in range(16): un += [f"v_lshlrev_b32 v{U+2*i}, 16, v{X+i}", f"v_and_b32 v{U+2*i+1}, v17, v{X+i}"]
    for x in un[:3]: a(x)
    un = un[3:]
    def both(txt):
        for line in txt.strip().split("\n"):
            p = 0; t_ = line.strip().format(s=S[p], q=S[p]+1, t=S[p]+2, r=S[p]+4, r2=S[p]+5, m=S[p]+6)
            a(t_)
            if t_.startswith(("v_sqrt", "v_rcp")) or (t_.startswith("v_add_f32_dpp") and f"v{S[0]+1}," in t_): a(un.pop(0))
    for mode in (QP1, QP2, RHM, RM):
        both("v_add_f32_dpp v{s}, v{s}, v{s} %s row_mask:0xf bank_mask:0xf\nv_add_f32_dpp v{q}, v{q}, v{q} %s row_mask:0xf bank_mask:0xf" % (mode, mode))
    rstd = """
    v_and_b32 v{t}, v17, v{t}
    v_add_f32 v{t}, %#x, v{t}
    v_cvt_pk_bf16_f32 v{t}, v{t}, v{t}
    v_and_b32 v{t}, v17, v{t}
    v_sqrt_f32 v{t}, v{t}
    v_cvt_pk_bf16_f32 v{t}, v{t}, v{t}
    v_and_b32 v{t}, v17, v{t}
    v_rcp_f32 v{%s}, v{t}
    """
    both("""
    v_mul_f32 v{s}, %s, v{s}
    v_mul_f32 v{q}, %s, v{q}
    v_fma_f32 v{q}, -v{s}, v{s}, v{q}
    v_max_f32 v{q}, 0, v{q}
    v_cvt_pk_bf16_f32 v{t}, v{s}, v{q}
    v_lshlrev_b32 v{m}, 16, v{t}
    """ % (f32(1/448), f32(1/448)))
    both(rstd % (EPS, "r"))
    both("""
    v_sub_f32 v{s}, v{s}, v{m}
    v_mul_f32 v{s}, v{s}, v{r}
    v_mul_f32 v{q}, v{q}, v{r}
    v_mul_f32 v{q}, v{q}, v{r}
    v_cvt_pk_bf16_f32 v{t}, v{s}, v{q}
    v_lshlrev_b32 v{s}, 16, v{t}
    v_fma_f32 v{m}, v{m}, v{r}, v{s}
    """)
    both(rstd % (EPS, "r2"))
    for x in un: a(x)
    both("v_mul_f32 v{m}, v{m}, v{r2}\nv_mul_f32 v{r}, v{r}, v{r2}")
    for p in range(1):
        for i in range(16):
            if i == 12: a("s_mov_b64 exec, vcc")
            u = U + 32 * p + 2 * i
            a(f"""
            v_pk_fma_f32 {vr(u,2)}, {vr(u,2)}, {vr(S[p]+4,2)}, {vr(S[p]+6,2)} op_sel_hi:[1,0,0] neg_lo:[0,0,1] neg_hi:[0,0,1]
            v_cvt_pk_bf16_f32 v{X+16*p+i}, v{u}, v{u+1}
            """)
            if i % 4 == 3: a(f"ds_write_b128 v14, {vr(X+16*p+i-3,4)} offset:{256*(i//4) + 16*HB_STRIDE*p}")
        a("s_mov_b64 exec, -1")
    stamp(a, 3)
    lds_arrive(a, C_H, nowait=True)
    lds_wait(a, C_H, 4)
    n = 0
    for p in range(1):
        for f in range(4):
            for x in range(2):
                if n == 15: a("s_waitcnt lgkmcnt(14)")
                a(f"ds_read_b64_tr_b16 {vr(U+16*p+4*f+2*x,2)}, v15 offset:{x*4*HB_STRIDE + f*64 + 16*HB_STRIDE*p}"); n += 1
    for p in range(1):
        for f in range(4):
            a(f"s_waitcnt lgkmcnt({6-2*f})")
            a(f"buffer_store_dwordx4 {vr(U+16*p+4*f,4)}, v{vL16}, {sr(R_WS,4)}, s{sT2 + (f>>1)} offen offset:{1024*(f&1) + 2048*p} sc1")
    lds_arrive(a, C_FL, nowait=True)
    stamp(a, 4)
    g_setup1(a)
    get_tag(a)
    set_flag(a, sT4)
    a("s_setprio 0")
    stamp(a, 5)
    lds_wait(a, C_FL, 4)
    lds_wait(a, C_ISS, 4)
    a(f"{pfw}:")

sK, sKF, sKP = 94, 95, 96
AQ, AO, AS, AP, AKV = 32, 64, 128, 160, 176
def att_setup(a):
    a(f"""
    s_add_u32 s{R_KV}, s{P_WS}, {WS_KV}
    s_addc_u32 s{R_KV+1}, s{P_WS+1}, 0
    s_add_u32 s{sT0}, s{sW}, 1
    s_lshl_b32 s{R_KV+2}, s{sT0}, 16
    s_mov_b32 s{R_KV+3}, 0x20000
    v_lshlrev_b32 v5, 7, v{vLANE}
    v_lshlrev_b32 v25, {3+FS}, v{vJ}
    s_lshr_b32 s{sKP}, s{sJ}, 1
    s_and_b32 s{sKP}, s{sKP}, 4
    s_add_u32 s{sKP}, s{sKP}, s{sCB}
    s_lshl_b32 s{sKP}, s{sKP}, 13
    s_lshl_b32 s{sT0}, s{sW}, 16
    s_add_u32 s{sKP}, s{sKP}, s{sT0}
    s_and_b32 s{sT0}, s{sJ}, 0x14
    s_cmp_lg_u32 s{sT0}, 0
    s_cselect_b32 s{sKP}, {OOB}, s{sKP}
    s_lshl_b32 s{sKF}, s{sW}, 8
    s_lshl_b32 s{sKF}, s{sKF}, {FS}
    s_add_u32 s{sKF}, s{sKF}, {FL_KV}
    """)
def kvload(a, buf):
    for j in range(4):
        a(f"buffer_load_dwordx4 {vr(AKV+16*buf+4*j,4)}, v{vL16}, {sr(R_KV,4)}, s{sK} offen offset:{1024*j} sc1")
    a(f"s_add_u32 s{sK}, s{sK}, 4096")
def first_kv(a):
    a(f"s_lshl_b32 s{sK}, s{sW}, 16")
    kvload(a, 0)
    a(f"buffer_load_dword v253, v5, {sr(R_KV,4)}, s{sKP} offen sc1")
    kvload(a, 1); kvload(a, 2)

def attention(a, done):
    Q, O, S, P, KV = AQ, AO, AS, AP, AKV
    NM = 20
    sIt, sRetry, sOS, sOF = sT1, sT3, 84, 85
    vMW, vRW, vMR, vRR = 8, 12, 15, 16
    go = a.label("att_go"); mloop = a.label("att_mloop"); loop = a.label("att_loop"); ok = a.label("att_ok"); havekv = a.label("att_havekv")
    a(f"s_mov_b32 s{sRetry}, {1 if OPT.anold else 0}")
    lds_wait(a, C_PRE, 4)
    stamp(a, 9)
    a(f"buffer_load_dwordx2 v[30:31], v25, {sr(R_WS,4)}, s{sKF} offen sc1")
    for i in range(1, 4):
        a(f"""
        s_add_u32 s{sT0}, s{sW}, {i}
        s_and_b32 s{sT0}, s{sT0}, 3
        s_lshl_b32 s{sT0}, s{sT0}, 11
        s_add_u32 s{sT0}, s{sT0}, {L_QS}
        v_add_u32 v{16+i}, s{sT0}, v{vL16}
        """)
    for i in range(4):
        a(f"""
        s_add_u32 s{sT0}, s{sW}, {i+1}
        s_and_b32 s{sT0}, s{sT0}, 3
        s_lshl_b32 s{sT2}, s{sT0}, 9
        s_add_u32 s{sT2}, s{sT2}, {L_MX + 128*i}
        v_lshl_add_u32 v{vMW+i}, v{vJ}, 2, s{sT2}
        s_mul_i32 s{sT2}, s{sT0}, 12288
        s_add_u32 s{sT2}, s{sT2}, {L_RED + 4096*(i%3)}
        v_add_u32 v{vRW+i if i < 3 else vRR}, s{sT2}, v{vL16}
        """)
    a(f"""
    v_subrev_u32 v{vMR}, 384, v{vMW+3}
    s_add_u32 s{sT0}, s{sW}, 3
    s_and_b32 s{sT2}, s{sT0}, 1
    s_lshl_b32 s{sOS}, s{sCB}, 1
    s_add_u32 s{sOS}, s{sOS}, s{sT2}
    s_lshl_b32 s{sOS}, s{sOS}, 12
    s_lshl_b32 s{sT2}, s{sRB}, 16
    s_add_u32 s{sOS}, s{sOS}, s{sT2}
    s_and_b32 s{sT2}, s{sT0}, 2
    s_lshl_b32 s{sT2}, s{sT2}, 9
    s_add_u32 s{sOS}, s{sOS}, s{sT2}
    s_add_u32 s{sOS}, s{sOS}, {WS_O}
    s_lshl_b32 s{sOF}, s{sRB}, 3
    s_add_u32 s{sOF}, s{sOF}, s{sCB}
    s_lshl_b32 s{sOF}, s{sOF}, 2
    s_add_u32 s{sOF}, s{sOF}, s{sW}
    s_lshl_b32 s{sOF}, s{sOF}, {3+FS}
    s_add_u32 s{sOF}, s{sOF}, {FL_O}
    s_mov_b32 s{sT4}, 0x71800000
    """)
    for r in range(12, 12 + OPT.zpre): a(f"v_mov_b32 v{O+r}, 0")
    a(f"s_waitcnt vmcnt(0)\nv_cmp_ne_u64 vcc, {sr(sTAG,2)}, v[30:31]\ns_cbranch_vccz {havekv}")
    poll(a, sKF, 32)
    a(f"{havekv}:")
    stamp(a, 10)
    first_kv(a)
    lds_wait(a, C_Q, 4)
    for i in range(1, 4):
        a(f"ds_read_b128 {vr(Q+8*i,4)}, v{16+i}\nds_read_b128 {vr(Q+8*i+4,4)}, v{16+i} offset:1024")
    for r in range(12 + OPT.zpre, 64): a(f"v_mov_b32 v{O+r}, 0")
    TMP = [S, S + 16, KV + 48, P]
    def scan_mf(kreg):
        for i in range(4):
            a(f"{MF} {vr(TMP[i],16)}, {vr(kreg,4)}, {vr(Q+8*i,4)}, 0")
            a(f"{MF} {vr(TMP[i],16)}, {vr(kreg+4,4)}, {vr(Q+8*i+4,4)}, {vr(TMP[i],16)}")
    a("s_waitcnt vmcnt(11) lgkmcnt(0)")
    stamp(a, 11)
    scan_mf(KV)
    a(f"s_nop 4\ns_mov_b64 exec, {sr(sHI,2)}")
    for i in range(4):
        t = TMP[i]
        a(f"v_max3_f32 v{NM+i}, v{t}, v{t+1}, v{t+2}")
        for j in range(3, 15, 2): a(f"v_max3_f32 v{NM+i}, v{t+j}, v{t+j+1}, v{NM+i}")
        a(f"""
        v_max_f32 v{NM+i}, v{t+15}, v{NM+i}
        v_cvt_pk_bf16_f32 v{Q+8*i+6}, -v{NM+i}, 0
        v_lshlrev_b32 v{NM+i}, 16, v{Q+8*i+6}
        """)
    a(f"{go}:")
    for i in range(4): a(f"ds_write_b32 v{vMW+i}, v{NM+i}")
    a("s_mov_b64 exec, -1")
    a(f"{MF} {vr(S,16)}, {vr(KV,4)}, {vr(Q,4)}, 0")
    a(f"{MF} {vr(S,16)}, {vr(KV+4,4)}, {vr(Q+4,4)}, {vr(S,16)}")
    a(f"s_add_u32 s{sT0}, s{sK}, 4096\nv_add_u32 v7, s{sT0}, v{vL16}")
    for r in range(8): a(f"v_mov_b32 v{KV+48+8+r}, 0")
    for r in range(8): a(f"v_mov_b32 v{P+8+r}, 0")
    a(f"v_mov_b32 v{S+30}, 0\nv_mov_b32 v{S+31}, 0")
    def smf(q, b, kb):
        d = vr(S + 16 * b, 16)
        return [f"{MF} {d}, {vr(KV+16*kb,4)}, {vr(Q+8*q,4)}, 0", f"{MF} {d}, {vr(KV+16*kb+4,4)}, {vr(Q+8*q+4,4)}, {d}"]
    def pv(q, b, kb):
        d = vr(O + 16 * q, 16)
        return [f"{MF} {d}, {vr(KV+16*kb+8,4)}, {vr(P+8*b,4)}, {d}", f"{MF} {d}, {vr(KV+16*kb+12,4)}, {vr(P+8*b+4,4)}, {d}"]
    def pk(b, i): return f"v_cvt_pk_bf16_f32 v{P+8*b+i}, v{S+16*b+2*i}, v{S+16*b+2*i+1}"
    def owrite(i): return ['s_nop 0'] * 4 if OPT.nocomb else [f"ds_write_b128 v{vRW+i}, {vr(O+16*i+4*g,4)} offset:{1024*g}" for g in range(4)]
    a(f"s_mov_b32 s{sIt}, {OPT.attit-1}\ns_waitcnt vmcnt(8)")
    if OPT.anold:
        a("s_waitcnt vmcnt(0)")
        for r in range(16): a(f"v_mov_b32 v{KV+48+r}, v{KV+r}")
    if OPT.ka: lds_wait(a, C_GO, 4, sleep=2)
    if OPT.adel: a(f's_sleep {OPT.adel}')
    stamp(a, 12)
    if OPT.prio_ld: a(f"s_setprio {OPT.prio_a}")
    def body(lastit):
        for n in range(16):
            T, q, b = n // 4, n % 4, n % 2
            if lastit and n == 14: lds_wait(a, C_R1D, 4)
            va = []
            for i in range(8):
                r = S + 16 * b + 2 * i
                va += [f"v_exp_f32 v{r}, v{r}", f"v_exp_f32 v{r+1}, v{r+1}", pk(b, i - 1) if i else pk(1 - b, 7)]
            s = smf((q + 1) % 4, 1 - b, ((n + 1) // 4) % 4)
            p = pv((q - 1) % 4, 1 - b, ((n - 1) // 4) % 4)
            pos = [[3, 9, 15, 21], [3, 7, 15, 19], [3, 7, 12, 19], [3, 8, 15, 20], [3, 7, 16, 21], [2, 6, 15, 19]][OPT.order if lastit or not (OPT.mix >> n) & 1 else OPT.order2]
            ins = {pos[0]: [s[0]], pos[1]: [s[1]], pos[2]: [p[0]], pos[3]: [p[1]]}
            if lastit and n == 15: ins = {pos[0]: [p[0]], pos[1]: [p[1]]}
            if q == 3 and not (lastit and T == 3):
                ins[1] = [f"s_waitcnt vmcnt({7 if not lastit or T == 0 else 4 if T == 1 else 0})"]
            if not lastit or T == 0:
                buf = (T - 1) % 4
                ins[OPT.ldpos] = [f"buffer_load_dwordx4 {vr(KV+16*buf+4*q,4)}, v{vL16}, {sr(R_KV,4)}, s{sK} offen offset:{1024*q} sc1"]
                if OPT.gld: ins[OPT.ldpos] = [f"global_load_dwordx4 {vr(KV+16*buf+4*q,4)}, v7, {sr(R_KV,2)} offset:{1024*q - (4096 if T % 2 == 0 else 0)} sc1"]
                if OPT.prio_ld:
                    ins[10] = [f"s_setprio {OPT.prio_ld}"]
                    ins[13] = [f"s_setprio {OPT.prio_a}"]
                if OPT.gld:
                    if q == 3 and T % 2: ins[14] = ["v_add_u32 v7, 0x2000, v7"]
                elif q == 3 and not OPT.hot & 16: ins[21 if OPT.ldpos > 13 else 14] = [f"s_add_u32 s{sK}, s{sK}, 4096"]
            if n == 15 and not lastit:
                ins[17] = [f"s_sub_u32 s{sIt}, s{sIt}, 1"]
                ins[22] = [f"s_cmp_lg_u32 s{sIt}, 0"]
            if lastit and n == 14:
                for g, x in enumerate(owrite(0)): ins.setdefault([10, 13, 17, 22][g], []).append(x)
            if lastit and n == 15:
                for g, x in enumerate(owrite(1)): ins.setdefault([8, 10, 13, 16][g], []).append(x)
                for g, x in enumerate(owrite(2)[:2]): ins.setdefault([20, 22][g], []).append(x)
            for i, x in enumerate(va):
                for y in ins.get(i, []):
                    if OPT.anold and y.startswith(("buffer_load", "global_load")): continue
                    if OPT.anow and y.startswith("s_waitcnt vmcnt"): continue
                    a(y)
                a(x)
    if OPT.unroll:
        for _ in range(3): body(False)
    elif OPT.attit > 1:
        a(".p2align 6")
        a(f"{loop}:")
        body(False)
        a(f"s_cbranch_scc1 {loop}")
    body(True)
    if OPT.prio_ld: a(f"s_setprio {OPT.prio_ld}")
    a(pk(1, 7))
    for x in owrite(2)[2:]: a(x)
    for x in pv(3, 1, 3): a(x)
    stamp(a, 13)
    a(f"""
    v_add_f32 v17, v{O+12}, v{O+28}
    v_add_f32 v17, v17, v{O+44}
    v_min3_f32 v18, v{O+12}, v{O+28}, v{O+44}
    s_mov_b32 s{sT0}, 0x21800000
    s_nop 7
    v_add_f32 v17, v17, v{O+60}
    v_min_f32 v18, v18, v{O+60}
    v_cmp_nlt_f32_e64 vcc, v17, s{sT4}
    v_cmp_ngt_f32_e64 s[86:87], v18, s{sT0}
    s_or_b64 vcc, vcc, s[86:87]
    s_and_b64 vcc, vcc, {sr(sHI,2)}
    s_cbranch_scc0 {ok}
    s_cmp_lg_u32 s{sRetry}, 0
    s_cbranch_scc1 {ok}
    s_mov_b32 s{sRetry}, 1
    s_waitcnt lgkmcnt(0)
    s_mov_b64 exec, {sr(sHI,2)}
    """)
    for i in range(4): a(f"v_mov_b32 v{Q+8*i+6}, 0\nv_mov_b32 v{Q+8*i+7}, 0")
    a(f"s_mov_b64 exec, -1\ns_lshl_b32 s{sK}, s{sW}, 16\ns_mov_b32 s{sIt}, 16")
    for r in range(64): a(f"v_mov_b32 v{O+r}, 0")
    for i in range(4): a(f"v_mov_b32 v{NM+i}, 0xff800000")
    a(f"""
    {mloop}:
    buffer_load_dwordx4 {vr(KV,4)}, v{vL16}, {sr(R_KV,4)}, s{sK} offen sc1
    buffer_load_dwordx4 {vr(KV+4,4)}, v{vL16}, {sr(R_KV,4)}, s{sK} offen offset:1024 sc1
    s_add_u32 s{sK}, s{sK}, 4096
    s_waitcnt vmcnt(0)
    """)
    scan_mf(KV)
    a("s_nop 11")
    for i in range(4):
        for j in range(8): a(f"v_max3_f32 v{NM+i}, v{TMP[i]+2*j}, v{TMP[i]+2*j+1}, v{NM+i}")
    a(f"""
    s_sub_u32 s{sIt}, s{sIt}, 1
    s_cmp_lg_u32 s{sIt}, 0
    s_cbranch_scc1 {mloop}
    """)
    first_kv(a)
    for i in range(4): a(f"v_mov_b32 v{S+i}, v{NM+i}")
    a("s_nop 1")
    for i in range(4): a(f"v_permlane32_swap_b32 v{S+i}, v{NM+i}")
    for i in range(4): a(f"v_max_f32 v{NM+i}, v{S+i}, v{NM+i}")
    a(f"s_mov_b64 exec, {sr(sHI,2)}")
    for i in range(4):
        a(f"""
        v_sub_f32 v{NM+i}, 0, v{NM+i}
        v_cvt_pk_bf16_f32 v17, v{NM+i}, 0
        v_lshlrev_b32 v18, 16, v17
        v_sub_f32 v18, v{NM+i}, v18
        v_cvt_pk_bf16_f32 v19, v18, 0
        v_lshl_or_b32 v{Q+8*i+6}, v19, 16, v17
        v_lshlrev_b32 v19, 16, v19
        v_sub_f32 v18, v18, v19
        v_cvt_pk_bf16_f32 v{Q+8*i+7}, v18, 0
        """)
    a(f"s_waitcnt vmcnt(11)\ns_branch {go}\n{ok}:")
    lds_arrive(a, C_ATT, nowait=True)
    if not OPT.nocomb: lds_wait(a, C_ATT, 4)
    stamp(a, 16)
    OW = O + 48
    if OPT.nocomb: a(f"v_mov_b32 v17, v{OW+12}\nv_mov_b32 v18, v{OW+12}\ns_nop 1\nv_permlane32_swap_b32 v17, v18\nv_rcp_f32 v18, v18\ns_branch nocomb")
    for i in range(4): a(f"ds_read_b32 v{NM+i}, v{vMR} offset:{128*i}")
    for i in range(3):
        for g in range(4):
            if i == 2 and g == 3: a("s_waitcnt lgkmcnt(11)")
            a(f"ds_read_b128 {vr(O+16*i+4*g,4)}, v{vRR} offset:{4096*i+1024*g}")
    a(f"""
    v_min3_f32 v17, v{NM}, v{NM+1}, v{NM+2}
    v_min_f32 v17, v17, v{NM+3}
    """)
    for i in (3, 0, 1, 2): a(f"v_sub_f32 v{NM+i}, v17, v{NM+i}")
    for i in (3, 0, 1, 2): a(f"v_exp_f32 v{NM+i}, v{NM+i}")
    for r in range(16): a(f"v_mul_f32 v{OW+r}, v{NM+3}, v{OW+r}")
    for i in range(3):
        a(f"s_waitcnt lgkmcnt({4*(2-i)})")
        R = [12] + [r for r in range(16) if r != 12] if i == 2 else range(16)
        for n, r in enumerate(R):
            a(f"v_fmac_f32 v{OW+r}, v{NM+i}, v{O+16*i+r}")
            if i == 2 and n == 0: a(f"v_mov_b32 v17, v{OW+12}\nv_mov_b32 v18, v{OW+12}")
            if i == 2 and n == 2: a("v_permlane32_swap_b32 v17, v18")
            if i == 2 and n == 3: a("v_rcp_f32 v18, v18")
    a("nocomb:")
    for h in range(2):
        for r in range(8 * h, 8 * h + 8): a(f"v_mul_f32 v{OW+r}, v18, v{OW+r}")
        for i in range(4 * h, 4 * h + 4): a(f"v_cvt_pk_bf16_f32 v{O+i}, v{OW+2*i}, v{OW+2*i+1}")
        if h: a(f"s_mov_b64 exec, {sr(sHI,2)}\nv_mov_b32 v{O+6}, 0\nv_mov_b32 v{O+7}, 0\ns_mov_b64 exec, -1")
        a(f"buffer_store_dwordx4 {vr(O+4*h,4)}, v{vL16}, {sr(R_WS,4)}, s{sOS} offen offset:{2048*h} sc1")
    stamp(a, 17)
    if OPT.odel: a(f's_sleep {OPT.odel}')
    set_flag(a, sOF)
    a(f"s_branch {done}")

class VM:
    def __init__(self): self.q = []
    def issue(self, tag):
        if OPT.dropw and tag[0] == 'd' and tag[1] >= OPT.dropw: return
        if OPT.d1 and tag[0] == 'd' and OPT.d1 <= tag[1] < 32: return
        self.q.append(tag)
    def wait(self, tags):
        idx = [i for i, t in enumerate(self.q) if t in tags]
        if not idx: return None
        n = len(self.q) - 1 - max(idx)
        assert n <= 63
        self.q = self.q[max(idx) + 1:]
        return n

ACC, AF, BF, DH, SG = 64, 32, 128, 8, 192
def reduce4(a, cnt, red, st0, st1, h0=None, h1=None, h2=None):
    base, stride, off = red
    stamp(a, st0)
    if h0: h0()
    for i in range(4):
        a(f"""
        s_xor_b32 s{sT0}, s{sG}, {i}
        s_mul_i32 s{sT1}, s{sT0}, {stride}
        s_add_u32 s{sT1}, s{sT1}, {base}
        v_add_u32 v{24+i}, s{sT1}, v{vL16}
        """)
    for i in range(1, 4):
        for g in range(4): a(f"ds_write_b128 v24, {vr(ACC+16*i+4*g,4)} offset:{off(4*(i-1)+g)}")
    lds_arrive(a, cnt, nowait=True)
    if h1: h1()
    lds_wait(a, cnt, 4)
    stamp(a, st1)
    for i in range(1, 4):
        for g in range(4): a(f"ds_read_b128 {vr(ACC+16*i+4*g,4)}, v{24+i} offset:{off(4*(i-1)+g)}")
    if h2: h2()
    for i in range(1, 4):
        a(f"s_waitcnt lgkmcnt({4*(3-i)})")
        for r in range(16): a(f"v_add_f32 v{ACC+r}, v{ACC+r}, v{ACC+16*i+r}")

GK = 2 * math.sqrt(2 / math.pi) * math.log2(math.e)
def gpath(a, done):
    global DH, SG
    DH = OPT.dh; SG = BF + 8 * DH
    assert SG + 8 * max(OPT.nsg, OPT.nsg2) <= 240
    vm = VM()
    N1, N2, N3 = 32, 60, 68
    nsg = OPT.nsg
    staged = {OPT.pre0 + i: i for i in range(nsg)}
    nsg2 = OPT.nsg2
    staged.update({N1 + OPT.pre + i: i for i in range(nsg2)})
    def wsrc(k, h):
        if k < N1: return vDW1, R_W1, sD, 8 * 3584
        if k < N2: return vDW2, R_W2, sDb, 8 * 4096
        return vDWO, R_WO, sD2, (4 if ((k - N2) & 1 and h) else 8) * 896
    rot = OPT.ra or OPT.rb
    def wadv(k, h):
        v, R, sd, inc = wsrc(k, h)
        t = f"s_add_u32 s{sd}, s{sd}, {inc}"
        if (OPT.hot & 1 and k < N1) or (OPT.hot & 2 and k >= N1): t = "s_nop 0"
        if rot and N1 <= k < N2 and h and k & 1: t += f"\ns_cmp_eq_u32 s{sd}, s{sDbE}\ns_cselect_b32 s{sd}, s{sDb0}, s{sd}"
        return t
    V2 = {vDW1: 249, vDW2: 250}
    def dma(k):
        out = []
        drop = (OPT.dropw and k >= OPT.dropw) or (OPT.d1 and OPT.d1 <= k < 32)
        if OPT.one and k < N2 and not state.get('plain'):
            v, R, sd, inc = wsrc(k, 0)
            adv = wadv(k, 1).replace(f", {inc}", f", {2*inc}", 1)
            return [(f"s_add_u32 m0, s{sRing}, {slotp(k)*8192}", f"buffer_load_dwordx4 v{v}, {sr(R,4)}, s{sd} offen lds", ""),
                    ("", f"buffer_load_dwordx4 v{V2[v]}, {sr(R,4)}, s{sd} offen offset:1024 lds", adv)]
        for h in range(2):
            v, R, sd, inc = wsrc(k, h)
            out.append((f"s_add_u32 m0, s{sRing}, {slotp(k)*8192 + h*1024}",
                        f"buffer_load_dwordx4 v{v}, {sr(R,4)}, s{sd} offen lds" if not drop else "s_nop 0", wadv(k, h)))
        return out
    state = {'nd': 0}
    def prefill(upto):
        while state['nd'] < upto:
            k = state['nd']; state['nd'] += 1
            if k in staged:
                for h in range(2):
                    v, R, sd, inc = wsrc(k, h)
                    a(f"buffer_load_dwordx4 {vr(SG+8*staged[k]+4*h,4)}, v{v}, {sr(R,4)}, s{sd} offen")
                    a(wadv(k, h)); vm.issue(('s', k))
            else:
                for m, l, adv in dma(k):
                    if m: a(m); a("s_nop 0")
                    a(l); a(adv); vm.issue(('d', k))
    def swrite(k):
        off = slotp(k) * 8192; v = vSW
        if off >= 65536: off -= 65536; v += 1
        return [f"ds_write_b128 v{v}, {vr(SG+8*staged[k]+4*h,4)} offset:{off+1024*h}" for h in range(2)]
    def deep(k): return OPT.tdeep and N1 - 4 <= k < N1
    def breg(k): return SG + 32 + 8 * (k - N1 + 4) if deep(k) else SG + 8 * (k - N2) if (k >= N2 and OPT.odeep) else BF + 8 * (k % DH)
    def ld(k):
        r = breg(k)
        v, sl = (vLN, sL) if k < N1 else (vLM, sLb) if k < N2 else (vLN, sL2)
        off = 2048 * (k & 1)
        o = [f"buffer_load_dwordx4 {vr(r,4)}, v{v}, {sr(R_WS,4)}, s{sl} offen offset:{off} sc1",
             f"buffer_load_dwordx4 {vr(r+4,4)}, v{v+1}, {sr(R_WS,4)}, s{sl} offen offset:{off} sc1"]
        adv = f"s_add_u32 s{sl}, s{sl}, 4096"
        if (OPT.hot & 4 and k < N1) or (OPT.hot & 8 and k >= N1): adv = "s_nop 0"
        if rot and N1 <= k < N2: adv += f"\ns_cmp_eq_u32 s{sl}, s{sLbE}\ns_cselect_b32 s{sl}, s{sLb0}, s{sl}"
        return o, (adv if k & 1 else None)
    def ld_now(k):
        o, adv = ld(k)
        for x in o: a(x); vm.issue(('l', k))
        if adv: a(adv)
    def tr(k, r=None):
        b0, xo = (vT1, 512) if k < N1 else (vT2, 1024) if k < N2 else (vT3, 1024)
        r = r or AF + 8 * (k % 2); off = slotp(k) * 8192
        if off >= 65536: off -= 65536; b0 += vTH - vT1
        return [f"ds_read_b64_tr_b16 {vr(r,2)}, v{b0} offset:{off}", f"ds_read_b64_tr_b16 {vr(r+2,2)}, v{b0} offset:{off+xo}",
                f"ds_read_b64_tr_b16 {vr(r+4,2)}, v{b0+1} offset:{off}", f"ds_read_b64_tr_b16 {vr(r+6,2)}, v{b0+1} offset:{off+xo}"]
    state['nl'] = 0
    XI = 8
    def b2load(): a(f"v_lshlrev_b32 v6, 1, v{vJ}\nbuffer_load_ushort v5, v6, {sr(R_B2,4)}, s{sB2} offen")
    def init2():
        a("v_lshlrev_b32 v5, 16, v5")
        for i in range(8): a(f"v_lshlrev_b32 v{XI+2*i}, 16, v{80+i}\nv_and_b32 v{XI+2*i+1}, 0xffff0000, v{80+i}")
        for r in range(16): a(f"v_add_f32 v{XI+r}, v5, v{XI+r}")
        a(f"v_min_u32 v251, 27, v{vLANE}\nv_lshlrev_b32 v251, {3+FS}, v251\nv_min_u32 v252, 7, v{vLANE}\nv_lshlrev_b32 v252, {3+FS}, v252")
    def red_addr(base, stride):
        for i in range(4):
            a(f"""
            s_xor_b32 s{sT0}, s{sG}, {i}
            s_mul_i32 s{sT1}, s{sT0}, {stride}
            s_add_u32 s{sT1}, s{sT1}, {base}
            v_add_u32 v{24+i}, s{sT1}, v{vL16}
            """)
    def free(kd, k):
        if kd >= OPT.ke and k < OPT.gatek and slotp(kd) < 8: return False
        prev = [j for j in range(kd) if slotp(j) == slotp(kd)]
        return not prev or prev[-1] <= k - 1
    def begin(lo, nld, pfi=None, after=None):
        state['nl'] = lo
        for k in range(lo, lo + nld):
            ld_now(k); state['nl'] += 1
            if pfi and k == lo + 1: a(pfi); vm.issue('pf')
        if after: after()
        n = vm.wait({('d', lo)})
        if n is not None: a(f"s_waitcnt vmcnt({n})")
        for x in tr(lo): a(x)
    def run(lo, hi, last, dlimit, llimit, first=None, hooks={}, tail=None):
        dh = OPT.dh
        for k in range(lo, hi):
            need = {('l', k)}
            if k + 1 < last: need.add(('d', k + 1))
            if tail and k + 1 == hi: need |= {('d', j) for j in tail}
            if k + 3 in staged: need.add(('s', k + 3))
            need |= hooks.get(('need', k), set())
            n = vm.wait(need)
            a(f"s_waitcnt vmcnt({n}) lgkmcnt(0)" if n is not None else "s_waitcnt lgkmcnt(0)")
            if k in hooks: hooks[k]()
            if OPT.fine and k % 4 == 0 and OPT.stamps == 1 and 0 <= k // 4 - OPT.fine0 < 15: stamp(a, 48 + k // 4 - OPT.fine0)
            l = AF + 8 * (k % 2); d = breg(k)
            lds_is_a = not (N1 <= k < N2)
            mf = []
            for i in range(4):
                mi, ni = i >> 1, i & 1
                A, B = (vr(l + 4 * mi, 4), vr(d + 4 * ni, 4)) if lds_is_a else (vr(d + 4 * mi, 4), vr(l + 4 * ni, 4))
                c = "0" if k == first and i else vr(XI, 16) if k == N1 else vr(ACC + 16 * i, 16)
                mf.append(f"{MF} {vr(ACC+16*i,16)}, {A}, {B}, {c}" if not OPT.nogm else "s_nop 0")
            t = tr(k + 1) if k + 1 < last else []
            t2 = []
            if tail and k + 1 == hi:
                assert state['nd'] > max(tail)
                tt = sum((tr(j, r) for j, r in tail.items()), []); t, t2 = tt[:8], tt[8:]
            sw = swrite(k + 3) if k + 3 in staged else []
            assert not sw or free(k + 3, k)
            kd = state['nd']; dm = []
            if kd < dlimit and kd <= k + (OPT.lw if k < N1 else OPT.lw2) and free(kd, k) and kd not in staged:
                assert kd >= k + 2
                dm = dma(kd); state['nd'] += 1
            lo_, adv = ([], None)
            kl = state['nl']
            if kl < llimit and (kl <= k + dh - 1 or deep(kl) or (kl >= N2 and OPT.odeep)): lo_, adv = ld(kl); state['nl'] += 1
            if OPT.spread == 0 or (OPT.spread == 2 and k >= N1):
                a(mf[0])
                for x in t: a(x)
                if dm: a(dm[0][0])
                a(mf[1])
                if lo_: a(lo_[0]); vm.issue(('l', kl))
                if lo_: a(lo_[1]); vm.issue(('l', kl))
                if adv: a(adv)
                if dm: a(dm[0][1]); vm.issue(('d', kd)); a(dm[0][2]); a(dm[1][0])
                a(mf[2])
                if dm: a(dm[1][1]); vm.issue(('d', kd)); a(dm[1][2])
                for x in sw: a(x)
                if t2: a('s_waitcnt lgkmcnt(4)')
                for x in t2: a(x)
                a(mf[3])
            else:
                a(mf[0])
                for x in t: a(x)
                if lo_: a(lo_[0]); vm.issue(('l', kl))
                a(mf[1])
                if lo_: a(lo_[1]); vm.issue(('l', kl))
                if adv: a(adv)
                if dm: a(dm[0][0])
                a(mf[2])
                if dm: a(dm[0][1]); vm.issue(('d', kd)); a(dm[0][2]); a(dm[1][0])
                for x in sw: a(x)
                if t2: a('s_waitcnt lgkmcnt(4)')
                for x in t2: a(x)
                a(mf[3])
                if dm: a(dm[1][1]); vm.issue(('d', kd)); a(dm[1][2])
            kd = state['nd']
            if kd < dlimit and kd <= k + (OPT.lw if k < N1 else OPT.lw2) and free(kd, k) and kd not in staged: prefill(kd + 1)
            kl = state['nl']
            if kl < llimit and (kl <= k + dh - 1 or deep(kl) or (kl >= N2 and OPT.odeep)): ld_now(kl); state['nl'] += 1
    def tail_reduce(tail, cnt, red, st0, st1, h0=None, h1=None, h2=None, lazy=(), pk=False):
        base, stride, off = red
        while state['nl'] <= max(tail): ld_now(state['nl']); state['nl'] += 1
        a(f"s_setprio {OPT.prio_t}")
        if pk: red_addr(base, stride)
        def wr(i): return [f"ds_write_b128 v24, {vr(ACC+16*i+4*g,4)} offset:{off(4*(i-1)+g)}" for g in range(4)]
        prev = None; L = len(tail); lazy = list(lazy)
        two = L > 4 and OPT.two1
        for i in ((1, 3, 0) if two else (1, 2, 3, 0)):
            W = wr(prev) if prev else []
            if two and i == 3: W = wr(1) + wr(2)[:3]
            if two and i == 0: W = wr(2)[3:] + wr(3)
            for n, (k, l) in enumerate(tail.items()):
                if i == 1:
                    need = {('l', k)}
                    if lazy: need.add(('d', lazy[0]))
                    w = vm.wait(need)
                    lg = "lgkmcnt(0)" if (n == 0 or n == L - 1) else "lgkmcnt(4)" if L > 4 and n >= 2 else ""
                    if L == 4 and n: lg = ""
                    x = (f"vmcnt({w}) " if w is not None else "") + lg
                    if x: a("s_waitcnt " + x)
                d = breg(k); mi, ni = i >> 1, i & 1
                A, B = (vr(l + 4 * mi, 4), vr(d + 4 * ni, 4)) if not (N1 <= k < N2) else (vr(d + 4 * mi, 4), vr(l + 4 * ni, 4))
                a(f"{MF} {vr(ACC+16*i,16)}, {A}, {B}, {vr(ACC+16*i,16)}")
                if i == 1 and two: a(f"{MF} {vr(ACC+32,16)}, {vr(l+4,4)}, {vr(d,4)}, {vr(ACC+32,16)}")
                if i == 1 and lazy:
                    j = lazy.pop(0)
                    for x in tr(j, tail[j]): a(x)
                if L == 4:
                    if W and n == 1: a("s_nop 9"); a(W[0]); a(W[1])
                    if W and n == 2: a(W[2]); a(W[3])
                    if i == 0 and n == 2: lds_arrive(a, cnt, nowait=True)
                elif two:
                    if i == 3:
                        if n == 1: a("s_nop 8")
                        if n >= 1: a(W[n - 1])
                    if i == 0:
                        if n == 1: a("s_nop 8")
                        if n <= 4: a(W[n])
                        if n == 4: lds_arrive(a, cnt, nowait=True)
                else:
                    if W and n == 1: a("s_nop 9")
                    if W and 1 <= n <= 4: a(W[n - 1])
                    if i == 0 and n == 4: lds_arrive(a, cnt, nowait=True)
            if i == 1 and h0: h0()
            prev = i
        a(f"s_setprio {OPT.prio_e}")
        stamp(a, st0)
        if h1: h1()
        lds_wait(a, cnt, 4)
        stamp(a, st1)
        for i in range(1, 4):
            for g in range(4): a(f"ds_read_b128 {vr(ACC+16*i+4*g,4)}, v{24+i} offset:{off(4*(i-1)+g)}")
        if h2: h2()
        for i in range(1, 4):
            a(f"s_waitcnt lgkmcnt({4*(3-i)})")
            if pk:
                for r in range(0, 16, 2): a(f"v_pk_add_f32 {vr(ACC+r,2)}, {vr(ACC+r,2)}, {vr(ACC+16*i+r,2)}")
            else:
                for r in range(16): a(f"v_add_f32 v{ACC+r}, v{ACC+r}, v{ACC+16*i+r}")
    def flagload(soff, n):
        vo = {32: 28, 28: 251, 8: 252}[n]
        if n == 32: a(f"v_min_u32 v28, {n-1}, v{vLANE}\nv_lshlrev_b32 v28, {3+FS}, v28")
        a(f"buffer_load_dwordx2 v[30:31], v{vo}, {sr(R_WS,4)}, s{soff} offen sc1"); vm.issue('fl')
    def flagcheck(okl, pr=0):
        a(f"s_setprio 3\nv_cmp_ne_u64 vcc, {sr(sTAG,2)}, v[30:31]\ns_setprio {pr}\ns_cbranch_vccz {okl}")
    def fill_poll(upA, upB, soff, n, mid=None):
        prefill(upA)
        flagload(soff, n)
        prefill(upB)
        if mid: mid()
        w = vm.wait({'fl'})
        a(f"s_waitcnt vmcnt({w})")
        okl = a.label("flok")
        flagcheck(okl)
        poll(a, soff, n)
        a(f"{okl}:")
    nog1 = a.label("nog1"); join = a.label("gjoin")
    g_xread(a)
    a(f"s_cmp_eq_u32 s{sHasG1}, 0\ns_cbranch_scc1 {nog1}")
    a(f"s_setprio {OPT.prio_g}")
    stamp(a, 8)
    if OPT.nodma: a(f"s_mov_b32 s{R_W1+2}, 0")
    a(f"v_add_u32 v249, {8*3584-1024}, v{vDW1}\nv_add_u32 v250, {8*4096-1024}, v{vDW2}")
    a(f"v_lshlrev_b32 v7, 3, v{vHH}")
    for g in range(4): a(f"buffer_load_dwordx2 {vr(88+2*g,2)}, v7, {sr(R_B1,4)}, s{sB1o} offen offset:{16*g}")
    for g in range(4): vm.issue('b')
    prefill(OPT.a1)
    lds_arrive(a, C_PRE, nowait=True)
    stamp(a, 9)
    fill_poll(OPT.a1, OPT.b1, sFH, 32, lambda: (g_setup2(a), b2load(), vm.issue('b2')))
    stamp(a, 10)
    def init1():
        for i in range(8): a(f"v_lshlrev_b32 v{ACC+2*i}, 16, v{88+i}\nv_and_b32 v{ACC+2*i+1}, 0xffff0000, v{88+i}")
        red_addr(L_RED, 12288)
        a(f"v_mov_b32 v7, {f32(-GK)}")
        w = vm.wait({'b2'}); a(f"s_waitcnt vmcnt({w}) lgkmcnt(0)")
        init2()
    def cpf(sid, val, saddr):
        sk = a.label("cpf")
        a(f"s_cmp_lg_u32 s{sid}, {val}\ns_cbranch_scc1 {sk}\nbuffer_load_dword v253, v{vPF}, {sr(R_WS,4)}, s{saddr} offen sc1\n{sk}:")
    def mkhooks(hl):
        d = {}
        for k, f in hl: d.setdefault(k, []).append(f)
        return {k: (lambda fs=fs: [f() for f in fs]) for k, fs in d.items()}
    a('s_setprio 3')
    begin(0, OPT.nl0, None, init1)
    a(f's_setprio {OPT.prio_g}')
    hl = [(0, lambda: stamp(a, 11)), (16, lambda: stamp(a, 12)), (OPT.gatek, lambda: (a('s_setprio 3'), lds_wait(a, C_Q, 4), a(f's_setprio {OPT.prio_g}')))]
    if OPT.kt: hl.append((N1 - 4 - OPT.kt, lambda: a(f's_setprio {OPT.prio_t}')))
    if OPT.ka: hl.append((OPT.ka, lambda: lds_arrive(a, C_GO, nowait=True)))
    if OPT.kp: hl.append((OPT.kp, lambda: a(f's_setprio {OPT.prio_g1b}')))
    for b in range(2, 8): hl.append((max(0, 4 * b - OPT.pfd), lambda b=b: cpf(sSH1, b, sPH)))
    for i, k in enumerate(range(OPT.b1, OPT.pre0 + nsg)): hl.append((i, lambda k=k: prefill(k + 1)))
    T1 = {N1 - 4 + i: SG + 8 * i for i in range(4)}
    assert OPT.e2 <= OPT.pre
    run(0, N1 - 4, N1, N1, N1, first=0, hooks=mkhooks(hl), tail=T1)
    tail_reduce(T1, C_R1, (L_RED, 12288, lambda i: 1024 * i), 13, 16,
            lambda: prefill(N1 + OPT.e0), lambda: prefill(N1 + OPT.e1), lambda: prefill(N1 + OPT.e2))
    lds_arrive(a, C_R1D, nowait=True)
    k = 2 * math.sqrt(2 / math.pi) * math.log2(math.e)
    a(f"s_mov_b32 s{sT0}, {f32(-k*0.044715)}")
    T = ACC + 16
    for h in range(2):
        R = range(8 * h, 8 * h + 8)
        for r in R: a(f"v_mul_f32 v{T+r}, v{ACC+r}, v{ACC+r}")
        for r in R: a(f"v_fma_f32 v{T+r}, v{T+r}, s{sT0}, v7")
        for r in R: a(f"v_mul_f32 v{T+r}, v{T+r}, v{ACC+r}")
        for r in R: a(f"v_exp_f32 v{T+r}, v{T+r}")
        for r in R: a(f"v_add_f32 v{T+r}, 1.0, v{T+r}")
        for r in R: a(f"v_rcp_f32 v{T+r}, v{T+r}")
        for r in R: a(f"v_mul_f32 v{T+r}, v{T+r}, v{ACC+r}")
        for i in range(4 * h, 4 * h + 4): a(f"v_cvt_pk_bf16_f32 v{T+16+i}, v{T+2*i}, v{T+2*i+1}")
        a(f"buffer_store_dwordx4 {vr(T+16+4*h,4)}, v{vLN}, {sr(R_WS,4)}, s{sUS} offen offset:{2048*h} sc1")
    stamp(a, 17)
    if OPT.gdel: a(f's_sleep {OPT.gdel}')
    if not OPT.flate: set_flag(a, sFU)
    stamp(a, 27)
    a(f"s_branch {join}\n{nog1}:")
    if OPT.gst:
        a("s_setprio 3")
        stats_code(a, 6, 7, sG, SX=128, T=36)
        a("s_setprio 0")
    lds_arrive(a, C_R1D, nowait=True)
    lds_arrive(a, C_GO, nowait=True)
    lds_arrive(a, C_PRE, nowait=True)
    g_setup2(a)
    b2load()
    a("s_waitcnt vmcnt(0) lgkmcnt(0)")
    init2()
    a(f"""
    s_lshr_b32 s{sT0}, s{sJ}, 3
    s_lshl_b32 s{sT0}, s{sT0}, 1
    s_and_b32 s{sT1}, s{sCB}, 1
    s_add_u32 s{sT0}, s{sT0}, s{sT1}
    s_sub_u32 s{sT0}, s{sT0}, 1
    s_cmp_eq_u32 s{sJ}, 6
    s_cbranch_scc1 engdone
    s_mul_i32 s{sT1}, s{sG}, 28
    s_add_u32 s{sT1}, s{sT1}, s{sT0}
    s_lshl_b32 s{sT1}, s{sT1}, 16
    s_lshl_b32 s{sT2}, s{sXCD}, 9
    s_add_u32 s{sT1}, s{sT1}, s{sT2}
    s_lshl_b32 s{sT2}, s{sT0}, 2
    s_add_u32 s{sT2}, s{sT2}, s{sG}
    s_lshl_b32 s{sT2}, s{sT2}, 13
    s_add_u32 s{sPFW}, s{sPFW}, {OPT.npf0*56*3584}
    """)
    if OPT.engw: lds_wait(a, C_X, 4, sleep=1)
    for i in range(10 - OPT.npf0 if OPT.eng & 1 else 0):
        a(f"s_waitcnt vmcnt({OPT.engd})\nbuffer_load_dword v{249+i%2}, v{vPF1}, {sr(R_W1,4)}, s{sPFW} offen\ns_add_u32 s{sPFW}, s{sPFW}, {56*3584}")
    stamp(a, 28)
    for i in range(4 if OPT.eng & 2 else 0):
        a(f"s_waitcnt vmcnt({OPT.engd})\nbuffer_load_dword v{249+i%2}, v{vPF2}, {sr(R_W2,4)}, s{sT1} offen\ns_add_u32 s{sT1}, s{sT1}, {7*16*4096}")
    stamp(a, 29)
    a(f"""
    s_cmp_lg_u32 s{sCB}, 7
    s_cbranch_scc1 engdone
    s_lshr_b32 s{sT2}, s{sJ}, 3
    s_lshl_b32 s{sT2}, s{sT2}, 2
    s_add_u32 s{sT2}, s{sT2}, s{sG}
    s_lshl_b32 s{sT2}, s{sT2}, 13
    """)
    for i in range(4 if OPT.eng & 4 else 0):
        a(f"s_waitcnt vmcnt({OPT.engd})\nbuffer_load_dword v{249+i%2}, v{vPF}, {sr(R_WO,4)}, s{sT2} offen\ns_add_u32 s{sT2}, s{sT2}, {16*8192}")
    stamp(a, 30)
    a(f"s_branch epw\nengdone:\ns_waitcnt vmcnt(0)")
    a("s_setprio 3")
    a(f"v_add_u32 v249, {8*3584-1024}, v{vDW1}\nv_add_u32 v250, {8*4096-1024}, v{vDW2}")
    lds_wait(a, C_Q, 4)
    state['nd'] = N1
    prefill(N1 + OPT.e2)
    a(f"{join}:")
    a(f"s_setprio {OPT.prio_b}")
    vm.q = [('d', k) for k in range(N1, N1 + OPT.e2) for h in range(2)]
    prefill(N1 + OPT.a2)
    if OPT.flate:
        a(f's_cmp_eq_u32 s{sHasG1}, 0\ns_cbranch_scc1 nfl\ns_sleep {OPT.flate}'); set_flag(a, sFU); a('nfl:')
    stamp(a, 18)
    fill_poll(N1 + OPT.a2, N1 + OPT.b2, sFUc, 28)
    stamp(a, 19)
    begin(N1, OPT.nl0)
    a(f"s_setprio {OPT.prio_g2}\ns_lshr_b32 s{sSH1}, s{sJ}, 3")
    assert not OPT.odeep or (SG + 64 <= 240 and N1 + OPT.pre + nsg2 - 3 <= N2 - OPT.ock)
    KC = N2 - OPT.ock
    hl = [(N1, lambda: stamp(a, 20)), (N1 + 14, lambda: stamp(a, 21)), (KC - 3, lambda: flagload(sFOc, 8))]
    for b in range(3, 7): hl.append((N1 + max(0, 4 * b - OPT.pfd), lambda b=b: cpf(sSH1, b - 3, sPU)))
    for i, k in enumerate(range(N1 + OPT.b2, N1 + OPT.pre + nsg2)): hl.append((N1 + i, lambda k=k: prefill(k + 1)))
    run(N1, KC, N2, N3, N2, first=N1, hooks=mkhooks(hl))
    w = vm.wait({'fl'})
    if w is not None: a(f"s_waitcnt vmcnt({w})")
    ordy = a.label("ordy"); red2 = a.label("red2")
    flagcheck(ordy)
    sv = (list(vm.q), dict(state))
    assert OPT.odeep and DH >= 4
    R8 = [8, 16] + [BF + 8 * i for i in range(4)] + [AF, AF + 8]
    T3 = {N2 + i: R8[i] for i in range(8)}
    T3a = {k: T3[k] for k in (N2, N2 + 1)}
    run(KC, N2, N3, N3, N2, tail=T3a)
    prefill(N3)
    stamp(a, 22)
    poll(a, sFOc, 8); vm.q = []
    stamp(a, 23)
    a(f"s_setprio {OPT.prio_e}")
    for k in range(N2, N3): ld_now(k)
    qn = list(vm.q)
    a(f"s_branch {red2}\n{ordy}:")
    vm.q = sv[0]; state.update(sv[1])
    run(KC, N2, N3, N3, N3, tail=T3a)
    prefill(N3)
    while state['nl'] < N3: ld_now(state['nl']); state['nl'] += 1
    w = vm.wait({('d', k) for k in range(N2, N3)})
    if w is not None: a(f"s_waitcnt vmcnt({w})")
    assert all(t[0] == 'l' for t in qn + vm.q), (qn, vm.q)
    if len(qn) > len(vm.q): vm.q = qn
    a(f"{red2}:")
    stamp(a, 24)
    tail_reduce(T3, C_R2, (L_RING, 2048, lambda i: (i >> 1) * 8192 + (i & 1) * 1024), 25, 26, lazy=range(N2 + 2, N3), pk=True)
    for i in range(8): a(f"v_cvt_pk_bf16_f32 v{ACC+16+i}, v{ACC+2*i}, v{ACC+2*i+1}")
    a(f"""
    s_nop 1
    v_permlane32_swap_b32 v{ACC+16}, v{ACC+18}
    v_permlane32_swap_b32 v{ACC+17}, v{ACC+19}
    v_permlane32_swap_b32 v{ACC+20}, v{ACC+22}
    v_permlane32_swap_b32 v{ACC+21}, v{ACC+23}
    buffer_store_dwordx4 {vr(ACC+16,4)}, v{vOUT}, {sr(R_OUT,4)}, s{sOUT} offen
    buffer_store_dwordx4 {vr(ACC+20,4)}, v{vOUT}, {sr(R_OUT,4)}, s{sOUT} offen offset:32
    s_branch {done}
    epw:
    s_lshl_b32 s{sT0}, s{sG}, 8
    s_add_u32 s{sT0}, s{sT0}, s2
    s_cmp_lg_u32 s{sT0}, 56
    s_cbranch_scc1 {done}
    """)
    lds_wait(a, C_ATT, 4, sleep=8)
    for i in range(4):
        a(f"s_mov_b32 s{sT0}, {FL_O + (2048*i << FS)}")
        poll(a, sT0, 64, sh=5)
    a(f"s_mov_b32 s{sT0}, {WS_EPOCH}")
    set_flag(a, sT0)

def kend(a, e):
    a(f"{e}:")
    if OPT.stamps:
        stamp(a, 14); a("s_waitcnt vmcnt(0)"); stamp(a, 15)
        a(f"""
        s_lshl_b32 s100, s2, 3
        s_add_u32 s100, s100, s{sW}
        s_lshl_b32 s100, s100, 8
        s_add_u32 s100, s100, {WS_STAMP}
        v_lshlrev_b32 v254, 2, v{vLANE}
        buffer_store_dword v255, v254, {sr(R_WS,4)}, s100 offen
        """)
    if OPT.amp >= 0:
        if OPT.amp == 14: stamp(a, 14)
        a(f"""
        s_cmp_ge_u32 s{sW}, 4
        s_cbranch_scc{0 if OPT.ampg else 1} {e}x
        s_nop 4
        v_readlane_b32 s16, v255, 0
        v_readlane_b32 s17, v255, 1
        s_nop 4
        s_cmp_eq_u32 s17, 0
        s_cbranch_scc1 {e}x
        s_sub_u32 s18, s17, s16
        s_min_u32 s18, s18, 4000
        s_mul_i32 s18, s18, 5
        s_add_u32 s18, s18, 4000
        ampl:
        s_memrealtime s[20:21]
        s_waitcnt lgkmcnt(0)
        s_sub_u32 s20, s20, s16
        s_cmp_lt_u32 s20, s18
        s_cbranch_scc1 ampl
        """)
    if OPT.double:
        a(f"""
        s_waitcnt vmcnt(0)
        s_memrealtime s[16:17]
        s_waitcnt lgkmcnt(0)
        s_sub_u32 s18, s16, s100
        s_min_u32 s18, s18, 20000
        dbl:
        s_memrealtime s[20:21]
        s_waitcnt lgkmcnt(0)
        s_sub_u32 s20, s20, s16
        s_cmp_lt_u32 s20, s18
        s_cbranch_scc1 dbl
        """)
    a(f"{e}x:\ns_endpgm\ncode_end:")

DOC = '''; ---------------------------------------------------------------------------------------------
; Hand-offs between workgroups (h, K/V, u, o) go through d_ws with sc1 stores, a drained per-wave flag
; and sc1 loads.  Flags carry a 64-bit tag derived from an epoch word in d_ws that every launch advances.
; Softmax: each wave shifts by a score maximum of its first key tile; the row sums are range-checked and
; ---------------------------------------------------------------------------------------------
'''
def build():
    a = Asm()
    n = NAME + "_kernel"
    a('.amdgcn_target "amdgcn-amd-amdhsa--gfx950"\n.text')
    a(f".globl {n}\n.p2align 8\n.type {n},@function\n{n}:")
    e = "fin"
    prologue(a, e)
    p1_a(a); attention(a, e)
    a("p1g:"); p1_g(a); gpath(a, e)
    kend(a, e)
    if OPT.nogv:
        i0 = a.L.index("p1g:")
        i1 = [i for i, l in enumerate(a.L) if l.startswith("gpfw")][0]
        a.L = [("s_nop 0" if (i > i1 and l.startswith("buffer_load_dwordx4")) else l) for i, l in enumerate(a.L)]
    check(a.L)
    head = open(f"refhead.txt").read().split("; Override")[0]
    ll = f"; @launch grid=(256,1,1) block=(512,1,1) lds={LDS_TOTAL}\n"
    desc = f""".section .rodata,"a"
.p2align 6
.amdhsa_kernel {n}
  .amdhsa_next_free_vgpr 256
  .amdhsa_next_free_sgpr 102
  .amdhsa_accum_offset 256
  .amdhsa_group_segment_fixed_size 0
  .amdhsa_kernarg_size 104
  .amdhsa_user_sgpr_count 2
  .amdhsa_user_sgpr_kernarg_segment_ptr 1
  .amdhsa_system_sgpr_workgroup_id_x 1
  .amdhsa_float_denorm_mode_32 3
.end_amdhsa_kernel
"""
    return head + DOC + ll + a.text() + desc

if __name__ == "__main__":
    args = []
    for x in sys.argv[1:]:
        if x.startswith("--"):
            k, _, v = x[2:].partition("=")
            if k == "FS": FS = int(v)
            else: setattr(OPT, k, int(v) if v else True)
        else: args.append(x)
    assert all((t * 37) >> 8 == t // 7 for t in range(56))
    open(args[0] if args else f"cdna_kernels/{NAME}.s", "w").write(build())
```
